```python
import torch

def _softmax(x, axis=-1):
    return torch.softmax(x, dim=axis)
def _gelu(x):
    return torch.nn.functional.gelu(x, approximate="tanh")
def _silu(x):
    return torch.nn.functional.silu(x)
def _sigmoid(x):
    return torch.sigmoid(x)
def _layernorm(x, axis=-1, eps=1e-5):
    m = x.mean(dim=axis, keepdim=True)
    v = x.var(dim=axis, keepdim=True, unbiased=False)
    return (x - m) / torch.sqrt(v + eps)
def _scatter_add(tgt, idx, src, axis=0):
    return tgt.clone().index_add_(axis, idx, src)
def _segment_sum(src, seg, n):
    out = torch.zeros((n,) + src.shape[1:], dtype=src.dtype)
    return out.index_add_(0, seg, src)
def _pad(x, pw):
    flat = tuple(v for pair in reversed(pw) for v in pair)
    return torch.nn.functional.pad(x, flat)

kernel_name = 'interleave_layers__linear_kernel_hedgehog__geglu_ffn__prompt'

def setup_inputs():

    _w = (lambda a: (lambda t: t.to(torch.bfloat16) if t.is_floating_point() else t)(torch.as_tensor(a)))
    def _A_setup():
        B, S, D, H = 1, 2048, 448, 16
        Dh = D // H
        return {
            "x": _w((lambda *s: torch.randn(*s, dtype=torch.bfloat16) * 0.05)(B, S, D)),
            "wqkv": _w((lambda *s: torch.randn(*s, dtype=torch.bfloat16) * 0.2)(D, 3 * D)),
            "w_phi": _w((lambda *s: torch.randn(*s, dtype=torch.bfloat16) * 0.2)(H, Dh, Dh) * (Dh ** -0.5)),
            "wo": _w((lambda *s: torch.randn(*s, dtype=torch.bfloat16) * 0.05)(D, D)),
        }
    _A_in = _A_setup()

    def _B_setup():
        B, S, D, F = 1, 2048, 448, 1792
        return {
            "x": _w((lambda *s: torch.randn(*s, dtype=torch.bfloat16) * 0.05)(B, S, D)),
            "w_gate": _w((lambda *s: torch.randn(*s, dtype=torch.bfloat16) * 0.05)(D, F)),
            "w_up": _w((lambda *s: torch.randn(*s, dtype=torch.bfloat16) * 0.05)(D, F)),
            "w_down": _w((lambda *s: torch.randn(*s, dtype=torch.bfloat16) * 0.05)(F, D)),
        }
    _B_in = _B_setup()

    return {
        "A_x": _A_in["x"],
        "A_wqkv": _A_in["wqkv"],
        "A_w_phi": _A_in["w_phi"],
        "A_wo": _A_in["wo"],
        "B_x": _B_in["x"],
        "B_w_gate": _B_in["w_gate"],
        "B_w_up": _B_in["w_up"],
        "B_w_down": _B_in["w_down"],
    }

def reference(A_x, A_wqkv, A_w_phi, A_wo, B_x, B_w_gate, B_w_up, B_w_down):
    def _A_ref(x, wqkv, w_phi, wo):
        B, S, D = x.shape
        H = 16; Dh = D // H
        qkv = (lambda x, *d: x.permute(*d))((x @ wqkv).reshape(B, S, 3, H, Dh), 2, 0, 3, 1, 4)
        q, k, v = qkv[0], qkv[1], qkv[2]
        pq = torch.einsum("bhsd,hdf->bhsf", q, w_phi)
        pk = torch.einsum("bhsd,hdf->bhsf", k, w_phi)
        phi_q = torch.concatenate([_softmax(pq, axis=-1), _softmax(-pq, axis=-1)], axis=-1)
        phi_k = torch.concatenate([_softmax(pk, axis=-1), _softmax(-pk, axis=-1)], axis=-1)
        kv = torch.einsum("bhsf,bhsd->bhfd", phi_k, v)
        z  = torch.einsum("bhsf->bhf", phi_k)
        num = torch.einsum("bhqf,bhfd->bhqd", phi_q, kv)
        den = torch.einsum("bhqf,bhf->bhq", phi_q, z)[..., None] + 1e-6
        o = num / den
        return (lambda x, *d: x.permute(*d))(o, 0, 2, 1, 3).reshape(B, S, D) @ wo

    def _B_ref(x, w_gate, w_up, w_down):
        return (_gelu(x @ w_gate) * (x @ w_up)) @ w_down

    x = A_x
    x = x + _A_ref(_layernorm(x, axis=-1), A_wqkv, A_w_phi, A_wo)
    x = x + _B_ref(_layernorm(x, axis=-1), B_w_gate, B_w_up, B_w_down)
    x = x + _A_ref(_layernorm(x, axis=-1), A_wqkv, A_w_phi, A_wo)
    x = x + _B_ref(_layernorm(x, axis=-1), B_w_gate, B_w_up, B_w_down)
    return x
```

```python
import re

TRANS = ('v_exp_f32','v_log_f32','v_rcp_f32','v_rsq_f32','v_sqrt_f32','v_sin_f32','v_cos_f32','v_rcp_iflag_f32')

def _regs(tok):
    tok = tok.strip()
    neg = tok.startswith('-')
    if neg: tok = tok[1:]
    if tok.startswith('abs(') and tok.endswith(')'): tok = tok[4:-1]
    if tok.startswith('|') and tok.endswith('|'): tok = tok[1:-1]
    m = re.fullmatch(r'([vas])(\d+)', tok)
    if m: return [(m.group(1), int(m.group(2)))]
    m = re.fullmatch(r'([vas])\[(\d+):(\d+)\]', tok)
    if m: return [(m.group(1), i) for i in range(int(m.group(2)), int(m.group(3))+1)]
    if tok == 'vcc': return [('s', 'vcc_lo'), ('s', 'vcc_hi')]
    if tok == 'vcc_lo': return [('s','vcc_lo')]
    if tok == 'vcc_hi': return [('s','vcc_hi')]
    if tok == 'exec': return [('s','exec_lo'), ('s','exec_hi')]
    if tok == 'exec_lo': return [('s','exec_lo')]
    if tok == 'exec_hi': return [('s','exec_hi')]
    if tok == 'm0': return [('s','m0')]
    return []

class Ins:
    __slots__ = ('text','op','ops','rd','wr','cls','mods','srcA','srcB','srcC','passes')
    def __init__(s, text):
        s.text = text
        t = text.split(';')[0].strip()
        m = re.match(r'(\S+)\s*(.*)', t)
        s.op = m.group(1)
        for suf in ('_e32','_e64','_dpp','_sdwa'):
            if s.op.endswith(suf) and not s.op.startswith('s_'):
                s.op = s.op[:-len(suf)]
        rest = m.group(2)
        parts = []; depth = 0; cur = ''
        for ch in rest:
            if ch in '[(': depth += 1
            if ch in '])': depth -= 1
            if ch == ',' and depth == 0:
                parts.append(cur.strip()); cur = ''
            else: cur += ch
        if cur.strip(): parts.append(cur.strip())
        s.mods = ''
        if parts:
            last = parts[-1].split()
            parts[-1] = last[0]
            s.mods = ' '.join(last[1:])
        s.ops = parts
        s.rd = set(); s.wr = set(); s.srcA = s.srcB = s.srcC = None; s.passes = 0
        s._classify(t)
    def _classify(s, t):
        op = s.op; o = s.ops
        R = lambda i: _regs(o[i]) if i < len(o) else []
        if op.startswith('v_mfma'):
            s.cls = 'mfma'
            s.passes = 8 if '32x32' in op else 4
            s.wr.update(R(0)); s.srcA = set(R(1)); s.srcB = set(R(2)); s.srcC = set(R(3))
            s.rd = s.srcA | s.srcB | s.srcC
        elif op.startswith('v_'):
            s.cls = 'trans' if op in TRANS else 'valu'
            if op.startswith('v_cmp'):
                s.wr.update(R(0))
                for i in range(1, len(o)): s.rd.update(R(i))
                if op.startswith('v_cmpx'): s.wr.update(_regs('exec'))
            elif op in ('v_readfirstlane_b32','v_readlane_b32'):
                s.wr.update(R(0))
                for i in range(1, len(o)): s.rd.update(R(i))
            elif op in ('v_add_co_u32','v_sub_co_u32','v_subrev_co_u32'):
                s.wr.update(R(0)); s.wr.update(R(1))
                for i in range(2, len(o)): s.rd.update(R(i))
            elif op in ('v_addc_co_u32','v_subb_co_u32'):
                s.wr.update(R(0)); s.wr.update(R(1))
                for i in range(2, len(o)): s.rd.update(R(i))
            elif op in ('v_permlane32_swap_b32','v_permlane16_swap_b32'):
                s.wr.update(R(0)); s.wr.update(R(1)); s.rd.update(R(0)); s.rd.update(R(1))
            else:
                s.wr.update(R(0))
                for i in range(1, len(o)): s.rd.update(R(i))
                if op in ('v_fmac_f32','v_dot2c_f32_bf16','v_writelane_b32','v_pk_fmac_f16') or 'dpp' in t or 'row_' in s.mods or 'quad_perm' in s.mods:
                    s.rd.update(R(0))
                if op == 'v_cndmask_b32' and len(o) == 3: s.rd.update(_regs('vcc'))
                if op == 'v_cndmask_b32' and len(o) == 4: pass
        elif op.startswith('ds_'):
            s.cls = 'ds'
            if op.startswith('ds_read') or op.startswith('ds_bpermute') or op.startswith('ds_swizzle') or op.startswith('ds_permute'):
                s.wr.update(R(0))
                for i in range(1, len(o)): s.rd.update(R(i))
            else:
                for i in range(len(o)): s.rd.update(R(i))
        elif op.startswith('buffer_') or op.startswith('global_'):
            s.cls = 'vmem'
            islds = (' lds' in (' ' + s.mods)) or (s.mods.endswith('lds'))
            if op in ('buffer_wbl2','buffer_inv'):
                pass
            elif op.startswith('buffer_load'):
                if islds:
                    for i in range(len(o)): s.rd.update(R(i))
                    s.rd.add(('s','m0'))
                else:
                    s.wr.update(R(0))
                    if 'd16' in op: s.rd.update(R(0))
                    for i in range(1, len(o)): s.rd.update(R(i))
            elif op.startswith('buffer_store') or op.startswith('buffer_atomic'):
                for i in range(len(o)): s.rd.update(R(i))
                if op.startswith('buffer_atomic') and 'sc0' in s.mods: s.wr.update(R(0))
            else:
                raise ValueError('unhandled vmem ' + t)
        elif op.startswith('s_'):
            s.cls = 'salu'
            if op in ('s_waitcnt','s_barrier','s_nop','s_endpgm','s_sleep','s_setprio','s_branch') or op.startswith('s_cbranch'):
                pass
            elif op.startswith('s_cmp') or op.startswith('s_bitcmp'):
                for i in range(len(o)): s.rd.update(R(i))
            elif op.startswith('s_load') or op in ('s_memtime','s_memrealtime'):
                s.cls = 'smem'
                s.wr.update(R(0))
                for i in range(1, len(o)): s.rd.update(R(i))
            else:
                s.wr.update(R(0))
                for i in range(1, len(o)): s.rd.update(R(i))
                if 'saveexec' in op: s.wr.update(_regs('exec')); s.rd.update(_regs('exec'))
        else:
            raise ValueError('unknown op ' + t)

def is_wide_store(i):
    return i.cls == 'vmem' and (i.op in ('buffer_store_dwordx4','buffer_store_dwordx3','global_store_dwordx4','global_store_dwordx3'))

def required_wait(prod, cons):
    need = 0
    pw, cr, cw = prod.wr, cons.rd, cons.wr
    pv = prod.cls in ('valu','trans')
    cv = cons.cls in ('valu','trans')
    if pv:
        vw = {r for r in pw if r[0] in 'va'}
        sw = {r for r in pw if r[0] == 's'}
        if cons.cls == 'mfma' and vw & cr: need = max(need, 2)
        if cv and vw & cr:
            if cons.op in ('v_readlane_b32','v_readfirstlane_b32'): need = max(need, 1)
            if cons.op.startswith('v_permlane'): need = max(need, 2)
            if 'row_' in cons.mods or 'quad_perm' in cons.mods or 'dpp' in cons.text.split()[0]: need = max(need, 2)
            if prod.cls == 'trans' and cons.cls != 'trans': need = max(need, 1)
            if prod.cls == 'trans' and cons.cls == 'trans': need = max(need, 1)
        if sw:
            rd = set(cr)
            if cons.op == 'v_cndmask_b32' and len(cons.ops) == 3: rd |= set(_regs('vcc'))
            if cv and sw & rd:
                need = max(need, 2)
                if cons.op in ('v_readlane_b32','v_writelane_b32'): need = max(need, 4)
            if cons.cls == 'vmem' and sw & cr: need = max(need, 5)
            if cons.cls == 'mfma' and sw & set(_regs('exec')): need = max(need, 4)
            if cons.cls in ('salu','smem') and sw & cr: need = max(need, 1)
            if cons.op.startswith('s_cbranch_vcc') and sw & set(_regs('vcc')): need = max(need, 5)
            if (sw & set(_regs('exec'))) and cv: need = max(need, 4)
    if prod.cls == 'mfma':
        D = pw
        p8 = prod.passes == 8
        if cons.cls == 'mfma':
            if D & (cons.srcA | cons.srcB): need = max(need, 12 if p8 else 8)
            if D & cons.srcC:
                if not (cons.srcC == D and cons.passes == prod.passes): need = max(need, 10 if p8 else 6)
            elif D & cons.wr:
                need = max(need, 10 if p8 else 6)
        elif cons.cls in ('valu','trans','vmem','ds'):
            if D & (cr | cw): need = max(need, 12 if p8 else 8)
        if cv and prod.srcC and (prod.srcC & cw): need = max(need, 7 if p8 else 3)
    if is_wide_store(prod):
        data = set(_regs(prod.ops[0]))
        if data & cw:
            need = max(need, 2 if cv else 1)
    if prod.cls == 'ds' and prod.op in ('ds_write_b128','ds_write_b96'):
        pass
    if prod.cls == 'salu':
        if ('s','m0') in pw and cons.cls == 'vmem' and ('s','m0') in cr: need = max(need, 1)
        if (pw & set(_regs('exec'))) and (cons.op.startswith('v_permlane') or 'row_' in cons.mods): need = max(need, 1)
    return need

MAXW = 20

class Asm:
    def __init__(s):
        s.items = []
        s.vm = []
        s.lg = []
        s.nlab = 0
    def __call__(s, text):
        for line in text.split('\n'):
            line = line.strip()
            if not line: continue
            s.items.append(('i', line))
    def c(s, text): s.items.append(('c', text))
    def label(s, name): s.items.append(('l', name))
    def newlabel(s, base='L'):
        s.nlab += 1
        return f'{base}_{s.nlab}'
    def vmem(s, text, tag=None):
        s(text); s.vm.append(tag)
        assert len(s.vm) <= 63, 'too many outstanding vmem'
    def ds(s, text, tag=None):
        s(text); s.lg.append(tag)
    def wait_vm(s, tag):
        idx = [i for i, t in enumerate(s.vm) if t == tag]
        if not idx: return
        n = len(s.vm) - 1 - idx[-1]
        s(f's_waitcnt vmcnt({n})')
        s.vm = s.vm[idx[-1]+1:]
    def wait_lg(s, tag):
        idx = [i for i, t in enumerate(s.lg) if t == tag]
        if not idx: return
        n = len(s.lg) - 1 - idx[-1]
        if n > 15:
            n = 15
            s(f's_waitcnt lgkmcnt({n})')
            s.lg = s.lg[len(s.lg)-n:]
            idx = [i for i, t in enumerate(s.lg) if t == tag]
            assert not idx
            return
        s(f's_waitcnt lgkmcnt({n})')
        s.lg = s.lg[idx[-1]+1:]
    def wait_vm0(s):
        s('s_waitcnt vmcnt(0)'); s.vm = []
    def wait_lg0(s):
        s('s_waitcnt lgkmcnt(0)'); s.lg = []
    def wait_all(s):
        s('s_waitcnt vmcnt(0) lgkmcnt(0)'); s.vm = []; s.lg = []
    def finalize(s, verbose=False):
        out = []
        hist = []
        pos = 0
        nnop = 0
        def pending_need():
            need = 0
            for (p, ppos) in hist:
                d = pos - ppos - 1
                w = 0
                if p.cls == 'mfma': w = 12 if p.passes == 8 else 8
                elif p.cls in ('valu','trans'):
                    w = 5 if any(r[0] == 's' for r in p.wr) else 2
                elif is_wide_store(p): w = 2
                elif p.cls == 'salu' and ('s','m0') in p.wr: w = 1
                need = max(need, w - d)
            return need
        def emit_nops(n):
            nonlocal pos, nnop
            while n > 0:
                k = min(n, 16)
                out.append(f'\ts_nop {k-1}')
                pos += k; n -= k; nnop += k
        for kind, text in s.items:
            if kind == 'c':
                out.append(f'\t; {text}'); continue
            if kind == 'l':
                emit_nops(pending_need())
                hist.clear()
                out.append(f'{text}:'); continue
            ins = Ins(text)
            if ins.op == 's_nop':
                out.append('\t' + text); pos += int(ins.ops[0], 0) + 1; continue
            need = 0
            for (p, ppos) in hist:
                d = pos - ppos - 1
                if d >= MAXW: continue
                r = required_wait(p, ins)
                need = max(need, r - d)
            isbr = ins.op.startswith('s_cbranch') or ins.op in ('s_branch','s_setpc_b64')
            if isbr:
                need = max(need, pending_need() - 0)
            emit_nops(need)
            out.append('\t' + text)
            hist.append((ins, pos)); pos += 1
            while hist and pos - hist[0][1] > MAXW: hist.pop(0)
        if verbose: print('nop states inserted:', nnop)
        return '\n'.join(out)
```

```python
S=2048; D=448; NH=16; DH=28; F=1792
FLAGS = 0x0
KVC   = 0x4000
KV    = 0x8000
STAMP = 0x50000
G0 = 0x100000
GS = 0x500000
WQ  = 0x000000
X0  = 0x150000
X1A = 0x188000
X2A = 0x1C0000
X1B = 0x1F8000
ST0 = 0x230000
ST1A= 0x238000
ST2A= 0x240000
ST1B= 0x248000
OA  = 0x250000
OB  = 0x290000
HA  = 0x2D0000
HB  = 0x3B0000
XBYTES = 8*28*1024
STBYTES = 8*14*256
OBYTES = 8*32*1024
HBYTES = 8*112*1024
WQH = 86016
WS_BYTES = 0x10000000
```

```python
from gen import *
import math

C0 = -2.0*LOG2E*math.sqrt(2.0/math.pi)
C1 = C0*0.044715

class Phases:
    def __init__(s, g):
        s.g = g; s.a = g.a
        s.stop = g.stop_after

    def frag_loads(s, dst_a, n, sbase, tag, first=0, sc=''):
        a = s.a
        for ks in range(first, first+n):
            if ks % 4 == 0 or ks == first:
                a(f's_add_u32 {sT6}, {sbase}, {(ks//4)*4096}')
            a.vmem(f'buffer_load_dwordx4 a[{dst_a+4*ks}:{dst_a+4*ks+3}], {vL16}, {WS}, {sT6} offen offset:{(ks%4)*1024} {sc}', (tag, ks))

    def stats_loads(s, dst, sbase, tag):
        a = s.a
        for i in range(7):
            a.vmem(f'buffer_load_dwordx2 v[{dst+2*i}:{dst+2*i+1}], {vSTA}, {WS}, {sbase} offen offset:{i*256}', tag)

    def stats_compute(s, src, vnmean, vrstd, t0, t1):
        a = s.a
        S_, Q_ = f'v{src}', f'v{src+1}'
        for i in range(1, 7):
            a(f'v_add_f32 {S_}, {S_}, v{src+2*i}')
            a(f'v_add_f32 {Q_}, {Q_}, v{src+2*i+1}')
        a(f'v_mov_b32 {t0}, {S_}'); a(f'v_mov_b32 {t1}, {Q_}')
        a(f'v_permlane32_swap_b32 {S_}, {t0}')
        a(f'v_permlane32_swap_b32 {Q_}, {t1}')
        a(f'v_add_f32 {S_}, {S_}, {t0}'); a(f'v_add_f32 {Q_}, {Q_}, {t1}')
        a(f'v_mul_f32 {vnmean}, {fbits(-1.0/448)}, {S_}')
        a(f'v_mul_f32 {Q_}, {fbits(1.0/448)}, {Q_}')
        a(f'v_fma_f32 {Q_}, -{vnmean}, {vnmean}, {Q_}')
        a(f'v_max_f32 {Q_}, 0, {Q_}')
        a(f'v_add_f32 {Q_}, {fbits(1e-5)}, {Q_}')
        a(f'v_rsq_f32 {vrstd}, {Q_}')

    def cs_reads(s, dst, lds_off, tag, vaddr):
        a = s.a
        for g in range(4):
            a.ds(f'ds_read_b128 v[{dst+4*g}:{dst+4*g+3}], {vaddr} offset:{lds_off+32*g}', tag)

    def colsum(s, reads_fn, nks, dst, lds_out):
        a = s.a
        for i in range(4): a(f'v_mov_b32 v{dst+16+i}, 0x3f803f80')
        F = dst + 20
        reads_fn(0, F, ('cs', 0))
        for ks in range(nks):
            if ks+1 < nks: reads_fn(ks+1, F + 4*((ks+1) & 1), ('cs', ks+1))
            a.wait_lg(('cs', ks))
            R = F + 4*(ks & 1)
            c = '0' if ks == 0 else f'v[{dst}:{dst+15}]'
            a(f'v_mfma_f32_32x32x16_bf16 v[{dst}:{dst+15}], v[{R}:{R+3}], v[{dst+16}:{dst+19}], {c}')
        a(f'v_add_u32 v10, {lds_out}, {vCS}')
        a('s_mov_b32 exec_lo, 1'); a('s_mov_b32 exec_hi, 1')
        for g in range(4):
            a.ds(f'ds_write_b128 v10, v[{dst+4*g}:{dst+4*g+3}] offset:{32*g}', 'csw')
        a('s_mov_b64 exec, -1')
        a.wait_lg0()

    def softmax_pm(s, P, vC, E1, E2, dP, dM, t):
        a = s.a
        for r in range(12, 16):
            a(f'v_cndmask_b32 v{P+r}, v{P+r}, v{P}, {sUP}')
        mx, mn, t2, t3 = f'v{t}', f'v{t+1}', f'v{t+2}', f'v{t+3}'
        a(f'v_max3_f32 {mx}, v{P}, v{P+1}, v{P+2}'); a(f'v_min3_f32 {mn}, v{P}, v{P+1}, v{P+2}')
        for r in range(3, 15, 2):
            a(f'v_max3_f32 {mx}, {mx}, v{P+r}, v{P+r+1}'); a(f'v_min3_f32 {mn}, {mn}, v{P+r}, v{P+r+1}')
        a(f'v_max_f32 {mx}, {mx}, v{P+15}'); a(f'v_min_f32 {mn}, {mn}, v{P+15}')
        a(f'v_mov_b32 {t2}, {mx}'); a(f'v_mov_b32 {t3}, {mn}')
        a(f'v_permlane32_swap_b32 {mx}, {t2}'); a(f'v_permlane32_swap_b32 {mn}, {t3}')
        a(f'v_max_f32 {mx}, {mx}, {t2}'); a(f'v_min_f32 {mn}, {mn}, {t3}')
        a(f'v_mul_f32 {mx}, {mx}, {vC}'); a(f'v_mul_f32 {mn}, {mn}, {vC}')
        for r in range(16):
            a(f'v_fma_f32 v{E1+r}, v{P+r}, {vC}, -{mx}')
            a(f'v_fma_f32 v{E2+r}, -v{P+r}, {vC}, {mn}')
        for r in range(16):
            a(f'v_exp_f32 v{E1+r}, v{E1+r}')
            a(f'v_exp_f32 v{E2+r}, v{E2+r}')
        for r in range(12, 16):
            a(f'v_cndmask_b32 v{E1+r}, v{E1+r}, 0, {sUP}')
            a(f'v_cndmask_b32 v{E2+r}, v{E2+r}, 0, {sUP}')
        s1, s2, s1b, s2b = f'v{t}', f'v{t+1}', f'v{t+2}', f'v{t+3}'
        a(f'v_add_f32 {s1}, v{E1}, v{E1+1}'); a(f'v_add_f32 {s2}, v{E2}, v{E2+1}')
        a(f'v_add_f32 {s1b}, v{E1+2}, v{E1+3}'); a(f'v_add_f32 {s2b}, v{E2+2}, v{E2+3}')
        for r in range(4, 16, 2):
            a(f'v_add_f32 {s1}, {s1}, v{E1+r}'); a(f'v_add_f32 {s2}, {s2}, v{E2+r}')
            a(f'v_add_f32 {s1b}, {s1b}, v{E1+r+1}'); a(f'v_add_f32 {s2b}, {s2b}, v{E2+r+1}')
        a(f'v_add_f32 {s1}, {s1}, {s1b}'); a(f'v_add_f32 {s2}, {s2}, {s2b}')
        a(f'v_mov_b32 {s1b}, {s1}'); a(f'v_mov_b32 {s2b}, {s2}')
        a(f'v_permlane32_swap_b32 {s1}, {s1b}'); a(f'v_permlane32_swap_b32 {s2}, {s2b}')
        a(f'v_add_f32 {s1}, {s1}, {s1b}'); a(f'v_add_f32 {s2}, {s2}, {s2b}')
        a(f'v_rcp_f32 {s1}, {s1}'); a(f'v_rcp_f32 {s2}, {s2}')
        for r in range(16):
            a(f'v_mul_f32 v{E1+r}, v{E1+r}, {s1}')
            a(f'v_mul_f32 v{E2+r}, v{E2+r}, {s2}')
        for i in range(8):
            a(f'v_cvt_pk_bf16_f32 v{dP+i}, v{E1+2*i}, v{E1+2*i+1}')
            a(f'v_cvt_pk_bf16_f32 v{dM+i}, v{E2+2*i}, v{E2+2*i+1}')

    def qk_post(s, acc, cs, vnmean, vC, frag, P, E1, E2, dP, dM, t):
        a = s.a
        for r in range(16):
            a(f'v_fmac_f32 v{acc+r}, {vnmean}, v{cs+r}')
        for i in range(8):
            a(f'v_cvt_pk_bf16_f32 v{frag+i}, v{acc+2*i}, v{acc+2*i+1}')
        a(f'v_mfma_f32_32x32x16_bf16 v[{P}:{P+15}], a[248:251], v[{frag}:{frag+3}], 0')
        a(f'v_mfma_f32_32x32x16_bf16 v[{P}:{P+15}], a[252:255], v[{frag+4}:{frag+7}], v[{P}:{P+15}]')
        s.softmax_pm(P, vC, E1, E2, dP, dM, t)

    def layer_setup(s):
        a = s.a
        L0 = a.newlabel('Ll0'); Le = a.newlabel('Lle')
        a(f's_cmp_lg_u32 {sL}, 0'); a(f's_cbranch_scc1 {L0}')
        for r, o in ((sXIN, X0), (sSTIN, ST0), (sX1, X1A), (sST1, ST1A), (sXO, X2A), (sSTO, ST2A), (sO, OA), (sH, HA)):
            a(f's_add_u32 {r}, {sGB}, {o}')
        a(f's_branch {Le}')
        a.label(L0)
        for r, o in ((sXIN, X2A), (sSTIN, ST2A), (sX1, X1B), (sST1, ST1B), (sXO, X2A), (sSTO, ST2A), (sO, OB), (sH, HB)):
            a(f's_add_u32 {r}, {sGB}, {o}')
        a.label(Le)
        a(f's_lshl_b32 {sT0}, {sL}, 4'); a(f's_add_u32 {sT0}, {sT0}, {sHEAD}')
        a(f's_lshl_b32 {sKV}, {sT0}, 13'); a(f's_add_u32 {sKV}, {sKV}, {KV}')
        a(f's_lshl_b32 {sKVC}, {sT0}, 7'); a(f's_add_u32 {sKVC}, {sKVC}, {KVC}')
        a(f's_lshl_b32 {sFL}, {sG}, 11'); a(f's_lshl_b32 {sT0}, {sL}, 9'); a(f's_add_u32 {sFL}, {sFL}, {sT0}')
        if FLAGS: a(f's_add_u32 {sFL}, {sFL}, {FLAGS}')

    def fl(s, p):
        a = s.a
        a(f's_add_u32 s80, {sFL}, {p*128}')
        return 's80'

    def p1(s):
        a = s.a; g = s.g
        a.c('==== P1')
        a(f's_mul_i32 {sT0}, {sHEAD}, {WQH}'); a(f's_add_u32 {sT0}, {sT0}, {sGB}')
        if WQ: a(f's_add_u32 {sT0}, {sT0}, {WQ}')
        a(f's_lshl_b32 {sT1}, {sW}, 10'); a(f's_add_u32 {sT0}, {sT0}, {sT1}')
        for n in range(21):
            a(f's_add_u32 m0, {sT1}, {n*4096}')
            a(f's_add_u32 {sT2}, {sT0}, {n*4096}')
            a.vmem(f'buffer_load_dwordx4 {vL16}, {WS}, {sT2} offen lds', 'W')
        a(f's_lshl_b32 {sT3}, {sHALF}, 2'); a(f's_add_u32 {sT3}, {sT3}, {sW}')
        a(f's_mul_i32 {sT4}, {sT3}, 3584'); a(f's_add_u32 {sT4}, {sT4}, {sSTIN}')
        s.stats_loads(96, sT4, 'st')
        a(f's_mul_i32 {sT4}, {sT3}, 28672'); a(f's_add_u32 {sT4}, {sT4}, {sXIN}')
        s.frag_loads(0, 28, sT4, 'x')
        a.wait_vm('W')
        a('s_barrier')
        g.stamp('p1 W landed')
        def rd64(base, va=vTR64):
            def f(ks, reg, tag):
                a.ds(f'ds_read_b64_tr_b16 v[{reg}:{reg+1}], {va} offset:{base+(16*ks)*64}', tag)
                a.ds(f'ds_read_b64_tr_b16 v[{reg+2}:{reg+3}], {va} offset:{base+(16*ks+8)*64}', tag)
            return f
        Lcs = a.newlabel('Lcs')
        a(f's_cmp_lg_u32 {sL}, 0'); a(f's_cbranch_scc1 {Lcs}')
        def cs_wave():
            a(f's_mul_i32 {sT0}, {sW}, 28672'); a(f'v_add_u32 v11, {sT0}, {vTR64}')
            def f(ks, reg, tag):
                a.ds(f'ds_read_b64_tr_b16 v[{reg}:{reg+1}], v11 offset:{(16*ks)*64}', tag)
                a.ds(f'ds_read_b64_tr_b16 v[{reg+2}:{reg+3}], v11 offset:{(16*ks+8)*64}', tag)
            a(f's_lshl_b32 {sT1}, {sW}, 7'); a(f's_add_u32 {sT1}, {sT1}, {M_CSQKV}')
            s.colsum(f, 28, 128, sT1)
        g.wave_in(0, 3, cs_wave)
        a('s_barrier')
        a.label(Lcs)
        AK, AV, AQ = 16, 32, 48
        FR = 64
        rk, rv, rq = rd64(L_WK), rd64(L_WV), rd64(0, 'v208')
        rk(0, FR, ('f', 0)); rv(0, FR+4, ('f', 0))
        for ks in range(28):
            if ks+1 < 28:
                b = FR + 8*((ks+1) & 1)
                rk(ks+1, b, ('f', ks+1)); rv(ks+1, b+4, ('f', ks+1))
            a.wait_vm(('x', ks))
            a.wait_lg(('f', ks))
            b = FR + 8*(ks & 1)
            ck = '0' if ks == 0 else f'v[{AK}:{AK+15}]'
            cv = '0' if ks == 0 else f'v[{AV}:{AV+15}]'
            a(f'v_mfma_f32_32x32x16_bf16 v[{AK}:{AK+15}], v[{b}:{b+3}], a[{4*ks}:{4*ks+3}], {ck}')
            a(f'v_mfma_f32_32x32x16_bf16 v[{AV}:{AV+15}], v[{b+4}:{b+7}], a[{4*ks}:{4*ks+3}], {cv}')
        g.stamp('p1 KV gemm')
        NM, RS, VC = 'v10', 'v11', 'v12'
        s.stats_compute(96, NM, RS, 'v13', 'v14')
        a(f'v_mul_f32 {VC}, {fbits(LOG2E)}, {RS}')
        a(f'v_add_u32 v15, {M_CSQKV}, {vCS}')
        s.cs_reads(112, 0, 'csk', 'v15'); s.cs_reads(128, 128, 'csv', 'v15')
        a.wait_lg('csk')
        s.qk_post(AK, 112, NM, VC, 144, 80, 96, 112+80, 176, 184, 152)
        a(f'v_and_b32 v13, 31, {vLANE}'); a(f's_lshl_b32 {sT0}, {sW}, 5'); a(f'v_add_u32 v14, {sT0}, v13')
        a(f'v_lshrrev_b32 v152, 5, {vLANE}')
        a('v_bfe_u32 v153, v13, 1, 1'); a('v_lshlrev_b32 v153, 3, v153')
        a('v_bfe_u32 v154, v13, 3, 1'); a('v_lshl_or_b32 v153, v154, 2, v153')
        a('v_bfe_u32 v154, v13, 2, 1'); a('v_lshl_or_b32 v153, v154, 1, v153')
        a('v_and_b32 v154, 1, v13'); a('v_or_b32 v153, v153, v154')
        a('v_xor_b32 v153, v153, v152')
        a('v_lshlrev_b32 v153, 3, v153'); a('v_lshl_add_u32 v153, v14, 7, v153')
        a(f'v_add_u32 v153, {L_PHI}, v153')
        for T in range(2):
            for gq in range(4):
                R = 176 + 8*T + 2*gq
                a(f'v_xor_b32 v154, {(8*T+2*gq) << 3}, v153')
                a.ds(f'ds_write_b64 v154, v[{R}:{R+1}]', 'pw')
        a.wait_lg('csv')
        for r in range(16):
            a(f'v_fmac_f32 v{AV+r}, {NM}, v{128+r}')
        for r in range(16):
            a(f'v_mul_f32 v{AV+r}, {RS}, v{AV+r}')
        a(f'v_cndmask_b32 v{AV+12}, v{AV+12}, 1.0, {sUP}')
        for i in range(8):
            a(f'v_cvt_pk_bf16_f32 v{144+i}, v{AV+2*i}, v{AV+2*i+1}')
        a('v_bfe_u32 v153, v14, 1, 3'); a('v_xor_b32 v153, v153, v152'); a('v_lshlrev_b32 v153, 3, v153')
        a('v_lshl_add_u32 v153, v14, 6, v153'); a(f'v_add_u32 v153, {L_VI}, v153')
        for gq in range(4):
            a(f'v_xor_b32 v154, {(2*gq) << 3}, v153')
            a.ds(f'ds_write_b64 v154, v[{144+2*gq}:{145+2*gq}]', 'vw')
        a.wait_lg0()
        a('s_barrier')
        g.stamp('p1 phi/v written')
        def kv():
            a(f'v_and_b32 v13, 15, {vLANE}'); a('v_lshrrev_b32 v14, 2, v13')
            a('v_and_b32 v152, 3, v13')
            a(f'v_bfe_u32 v153, {vLANE}, 4, 1')
            a(f'v_lshrrev_b32 v154, 5, {vLANE}')
            a('v_lshl_add_u32 v155, v153, 2, v152')
            a('v_lshl_add_u32 v156, v154, 2, v14')
            a('v_lshrrev_b32 v157, 1, v14'); a('v_lshlrev_b32 v157, 3, v157')
            a('v_lshl_or_b32 v157, v154, 1, v157'); a('v_and_b32 v158, 1, v14'); a('v_or_b32 v157, v157, v158')
            a(f's_lshl_b32 {sT0}, {sW}, 3'); a(f'v_add_u32 v158, {sT0}, v155')
            a('v_xor_b32 v158, v158, v157')
            a('v_lshlrev_b32 v158, 3, v158'); a('v_lshl_add_u32 v158, v156, 7, v158')
            a(f'v_add_u32 v158, {L_PHI}, v158')
            a('v_xor_b32 v159, 32, v158'); a(f'v_add_u32 v159, {8*128}, v159')
            a('v_lshrrev_b32 v157, 1, v14'); a('v_lshl_or_b32 v157, v154, 1, v157')
            a('v_xor_b32 v157, v157, v155'); a('v_lshlrev_b32 v157, 3, v157')
            a('v_lshl_add_u32 v157, v156, 6, v157'); a(f'v_add_u32 v157, {L_VI}, v157')
            a('v_xor_b32 v156, 32, v157'); a(f'v_add_u32 v156, {8*64}, v156')
            def rr(kt, reg, tag):
                a.ds(f'ds_read_b64_tr_b16 v[{reg}:{reg+1}], v158 offset:{kt*2048}', tag)
                a.ds(f'ds_read_b64_tr_b16 v[{reg+2}:{reg+3}], v159 offset:{kt*2048}', tag)
                a.ds(f'ds_read_b64_tr_b16 v[{reg+4}:{reg+5}], v157 offset:{kt*1024}', tag)
                a.ds(f'ds_read_b64_tr_b16 v[{reg+6}:{reg+7}], v156 offset:{kt*1024}', tag)
            rr(0, FR, ('k', 0))
            for kt in range(8):
                if kt+1 < 8: rr(kt+1, FR + 8*((kt+1) & 1), ('k', kt+1))
                a.wait_lg(('k', kt))
                b = FR + 8*(kt & 1)
                c = '0' if kt == 0 else 'v[80:95]'
                a(f'v_mfma_f32_32x32x16_bf16 v[80:95], v[{b}:{b+3}], v[{b+4}:{b+7}], {c}')
            Lz = a.newlabel('Lz')
            a(f's_cmp_lg_u32 {sL}, 0'); a(f's_cbranch_scc1 {Lz}')
            a(f's_mov_b32 {sT0}, 4')
            g.poll(DBG, None, sT0, 8, vt='v13')
            a.label(Lz)
            a(f'v_and_b32 v13, 31, {vLANE}'); a('v_lshlrev_b32 v13, 2, v13')
            a(f'v_lshrrev_b32 v14, 5, {vLANE}'); a('v_lshl_add_u32 v13, v14, 9, v13')
            a(f's_lshl_b32 {sT0}, {sW}, 12'); a(f's_add_u32 {sT0}, {sT0}, {sKV}')
            for gq in range(4):
                for r in range(4):
                    a(f'buffer_atomic_add_f32 v{80+4*gq+r}, v13, {WS}, {sT0} offen offset:{(8*gq+r)*128} sc1')
        g.wave_in(0, 2, kv)
        a.vm = []; a.lg = []
        g.stamp('p1 kv issued')
        a(f'v_add_u32 v208, {L_WQ}, {vTR64}')
        rq(0, FR, ('f', 0))
        for ks in range(28):
            if ks+1 < 28: rq(ks+1, FR + 4*((ks+1) & 1), ('f', ks+1))
            a.wait_lg(('f', ks))
            b = FR + 4*(ks & 1)
            cq = '0' if ks == 0 else f'v[{AQ}:{AQ+15}]'
            a(f'v_mfma_f32_32x32x16_bf16 v[{AQ}:{AQ+15}], v[{b}:{b+3}], a[{4*ks}:{4*ks+3}], {cq}')
        s.cs_reads(112, 256, 'csq', 'v15')
        a.wait_lg('csq')
        s.qk_post(AQ, 112, NM, VC, 144, 80, 96, 192, 160, 168, 152)
        g.stamp('p1 q done')
        def kvdone():
            a('s_waitcnt vmcnt(0)')
            a('v_mov_b32 v13, 1'); a('s_mov_b64 exec, 1')
            a(f'buffer_atomic_add v13, off, {WS}, {sKVC} sc1')
            a('s_mov_b64 exec, -1')
        g.wave_in(0, 2, kvdone)

    def p2a(s):
        a = s.a; g = s.g
        a.c('==== P2a')
        def w0():
            g.poll(WS, None, sKVC, 32, vt='v13')
        g.wave_only(0, w0)
        a('s_barrier')
        g.stamp('kv hop done')
        a(f'v_and_b32 v13, 31, {vLANE}'); a('v_lshlrev_b32 v13, 2, v13')
        a(f'v_lshrrev_b32 v14, 5, {vLANE}'); a('v_lshl_add_u32 v13, v14, 9, v13')
        a(f's_add_u32 {sT0}, {sKV}, 4096')
        for T in range(2):
            for gq in range(4):
                for r in range(4):
                    so = sKV if T == 0 else sT0
                    a.vmem(f'buffer_load_dword v{64+16*T+4*gq+r}, v13, {WS}, {so} offen offset:{(8*gq+r)*128} sc1', ('kv', T, gq >> 1))
        for T in range(2):
            for e in range(2):
                a.wait_vm(('kv', T, e))
                for i in range(4):
                    R = 64 + 16*T + 8*e + 2*i
                    a(f'v_cvt_pk_bf16_f32 v{96+8*T+4*e+i}, v{R}, v{R+1}')
        k = 0
        for T in range(2):
            for e in range(2):
                c = '0' if k == 0 else 'v[16:31]'
                a(f'v_mfma_f32_32x32x16_bf16 v[16:31], v[{96+8*T+4*e}:{96+8*T+4*e+3}], v[{160+8*T+4*e}:{160+8*T+4*e+3}], {c}')
                k += 1
        a('v_mov_b32 v32, v28'); a('v_mov_b32 v33, v28')
        a('v_permlane32_swap_b32 v32, v33')
        a(f'v_add_f32 v33, {fbits(1e-6)}, v33')
        a('v_rcp_f32 v33, v33')
        for r in range(16):
            a(f'v_mul_f32 v{16+r}, v{16+r}, v33')
        for r in range(12, 16):
            a(f'v_cndmask_b32 v{16+r}, v{16+r}, 0, {sUP}')
        for i in range(8):
            a(f'v_cvt_pk_bf16_f32 v{40+i}, v{16+2*i}, v{16+2*i+1}')
        a(f's_lshl_b32 {sT3}, {sHALF}, 2'); a(f's_add_u32 {sT3}, {sT3}, {sW}')
        a(f's_lshl_b32 {sT3}, {sT3}, 15'); a(f's_add_u32 {sT3}, {sT3}, {sO}')
        a(f's_lshl_b32 {sT4}, {sHEAD}, 11'); a(f's_add_u32 {sT3}, {sT3}, {sT4}')
        a.vmem(f'buffer_store_dwordx4 v[40:43], {vL16}, {WS}, {sT3} offen', 'o')
        a.vmem(f'buffer_store_dwordx4 v[44:47], {vL16}, {WS}, {sT3} offen offset:1024', 'o')
        g.set_flag(s.fl(1))
        g.stamp('p2a done')

    def reduce_epilogue(s, ACC, RED, resid, sXdst, sSTdst, final_branch):
        a = s.a; g = s.g
        for i in (1, 2, 3):
            a(f's_xor_b32 {sT0}, {sW}, {i}'); a(f's_mul_i32 {sT0}, {sT0}, 3'); a(f's_add_u32 {sT0}, {sT0}, {i-1}')
            a(f's_lshl_b32 {sT0}, {sT0}, 12'); a(f's_add_u32 {sT0}, {sT0}, {RED}')
            a(f'v_add_u32 v10, {sT0}, {vL16}')
            for q in range(4):
                R = ACC + 16*i + 4*q
                a.ds(f'ds_write_b128 v10, v[{R}:{R+3}] offset:{q*1024}', 'rw')
        a.wait_lg0()
        a('s_barrier')
        a(f's_mul_i32 {sT0}, {sW}, {3*4096}'); a(f's_add_u32 {sT0}, {sT0}, {RED}')
        a(f'v_add_u32 v10, {sT0}, {vL16}')
        T = ACC + 16
        for k in range(3):
            for q in range(4):
                R = T + 16*k + 4*q
                a.ds(f'ds_read_b128 v[{R}:{R+3}], v10 offset:{k*4096+q*1024}', ('rr', k))
        for k in range(3):
            a.wait_lg(('rr', k))
            for r in range(16):
                a(f'v_add_f32 v{ACC+r}, v{ACC+r}, v{T+16*k+r}')
        a.wait_vm('res')
        for i in range(8):
            a(f'v_lshlrev_b32 v{T+2*i}, 16, v{resid+i}')
            a(f'v_and_b32 v{T+2*i+1}, 0xffff0000, v{resid+i}')
        for r in range(16):
            a(f'v_add_f32 v{ACC+r}, v{ACC+r}, v{T+r}')
        for i in range(8):
            a(f'v_cvt_pk_bf16_f32 v{T+16+i}, v{ACC+2*i}, v{ACC+2*i+1}')
        PK = T + 16
        a(f's_and_b32 {sT1}, {sW}, 1'); a(f's_lshl_b32 {sT2}, {sTQ}, 1'); a(f's_add_u32 {sT1}, {sT1}, {sT2}')
        a(f's_lshr_b32 {sT2}, {sW}, 1'); a(f's_lshl_b32 {sT3}, {sCT}, 1'); a(f's_add_u32 {sT2}, {sT2}, {sT3}')
        Lfin = a.newlabel('Lfin'); Lend = a.newlabel('Lrend')
        if final_branch:
            a(f's_cmp_lg_u32 {sL}, 0'); a(f's_cbranch_scc1 {Lfin}')
        Sv, Qv = 'v10', 'v11'
        a(f'v_add_f32 {Sv}, v{ACC}, v{ACC+1}'); a(f'v_mul_f32 {Qv}, v{ACC}, v{ACC}')
        a(f'v_fmac_f32 {Qv}, v{ACC+1}, v{ACC+1}')
        for r in range(2, 16):
            a(f'v_add_f32 {Sv}, {Sv}, v{ACC+r}'); a(f'v_fmac_f32 {Qv}, v{ACC+r}, v{ACC+r}')
        a(f'v_mov_b32 v12, {Sv}'); a(f'v_mov_b32 v13, {Qv}')
        a(f'v_permlane32_swap_b32 {Sv}, v12'); a(f'v_permlane32_swap_b32 {Qv}, v13')
        a(f'v_add_f32 v14, {Sv}, v12'); a(f'v_add_f32 v15, {Qv}, v13')
        a(f's_mul_i32 {sT4}, {sT1}, 28672'); a(f's_lshl_b32 {sT5}, {sT2}, 11'); a(f's_add_u32 {sT4}, {sT4}, {sT5}')
        a(f's_add_u32 {sT4}, {sT4}, {sXdst}')
        a.vmem(f'buffer_store_dwordx4 v[{PK}:{PK+3}], {vL16}, {WS}, {sT4} offen', 'xs')
        a.vmem(f'buffer_store_dwordx4 v[{PK+4}:{PK+7}], {vL16}, {WS}, {sT4} offen offset:1024', 'xs')
        a(f's_mul_i32 {sT4}, {sT1}, 14'); a(f's_add_u32 {sT4}, {sT4}, {sT2}'); a(f's_lshl_b32 {sT4}, {sT4}, 8')
        a(f's_add_u32 {sT4}, {sT4}, {sSTdst}')
        a(f'v_lshlrev_b32 v12, 3, {vLANE}')
        a('s_mov_b64 exec, 0xffffffff')
        a.vmem(f'buffer_store_dwordx2 v[14:15], v12, {WS}, {sT4} offen', 'xs')
        a('s_mov_b64 exec, -1')
        if final_branch:
            a(f's_branch {Lend}')
            a.label(Lfin)
            for e in range(2):
                a(f'v_permlane32_swap_b32 v{PK+4*e}, v{PK+4*e+2}')
                a(f'v_permlane32_swap_b32 v{PK+4*e+1}, v{PK+4*e+3}')
            a(f's_lshl_b32 {sT4}, {sG}, 8'); a(f's_lshl_b32 {sT5}, {sT1}, 5'); a(f's_add_u32 {sT4}, {sT4}, {sT5}')
            a(f's_mul_i32 {sT4}, {sT4}, 896'); a(f's_lshl_b32 {sT5}, {sT2}, 6'); a(f's_add_u32 {sT4}, {sT4}, {sT5}')
            a(f'v_and_b32 v12, 31, {vLANE}'); a('v_mul_u32_u24 v12, 896, v12')
            a(f'v_lshrrev_b32 v13, 5, {vLANE}'); a('v_lshl_add_u32 v12, v13, 4, v12')
            a(f'buffer_store_dwordx4 v[{PK}:{PK+3}], v12, {OUT}, {sT4} offen')
            a(f'buffer_store_dwordx4 v[{PK+4}:{PK+7}], v12, {OUT}, {sT4} offen offset:32')
            a.label(Lend)

    def tile_addrs(s, base_expr_fn):
        a = s.a
        a(f's_lshr_b32 {sT0}, {sW}, 1'); a(f's_lshl_b32 {sT0}, {sT0}, 6')
        a(f'v_xor_b32 v14, {sT0}, {vTR0}')
        a(f'v_add_u32 v14, {sT5}, v14')
        a('v_xor_b32 v15, 64, v14')

    def resid_loads(s, dst, sX):
        a = s.a
        a(f's_and_b32 {sT1}, {sW}, 1'); a(f's_lshl_b32 {sT2}, {sTQ}, 1'); a(f's_add_u32 {sT1}, {sT1}, {sT2}')
        a(f's_lshr_b32 {sT2}, {sW}, 1'); a(f's_lshl_b32 {sT3}, {sCT}, 1'); a(f's_add_u32 {sT2}, {sT2}, {sT3}')
        a(f's_mul_i32 {sT4}, {sT1}, 28672'); a(f's_lshl_b32 {sT2}, {sT2}, 11'); a(f's_add_u32 {sT4}, {sT4}, {sT2}')
        a(f's_add_u32 {sT4}, {sT4}, {sX}')
        a.vmem(f'buffer_load_dwordx4 v[{dst}:{dst+3}], {vL16}, {WS}, {sT4} offen', 'res')
        a.vmem(f'buffer_load_dwordx4 v[{dst+4}:{dst+7}], {vL16}, {WS}, {sT4} offen offset:1024', 'res')

    def p2b(s):
        a = s.a; g = s.g
        a.c('==== P2b')
        L_WO = 0; WOW = 15360; RED = 61440
        a(f's_mul_i32 {sT0}, {sW}, {112*896}'); a(f's_lshl_b32 {sT1}, {sCT}, 7'); a(f's_add_u32 {sT0}, {sT0}, {sT1}')
        a(f's_mul_i32 {sT5}, {sW}, {WOW}')
        if L_WO: a(f's_add_u32 {sT5}, {sT5}, {L_WO}')
        for i in range(15):
            a(f's_add_u32 m0, {sT5}, {i*1024}')
            a(f's_add_u32 {sT2}, {sT0}, {i*8*896}')
            a.vmem(f'buffer_load_dwordx4 {vD896}, {WO}, {sT2} offen lds', 'W')
        s.tile_addrs(None)
        s.resid_loads(96, sXIN)
        a.wait_vm0()
        a(f's_lshr_b32 {sT0}, {sTQ}, 1'); a(f's_lshl_b32 {sT0}, {sT0}, 4'); a(f's_lshl_b32 s81, 0xffff, {sT0}')
        g.wait_flags(s.fl(1), 's81')
        g.stamp('p2b hop done')
        for b in range(2):
            a(f's_and_b32 {sT0}, {sW}, 1'); a(f's_xor_b32 {sT0}, {sT0}, {b}'); a(f's_lshl_b32 {sT1}, {sTQ}, 1')
            a(f's_add_u32 {sT0}, {sT0}, {sT1}'); a(f's_lshl_b32 {sT0}, {sT0}, 15'); a(f's_add_u32 {sT0}, {sT0}, {sO}')
            a(f's_lshl_b32 {sT1}, {sW}, 13'); a(f's_add_u32 s{82+b}, {sT0}, {sT1}')
        for i in range(8):
            for b in range(2):
                if i % 4 == 0: a(f's_add_u32 s{84+b}, s{82+b}, {(i//4)*4096}')
                a.vmem(f'buffer_load_dwordx4 a[{8*i+4*b}:{8*i+4*b+3}], {vL16}, {WS}, s{84+b} offen offset:{(i%4)*1024}', ('o', i))
        ACC = 16; FR = 80
        def rd(i, reg, tag):
            off = (28*(i >> 1) + 16*(i & 1))*128
            for sl in range(2):
                va = 'v14' if sl == 0 else 'v15'
                a.ds(f'ds_read_b64_tr_b16 v[{reg+4*sl}:{reg+4*sl+1}], {va} offset:{off}', tag)
                a.ds(f'ds_read_b64_tr_b16 v[{reg+4*sl+2}:{reg+4*sl+3}], {va} offset:{off+8*128}', tag)
        rd(0, FR, ('f', 0))
        for i in range(8):
            if i+1 < 8: rd(i+1, FR + 8*((i+1) & 1), ('f', i+1))
            a.wait_vm(('o', i)); a.wait_lg(('f', i))
            b0 = FR + 8*(i & 1)
            for sa in range(2):
                for sb in range(2):
                    R = ACC + 16*(2*sa+sb)
                    c = '0' if i == 0 else f'v[{R}:{R+15}]'
                    a(f'v_mfma_f32_32x32x16_bf16 v[{R}:{R+15}], v[{b0+4*sa}:{b0+4*sa+3}], a[{8*i+4*sb}:{8*i+4*sb+3}], {c}')
        g.stamp('p2b gemm')
        s.reduce_epilogue(ACC, RED, 96, sX1, sST1, False)
        g.set_flag(s.fl(2))
        g.stamp('p2b done')

    def p3(s):
        a = s.a; g = s.g
        a.c('==== P3')
        L_G = 0; L_U = 57344
        a(f's_lshl_b32 {sT0}, {sM}, 7'); a(f's_mul_i32 {sT1}, {sW}, {8*3584}'); a(f's_add_u32 {sT0}, {sT0}, {sT1}')
        a(f's_lshl_b32 {sT1}, {sW}, 10')
        for srd, base in ((WG, L_G), (WU, L_U)):
            for n in range(14):
                a(f's_add_u32 m0, {sT1}, {base + n*4096}')
                a(f's_add_u32 {sT2}, {sT0}, {n*32*3584}')
                a.vmem(f'buffer_load_dwordx4 {vD3584}, {srd}, {sT2} offen lds', 'W')
        a.wait_vm0()
        a('s_barrier')
        a(f'v_add_u32 v12, {L_U}, {vTR0}'); a(f'v_add_u32 v13, {L_U}, {vTR1}')
        Lcs = a.newlabel('Lcs')
        a(f's_cmp_lg_u32 {sL}, 0'); a(f's_cbranch_scc1 {Lcs}')
        a(f's_and_b32 {sT0}, {sW}, 1'); a(f's_lshl_b32 {sT0}, {sT0}, 6'); a(f'v_xor_b32 v11, {sT0}, {vTR0}')
        a(f's_lshr_b32 {sT0}, {sW}, 1'); a(f's_mul_i32 {sT0}, {sT0}, {L_U}'); a(f'v_add_u32 v11, {sT0}, v11')
        def f(ks, reg, tag):
            a.ds(f'ds_read_b64_tr_b16 v[{reg}:{reg+1}], v11 offset:{(16*ks)*128}', tag)
            a.ds(f'ds_read_b64_tr_b16 v[{reg+2}:{reg+3}], v11 offset:{(16*ks+8)*128}', tag)
        a(f's_lshl_b32 {sT1}, {sW}, 7'); a(f's_add_u32 {sT1}, {sT1}, {M_CSFF}')
        s.colsum(f, 28, 128, sT1)
        a.label(Lcs)
        g.wait_flags(s.fl(2), 0x0fffffff)
        g.stamp('p3 hop done')
        for b in range(2):
            a(f's_lshl_b32 {sT0}, {sW}, 1'); a(f's_add_u32 {sT0}, {sT0}, {b}')
            a(f's_mul_i32 s{82+b}, {sT0}, 28672'); a(f's_add_u32 s{82+b}, s{82+b}, {sX1}')
            a(f's_mul_i32 s{86+b}, {sT0}, 3584'); a(f's_add_u32 s{86+b}, s{86+b}, {sST1}')
        def xload(ks):
            for b in range(2):
                a(f's_add_u32 {sT6}, s{82+b}, {(ks//4)*4096}')
                a.vmem(f'buffer_load_dwordx4 a[{8*ks+4*b}:{8*ks+4*b+3}], {vL16}, {WS}, {sT6} offen offset:{(ks%4)*1024}', ('x', ks))
        for ks in range(4): xload(ks)
        s.stats_loads(96, 's86', 'st'); s.stats_loads(112, 's87', 'st')
        for ks in range(4, 24): xload(ks)
        FR = 144
        NM = ('v10', 'v11'); RS = ('v14', 'v15')
        for c in range(2):
            vg = vTR0 if c == 0 else vTR1
            vu = 'v12' if c == 0 else 'v13'
            def rd(ks, reg, tag):
                a.ds(f'ds_read_b64_tr_b16 v[{reg}:{reg+1}], {vg} offset:{L_G+(16*ks)*128}', tag)
                a.ds(f'ds_read_b64_tr_b16 v[{reg+2}:{reg+3}], {vg} offset:{L_G+(16*ks+8)*128}', tag)
                a.ds(f'ds_read_b64_tr_b16 v[{reg+4}:{reg+5}], {vu} offset:{(16*ks)*128}', tag)
                a.ds(f'ds_read_b64_tr_b16 v[{reg+6}:{reg+7}], {vu} offset:{(16*ks+8)*128}', tag)
            G_ = (16, 32); U_ = (48, 64)
            rd(0, FR, ('f', 0))
            for ks in range(28):
                if ks+1 < 28: rd(ks+1, FR + 8*((ks+1) & 1), ('f', ks+1))
                if c == 0:
                    a.wait_vm(('x', ks))
                a.wait_lg(('f', ks))
                b0 = FR + 8*(ks & 1)
                for b in range(2):
                    cg = '0' if ks == 0 else f'v[{G_[b]}:{G_[b]+15}]'
                    cu = '0' if ks == 0 else f'v[{U_[b]}:{U_[b]+15}]'
                    a(f'v_mfma_f32_32x32x16_bf16 v[{G_[b]}:{G_[b]+15}], v[{b0}:{b0+3}], a[{8*ks+4*b}:{8*ks+4*b+3}], {cg}')
                    a(f'v_mfma_f32_32x32x16_bf16 v[{U_[b]}:{U_[b]+15}], v[{b0+4}:{b0+7}], a[{8*ks+4*b}:{8*ks+4*b+3}], {cu}')
                if c == 0 and ks + 24 < 28: xload(ks+24)
            g.stamp(f'p3 gemm {c}')
            if c == 0:
                s.stats_compute(96, NM[0], RS[0], 'v160', 'v161')
                s.stats_compute(112, NM[1], RS[1], 'v160', 'v161')
            a(f'v_add_u32 v160, {M_CSFF}, {vCS}')
            s.cs_reads(96, 128*c, 'cs', 'v160'); s.cs_reads(112, 256+128*c, 'cs', 'v160')
            a.wait_lg('cs')
            a(f'v_mov_b32 v161, {fbits(C1)}')
            for b in range(2):
                G, U = G_[b], U_[b]
                for r in range(16):
                    a(f'v_fmac_f32 v{G+r}, {NM[b]}, v{96+r}')
                    a(f'v_fmac_f32 v{U+r}, {NM[b]}, v{112+r}')
                T = 164
                for r in range(16):
                    a(f'v_mul_f32 v{G+r}, {RS[b]}, v{G+r}')
                for r in range(16):
                    a(f'v_mul_f32 v{T+r}, v{G+r}, v{G+r}')
                for r in range(16):
                    a(f'v_fmaak_f32 v{T+r}, v{T+r}, v161, {fbits(C0)}')
                for r in range(16):
                    a(f'v_mul_f32 v{T+r}, v{T+r}, v{G+r}')
                for r in range(16):
                    a(f'v_exp_f32 v{T+r}, v{T+r}')
                for r in range(16):
                    a(f'v_mul_f32 v{U+r}, v{U+r}, v{G+r}')
                for r in range(16):
                    a(f'v_add_f32 v{T+r}, 1.0, v{T+r}')
                for r in range(16):
                    a(f'v_rcp_f32 v{T+r}, v{T+r}')
                for r in range(16):
                    a(f'v_mul_f32 v{U+r}, {RS[b]}, v{U+r}')
                for r in range(16):
                    a(f'v_mul_f32 v{U+r}, v{U+r}, v{T+r}')
                for i in range(8):
                    a(f'v_cvt_pk_bf16_f32 v{T+16+i}, v{U+2*i}, v{U+2*i+1}')
                a(f's_lshl_b32 {sT0}, {sW}, 1'); a(f's_add_u32 {sT0}, {sT0}, {b}'); a(f's_mul_i32 {sT0}, {sT0}, 114688')
                a(f's_add_u32 {sT0}, {sT0}, {sH}'); a(f's_lshl_b32 {sT1}, {sM}, 12'); a(f's_add_u32 {sT0}, {sT0}, {sT1}')
                a.vmem(f'buffer_store_dwordx4 v[{T+16}:{T+19}], {vL16}, {WS}, {sT0} offen offset:{2*c*1024}', 'hs')
                a.vmem(f'buffer_store_dwordx4 v[{T+20}:{T+23}], {vL16}, {WS}, {sT0} offen offset:{(2*c+1)*1024}', 'hs')
            g.stamp(f'p3 epi {c}')
        g.set_flag(s.fl(3))
        g.stamp('p3 done')

    def p4(s):
        a = s.a; g = s.g
        a.c('==== P4')
        RING = 36864; NSLOT = 36; RED = 0
        a(f's_mul_i32 s88, {sW}, {448*896}'); a(f's_lshl_b32 {sT1}, {sCT}, 7'); a(f's_add_u32 s88, s88, {sT1}')
        a(f's_mul_i32 s89, {sW}, {RING}')
        def wdma(i):
            a(f's_add_u32 m0, s89, {(i % NSLOT)*1024}')
            a(f's_add_u32 {sT2}, s88, {i*8*896}')
            a.vmem(f'buffer_load_dwordx4 {vD896}, {WD}, {sT2} offen lds', ('W', i))
        a('s_barrier')
        for i in range(NSLOT): wdma(i)
        a(f's_mov_b32 {sT5}, s89')
        s.tile_addrs(None)
        s.resid_loads(96, sX1)
        a.wait_vm0()
        g.wait_flags(s.fl(3), 0x0fffffff)
        g.stamp('p4 hop done')
        for b in range(2):
            a(f's_and_b32 {sT0}, {sW}, 1'); a(f's_xor_b32 {sT0}, {sT0}, {b}'); a(f's_lshl_b32 {sT1}, {sTQ}, 1')
            a(f's_add_u32 {sT0}, {sT0}, {sT1}'); a(f's_mul_i32 {sT0}, {sT0}, 114688'); a(f's_add_u32 {sT0}, {sT0}, {sH}')
            a(f's_mul_i32 {sT1}, {sW}, {28*1024}'); a(f's_add_u32 s{82+b}, {sT0}, {sT1}')
        def hload(ks):
            for b in range(2):
                a(f's_add_u32 {sT6}, s{82+b}, {(ks//4)*4096}')
                a.vmem(f'buffer_load_dwordx4 a[{8*ks+4*b}:{8*ks+4*b+3}], {vL16}, {WS}, {sT6} offen offset:{(ks%4)*1024}', ('h', ks))
        for ks in range(24): hload(ks)
        ACC = 16; FR = 80
        def rd(ks, reg, tag):
            off = ((2*ks) % NSLOT)*1024
            for sl in range(2):
                va = 'v14' if sl == 0 else 'v15'
                a.ds(f'ds_read_b64_tr_b16 v[{reg+4*sl}:{reg+4*sl+1}], {va} offset:{off}', tag)
                a.ds(f'ds_read_b64_tr_b16 v[{reg+4*sl+2}:{reg+4*sl+3}], {va} offset:{off+1024}', tag)
        rd(0, FR, ('f', 0))
        for ks in range(28):
            if ks+1 < 28:
                if 2*(ks+1)+1 >= NSLOT: a.wait_vm(('W', 2*(ks+1)+1))
                rd(ks+1, FR + 8*((ks+1) & 1), ('f', ks+1))
            a.wait_vm(('h', ks)); a.wait_lg(('f', ks))
            b0 = FR + 8*(ks & 1)
            for sa in range(2):
                for sb in range(2):
                    R = ACC + 16*(2*sa+sb)
                    c = '0' if ks == 0 else f'v[{R}:{R+15}]'
                    a(f'v_mfma_f32_32x32x16_bf16 v[{R}:{R+15}], v[{b0+4*sa}:{b0+4*sa+3}], a[{8*ks+4*sb}:{8*ks+4*sb+3}], {c}')
            if 2*ks + NSLOT < 56:
                wdma(2*ks + NSLOT); wdma(2*ks + NSLOT + 1)
            if ks + 24 < 28: hload(ks+24)
        g.stamp('p4 gemm')
        a('s_barrier')
        s.reduce_epilogue(ACC, RED, 96, sXO, sSTO, True)
        a.vm = []
        g.stamp('p4 epi')

    def run(s):
        a = s.a; g = s.g; stop = s.stop
        a.label('L_layer')
        s.layer_setup()
        s.p1()
        if stop == 'p1': return
        s.p2a()
        if stop == 'p2a': return
        a(f's_cmp_ge_u32 {sM}, 28'); a('s_cbranch_scc1 L_skipffn')
        s.p2b()
        if stop != 'p2b':
            s.p3()
            if stop != 'p3':
                s.p4()
                L = a.newlabel('Lnf')
                a(f's_cmp_lg_u32 {sL}, 0'); a(f's_cbranch_scc1 {L}')
                g.set_flag(s.fl(4))
                a.label(L)
        a.label('L_skipffn')
        if stop in ('p2b', 'p3', 'l0'): return
        a(f's_cmp_lg_u32 {sL}, 0'); a('s_cbranch_scc1 L_fin')
        a(f's_mul_i32 {sT0}, {sHALF}, 14'); a(f's_lshl_b32 s81, 0x3fff, {sT0}')
        g.wait_flags(s.fl(4), 's81')
        g.stamp('p4 hop(x2)')
        a(f's_mov_b32 {sL}, 1')
        a('s_branch L_layer')
```

```python
import sys
from asmlib import Asm
from layout import *

NAME = 'interleave_layers__linear_kernel_hedgehog__geglu_ffn__prompt_kernel'

WS='s[4:7]'; WO='s[8:11]'; WG='s[12:15]'; WU='s[16:19]'; WD='s[20:23]'; OUT='s[24:27]'; DBG='s[28:31]'
AX='s[32:35]'; WQKV='s[36:39]'; WPHI='s[40:43]'
sG='s44'; sM='s45'; sW='s46'; sL='s47'; sHEAVY='s48'; sGB='s49'; sTO='s50'
sXIN='s51'; sSTIN='s52'; sX1='s53'; sST1='s54'; sXO='s55'; sSTO='s56'; sO='s57'; sH='s58'; sKV='s59'; sKVC='s60'; sFL='s61'
sXCC='s62'; sHEAD='s63'; sHALF='s64'; sTQ='s65'; sCT='s66'
sUP='s[96:97]'
sT0='s68'; sT1='s69'; sT2='s70'; sT3='s71'; sT4='s72'; sT5='s73'; sT6='s74'; sT7='s75'
sP0='s[76:77]'; sP1='s[78:79]'
vLANE='v0'; vL16='v1'; vTR64='v2'; vTR0='v3'; vTR1='v4'; vD896='v5'; vD3584='v6'; vSTA='v7'; vCS='v8'; vSTAMP='v9'
LDS_TOTAL = 163840
MISC = LDS_TOTAL - 2048
M_MODE = MISC
M_CSQKV = MISC + 128
M_CSFF  = MISC + 512
L_WK=0; L_WV=28672; L_WQ=57344
L_PHI=86016; L_VI=102400; L_KVF=110592
LOG2E = 1.4426950408889634

def fbits(x):
    import struct
    return '0x%08x' % struct.unpack('<I', struct.pack('<f', x))[0]

class Gen:
    def __init__(s, stop_after=None, stamps=False, force_heavy=False):
        s.a = Asm(); s.stop_after = stop_after; s.stamps = stamps; s.force_heavy = force_heavy
        s.nstamp = 0
        s.stamp_names = []

    def stamp(s, name):
        if not s.stamps: return
        a = s.a
        i = s.nstamp; s.nstamp += 1; s.stamp_names.append(name)
        a('s_waitcnt lgkmcnt(0)'); a.lg = []
        a('s_memtime s[94:95]')
        a('s_waitcnt lgkmcnt(0)')
        a(f's_lshl_b32 s95, {sL}, 5')
        a(f's_add_u32 s95, s95, {i}')
        a('s_mov_b32 s93, m0')
        a('s_mov_b32 m0, s95')
        a(f'v_writelane_b32 {vSTAMP}, s94, m0')
        a('s_mov_b32 m0, s93')

    def wave_only(s, w, fn):
        a = s.a
        L = a.newlabel('Lw')
        a(f's_cmp_lg_u32 {sW}, {w}')
        a(f's_cbranch_scc1 {L}')
        fn()
        a.label(L)

    def wave_in(s, lo, hi, fn):
        a = s.a
        L = a.newlabel('Lw')
        if lo > 0:
            a(f's_cmp_lt_u32 {sW}, {lo}'); a(f's_cbranch_scc1 {L}')
        if hi < 4:
            a(f's_cmp_ge_u32 {sW}, {hi}'); a(f's_cbranch_scc1 {L}')
        fn()
        a.label(L)

    def poll(s, srd, voff, soff, expect, mask=None, sc='sc1', vt='v10'):
        a = s.a
        Lp = a.newlabel('Lpoll'); Ld = a.newlabel('Ldone'); Lt = a.newlabel('Lto')
        a(f's_cmp_lg_u32 {sTO}, 0'); a(f's_cbranch_scc1 {Ld}')
        a(f's_mov_b32 {sT7}, 0')
        a.label(Lp)
        if voff is None:
            a(f'buffer_load_dword {vt}, off, {srd}, {soff} {sc}')
        else:
            a(f'buffer_load_dword {vt}, {voff}, {srd}, {soff} offen {sc}')
        a('s_waitcnt vmcnt(0)')
        a(f'v_cmp_ne_u32 vcc, {expect}, {vt}')
        a(f's_add_u32 {sT7}, {sT7}, 1')
        if mask is not None:
            a(f's_and_b64 vcc, vcc, {mask}')
        a('s_cmp_eq_u64 vcc, 0')
        a(f's_cbranch_scc1 {Ld}')
        a(f's_cmp_lt_u32 {sT7}, 400000')
        a(f's_cbranch_scc1 {Lp}')
        a(f's_mov_b32 {sTO}, 1')
        a.label(Ld)

    def set_flag(s, phase_off):
        a = s.a
        a.wait_all()
        a('s_barrier')
        def w0():
            Lh = a.newlabel('Lh'); Le = a.newlabel('Le')
            a(f's_lshl_b32 {sT0}, {sM}, 2')
            a(f's_add_u32 {sT0}, {sT0}, {phase_off}')
            a('v_mov_b32 v10, 1')
            a('s_mov_b64 exec, 1')
            a(f's_cmp_lg_u32 {sHEAVY}, 0'); a(f's_cbranch_scc1 {Lh}')
            a(f'buffer_store_dword v10, off, {WS}, {sT0}')
            a(f's_branch {Le}')
            a.label(Lh)
            a('buffer_wbl2 sc1')
            a('s_waitcnt vmcnt(0)')
            a(f'buffer_store_dword v10, off, {WS}, {sT0} sc1')
            a.label(Le)
            a('s_mov_b64 exec, -1')
        s.wave_only(0, w0)

    def wait_flags(s, phase_off, mask_lo):
        a = s.a
        def w0():
            a(f's_mov_b32 s76, {mask_lo}'); a('s_mov_b32 s77, 0')
            a(f'v_and_b32 v11, 31, {vLANE}'); a('v_lshlrev_b32 v11, 2, v11')
            s.poll(WS, 'v11', phase_off, 1, mask=sP0)
            Le = a.newlabel('Le')
            a(f's_cmp_eq_u32 {sHEAVY}, 0'); a(f's_cbranch_scc1 {Le}')
            a('buffer_inv sc1'); a('s_waitcnt vmcnt(0)')
            a.label(Le)
        s.wave_only(0, w0)
        a('s_barrier')

    def prologue(s):
        a = s.a
        a('s_cmp_ge_u32 s2, 256'); a('s_cbranch_scc1 L_end')
        a('s_load_dwordx2 s[32:33], s[0:1], 0')
        a('s_load_dwordx2 s[36:37], s[0:1], 8')
        a('s_load_dwordx2 s[40:41], s[0:1], 16')
        a('s_load_dwordx2 s[8:9], s[0:1], 24')
        a('s_load_dwordx2 s[12:13], s[0:1], 40')
        a('s_load_dwordx2 s[16:17], s[0:1], 48')
        a('s_load_dwordx2 s[20:21], s[0:1], 56')
        a('s_load_dwordx2 s[24:25], s[0:1], 64')
        a('s_load_dwordx2 s[28:29], s[0:1], 72')
        a('s_load_dwordx2 s[4:5], s[0:1], 80')
        a(f's_getreg_b32 {sXCC}, hwreg(HW_REG_XCC_ID, 0, 4)')
        a(f's_and_b32 {sG}, s2, 7'); a(f's_lshr_b32 {sM}, s2, 3')
        a('v_lshrrev_b32 v10, 6, v0')
        a(f'v_and_b32 {vLANE}, 63, v0')
        a(f'v_readfirstlane_b32 {sW}, v10')
        for (b, n) in ((6, WS_BYTES), (10, D*D*2), (14, D*F*2), (18, D*F*2), (22, F*D*2), (26, S*D*2), (30, 256), (34, S*D*2), (38, D*3*D*2), (42, NH*DH*DH*2)):
            a(f's_mov_b32 s{b}, {n}'); a(f's_mov_b32 s{b+1}, 0x20000')
        a(f's_mov_b32 {sL}, 0'); a(f's_mov_b32 {sHEAVY}, 0'); a(f's_mov_b32 {sTO}, 0')
        a(f's_mul_i32 {sGB}, {sG}, {GS}'); a(f's_add_u32 {sGB}, {sGB}, {G0}')
        a(f's_and_b32 {sHEAD}, {sM}, 15'); a(f's_lshr_b32 {sHALF}, {sM}, 4')
        a(f's_mul_i32 {sTQ}, {sM}, 37'); a(f's_lshr_b32 {sTQ}, {sTQ}, 8')
        a(f's_mul_i32 {sT0}, {sTQ}, 7'); a(f's_sub_u32 {sCT}, {sM}, {sT0}')
        a('s_mov_b32 s96, 0'); a('s_mov_b32 s97, -1')
        if s.stamps: a(f'v_mov_b32 {vSTAMP}, 0')
        a(f'v_lshlrev_b32 {vL16}, 4, {vLANE}')
        a(f'v_lshrrev_b32 v10, 5, {vLANE}')
        a(f'v_and_b32 v11, 15, {vLANE}')
        a('v_lshrrev_b32 v12, 2, v11')
        a(f'v_bfe_u32 v13, {vLANE}, 4, 1')
        a('v_and_b32 v14, 3, v11')
        a('v_lshl_add_u32 v15, v10, 2, v12')
        a('v_lshlrev_b32 v16, 5, v13'); a('v_lshl_add_u32 v16, v14, 3, v16')
        a(f'v_lshl_add_u32 {vTR64}, v15, 6, v16')
        a('v_lshl_add_u32 v17, v15, 7, v16')
        a('v_lshrrev_b32 v18, 1, v12')
        a(f'v_lshl_add_u32 {vTR0}, v18, 6, v17')
        a('v_xor_b32 v18, 1, v18')
        a(f'v_lshl_add_u32 {vTR1}, v18, 6, v17')
        a(f'v_lshrrev_b32 v19, 3, {vLANE}')
        a(f'v_and_b32 v20, 7, {vLANE}')
        a('v_lshlrev_b32 v21, 2, v13')
        a('v_xor_b32 v20, v20, v21'); a('v_lshlrev_b32 v20, 4, v20')
        a(f'v_mul_u32_u24 {vD896}, 896, v19'); a(f'v_add_u32 {vD896}, {vD896}, v20')
        a(f'v_mul_u32_u24 {vD3584}, 3584, v19'); a(f'v_add_u32 {vD3584}, {vD3584}, v20')
        a(f'v_and_b32 v22, 31, {vLANE}'); a('v_lshlrev_b32 v22, 3, v22')
        a(f'v_mul_u32_u24 {vSTA}, 1792, v10'); a(f'v_add_u32 {vSTA}, {vSTA}, v22')
        a(f'v_lshlrev_b32 {vCS}, 4, v10')
        a('s_waitcnt lgkmcnt(0)')
        s.stamp('start')

    def p0(s):
        a = s.a
        a.c('==== P0')
        def w3():
            a('v_mov_b32 v10, 0')
            a(f's_lshl_b32 {sT0}, {sG}, 11'); a(f's_lshl_b32 {sT1}, {sM}, 2'); a(f's_add_u32 {sT0}, {sT0}, {sT1}')
            if FLAGS: a(f's_add_u32 {sT0}, {sT0}, {FLAGS}')
            a(f'v_lshlrev_b32 v11, 7, {vLANE}')
            a('s_mov_b64 exec, 0xffff')
            a(f'buffer_store_dword v10, v11, {WS}, {sT0} offen')
            a('s_waitcnt vmcnt(0)')
            a('s_mov_b64 exec, 1')
            a(f's_mul_i32 {sT1}, {sXCC}, {sXCC}'); a(f's_lshl_b32 {sT1}, {sT1}, 10'); a(f's_add_u32 {sT1}, {sT1}, {sXCC}')
            a(f's_add_u32 {sT1}, {sT1}, {1<<26}')
            a(f'v_mov_b32 v10, {sT1}')
            a(f's_lshl_b32 {sT2}, {sG}, 5')
            a(f'buffer_atomic_add v10, off, {DBG}, {sT2} sc1')
            a('s_mov_b64 exec, -1')
        s.wave_only(3, w3)
        def w2():
            a('v_mov_b32 v12, 0'); a('v_mov_b32 v13, 0'); a('v_mov_b32 v14, 0'); a('v_mov_b32 v15, 0')
            a(f's_lshl_b32 {sT0}, s2, 10'); a(f's_add_u32 {sT0}, {sT0}, {KV}')
            a(f'buffer_store_dwordx4 v[12:15], {vL16}, {WS}, {sT0} offen sc1')
            L = a.newlabel('Lz')
            a('s_cmp_ge_u32 s2, 32'); a(f's_cbranch_scc1 {L}')
            a(f's_lshl_b32 {sT0}, s2, 7'); a(f's_add_u32 {sT0}, {sT0}, {KVC}')
            a('s_mov_b64 exec, 1')
            a(f'buffer_store_dword v12, off, {WS}, {sT0} sc1')
            a('s_mov_b64 exec, -1')
            a.label(L)
        s.wave_only(2, w2)
        a(f's_mul_i32 {sT0}, {sM}, {14*2688}')
        a(f's_lshl_b32 {sT1}, {sW}, 10'); a(f's_add_u32 {sT0}, {sT0}, {sT1}')
        for n in range(10):
            a(f's_add_u32 m0, {sT1}, {n*4096}')
            a(f's_add_u32 {sT2}, {sT0}, {n*4096}')
            a(f'buffer_load_dwordx4 {vL16}, {WQKV}, {sT2} offen lds')
        a(f'v_and_b32 v10, 31, {vLANE}'); a(f'v_lshrrev_b32 v11, 5, {vLANE}')
        a('v_lshlrev_b32 v12, 1, v10'); a('v_mul_u32_u24 v13, 224, v11'); a('v_add_u32 v12, v12, v13')
        a(f's_mul_i32 {sT0}, {sHEAD}, 1568')
        a('v_mov_b32 v14, 0x40000000')
        a('v_cmp_gt_u32 vcc, 28, v10')
        a('v_cndmask_b32 v12, v14, v12, vcc')
        a(f'v_cndmask_b32 v13, v12, v14, {sUP}')
        for e in range(2):
            for b in range(2):
                for r in range(4):
                    reg = 64 + 8*e + 4*b + r
                    va = 'v13' if (e == 1 and b == 1) else 'v12'
                    a(f'buffer_load_ushort v{reg}, {va}, {WPHI}, {sT0} offen offset:{(16*e+8*b+r)*56}')
        def x0_load():
            a(f's_lshl_b32 {sT0}, {sW}, 6'); a(f'v_add_u32 v16, {sT0}, {vLANE}')
            a('v_and_b32 v17, 7, v16'); a('v_lshrrev_b32 v18, 3, v16')
            a(f's_lshl_b32 {sT1}, {sG}, 8'); a(f's_lshl_b32 {sT2}, {sM}, 3'); a(f's_add_u32 {sT1}, {sT1}, {sT2}')
            a(f's_mul_i32 {sT1}, {sT1}, 896')
            a('v_mul_u32_u24 v19, 896, v17'); a('v_lshl_add_u32 v19, v18, 6, v19')
            a('v_mov_b32 v20, 0x40000000'); a('v_cmp_gt_u32 vcc, 112, v16'); a('v_cndmask_b32 v19, v20, v19, vcc')
            for e in range(2):
                for hh in range(2):
                    R = 32 + 4*(2*e+hh)
                    a(f'buffer_load_dwordx2 v[{R}:{R+1}], v19, {AX}, {sT1} offen offset:{32*e+8*hh}')
                    a(f'buffer_load_dwordx2 v[{R+2}:{R+3}], v19, {AX}, {sT1} offen offset:{32*e+16+8*hh}')
        s.wave_in(0, 2, x0_load)
        a('s_waitcnt vmcnt(0)')
        for i in range(8):
            a(f'v_lshl_or_b32 v{64+2*i}, v{65+2*i}, 16, v{64+2*i}')
            a(f'v_accvgpr_write_b32 a{248+i}, v{64+2*i}')
        def x0_store():
            a('v_mov_b32 v21, 0'); a('v_mov_b32 v22, 0'); a('v_mov_b32 v23, 0x3f803f80')
            for i in range(16):
                a(f'v_dot2c_f32_bf16 v21, v{32+i}, v23')
                a(f'v_dot2c_f32_bf16 v22, v{32+i}, v{32+i}')
            a(f's_lshr_b32 {sT0}, {sM}, 2'); a(f's_mul_i32 {sT1}, {sT0}, 28672'); a(f's_add_u32 {sT1}, {sT1}, {sGB}')
            a(f's_add_u32 {sT1}, {sT1}, {X0}')
            a(f's_and_b32 {sT2}, {sM}, 3'); a(f's_lshl_b32 {sT2}, {sT2}, 3')
            a(f'v_add_u32 v24, {sT2}, v17')
            a('v_lshlrev_b32 v25, 4, v24'); a('v_lshl_add_u32 v25, v18, 11, v25')
            a('v_mov_b32 v20, 0x40000000'); a('v_cmp_gt_u32 vcc, 112, v16'); a('v_cndmask_b32 v25, v20, v25, vcc')
            for e in range(2):
                for hh in range(2):
                    R = 32 + 4*(2*e+hh)
                    a(f'buffer_store_dwordx4 v[{R}:{R+3}], v25, {WS}, {sT1} offen offset:{e*1024+hh*512}')
            a(f's_mul_i32 {sT1}, {sT0}, 3584'); a(f's_add_u32 {sT1}, {sT1}, {sGB}'); a(f's_add_u32 {sT1}, {sT1}, {ST0}')
            a('v_lshlrev_b32 v26, 3, v24'); a('v_lshl_add_u32 v26, v18, 8, v26')
            a('v_cndmask_b32 v26, v20, v26, vcc')
            a('v_mov_b32 v28, v21'); a('v_mov_b32 v29, v22')
            a(f'buffer_store_dwordx2 v[28:29], v26, {WS}, {sT1} offen')
        s.wave_in(0, 2, x0_store)
        a('s_barrier')
        a(f'v_lshrrev_b32 v10, 2, {vLANE}'); a(f'v_and_b32 v11, 3, {vLANE}')
        a('v_mul_u32_u24 v12, 2688, v10'); a('v_lshl_add_u32 v12, v11, 4, v12')
        a(f's_mul_i32 {sT0}, {sW}, 224'); a(f'v_add_u32 v12, {sT0}, v12')
        a(f'v_cmp_gt_u32 vcc, 56, {vLANE}'); a('v_mov_b32 v13, 0')
        a('v_cndmask_b32 v12, v13, v12, vcc')
        a('v_mov_b32 v14, 0x40000000'); a(f'v_cndmask_b32 v14, v14, {vL16}, vcc')
        a('v_cmp_eq_u32 s[78:79], 3, v11')
        a(f's_mul_i32 {sT1}, {sW}, {4*WQH}'); a(f's_mul_i32 {sT2}, {sM}, 896'); a(f's_add_u32 {sT1}, {sT1}, {sT2}')
        a(f's_add_u32 {sT1}, {sT1}, {sGB}')
        if WQ: a(f's_add_u32 {sT1}, {sT1}, {WQ}')
        k = 0
        for hl in range(4):
            for mat, slot in ((1, 0), (2, 1), (0, 2)):
                R = 32 + 4*k
                a.ds(f'ds_read_b64 v[{R}:{R+1}], v12 offset:{mat*896+56*hl}', ('rp', k))
                a.ds(f'ds_read_b64 v[{R+2}:{R+3}], v12 offset:{mat*896+56*hl+8}', ('rp', k))
                k += 1
                if k % 4 == 0:
                    a.wait_lg0()
        k = 0
        for hl in range(4):
            for mat, slot in ((1, 0), (2, 1), (0, 2)):
                R = 32 + 4*k
                a(f'v_cndmask_b32 v{R+2}, v{R+2}, v13, s[78:79]')
                a(f'v_cndmask_b32 v{R+3}, v{R+3}, v13, s[78:79]')
                a(f's_add_u32 {sT2}, {sT1}, {hl*WQH + slot*28672}')
                a(f'buffer_store_dwordx4 v[{R}:{R+3}], v14, {WS}, {sT2} offen')
                k += 1
        def w0():
            a(f's_lshl_b32 {sT2}, {sG}, 5')
            Lp = a.newlabel('Lreg'); Ld = a.newlabel('Lregd')
            a(f's_mov_b32 {sT7}, 0')
            a.label(Lp)
            a(f'buffer_load_dword v10, off, {DBG}, {sT2} sc1')
            a('s_waitcnt vmcnt(0)')
            a(f'v_readfirstlane_b32 {sT3}, v10')
            a(f's_add_u32 {sT7}, {sT7}, 1')
            a(f's_lshr_b32 {sT4}, {sT3}, 26')
            a(f's_cmp_eq_u32 {sT4}, 32'); a(f's_cbranch_scc1 {Ld}')
            a(f's_cmp_lt_u32 {sT7}, 400000'); a(f's_cbranch_scc1 {Lp}')
            a(f's_mov_b32 {sTO}, 1')
            a.label(Ld)
            a(f's_mul_i32 {sT1}, {sXCC}, {sXCC}'); a(f's_lshl_b32 {sT1}, {sT1}, 10'); a(f's_add_u32 {sT1}, {sT1}, {sXCC}')
            a(f's_lshl_b32 {sT1}, {sT1}, 5')
            a(f's_and_b32 {sT3}, {sT3}, {(1<<26)-1}')
            a(f's_cmp_lg_u32 {sT3}, {sT1}'); a(f's_cselect_b32 {sHEAVY}, 1, 0')
            if s.force_heavy: a(f's_mov_b32 {sHEAVY}, 1')
            Le = a.newlabel('Le')
            a(f's_cmp_eq_u32 {sHEAVY}, 0'); a(f's_cbranch_scc1 {Le}')
            a('v_mov_b32 v10, 0')
            a(f's_lshl_b32 {sT0}, {sG}, 11'); a(f's_lshl_b32 {sT1}, {sM}, 2'); a(f's_add_u32 {sT0}, {sT0}, {sT1}')
            if FLAGS: a(f's_add_u32 {sT0}, {sT0}, {FLAGS}')
            a(f'v_lshlrev_b32 v11, 7, {vLANE}')
            a('s_mov_b64 exec, 0xffff')
            a(f'buffer_store_dword v10, v11, {WS}, {sT0} offen sc1')
            a('s_waitcnt vmcnt(0)')
            a('s_mov_b64 exec, 1')
            a('v_mov_b32 v10, 1')
            a(f's_add_u32 {sT0}, {sT2}, 8')
            a(f'buffer_atomic_add v10, off, {DBG}, {sT0} sc1')
            a('s_mov_b64 exec, -1')
            s.poll(DBG, None, sT0, 32)
            a.label(Le)
            a(f'v_mov_b32 v10, {sHEAVY}'); a(f'v_mov_b32 v11, {M_MODE}')
            a('ds_write_b32 v11, v10')
            a('s_waitcnt lgkmcnt(0)')
        s.wave_only(0, w0)
        a.wait_all()
        a('s_barrier')
        a(f'v_mov_b32 v11, {M_MODE}'); a('ds_read_b32 v10, v11'); a('s_waitcnt lgkmcnt(0)')
        a(f'v_readfirstlane_b32 {sHEAVY}, v10')
        s.stamp('p0 work done')
        a(f's_lshl_b32 {sFL}, {sG}, 11')
        if FLAGS: a(f's_add_u32 {sFL}, {sFL}, {FLAGS}')
        s.set_flag(sFL)
        s.wait_flags(sFL, -1)
        def gz():
            L = a.newlabel('Lgz')
            a(f's_cmp_lg_u32 {sM}, 0'); a(f's_cbranch_scc1 {L}')
            a('v_mov_b32 v10, 1'); a('s_mov_b64 exec, 1')
            a(f'buffer_atomic_add v10, off, {DBG}, 4 sc1' if False else f's_mov_b32 {sT0}, 4')
            a(f'buffer_atomic_add v10, off, {DBG}, {sT0} sc1')
            a('s_mov_b64 exec, -1')
            a.label(L)
        s.wave_only(3, gz)
        s.stamp('p0 hop done')

    def finish(s):
        a = s.a
        a.label('L_fin')
        if s.stamps:
            def w0():
                a(f's_lshl_b32 {sT0}, s2, 8'); a(f's_add_u32 {sT0}, {sT0}, {STAMP}')
                a(f'v_lshlrev_b32 v10, 2, {vLANE}')
                a(f'buffer_store_dword {vSTAMP}, v10, {WS}, {sT0} offen')
            s.wave_only(0, w0)
        a('s_waitcnt vmcnt(0) lgkmcnt(0)')
        a.label('L_end')
        a('s_endpgm')

    def build(s):
        s.prologue()
        s.p0()
        if s.stop_after != 'p0':
            from phases import Phases
            Phases(s).run()
        s.finish()
        body = s.a.finalize(True)
        hdr = open('interleave_layers__linear_kernel_hedgehog__geglu_ffn__prompt.s.ref').read().split('\n') if False else None
        head = HEADER
        return head + body + '\n' + FOOTER

HEADER = f'''; Persistent single-launch kernel: 256 workgroups (one per CU), 8 groups of 32 that share an L2.
; @launch grid=(256,1,1) block=(256,1,1) lds={LDS_TOTAL}
.amdgcn_target "amdgcn-amd-amdhsa--gfx950"
.text
.globl {NAME}
.p2align 8
.type {NAME},@function
{NAME}:
'''
FOOTER = f'''.section .rodata,"a"
.p2align 6
.amdhsa_kernel {NAME}
  .amdhsa_next_free_vgpr 512
  .amdhsa_next_free_sgpr 102
  .amdhsa_accum_offset 256
  .amdhsa_group_segment_fixed_size 0
  .amdhsa_kernarg_size 88
  .amdhsa_user_sgpr_count 2
  .amdhsa_user_sgpr_kernarg_segment_ptr 1
  .amdhsa_system_sgpr_workgroup_id_x 1
.end_amdhsa_kernel
'''

if __name__ == '__main__':
    import argparse
    ap = argparse.ArgumentParser()
    ap.add_argument('-o', default='k.s')
    ap.add_argument('--stop', default=None)
    ap.add_argument('--stamps', action='store_true')
    ap.add_argument('--heavy', action='store_true')
    args = ap.parse_args()
    g = Gen(stop_after=args.stop, stamps=args.stamps, force_heavy=args.heavy)
    txt = g.build()
    open(args.o, 'w').write(txt)
    print('written', args.o, len(txt), 'bytes;', 'stamps:', g.stamp_names)
```

```python
import re

TRANS = ('v_exp_f32','v_log_f32','v_rcp_f32','v_rsq_f32','v_sqrt_f32','v_sin_f32','v_cos_f32','v_rcp_iflag_f32')

def _regs(tok):
    tok = tok.strip()
    neg = tok.startswith('-')
    if neg: tok = tok[1:]
    if tok.startswith('abs(') and tok.endswith(')'): tok = tok[4:-1]
    if tok.startswith('|') and tok.endswith('|'): tok = tok[1:-1]
    m = re.fullmatch(r'([vas])(\d+)', tok)
    if m: return [(m.group(1), int(m.group(2)))]
    m = re.fullmatch(r'([vas])\[(\d+):(\d+)\]', tok)
    if m: return [(m.group(1), i) for i in range(int(m.group(2)), int(m.group(3))+1)]
    if tok == 'vcc': return [('s', 'vcc_lo'), ('s', 'vcc_hi')]
    if tok == 'vcc_lo': return [('s','vcc_lo')]
    if tok == 'vcc_hi': return [('s','vcc_hi')]
    if tok == 'exec': return [('s','exec_lo'), ('s','exec_hi')]
    if tok == 'exec_lo': return [('s','exec_lo')]
    if tok == 'exec_hi': return [('s','exec_hi')]
    if tok == 'm0': return [('s','m0')]
    return []

class Ins:
    __slots__ = ('text','op','ops','rd','wr','cls','mods','srcA','srcB','srcC','passes')
    def __init__(s, text):
        s.text = text
        t = text.split(';')[0].strip()
        m = re.match(r'(\S+)\s*(.*)', t)
        s.op = m.group(1)
        for suf in ('_e32','_e64','_dpp','_sdwa'):
            if s.op.endswith(suf) and not s.op.startswith('s_'):
                s.op = s.op[:-len(suf)]
        rest = m.group(2)
        parts = []; depth = 0; cur = ''
        for ch in rest:
            if ch in '[(': depth += 1
            if ch in '])': depth -= 1
            if ch == ',' and depth == 0:
                parts.append(cur.strip()); cur = ''
            else: cur += ch
        if cur.strip(): parts.append(cur.strip())
        s.mods = ''
        if parts:
            last = parts[-1].split()
            parts[-1] = last[0]
            s.mods = ' '.join(last[1:])
        s.ops = parts
        s.rd = set(); s.wr = set(); s.srcA = s.srcB = s.srcC = None; s.passes = 0
        s._classify(t)
    def _classify(s, t):
        op = s.op; o = s.ops
        R = lambda i: _regs(o[i]) if i < len(o) else []
        if op.startswith('v_mfma'):
            s.cls = 'mfma'
            s.passes = 8 if '32x32' in op else 4
            s.wr.update(R(0)); s.srcA = set(R(1)); s.srcB = set(R(2)); s.srcC = set(R(3))
            s.rd = s.srcA | s.srcB | s.srcC
        elif op.startswith('v_'):
            s.cls = 'trans' if op in TRANS else 'valu'
            if op.startswith('v_cmp'):
                s.wr.update(R(0))
                for i in range(1, len(o)): s.rd.update(R(i))
                if op.startswith('v_cmpx'): s.wr.update(_regs('exec'))
            elif op in ('v_readfirstlane_b32','v_readlane_b32'):
                s.wr.update(R(0))
                for i in range(1, len(o)): s.rd.update(R(i))
            elif op in ('v_add_co_u32','v_sub_co_u32','v_subrev_co_u32'):
                s.wr.update(R(0)); s.wr.update(R(1))
                for i in range(2, len(o)): s.rd.update(R(i))
            elif op in ('v_addc_co_u32','v_subb_co_u32'):
                s.wr.update(R(0)); s.wr.update(R(1))
                for i in range(2, len(o)): s.rd.update(R(i))
            elif op in ('v_permlane32_swap_b32','v_permlane16_swap_b32'):
                s.wr.update(R(0)); s.wr.update(R(1)); s.rd.update(R(0)); s.rd.update(R(1))
            else:
                s.wr.update(R(0))
                for i in range(1, len(o)): s.rd.update(R(i))
                if op in ('v_fmac_f32','v_dot2c_f32_bf16','v_writelane_b32','v_pk_fmac_f16') or 'dpp' in t or 'row_' in s.mods or 'quad_perm' in s.mods:
                    s.rd.update(R(0))
                if op == 'v_cndmask_b32' and len(o) == 3: s.rd.update(_regs('vcc'))
                if op == 'v_cndmask_b32' and len(o) == 4: pass
        elif op.startswith('ds_'):
            s.cls = 'ds'
            if op.startswith('ds_read') or op.startswith('ds_bpermute') or op.startswith('ds_swizzle') or op.startswith('ds_permute'):
                s.wr.update(R(0))
                for i in range(1, len(o)): s.rd.update(R(i))
            else:
                for i in range(len(o)): s.rd.update(R(i))
        elif op.startswith('buffer_') or op.startswith('global_'):
            s.cls = 'vmem'
            islds = (' lds' in (' ' + s.mods)) or (s.mods.endswith('lds'))
            if op in ('buffer_wbl2','buffer_inv'):
                pass
            elif op.startswith('buffer_load'):
                if islds:
                    for i in range(len(o)): s.rd.update(R(i))
                    s.rd.add(('s','m0'))
                else:
                    s.wr.update(R(0))
                    if 'd16' in op: s.rd.update(R(0))
                    for i in range(1, len(o)): s.rd.update(R(i))
            elif op.startswith('global_load'):
                s.wr.update(R(0))
                for i in range(1, len(o)): s.rd.update(R(i))
            elif op.startswith('buffer_store') or op.startswith('buffer_atomic'):
                for i in range(len(o)): s.rd.update(R(i))
                if op.startswith('buffer_atomic') and 'sc0' in s.mods: s.wr.update(R(0))
            else:
                raise ValueError('unhandled vmem ' + t)
        elif op.startswith('s_'):
            s.cls = 'salu'
            if op in ('s_waitcnt','s_barrier','s_nop','s_endpgm','s_sleep','s_setprio','s_branch') or op.startswith('s_cbranch'):
                pass
            elif op.startswith('s_cmp') or op.startswith('s_bitcmp'):
                for i in range(len(o)): s.rd.update(R(i))
            elif op == 's_getpc_b64':
                s.wr.update(R(0))
            elif op.startswith('s_load') or op in ('s_memtime','s_memrealtime'):
                s.cls = 'smem'
                s.wr.update(R(0))
                for i in range(1, len(o)): s.rd.update(R(i))
            else:
                s.wr.update(R(0))
                for i in range(1, len(o)): s.rd.update(R(i))
                if 'saveexec' in op: s.wr.update(_regs('exec')); s.rd.update(_regs('exec'))
        else:
            raise ValueError('unknown op ' + t)

def is_wide_store(i):
    return i.cls == 'vmem' and (i.op in ('buffer_store_dwordx4','buffer_store_dwordx3','global_store_dwordx4','global_store_dwordx3'))

def required_wait(prod, cons):
    need = 0
    pw, cr, cw = prod.wr, cons.rd, cons.wr
    pv = prod.cls in ('valu','trans')
    cv = cons.cls in ('valu','trans')
    if pv:
        vw = {r for r in pw if r[0] in 'va'}
        sw = {r for r in pw if r[0] == 's'}
        if cons.cls == 'mfma' and vw & cr: need = max(need, 2)
        if cv and vw & cr:
            if cons.op in ('v_readlane_b32','v_readfirstlane_b32'): need = max(need, 1)
            if cons.op.startswith('v_permlane'): need = max(need, 2)
            if 'row_' in cons.mods or 'quad_perm' in cons.mods or 'dpp' in cons.text.split()[0]: need = max(need, 2)
            if prod.cls == 'trans' and cons.cls != 'trans': need = max(need, 1)
            if prod.cls == 'trans' and cons.cls == 'trans': need = max(need, 1)
        if sw:
            rd = set(cr)
            if cons.op == 'v_cndmask_b32' and len(cons.ops) == 3: rd |= set(_regs('vcc'))
            if cv and sw & rd:
                need = max(need, 2)
                if cons.op in ('v_readlane_b32','v_writelane_b32'): need = max(need, 4)
            if cons.cls == 'vmem' and sw & cr: need = max(need, 5)
            if cons.cls == 'mfma' and sw & set(_regs('exec')): need = max(need, 4)
            if cons.cls in ('salu','smem') and sw & cr: need = max(need, 1)
            if cons.op.startswith('s_cbranch_vcc') and sw & set(_regs('vcc')): need = max(need, 5)
            if (sw & set(_regs('exec'))) and cv: need = max(need, 4)
    if prod.op.startswith('v_dot'):
        vw = {r for r in pw if r[0] in 'va'}
        if cons.op == prod.op:
            srcs = set()
            for i in range(1, len(cons.ops)): srcs.update(_regs(cons.ops[i]))
            if vw & srcs: need = max(need, 3)
        elif vw & (cr | cw): need = max(need, 3)
    if prod.cls == 'mfma':
        D = pw
        p8 = prod.passes == 8
        if cons.cls == 'mfma':
            if D & (cons.srcA | cons.srcB): need = max(need, 12 if p8 else 8)
            if D & cons.srcC:
                if not (cons.srcC == D and cons.passes == prod.passes): need = max(need, 10 if p8 else 6)
            elif D & cons.wr:
                need = max(need, 10 if p8 else 6)
        elif cons.cls in ('valu','trans','vmem','ds'):
            if D & (cr | cw): need = max(need, 12 if p8 else 8)
        if cv and prod.srcC and (prod.srcC & cw): need = max(need, 7 if p8 else 3)
    if is_wide_store(prod):
        data = set(_regs(prod.ops[0]))
        if data & cw:
            need = max(need, 2 if cv else 1)
    if prod.cls == 'ds' and prod.op in ('ds_write_b128','ds_write_b96'):
        pass
    if prod.cls == 'salu':
        if ('s','m0') in pw and cons.cls == 'vmem' and ('s','m0') in cr: need = max(need, 1)
        if (pw & set(_regs('exec'))) and (cons.op.startswith('v_permlane') or 'row_' in cons.mods): need = max(need, 1)
    return need

MAXW = 20

class Asm:
    def __init__(s):
        s.items = []
        s.vm = []
        s.lg = []
        s.nlab = 0
    def __call__(s, text):
        for line in text.split('\n'):
            line = line.strip()
            if not line: continue
            s.items.append(('i', line))
    def c(s, text): s.items.append(('c', text))
    def label(s, name): s.items.append(('l', name))
    def rawlabel(s, name): s.items.append(('r', name))
    def newlabel(s, base='L'):
        s.nlab += 1
        return f'{base}_{s.nlab}'
    def vmem(s, text, tag=None):
        s(text); s.vm.append(tag)
        assert len(s.vm) <= 63, 'too many outstanding vmem'
    def ds(s, text, tag=None):
        s(text); s.lg.append(tag)
    def wait_vm(s, tag):
        idx = [i for i, t in enumerate(s.vm) if t == tag]
        if not idx: return
        n = len(s.vm) - 1 - idx[-1]
        s(f's_waitcnt vmcnt({n})')
        s.vm = s.vm[idx[-1]+1:]
    def wait_lg(s, tag):
        idx = [i for i, t in enumerate(s.lg) if t == tag]
        if not idx: return
        n = len(s.lg) - 1 - idx[-1]
        if n > 14:
            n = 14
            s(f's_waitcnt lgkmcnt({n})')
            s.lg = s.lg[len(s.lg)-n:]
            idx = [i for i, t in enumerate(s.lg) if t == tag]
            assert not idx
            return
        s(f's_waitcnt lgkmcnt({n})')
        s.lg = s.lg[idx[-1]+1:]
    def wait_vm0(s):
        s('s_waitcnt vmcnt(0)'); s.vm = []
    def wait_lg0(s):
        s('s_waitcnt lgkmcnt(0)'); s.lg = []
    def wait_all(s):
        s('s_waitcnt vmcnt(0) lgkmcnt(0)'); s.vm = []; s.lg = []
    def finalize(s, verbose=False):
        out = []
        hist = []
        pos = 0
        nnop = 0
        def pending_need():
            need = 0
            for (p, ppos) in hist:
                d = pos - ppos - 1
                w = 0
                if p.cls == 'mfma': w = 12 if p.passes == 8 else 8
                elif p.cls in ('valu','trans'):
                    w = 5 if any(r[0] == 's' for r in p.wr) else (3 if p.op.startswith('v_dot') else 2)
                elif is_wide_store(p): w = 2
                elif p.cls == 'salu' and ('s','m0') in p.wr: w = 1
                need = max(need, w - d)
            return need
        def emit_nops(n):
            nonlocal pos, nnop
            while n > 0:
                k = min(n, 16)
                out.append(f'\ts_nop {k-1}')
                pos += k; n -= k; nnop += k
        for kind, text in s.items:
            if kind == 'c':
                out.append(f'\t; {text}'); continue
            if kind == 'r':
                out.append(f'{text}:'); continue
            if kind == 'l':
                emit_nops(pending_need())
                hist.clear()
                out.append(f'{text}:'); continue
            ins = Ins(text)
            if ins.op == 's_nop':
                out.append('\t' + text); pos += int(ins.ops[0], 0) + 1; continue
            need = 0
            for (p, ppos) in hist:
                d = pos - ppos - 1
                if d >= MAXW: continue
                r = required_wait(p, ins)
                need = max(need, r - d)
            isbr = ins.op.startswith('s_cbranch') or ins.op in ('s_branch','s_setpc_b64')
            if isbr:
                need = max(need, pending_need() - 0)
            emit_nops(need)
            out.append('\t' + text)
            hist.append((ins, pos)); pos += 1
            while hist and pos - hist[0][1] > MAXW: hist.pop(0)
        if verbose: print('nop states inserted:', nnop)
        return '\n'.join(out)
```

```python
from gen import *
import gen as G
import math, os
from collections import deque

C0 = -2.0*LOG2E*math.sqrt(2.0/math.pi)
C1 = C0*0.044715
PRET = int(os.environ.get('PRET', '0'))
IDLEW = int(os.environ.get('IDLEW', '1'))
LDSC = os.environ.get('LDSC', 'sc1')

L_WG = 0; L_WU = 104448; L_WO = 45056; WOW = 14336; L_KVF = 40960
RED2 = 45056
RED4 = 86016
RING = 36864; NSLOT = 36
vPHIW='v240'; vVIW='v241'; vPA0='v242'; vPA1='v243'; vVB0='v244'; vVB1='v245'; vKVO='v246'; vL128='v247'
vDUM='v255'

class Side:
    def __init__(s, items=()): s.q = deque(items)
    def emit(s, a, n=1):
        for _ in range(n):
            if not s.q: return
            it = s.q.popleft()
            if callable(it): it()
            else: a(it)
    def flush(s, a): s.emit(a, len(s.q))
    def __len__(s): return len(s.q)

def run_list(a, L, side=None, every=0):
    cnt = 0
    for it in L:
        if callable(it): it()
        else: a(it)
        cnt += 1
        if side is not None and every and cnt % every == 0: side.emit(a)
    if side is not None: side.flush(a)

class Phases:
    def __init__(s, g):
        s.g = g; s.a = g.a
        s.stop = g.stop_after

    def persistent_addrs(s):
        a = s.a
        a(f'v_and_b32 v13, 31, {vLANE}'); a(f's_lshl_b32 {sT0}, {sW}, 5'); a(f'v_add_u32 v14, {sT0}, v13')
        a(f'v_lshrrev_b32 v20, 5, {vLANE}')
        a('v_bfe_u32 v21, v13, 1, 1'); a('v_lshlrev_b32 v21, 3, v21')
        a('v_bfe_u32 v22, v13, 3, 1'); a('v_lshl_or_b32 v21, v22, 2, v21')
        a('v_bfe_u32 v22, v13, 2, 1'); a('v_lshl_or_b32 v21, v22, 1, v21')
        a('v_and_b32 v22, 1, v13'); a('v_or_b32 v21, v21, v22')
        a('v_xor_b32 v21, v21, v20')
        a('v_lshlrev_b32 v21, 3, v21'); a('v_lshl_add_u32 v21, v14, 7, v21')
        a(f'v_add_u32 {vPHIW}, {L_PHI}, v21')
        a('v_bfe_u32 v21, v14, 1, 3'); a('v_xor_b32 v21, v21, v20'); a('v_lshlrev_b32 v21, 3, v21')
        a('v_lshl_add_u32 v21, v14, 6, v21'); a(f'v_add_u32 {vVIW}, {L_VI}, v21')
        a(f'v_and_b32 v13, 15, {vLANE}'); a('v_lshrrev_b32 v14, 2, v13')
        a('v_and_b32 v22, 3, v13'); a(f'v_bfe_u32 v23, {vLANE}, 4, 1')
        a('v_lshl_add_u32 v24, v23, 2, v22')
        a('v_lshl_add_u32 v25, v20, 2, v14')
        a('v_lshrrev_b32 v26, 1, v14'); a('v_lshlrev_b32 v26, 3, v26')
        a('v_lshl_or_b32 v26, v20, 1, v26'); a('v_and_b32 v27, 1, v14'); a('v_or_b32 v26, v26, v27')
        a(f's_and_b32 {sT0}, {sW}, 1'); a(f's_lshl_b32 {sT0}, {sT0}, 3'); a(f'v_add_u32 v27, {sT0}, v24')
        a('v_xor_b32 v27, v27, v26')
        a('v_lshlrev_b32 v27, 3, v27'); a('v_lshl_add_u32 v27, v25, 7, v27')
        a(f'v_add_u32 {vPA0}, {L_PHI}, v27')
        a(f'v_xor_b32 v27, 32, {vPA0}'); a(f'v_add_u32 {vPA1}, {8*128}, v27')
        a('v_lshrrev_b32 v26, 1, v14'); a('v_lshl_or_b32 v26, v20, 1, v26')
        a('v_xor_b32 v26, v26, v24'); a('v_lshlrev_b32 v26, 3, v26')
        a('v_lshl_add_u32 v26, v25, 6, v26'); a(f'v_add_u32 {vVB0}, {L_VI}, v26')
        a(f'v_xor_b32 v27, 32, {vVB0}'); a(f'v_add_u32 {vVB1}, {8*64}, v27')
        a(f'v_and_b32 v13, 31, {vLANE}'); a('v_lshlrev_b32 v13, 2, v13'); a(f'v_lshl_add_u32 {vKVO}, v20, 9, v13')
        a(f'v_lshlrev_b32 {vL128}, 7, {vLANE}')

    def pretouch(s, soff, nlines, tag='pt'):
        if not PRET: return
        a = s.a
        if nlines < 64: a(f's_mov_b64 exec, {hex((1 << nlines)-1)}')
        a.vmem(f'buffer_load_dword {vDUM}, {vL128}, {WS}, {soff} offen', tag)
        if nlines < 64: a('s_mov_b64 exec, -1')

    def stats_load_items(s, dst, sbase, tag):
        a = s.a
        return [(lambda i=i: a.vmem(f'buffer_load_dwordx2 v[{dst+2*i}:{dst+2*i+1}], {vSTA}, {WS}, {sbase} offen offset:{i*256} {LDSC}', tag)) for i in range(7)]

    def stats_list(s, src, vnmean, vrstd, t0, t1):
        S_, Q_ = f'v{src}', f'v{src+1}'
        L = []
        for i in range(1, 7):
            L += [f'v_add_f32 {S_}, {S_}, v{src+2*i}', f'v_add_f32 {Q_}, {Q_}, v{src+2*i+1}']
        L += [f'v_mov_b32 {t0}, {S_}', f'v_mov_b32 {t1}, {Q_}',
              f'v_permlane32_swap_b32 {S_}, {t0}', f'v_permlane32_swap_b32 {Q_}, {t1}',
              f'v_add_f32 {S_}, {S_}, {t0}', f'v_add_f32 {Q_}, {Q_}, {t1}',
              f'v_mul_f32 {vnmean}, {fbits(-1.0/448)}, {S_}', f'v_mul_f32 {Q_}, {fbits(1.0/448)}, {Q_}',
              f'v_fma_f32 {Q_}, -{vnmean}, {vnmean}, {Q_}', f'v_max_f32 {Q_}, 0, {Q_}',
              f'v_add_f32 {Q_}, {fbits(1e-5)}, {Q_}', f'v_rsq_f32 {vrstd}, {Q_}']
        return L

    def cs_read_items(s, dst, lds_off, tag, vaddr):
        a = s.a
        return [(lambda g=g: a.ds(f'ds_read_b128 v[{dst+4*g}:{dst+4*g+3}], {vaddr} offset:{lds_off+32*g}', tag)) for g in range(4)]

    def colsum(s, reads_fn, nks, dst, lds_out, va='v10'):
        a = s.a
        for i in range(4): a(f'v_mov_b32 v{dst+16+i}, 0x3f803f80')
        F = dst + 20
        reads_fn(0, F, ('cs', 0)); reads_fn(1, F+4, ('cs', 1))
        for ks in range(nks):
            if ks+2 < nks: reads_fn(ks+2, F + 4*((ks+2) % 3), ('cs', ks+2))
            a.wait_lg(('cs', ks))
            R = F + 4*(ks % 3)
            c = '0' if ks == 0 else f'v[{dst}:{dst+15}]'
            a(f'v_mfma_f32_32x32x16_bf16 v[{dst}:{dst+15}], v[{R}:{R+3}], v[{dst+16}:{dst+19}], {c}')
        a(f'v_add_u32 {va}, {lds_out}, {vCS}')
        a('s_mov_b32 exec_lo, 1'); a('s_mov_b32 exec_hi, 1')
        for g in range(4):
            a.ds(f'ds_write_b128 {va}, v[{dst+4*g}:{dst+4*g+3}] offset:{32*g}', 'csw')
        a('s_mov_b64 exec, -1')
        a.wait_lg0()

    def softmax_list(s, P, vC, E1, E2, dP, dM, t):
        L = []
        for r in range(12, 16):
            L.append(f'v_cndmask_b32 v{P+r}, v{P+r}, v{P}, {sUP}')
        mx, mn, t2, t3 = f'v{t}', f'v{t+1}', f'v{t+2}', f'v{t+3}'
        L += [f'v_max3_f32 {mx}, v{P}, v{P+1}, v{P+2}', f'v_min3_f32 {mn}, v{P}, v{P+1}, v{P+2}',
              f'v_max3_f32 {t2}, v{P+3}, v{P+4}, v{P+5}', f'v_min3_f32 {t3}, v{P+3}, v{P+4}, v{P+5}']
        for r in (6, 10):
            L += [f'v_max3_f32 {mx}, {mx}, v{P+r}, v{P+r+1}', f'v_min3_f32 {mn}, {mn}, v{P+r}, v{P+r+1}',
                  f'v_max3_f32 {t2}, {t2}, v{P+r+2}, v{P+r+3}', f'v_min3_f32 {t3}, {t3}, v{P+r+2}, v{P+r+3}']
        L += [f'v_max3_f32 {mx}, {mx}, v{P+14}, v{P+15}', f'v_min3_f32 {mn}, {mn}, v{P+14}, v{P+15}',
              f'v_max_f32 {mx}, {mx}, {t2}', f'v_min_f32 {mn}, {mn}, {t3}',
              f'v_mov_b32 {t2}, {mx}', f'v_mov_b32 {t3}, {mn}',
              f'v_permlane32_swap_b32 {mx}, {t2}', f'v_permlane32_swap_b32 {mn}, {t3}',
              f'v_max_f32 {mx}, {mx}, {t2}', f'v_min_f32 {mn}, {mn}, {t3}',
              f'v_mul_f32 {mx}, {mx}, {vC}', f'v_mul_f32 {mn}, {mn}, {vC}']
        c = int(vC[1:]); assert c % 2 == 0 and t % 2 == 0
        cp = f'v[{c}:{c+1}]'; tp = f'v[{t}:{t+1}]'
        for r in range(0, 16, 2):
            L.append(f'v_pk_fma_f32 v[{E1+r}:{E1+r+1}], v[{P+r}:{P+r+1}], {cp}, {tp} op_sel:[0,0,0] op_sel_hi:[1,0,0] neg_lo:[0,0,1] neg_hi:[0,0,1]')
            L.append(f'v_pk_fma_f32 v[{E2+r}:{E2+r+1}], v[{P+r}:{P+r+1}], {cp}, {tp} op_sel:[0,0,1] op_sel_hi:[1,0,1] neg_lo:[1,0,0] neg_hi:[1,0,0]')
        for r in range(16):
            L += [f'v_exp_f32 v{E1+r}, v{E1+r}', f'v_exp_f32 v{E2+r}, v{E2+r}']
        for r in range(12, 16):
            L += [f'v_cndmask_b32 v{E1+r}, v{E1+r}, 0, {sUP}', f'v_cndmask_b32 v{E2+r}, v{E2+r}, 0, {sUP}']
        A1 = f'v[{t}:{t+1}]'; A2 = f'v[{t+2}:{t+3}]'; B1 = f'v[{t+4}:{t+5}]'; B2 = f'v[{t+6}:{t+7}]'
        pr = lambda b, r: f'v[{b+r}:{b+r+1}]'
        L += [f'v_pk_add_f32 {A1}, {pr(E1,0)}, {pr(E1,2)}', f'v_pk_add_f32 {A2}, {pr(E2,0)}, {pr(E2,2)}',
              f'v_pk_add_f32 {B1}, {pr(E1,4)}, {pr(E1,6)}', f'v_pk_add_f32 {B2}, {pr(E2,4)}, {pr(E2,6)}']
        L += [f'v_pk_add_f32 {A1}, {A1}, {pr(E1,8)}', f'v_pk_add_f32 {A2}, {A2}, {pr(E2,8)}',
              f'v_pk_add_f32 {B1}, {B1}, {pr(E1,10)}', f'v_pk_add_f32 {B2}, {B2}, {pr(E2,10)}',
              f'v_pk_add_f32 {A1}, {A1}, {pr(E1,12)}', f'v_pk_add_f32 {A2}, {A2}, {pr(E2,12)}',
              f'v_pk_add_f32 {B1}, {B1}, {pr(E1,14)}', f'v_pk_add_f32 {B2}, {B2}, {pr(E2,14)}',
              f'v_pk_add_f32 {A1}, {A1}, {B1}', f'v_pk_add_f32 {A2}, {A2}, {B2}',
              f'v_add_f32 v{t}, v{t}, v{t+1}', f'v_add_f32 v{t+2}, v{t+2}, v{t+3}',
              f'v_mov_b32 v{t+1}, v{t}', f'v_mov_b32 v{t+3}, v{t+2}',
              f'v_permlane32_swap_b32 v{t}, v{t+1}', f'v_permlane32_swap_b32 v{t+2}, v{t+3}',
              f'v_add_f32 v{t}, v{t}, v{t+1}', f'v_add_f32 v{t+2}, v{t+2}, v{t+3}',
              f'v_rcp_f32 v{t}, v{t}', f'v_rcp_f32 v{t+2}, v{t+2}']
        for r in range(0, 16, 2):
            L.append(f'v_pk_mul_f32 {pr(E1,r)}, {pr(E1,r)}, {A1} op_sel_hi:[1,0]')
            L.append(f'v_pk_mul_f32 {pr(E2,r)}, {pr(E2,r)}, {A2} op_sel_hi:[1,0]')
        for i in range(8):
            L += [f'v_cvt_pk_bf16_f32 v{dP+i}, v{E1+2*i}, v{E1+2*i+1}', f'v_cvt_pk_bf16_f32 v{dM+i}, v{E2+2*i}, v{E2+2*i+1}']
        return L

    def qk_list(s, acc, cs, NMp, vC, frag, P, E1, E2, dP, dM, t):
        L = []
        for r in range(0, 16, 2):
            L.append(f'v_pk_fma_f32 v[{acc+r}:{acc+r+1}], v[{cs+r}:{cs+r+1}], v[{NMp}:{NMp+1}], v[{acc+r}:{acc+r+1}] op_sel_hi:[1,0,1]')
        for i in range(8):
            L.append(f'v_cvt_pk_bf16_f32 v{frag+i}, v{acc+2*i}, v{acc+2*i+1}')
        L.append(f'v_mfma_f32_32x32x16_bf16 v[{P}:{P+15}], a[248:251], v[{frag}:{frag+3}], 0')
        L.append(f'v_mfma_f32_32x32x16_bf16 v[{P}:{P+15}], a[252:255], v[{frag+4}:{frag+7}], v[{P}:{P+15}]')
        L += s.softmax_list(P, vC, E1, E2, dP, dM, t)
        return L

    def dma_item(s, srd, voff, ssrc, srcoff, sdst, dstoff, tag):
        a = s.a
        def f():
            if sdst is None: a(f's_mov_b32 m0, {dstoff}')
            else: a(f's_add_u32 m0, {sdst}, {dstoff}')
            a(f's_add_u32 s92, {ssrc}, {srcoff}')
            a.vmem(f'buffer_load_dwordx4 {voff}, {srd}, s92 offen lds', tag)
        return f

    def wq_items(s):
        a = s.a
        a(f's_mul_i32 s90, {sHEAD}, {WQH}'); a(f's_add_u32 s90, s90, {sGB}')
        if WQ: a(f's_add_u32 s90, s90, {WQ}')
        a(f's_lshl_b32 s91, {sW}, 10'); a(f's_add_u32 s90, s90, s91')
        return [s.dma_item(WS, vL16, 's90', n*4096, 's91', n*4096, 'W') for n in range(21)]

    def layer_setup(s):
        a = s.a
        L0 = a.newlabel('Ll0'); Le = a.newlabel('Lle')
        a(f's_cmp_lg_u32 {sL}, 0'); a(f's_cbranch_scc1 {L0}')
        for r, o in ((sXIN, X0), (sSTIN, ST0), (sX1, X1A), (sST1, ST1A), (sXO, X2A), (sSTO, ST2A), (sO, OA), (sH, HA)):
            a(f's_add_u32 {r}, {sGB}, {o}')
        a(f's_branch {Le}')
        a.label(L0)
        for r, o in ((sXIN, X2A), (sSTIN, ST2A), (sX1, X1B), (sST1, ST1B), (sXO, X2A), (sSTO, ST2A), (sO, OB), (sH, HB)):
            a(f's_add_u32 {r}, {sGB}, {o}')
        a.label(Le)
        a(f's_lshl_b32 {sT0}, {sL}, 4'); a(f's_add_u32 {sT0}, {sT0}, {sHEAD}')
        a(f's_lshl_b32 {sKV}, {sT0}, 13'); a(f's_add_u32 {sKV}, {sKV}, {KV}')
        a(f's_lshl_b32 {sKVC}, {sT0}, 7'); a(f's_add_u32 {sKVC}, {sKVC}, {KVC}')
        a(f's_lshl_b32 {sFL}, {sG}, 11'); a(f's_lshl_b32 {sT0}, {sL}, 9'); a(f's_add_u32 {sFL}, {sFL}, {sT0}')
        if FLAGS: a(f's_add_u32 {sFL}, {sFL}, {FLAGS}')

    def fl(s, p):
        s.a(f's_add_u32 s80, {sFL}, {p*128}')
        return 's80'

    def p1(s):
        a = s.a; g = s.g
        a.c('==== P1')
        XD = 8
        a(f's_lshl_b32 {sT3}, {sHALF}, 2'); a(f's_add_u32 {sT3}, {sT3}, {sW}')
        a(f's_mul_i32 s82, {sT3}, 3584'); a(f's_add_u32 s82, s82, {sSTIN}')
        a(f's_mul_i32 s83, {sT3}, 28672'); a(f's_add_u32 s83, s83, {sXIN}')
        def xload(ks):
            if ks % 4 == 0: a(f's_add_u32 s84, s83, {(ks//4)*4096}')
            a.vmem(f'buffer_load_dwordx4 a[{4*ks}:{4*ks+3}], {vL16}, {WS}, s84 offen offset:{(ks%4)*1024} {LDSC}', ('x', ks))
        a(f's_lshl_b32 {sT4}, {sT3}, 15'); a(f's_add_u32 {sT4}, {sT4}, {sO}'); a(f's_lshl_b32 {sT5}, {sHEAD}, 11'); a(f's_add_u32 s85, {sT4}, {sT5}')
        def rd64(base, va=vTR64):
            def f(ks, reg, tag):
                a.ds(f'ds_read_b64_tr_b16 v[{reg}:{reg+1}], {va} offset:{base+(16*ks)*64}', tag)
                a.ds(f'ds_read_b64_tr_b16 v[{reg+2}:{reg+3}], {va} offset:{base+(16*ks+8)*64}', tag)
            return f
        AK, AV, AQ, FR = 16, 32, 48, 64
        rk, rv, rq = rd64(L_WK), rd64(L_WV), rd64(0, 'v208')
        FRS = (64, 72, 216)
        NM, RS, VC = 'v10', 'v11', 'v12'
        def kvloop(loads):
            st_items = Side(s.stats_load_items(96, 's82', 'st') if loads else [])
            if loads:
                for ks in range(XD): xload(ks)
            rk(0, FRS[0], ('fk', 0)); rv(0, FRS[0]+4, ('fv', 0))
            rk(1, FRS[1], ('fk', 1)); rv(1, FRS[1]+4, ('fv', 1))
            for ks in range(28):
                b = FRS[ks % 3]
                if loads: a.wait_vm(('x', ks))
                a.wait_lg(('fk', ks))
                ck = '0' if ks == 0 else f'v[{AK}:{AK+15}]'
                cv = '0' if ks == 0 else f'v[{AV}:{AV+15}]'
                a(f'v_mfma_f32_32x32x16_bf16 v[{AK}:{AK+15}], v[{b}:{b+3}], a[{4*ks}:{4*ks+3}], {ck}')
                if ks+2 < 28: rk(ks+2, FRS[(ks+2) % 3], ('fk', ks+2))
                if loads and ks + XD < 28: xload(ks + XD)
                a.wait_lg(('fv', ks))
                a(f'v_mfma_f32_32x32x16_bf16 v[{AV}:{AV+15}], v[{b+4}:{b+7}], a[{4*ks}:{4*ks+3}], {cv}')
                if ks+2 < 28: rv(ks+2, FRS[(ks+2) % 3]+4, ('fv', ks+2))
                if loads and ks >= 28 - XD - 1: st_items.emit(a)
            st_items.flush(a)
        L1p = a.newlabel('Lp1l1'); Lj = a.newlabel('Lp1j')
        a(f's_cmp_lg_u32 {sL}, 0'); a(f's_cbranch_scc1 {L1p}')
        def cs_wave():
            a(f's_mul_i32 {sT0}, {sW}, 28672'); a(f'v_add_u32 v11, {sT0}, {vTR64}')
            a(f's_lshl_b32 {sT1}, {sW}, 7'); a(f's_add_u32 {sT1}, {sT1}, {M_CSQKV}')
            s.colsum(rd64(0, 'v11'), 28, 128, sT1)
        g.wave_in(0, 2, cs_wave)
        a.lg = []
        kvloop(False)
        a('s_barrier')
        a('v_mov_b32 v10, v234'); a('v_mov_b32 v11, v235')
        a(f's_branch {Lj}')
        a.label(L1p)
        a.vm = []; a.lg = []
        kvloop(True)
        a.wait_vm('st')
        run_list(a, s.stats_list(96, NM, RS, 'v13', 'v14'))
        a.label(Lj)
        a.vm = []; a.lg = []
        s.pretouch('s85', 16)
        g.stamp('p1 KV gemm')
        a(f'v_add_u32 v15, {M_CSQKV}, {vCS}')
        run_list(a, s.cs_read_items(112, 0, 'csk', 'v15') + s.cs_read_items(128, 128, 'csv', 'v15'))
        a(f'v_mul_f32 {VC}, {fbits(LOG2E)}, {RS}')
        a.wait_lg('csk')
        L = s.qk_list(AK, 112, 10, VC, 144, 80, 96, 192, 176, 184, 152)
        for T in range(2):
            for gq in range(4):
                R = 176 + 8*T + 2*gq
                L.append(f'v_xor_b32 v{156+(gq&1)}, {(8*T+2*gq) << 3}, {vPHIW}')
                L.append(lambda R=R, gq=gq: a.ds(f'ds_write_b64 v{156+(gq&1)}, v[{R}:{R+1}]', 'pw'))
        L.append(lambda: a.wait_lg('csv'))
        for r in range(0, 16, 2):
            L.append(f'v_pk_fma_f32 v[{AV+r}:{AV+r+1}], v[{128+r}:{129+r}], v[10:11], v[{AV+r}:{AV+r+1}] op_sel_hi:[1,0,1]')
        for r in range(0, 16, 2):
            L.append(f'v_pk_mul_f32 v[{AV+r}:{AV+r+1}], v[{AV+r}:{AV+r+1}], v[10:11] op_sel:[0,1] op_sel_hi:[1,1]')
        L.append(f'v_cndmask_b32 v{AV+12}, v{AV+12}, 1.0, {sUP}')
        for i in range(8):
            L.append(f'v_cvt_pk_bf16_f32 v{144+i}, v{AV+2*i}, v{AV+2*i+1}')
        for gq in range(4):
            L.append(f'v_xor_b32 v{156+(gq&1)}, {(2*gq) << 3}, {vVIW}')
            L.append(lambda gq=gq: a.ds(f'ds_write_b64 v{156+(gq&1)}, v[{144+2*gq}:{145+2*gq}]', 'vw'))
        run_list(a, L)
        a.wait_all()
        a('s_barrier')
        g.stamp('p1 phi/v written')
        vm_save = list(a.vm)
        def kv():
            def rr(kt, reg, tag):
                a.ds(f'ds_read_b64_tr_b16 v[{reg}:{reg+1}], {vPA0} offset:{kt*2048}', tag)
                a.ds(f'ds_read_b64_tr_b16 v[{reg+2}:{reg+3}], {vPA1} offset:{kt*2048}', tag)
                a.ds(f'ds_read_b64_tr_b16 v[{reg+4}:{reg+5}], {vVB0} offset:{kt*1024}', tag)
                a.ds(f'ds_read_b64_tr_b16 v[{reg+6}:{reg+7}], {vVB1} offset:{kt*1024}', tag)
            KS = (64, 72, 216)
            rr(0, KS[0], ('k', 0)); rr(1, KS[1], ('k', 1))
            for kt in range(8):
                if kt+2 < 8: rr(kt+2, KS[(kt+2) % 3], ('k', kt+2))
                a.wait_lg(('k', kt))
                b = KS[kt % 3]
                c = '0' if kt == 0 else 'v[80:95]'
                a(f'v_mfma_f32_32x32x16_bf16 v[80:95], v[{b}:{b+3}], v[{b+4}:{b+7}], {c}')
            Lz = a.newlabel('Lz')
            a(f's_cmp_lg_u32 {sL}, 0'); a(f's_cbranch_scc1 {Lz}')
            g.registration_check()
            a.label(Lz)
            a(f's_lshl_b32 {sT0}, {sW}, 12'); a(f's_add_u32 {sT0}, {sT0}, {sKV}')
            for gq in range(4):
                for r in range(4):
                    a(f'buffer_atomic_add_f32 v{80+4*gq+r}, {vKVO}, {WS}, {sT0} offen offset:{(8*gq+r)*128} sc1')
        g.wave_in(0, 2, kv)
        def csq():
            Lq0 = a.newlabel('Lq0')
            a(f's_cmp_lg_u32 {sL}, 0'); a(f's_cbranch_scc1 {Lq0}')
            a(f'v_add_u32 v209, {2*28672}, {vTR64}')
            a(f's_mov_b32 {sT1}, {M_CSQKV + 256}')
            s.colsum(rd64(0, 'v209'), 28, 112, sT1, va='v152')
            a.label(Lq0)
        g.wave_only(2, csq)
        a.lg = []
        def w0():
            a(f's_sub_u32 {sT0}, {sW}, 2')
            a(f's_lshl_b32 s90, {sM}, 7'); a(f's_mul_i32 s91, {sT0}, {8*3584}'); a(f's_add_u32 s90, s90, s91')
            a(f's_lshl_b32 s91, {sT0}, 10')
            for n in range(24):
                s.dma_item(WU, vD3584, 's90', (8+2*n)*8*3584, 's91', L_WU + (8+2*n)*1024, 'W0')()
        g.wave_in(2, 4, w0)
        a.vm = []
        a.lg = []
        g.stamp('p1 kv issued')
        a(f'v_add_u32 v208, {L_WQ}, {vTR64}')
        QS = (64, 68, 72)
        rq(0, QS[0], ('f', 0)); rq(1, QS[1], ('f', 1))
        for ks in range(28):
            if ks+2 < 28: rq(ks+2, QS[(ks+2) % 3], ('f', ks+2))
            a.wait_lg(('f', ks))
            b = QS[ks % 3]
            cq = '0' if ks == 0 else f'v[{AQ}:{AQ+15}]'
            a(f'v_mfma_f32_32x32x16_bf16 v[{AQ}:{AQ+15}], v[{b}:{b+3}], a[{4*ks}:{4*ks+3}], {cq}')
        a.wait_lg0()
        Lsv = a.newlabel('Lsv')
        a(f's_cmp_lg_u32 {sL}, 0'); a(f's_cbranch_scc1 {Lsv}')
        a(f's_mul_i32 {sT0}, {sHALF}, 42'); a(f's_add_u32 {sT0}, {sT0}, {sW}'); a(f's_lshl_b32 {sT0}, {sT0}, 10')
        a(f'v_add_u32 v13, {sT0}, {vL16}')
        a(f's_mul_i32 {sT1}, {sHEAD}, {WQH}'); a(f's_add_u32 {sT1}, {sT1}, {sGB}'); a(f's_add_u32 {sT1}, {sT1}, {sT0}')
        if WQ: a(f's_add_u32 {sT1}, {sT1}, {WQ}')
        for n in range(11):
            if n == 10:
                Lx = a.newlabel('Lx'); a(f's_cmp_ge_u32 {sW}, 2'); a(f's_cbranch_scc1 {Lx}')
            R = 64 + 4*(n % 4)
            a(f'ds_read_b128 v[{R}:{R+3}], v13 offset:{n*4096}')
            a('s_waitcnt lgkmcnt(0)')
            a(f's_add_u32 {sT2}, {sT1}, {n*4096}')
            a(f'buffer_store_dwordx4 v[{R}:{R+3}], {vL16}, {WS}, {sT2} offen sc1')
            if n == 10: a.label(Lx)
        a.label(Lsv)
        a('s_barrier')
        run_list(a, s.cs_read_items(112, 256, 'csq', 'v15'))
        a.wait_lg0()
        g.stamp('p1 q gemm')
        qpost = lambda: s.qk_list(AQ, 112, 10, VC, 144, 80, 96, 192, 160, 168, 152)
        Lq = a.newlabel('Lq23'); Lqe = a.newlabel('Lqe')
        a(f's_cmp_ge_u32 {sW}, 2'); a(f's_cbranch_scc1 {Lq}')
        a.vm = []
        run_list(a, qpost())
        a('s_waitcnt vmcnt(0)')
        a('v_mov_b32 v13, 1'); a('s_mov_b64 exec, 1')
        a(f'buffer_atomic_add v13, off, {WS}, {sKVC} sc1')
        a('s_mov_b64 exec, -1')
        s.resid_loads(224, sXIN, track=False, raw_l0=True)
        g.stamp('p1 kv counted')
        g.poll(WS, None, sKVC, 32, vt='v13')
        g.stamp('kv hop done')
        a(f's_lshl_b32 {sT0}, {sW}, 12'); a(f's_add_u32 {sT0}, {sT0}, {sKV}')
        for gq in range(4):
            for r in range(4):
                a.vmem(f'buffer_load_dword v{64+4*gq+r}, {vKVO}, {WS}, {sT0} offen offset:{(8*gq+r)*128} sc1', ('kv', gq >> 1))
        for e in range(2):
            a.wait_vm(('kv', e))
            for i in range(4):
                a(f'v_cvt_pk_bf16_f32 v{96+4*e+i}, v{64+8*e+2*i}, v{64+8*e+2*i+1}')
        a(f's_lshl_b32 {sT0}, {sW}, 11'); a(f's_add_u32 {sT0}, {sT0}, {L_KVF}'); a(f'v_add_u32 v13, {sT0}, {vL16}')
        a('ds_write_b128 v13, v[96:99]'); a('ds_write_b128 v13, v[100:103] offset:1024')
        a('s_waitcnt lgkmcnt(0)')
        a(f's_branch {Lqe}')
        a.label(Lq)
        a.vm = []
        a(f's_sub_u32 {sT0}, {sW}, 2')
        a(f's_lshl_b32 s86, {sCT}, 7'); a(f's_mul_i32 {sT1}, {sT0}, {8*896}'); a(f's_add_u32 s86, s86, {sT1}')
        a(f's_lshl_b32 s87, {sT0}, 10')
        a(f's_lshl_b32 s88, {sM}, 7'); a(f's_mul_i32 {sT1}, {sT0}, {8*3584}'); a(f's_add_u32 s88, s88, {sT1}')
        items = [s.dma_item(WO, vD896, 's86', 2*n*8*896, 's87', L_WO + 2*n*1024, 'W1') for n in range(28)]
        items += [s.dma_item(WG, vD3584, 's88', 2*n*8*3584, 's87', L_WG + 2*n*1024, 'W1') for n in range(20)]
        items += [s.dma_item(WU, vD3584, 's88', 2*n*8*3584, 's87', L_WU + 2*n*1024, 'W1') for n in range(4)]
        s.resid_loads(224, sXIN, track=False, raw_l0=True)
        run_list(a, qpost(), Side(items), 3)
        a.label(Lqe)
        a.vm = []; a.lg = []
        a('s_barrier')
        g.stamp('kv frags ready')

    def p2a(s):
        a = s.a; g = s.g
        a.c('==== P2a')
        a(f'v_add_u32 v13, {L_KVF}, {vL16}')
        for k in range(4):
            a.ds(f'ds_read_b128 v[{96+4*k}:{99+4*k}], v13 offset:{k*1024}', ('kf', k))
        for k in range(4):
            a.wait_lg(('kf', k))
            c = '0' if k == 0 else 'v[16:31]'
            a(f'v_mfma_f32_32x32x16_bf16 v[16:31], v[{96+4*k}:{99+4*k}], v[{160+4*k}:{163+4*k}], {c}')
        a('v_mov_b32 v32, v28'); a('v_mov_b32 v33, v28')
        a('v_permlane32_swap_b32 v32, v33')
        a(f'v_add_f32 v33, {fbits(1e-6)}, v33')
        a('v_rcp_f32 v34, v33')
        for r in range(0, 16, 2):
            a(f'v_pk_mul_f32 v[{16+r}:{17+r}], v[{16+r}:{17+r}], v[34:35] op_sel_hi:[1,0]')
        for r in range(12, 16):
            a(f'v_cndmask_b32 v{16+r}, v{16+r}, 0, {sUP}')
        for i in range(8):
            a(f'v_cvt_pk_bf16_f32 v{40+i}, v{16+2*i}, v{16+2*i+1}')
        a(f'buffer_store_dwordx4 v[40:43], {vL16}, {WS}, s85 offen {STSC}')
        a(f'buffer_store_dwordx4 v[44:47], {vL16}, {WS}, s85 offen offset:1024 {STSC}')
        g.set_flag(s.fl(1))
        g.stamp('p2a done')

    def tile_coords(s):
        a = s.a
        a(f's_and_b32 {sT1}, {sW}, 1'); a(f's_lshl_b32 {sT2}, {sTQ}, 1'); a(f's_add_u32 {sT1}, {sT1}, {sT2}')
        a(f's_lshr_b32 {sT2}, {sW}, 1'); a(f's_lshl_b32 {sT3}, {sCT}, 1'); a(f's_add_u32 {sT2}, {sT2}, {sT3}')

    def resid_loads(s, dst, sX, track=True, raw_l0=False):
        a = s.a
        s.tile_coords()
        f = a.vmem if track else (lambda t, tag: a(t))
        Lr = Le = None
        if raw_l0:
            Lr = a.newlabel('Lrr'); Le = a.newlabel('Lre')
            a(f's_cmp_eq_u32 {sL}, 0'); a(f's_cbranch_scc1 {Lr}')
        a(f's_mul_i32 {sT4}, {sT1}, 28672'); a(f's_lshl_b32 {sT2}, {sT2}, 11'); a(f's_add_u32 {sT4}, {sT4}, {sT2}')
        a(f's_add_u32 {sT4}, {sT4}, {sX}')
        f(f'buffer_load_dwordx4 v[{dst}:{dst+3}], {vL16}, {WS}, {sT4} offen {LDSC}', 'res')
        f(f'buffer_load_dwordx4 v[{dst+4}:{dst+7}], {vL16}, {WS}, {sT4} offen offset:1024 {LDSC}', 'res')
        if raw_l0:
            a(f's_branch {Le}')
            a.label(Lr)
            a(f's_lshl_b32 {sT4}, {sG}, 8'); a(f's_lshl_b32 {sT5}, {sT1}, 5'); a(f's_add_u32 {sT4}, {sT4}, {sT5}')
            a(f's_mul_i32 {sT4}, {sT4}, 896'); a(f's_lshl_b32 {sT5}, {sT2}, 6'); a(f's_add_u32 {sT4}, {sT4}, {sT5}')
            a(f'v_and_b32 v13, 31, {vLANE}'); a('v_mul_u32_u24 v13, 896, v13')
            a(f'v_lshrrev_b32 v14, 5, {vLANE}'); a('v_lshl_add_u32 v13, v14, 3, v13')
            for gq in range(4):
                a(f'buffer_load_dwordx2 v[{dst+2*gq}:{dst+2*gq+1}], v13, {AX}, {sT4} offen offset:{16*gq}')
            a.label(Le)

    def dest_pretouch(s, sXdst, sSTdst):
        if not PRET: return
        a = s.a
        s.tile_coords()
        a(f's_mul_i32 {sT4}, {sT1}, 28672'); a(f's_lshl_b32 {sT5}, {sT2}, 11'); a(f's_add_u32 {sT4}, {sT4}, {sT5}')
        a(f's_add_u32 {sT4}, {sT4}, {sXdst}')
        s.pretouch(sT4, 16)
        a(f's_mul_i32 {sT4}, {sT1}, 14'); a(f's_add_u32 {sT4}, {sT4}, {sT2}'); a(f's_lshl_b32 {sT4}, {sT4}, 8')
        a(f's_add_u32 {sT4}, {sT4}, {sSTdst}')
        s.pretouch(sT4, 2)

    def red_write(s, ACC, RED):
        a = s.a
        for i in (1, 2, 3):
            a(f's_xor_b32 {sT0}, {sW}, {i}'); a(f's_mul_i32 {sT0}, {sT0}, 3'); a(f's_add_u32 {sT0}, {sT0}, {i-1}')
            a(f's_lshl_b32 {sT0}, {sT0}, 12'); a(f's_add_u32 {sT0}, {sT0}, {RED}')
            a(f'v_add_u32 v{10+i}, {sT0}, {vL16}')
        for i in (1, 2, 3):
            for q in range(4):
                R = ACC + 16*i + 4*q
                a.ds(f'ds_write_b128 v{10+i}, v[{R}:{R+3}] offset:{q*1024}', 'rw')
        a(f's_mul_i32 {sT0}, {sW}, {3*4096}'); a(f's_add_u32 {sT0}, {sT0}, {RED}')
        a(f'v_add_u32 v10, {sT0}, {vL16}')
        a.wait_lg0()
        a('s_barrier')

    def red_list(s, ACC, resid):
        a = s.a
        T = ACC + 16
        L = []
        for k in range(3):
            for q in range(4):
                R = T + 16*k + 4*q
                L.append(lambda R=R, k=k, q=q: a.ds(f'ds_read_b128 v[{R}:{R+3}], v10 offset:{k*4096+q*1024}', ('rr', k)))
        U = ACC + 64
        for i in range(8):
            L += [f'v_lshlrev_b32 v{U+2*i}, 16, v{resid+i}', f'v_and_b32 v{U+2*i+1}, 0xffff0000, v{resid+i}']
        pr = lambda b, r: f'v[{b+r}:{b+r+1}]'
        for r in range(0, 16, 2):
            L.append(f'v_pk_add_f32 {pr(ACC,r)}, {pr(ACC,r)}, {pr(U,r)}')
        for k in range(3):
            L.append(lambda k=k: a.wait_lg(('rr', k)))
            for r in range(0, 16, 2):
                L.append(f'v_pk_add_f32 {pr(ACC,r)}, {pr(ACC,r)}, {pr(T+16*k,r)}')
        PK = T + 16
        for i in range(8):
            L.append(f'v_cvt_pk_bf16_f32 v{PK+i}, v{ACC+2*i}, v{ACC+2*i+1}')
        return L

    def store_x_list(s, ACC, sXdst, sSTdst):
        a = s.a
        PK = ACC + 32
        L = []
        def addr():
            s.tile_coords()
            a(f's_mul_i32 {sT4}, {sT1}, 28672'); a(f's_lshl_b32 {sT5}, {sT2}, 11'); a(f's_add_u32 {sT4}, {sT4}, {sT5}')
            a(f's_add_u32 {sT4}, {sT4}, {sXdst}')
            a.vmem(f'buffer_store_dwordx4 v[{PK}:{PK+3}], {vL16}, {WS}, {sT4} offen {STSC}', 'xs')
            a.vmem(f'buffer_store_dwordx4 v[{PK+4}:{PK+7}], {vL16}, {WS}, {sT4} offen offset:1024 {STSC}', 'xs')
        L.append(addr)
        pr = lambda b, r: f'v[{b+r}:{b+r+1}]'
        L += [f'v_pk_add_f32 v[12:13], {pr(ACC,0)}, {pr(ACC,2)}', f'v_pk_mul_f32 v[14:15], {pr(ACC,0)}, {pr(ACC,0)}']
        L.append(f'v_pk_fma_f32 v[14:15], {pr(ACC,2)}, {pr(ACC,2)}, v[14:15]')
        for r in range(4, 16, 2):
            L += [f'v_pk_add_f32 v[12:13], v[12:13], {pr(ACC,r)}', f'v_pk_fma_f32 v[14:15], {pr(ACC,r)}, {pr(ACC,r)}, v[14:15]']
        L += ['v_add_f32 v12, v12, v13', 'v_add_f32 v14, v14, v15', 'v_mov_b32 v13, v12', 'v_mov_b32 v15, v14',
              'v_permlane32_swap_b32 v12, v13', 'v_permlane32_swap_b32 v14, v15',
              'v_add_f32 v12, v12, v13', 'v_add_f32 v13, v14, v15', f'v_lshlrev_b32 v11, 3, {vLANE}']
        def st():
            a(f's_mul_i32 {sT4}, {sT1}, 14'); a(f's_add_u32 {sT4}, {sT4}, {sT2}'); a(f's_lshl_b32 {sT4}, {sT4}, 8')
            a(f's_add_u32 {sT4}, {sT4}, {sSTdst}')
            a('s_mov_b64 exec, 0xffffffff')
            a.vmem(f'buffer_store_dwordx2 v[12:13], v11, {WS}, {sT4} offen {STSC}', 'xs')
            a('s_mov_b64 exec, -1')
        L.append(st)
        return L

    def store_out_list(s, ACC):
        a = s.a
        PK = ACC + 32
        L = []
        for e in range(2):
            L += [f'v_permlane32_swap_b32 v{PK+4*e}, v{PK+4*e+2}', f'v_permlane32_swap_b32 v{PK+4*e+1}, v{PK+4*e+3}']
        def st():
            s.tile_coords()
            a(f's_lshl_b32 {sT4}, {sG}, 8'); a(f's_lshl_b32 {sT5}, {sT1}, 5'); a(f's_add_u32 {sT4}, {sT4}, {sT5}')
            a(f's_mul_i32 {sT4}, {sT4}, 896'); a(f's_lshl_b32 {sT5}, {sT2}, 6'); a(f's_add_u32 {sT4}, {sT4}, {sT5}')
            a(f'v_and_b32 v12, 31, {vLANE}'); a('v_mul_u32_u24 v12, 896, v12')
            a(f'v_lshrrev_b32 v13, 5, {vLANE}'); a('v_lshl_add_u32 v12, v13, 4, v12')
            a(f'buffer_store_dwordx4 v[{PK}:{PK+3}], v12, {OUT}, {sT4} offen')
            a(f'buffer_store_dwordx4 v[{PK+4}:{PK+7}], v12, {OUT}, {sT4} offen offset:32')
        L.append(st)
        return L

    def tile_addrs(s, sbase):
        a = s.a
        a(f's_lshr_b32 {sT0}, {sW}, 1'); a(f's_lshl_b32 {sT0}, {sT0}, 6')
        a(f'v_xor_b32 v14, {sT0}, {vTR0}')
        a(f'v_add_u32 v14, {sbase}, v14')
        a('v_xor_b32 v15, 64, v14')

    def p2b(s):
        a = s.a; g = s.g
        a.c('==== P2b')
        a(f's_mul_i32 {sT5}, {sW}, {WOW}'); a(f's_add_u32 {sT5}, {sT5}, {L_WO}')
        s.tile_addrs(sT5)
        a(f'v_lshrrev_b32 v12, 5, {vLANE}'); a('v_lshlrev_b32 v12, 9, v12')
        a('v_sub_u32 v13, v15, v12'); a('v_sub_u32 v12, v14, v12')
        s.dest_pretouch(sX1, sST1)
        a(f's_lshr_b32 {sT0}, {sTQ}, 1'); a(f's_lshl_b32 {sT0}, {sT0}, 4'); a(f's_lshl_b32 s81, 0xffff, {sT0}')
        for b in range(2):
            a(f's_and_b32 {sT0}, {sW}, 1'); a(f's_xor_b32 {sT0}, {sT0}, {b}'); a(f's_lshl_b32 {sT1}, {sTQ}, 1')
            a(f's_add_u32 {sT0}, {sT0}, {sT1}'); a(f's_lshl_b32 {sT0}, {sT0}, 15'); a(f's_add_u32 {sT0}, {sT0}, {sO}')
            a(f's_lshl_b32 {sT1}, {sW}, 13'); a(f's_add_u32 s{82+b}, {sT0}, {sT1}')
        g.wait_flags(s.fl(1), 's81', vt='v10', va='v11')
        a.vm = []
        g.stamp('p2b hop done')
        def oload(i):
            for b in range(2):
                if i % 4 == 0: a(f's_add_u32 s{84+b}, s{82+b}, {(i//4)*4096}')
                a.vmem(f'buffer_load_dwordx4 a[{8*i+4*b}:{8*i+4*b+3}], {vL16}, {WS}, s{84+b} offen offset:{(i%4)*1024} {LDSC}', ('o', i, b))
        ACC = 16; FS = (80, 88, 104)
        def rd(i, reg, tag):
            off = (28*(i >> 1) + 16*(i & 1))*128
            for sl in range(2):
                va = ('v14', 'v15')[sl]
                vb = ('v12', 'v13')[sl] if (i & 1) else va
                a.ds(f'ds_read_b64_tr_b16 v[{reg+4*sl}:{reg+4*sl+1}], {va} offset:{off}', tag)
                a.ds(f'ds_read_b64_tr_b16 v[{reg+4*sl+2}:{reg+4*sl+3}], {vb} offset:{off+8*128}', tag)
        OD = 3
        for i in range(OD): oload(i)
        rd(0, FS[0], ('f', 0)); rd(1, FS[1], ('f', 1))
        for i in range(8):
            if i+2 < 8: rd(i+2, FS[(i+2) % 3], ('f', i+2))
            a.wait_lg(('f', i))
            b0 = FS[i % 3]
            for sb in range(2):
                a.wait_vm(('o', i, sb))
                for sa in range(2):
                    R = ACC + 16*(2*sa+sb)
                    c = '0' if i == 0 else f'v[{R}:{R+15}]'
                    a(f'v_mfma_f32_32x32x16_bf16 v[{R}:{R+15}], v[{b0+4*sa}:{b0+4*sa+3}], a[{8*i+4*sb}:{8*i+4*sb+3}], {c}')
            if i + OD < 8: oload(i + OD)
        g.stamp('p2b gemm')
        a('s_barrier')
        s.red_write(ACC, RED2)
        run_list(a, s.red_list(ACC, 224) + s.store_x_list(ACC, sX1, sST1))
        g.set_flag(s.fl(2))
        g.stamp('p2b done')

    def gelu_list(s, G, U, csg, csu, NM, RS, T, PK, packed):
        L = []
        pr = lambda b, r: f'v[{b+r}:{b+r+1}]'
        if packed:
            nm = int(NM[1:]); nmp = f'v[{nm & ~1}:{(nm & ~1)+1}]'; ns = nm & 1
            rs = int(RS[1:]); rsp = f'v[{rs & ~1}:{(rs & ~1)+1}]'; rss = rs & 1
            for r in range(0, 16, 2): L.append(f'v_pk_fma_f32 {pr(G,r)}, {pr(csg,r)}, {nmp}, {pr(G,r)} op_sel:[0,{ns},0] op_sel_hi:[1,{ns},1]')
            for r in range(0, 16, 2): L.append(f'v_pk_fma_f32 {pr(U,r)}, {pr(csu,r)}, {nmp}, {pr(U,r)} op_sel:[0,{ns},0] op_sel_hi:[1,{ns},1]')
            for r in range(0, 16, 2): L.append(f'v_pk_mul_f32 {pr(G,r)}, {pr(G,r)}, {rsp} op_sel:[0,{rss}] op_sel_hi:[1,{rss}]')
            for r in range(0, 16, 2): L.append(f'v_pk_mul_f32 {pr(T,r)}, {pr(G,r)}, {pr(G,r)}')
            for r in range(0, 16, 2): L.append(f'v_pk_fma_f32 {pr(T,r)}, {pr(T,r)}, v[236:237], v[236:237] op_sel:[0,0,1] op_sel_hi:[1,0,1]')
            for r in range(0, 16, 2): L.append(f'v_pk_mul_f32 {pr(T,r)}, {pr(T,r)}, {pr(G,r)}')
            for r in range(16): L.append(f'v_exp_f32 v{T+r}, v{T+r}')
            for r in range(0, 16, 2): L.append(f'v_pk_mul_f32 {pr(U,r)}, {pr(U,r)}, {pr(G,r)}')
            for r in range(0, 16, 2): L.append(f'v_pk_add_f32 {pr(T,r)}, {pr(T,r)}, v[238:239] op_sel_hi:[1,0]')
            for r in range(16): L.append(f'v_rcp_f32 v{T+r}, v{T+r}')
            for r in range(0, 16, 2): L.append(f'v_pk_mul_f32 {pr(U,r)}, {pr(U,r)}, {rsp} op_sel:[0,{rss}] op_sel_hi:[1,{rss}]')
            for r in range(0, 16, 2): L.append(f'v_pk_mul_f32 {pr(U,r)}, {pr(U,r)}, {pr(T,r)}')
        else:
            for r in range(16): L.append(f'v_fmac_f32 v{G+r}, {NM}, v{csg+r}')
            for r in range(16): L.append(f'v_fmac_f32 v{U+r}, {NM}, v{csu+r}')
            for r in range(16): L.append(f'v_mul_f32 v{G+r}, {RS}, v{G+r}')
            for r in range(16): L.append(f'v_mul_f32 v{T+r}, v{G+r}, v{G+r}')
            for r in range(16): L.append(f'v_fma_f32 v{T+r}, v{T+r}, v236, v237')
            for r in range(16): L.append(f'v_mul_f32 v{T+r}, v{T+r}, v{G+r}')
            for r in range(16):
                L += [f'v_exp_f32 v{T+r}, v{T+r}', f'v_mul_f32 v{U+r}, v{U+r}, v{G+r}']
            for r in range(16): L.append(f'v_add_f32 v{T+r}, 1.0, v{T+r}')
            for r in range(16):
                L += [f'v_rcp_f32 v{T+r}, v{T+r}', f'v_mul_f32 v{U+r}, {RS}, v{U+r}']
            for r in range(16): L.append(f'v_mul_f32 v{U+r}, v{U+r}, v{T+r}')
        for i in range(8):
            L.append(f'v_cvt_pk_bf16_f32 v{PK+i}, v{U+2*i}, v{U+2*i+1}')
        return L

    def p3(s):
        a = s.a; g = s.g
        a.c('==== P3')
        a(f'v_add_u32 v12, {L_WU}, {vTR0}'); a(f'v_add_u32 v13, {L_WU}, {vTR1}')
        for b in range(2):
            a(f's_lshl_b32 {sT0}, {sW}, 1'); a(f's_add_u32 {sT0}, {sT0}, {b}')
            a(f's_mul_i32 s{82+b}, {sT0}, 28672'); a(f's_add_u32 s{82+b}, s{82+b}, {sX1}')
            a(f's_mul_i32 s{86+b}, {sT0}, 3584'); a(f's_add_u32 s{86+b}, s{86+b}, {sST1}')
            a(f's_mul_i32 s{88+b}, {sT0}, 114688'); a(f's_add_u32 s{88+b}, s{88+b}, {sH}')
            a(f's_lshl_b32 {sT1}, {sM}, 12'); a(f's_add_u32 s{88+b}, s{88+b}, {sT1}')
        a(f's_lshl_b32 s90, {sM}, 7'); a(f's_mul_i32 s91, {sW}, {8*3584}'); a(f's_add_u32 s90, s90, s91')
        a(f's_lshl_b32 s91, {sW}, 10')
        for n in range(4):
            s.dma_item(WG, vD3584, 's90', (40+4*n)*8*3584, 's91', L_WG + (40+4*n)*1024, 'late')()
        a(f'v_mov_b32 v236, {fbits(C1)}'); a(f'v_mov_b32 v237, {fbits(C0)}'); a('v_mov_b32 v238, 1.0')
        g.wait_flags(s.fl(2), 0x0fffffff, vt='v10', va='v11', keep_vm=True)
        g.stamp('p3 hop done')
        def xload(ks, b):
            a(f's_add_u32 {sT6}, s{82+b}, {(ks//4)*4096}')
            a.vmem(f'buffer_load_dwordx4 a[{8*ks+4*b}:{8*ks+4*b+3}], {vL16}, {WS}, {sT6} offen offset:{(ks%4)*1024} {LDSC}', ('x', ks, b))
        XD = 4
        for ks in range(XD):
            xload(ks, 0); xload(ks, 1)
        GU = (((16, 32), (48, 64)), ((80, 96), (112, 128)))
        FS = (144, 152, 160)
        NM = ('v10', 'v11'); RS = ('v14', 'v15')
        STR = (168, 184); CSG = 168; CSU = 184; T = 200; PK = 216
        misc = Side(s.stats_load_items(STR[0], 's86', 'st') + s.stats_load_items(STR[1], 's87', 'st'))
        def unit(c, side, per_beat):
            vg = vTR0 if c == 0 else vTR1
            vu = 'v12' if c == 0 else 'v13'
            def rdg(ks):
                reg = FS[ks % 3]
                a.ds(f'ds_read_b64_tr_b16 v[{reg}:{reg+1}], {vg} offset:{L_WG+(16*ks)*128}', ('fg', ks))
                a.ds(f'ds_read_b64_tr_b16 v[{reg+2}:{reg+3}], {vg} offset:{L_WG+(16*ks+8)*128}', ('fg', ks))
            def rdu(ks):
                reg = FS[ks % 3] + 4
                a.ds(f'ds_read_b64_tr_b16 v[{reg}:{reg+1}], {vu} offset:{(16*ks)*128}', ('fu', ks))
                a.ds(f'ds_read_b64_tr_b16 v[{reg+2}:{reg+3}], {vu} offset:{(16*ks+8)*128}', ('fu', ks))
            (G_, U_) = GU[c]
            rdg(0); rdu(0); rdg(1); rdu(1)
            for ks in range(28):
                b0 = FS[ks % 3]
                if c == 0 and ks == 18:
                    a.wait_vm('late'); a('s_barrier')
                for j, (acc, fo, b) in enumerate(((G_[0], 0, 0), (G_[1], 0, 1), (U_[0], 4, 0), (U_[1], 4, 1))):
                    if c == 0 and j < 2: a.wait_vm(('x', ks, b))
                    if j == 0: a.wait_lg(('fg', ks))
                    if j == 2: a.wait_lg(('fu', ks))
                    cc = '0' if ks == 0 else f'v[{acc}:{acc+15}]'
                    a(f'v_mfma_f32_32x32x16_bf16 v[{acc}:{acc+15}], v[{b0+fo}:{b0+fo+3}], a[{8*ks+4*b}:{8*ks+4*b+3}], {cc}')
                    if j == 0 and ks+2 < 28: rdg(ks+2)
                    if j == 2 and ks+2 < 28: rdu(ks+2)
                    if c == 0:
                        if j in (0, 2) and ks + XD < 28: xload(ks+XD, j >> 1)
                        if j == 3 and ks >= 8: side.emit(a)
                    else:
                        side.emit(a, per_beat[(4*ks+j) % len(per_beat)])
            side.flush(a)
        unit(0, misc, None)
        vm_st = None
        s.pretouch('s88', 32); s.pretouch('s89', 32)
        g.stamp('p3 gemm 0')
        Lcs = a.newlabel('Lcs')
        a(f's_cmp_lg_u32 {sL}, 0'); a(f's_cbranch_scc1 {Lcs}')
        a(f's_and_b32 {sT0}, {sW}, 1'); a(f's_lshl_b32 {sT0}, {sT0}, 6'); a(f'v_xor_b32 v11, {sT0}, {vTR0}')
        a(f's_lshr_b32 {sT0}, {sW}, 1'); a(f's_mul_i32 {sT0}, {sT0}, {L_WU}'); a(f'v_add_u32 v11, {sT0}, v11')
        def f(ks, reg, tag):
            a.ds(f'ds_read_b64_tr_b16 v[{reg}:{reg+1}], v11 offset:{(16*ks)*128}', tag)
            a.ds(f'ds_read_b64_tr_b16 v[{reg+2}:{reg+3}], v11 offset:{(16*ks+8)*128}', tag)
        a(f's_lshl_b32 {sT1}, {sW}, 7'); a(f's_add_u32 {sT1}, {sT1}, {M_CSFF}')
        s.colsum(f, 28, 80, sT1)
        a('s_barrier')
        a.label(Lcs)
        a.wait_vm('st')
        run_list(a, s.stats_list(STR[0], NM[0], RS[0], 'v230', 'v231') + s.stats_list(STR[1], NM[1], RS[1], 'v230', 'v231'))
        a(f'v_add_u32 v232, {M_CSFF}, {vCS}')
        def epi(c, packed):
            L = []
            L += s.cs_read_items(CSG, 128*c, 'cs', 'v232') + s.cs_read_items(CSU, 256+128*c, 'cs', 'v232')
            L.append(lambda: a.wait_lg('cs'))
            for b in range(2):
                L += s.gelu_list(GU[c][0][b], GU[c][1][b], CSG, CSU, NM[b], RS[b], T, PK, packed)
                def st(b=b):
                    a.vmem(f'buffer_store_dwordx4 v[{PK}:{PK+3}], {vL16}, {WS}, s{88+b} offen offset:{2*c*1024} {STSC}', 'hs')
                    a.vmem(f'buffer_store_dwordx4 v[{PK+4}:{PK+7}], {vL16}, {WS}, s{88+b} offen offset:{(2*c+1)*1024} {STSC}', 'hs')
                L.append(st)
            return L
        g.stamp('p3 stats')
        e0 = epi(0, False)
        n0 = len(e0)
        base = n0 // 112; extra = n0 - base*112
        per = [base + (1 if (i*extra)//112 != ((i+1)*extra)//112 else 0) for i in range(112)]
        unit(1, Side(e0), per)
        g.stamp('p3 gemm 1')
        a('s_barrier')
        a(f's_mul_i32 s90, {sW}, {448*896}'); a(f's_lshl_b32 {sT1}, {sCT}, 7'); a(f's_add_u32 s90, s90, {sT1}')
        a(f's_mul_i32 s91, {sW}, {RING}')
        wd = lambda i: s.dma_item(WD, vD896, 's90', i*8*896, 's91', (i % NSLOT)*1024, ('W', i))
        NA = 20
        e1 = epi(1, True)
        run_list(a, e1, Side([wd(i) for i in range(NA)]), max(1, len(e1)//(NA+2)))
        g.stamp('p3 epi 1')
        s.resid_loads(224, sX1)
        s.dest_pretouch(sXO, sSTO)
        g.set_flag(s.fl(3))
        for i in range(NA, NSLOT): wd(i)()
        g.stamp('p3 done')

    def p4(s):
        a = s.a; g = s.g
        a.c('==== P4')
        a(f's_mov_b32 {sT5}, s91')
        s.tile_addrs(sT5)
        for b in range(2):
            a(f's_and_b32 {sT0}, {sW}, 1'); a(f's_xor_b32 {sT0}, {sT0}, {b}'); a(f's_lshl_b32 {sT1}, {sTQ}, 1')
            a(f's_add_u32 {sT0}, {sT0}, {sT1}'); a(f's_mul_i32 {sT0}, {sT0}, 114688'); a(f's_add_u32 {sT0}, {sT0}, {sH}')
            a(f's_mul_i32 {sT1}, {sW}, {28*1024}'); a(f's_add_u32 s{82+b}, {sT0}, {sT1}')
        g.wait_flags(s.fl(3), 0x0fffffff, vt='v10', va='v11', keep_vm=True)
        g.stamp('p4 hop done')
        wd = lambda i: s.dma_item(WD, vD896, 's90', i*8*896, 's91', (i % NSLOT)*1024, ('W', i))
        def hload(ks, b):
            a(f's_add_u32 {sT6}, s{82+b}, {(ks//4)*4096}')
            a.vmem(f'buffer_load_dwordx4 a[{8*ks+4*b}:{8*ks+4*b+3}], {vL16}, {WS}, {sT6} offen offset:{(ks%4)*1024} {LDSC}', ('h', ks, b))
        HD = 4
        for ks in range(HD):
            hload(ks, 0); hload(ks, 1)
        ACC = 16; FS = (80, 88, 104)
        def rd(ks):
            reg = FS[ks % 3]
            off = ((2*ks) % NSLOT)*1024
            a.wait_vm(('W', 2*ks+1))
            for sl in range(2):
                va = 'v14' if sl == 0 else 'v15'
                a.ds(f'ds_read_b64_tr_b16 v[{reg+4*sl}:{reg+4*sl+1}], {va} offset:{off}', ('f', ks, sl))
                a.ds(f'ds_read_b64_tr_b16 v[{reg+4*sl+2}:{reg+4*sl+3}], {va} offset:{off+1024}', ('f', ks, sl))
        rd(0); rd(1)
        for ks in range(28):
            b0 = FS[ks % 3]
            for j, (sa, sb) in enumerate(((0, 0), (0, 1), (1, 0), (1, 1))):
                if j < 2: a.wait_vm(('h', ks, sb))
                if j in (0, 2): a.wait_lg(('f', ks, sa))
                R = ACC + 16*(2*sa+sb)
                c = '0' if ks == 0 else f'v[{R}:{R+15}]'
                a(f'v_mfma_f32_32x32x16_bf16 v[{R}:{R+15}], v[{b0+4*sa}:{b0+4*sa+3}], a[{8*ks+4*sb}:{8*ks+4*sb+3}], {c}')
                if j == 0 and ks+2 < 28: rd(ks+2)
                if j in (0, 2) and ks + HD < 28: hload(ks+HD, j >> 1)
                if j in (1, 3) and ks >= 1 and 2*(ks-1) + NSLOT < 56: wd(2*(ks-1) + NSLOT + (j >> 1))()
        g.stamp('p4 gemm')
        a('s_barrier')
        s.red_write(ACC, RED4)
        Lf = a.newlabel('Lfin'); Le = a.newlabel('Lp4e')
        a(f's_cmp_lg_u32 {sL}, 0'); a(f's_cbranch_scc1 {Lf}')
        vm0 = list(a.vm)
        items = s.wq_items()
        Lr = s.red_list(ACC, 224)
        run_list(a, Lr, Side(items[:12]), max(1, len(Lr)//13))
        run_list(a, s.store_x_list(ACC, sXO, sSTO))
        g.set_flag(s.fl(4))
        for it in items[12:]: it()
        a(f's_branch {Le}')
        a.label(Lf)
        a.vm = []; a.lg = []
        run_list(a, s.red_list(ACC, 224) + s.store_out_list(ACC))
        a('s_branch L_fin')
        a.label(Le)
        g.stamp('p4 epi')

    def run(s):
        a = s.a; g = s.g; stop = s.stop
        a.label('L_layer')
        s.layer_setup()
        s.p1()
        s.p2a()
        a(f's_cmp_ge_u32 {sM}, 28'); a('s_cbranch_scc1 L_idle')
        s.p2b()
        s.p3()
        s.p4()
        a('s_branch L_next')
        a.label('L_idle')
        a.vm = []; a.lg = []
        if IDLEW:
            a(f's_sub_u32 {sT0}, {sM}, 28'); a(f's_lshl_b32 {sT0}, {sT0}, 2'); a(f's_add_u32 s86, {sT0}, {sW}')
            a(f's_mul_i32 s87, s86, {784*128}')
            for i in range(13):
                a(f's_add_u32 {sT1}, s87, {i*64*128}')
                a(f'buffer_load_dword {vDUM}, {vL128}, {WD}, {sT1} offen')
        a(f's_cmp_lg_u32 {sL}, 0'); a('s_cbranch_scc1 L_fin')
        g.wait_flags(s.fl(2), 0x0fffffff, vt='v10', va='v11', drain=True)
        for it in s.wq_items(): it()
        if IDLEW:
            g.wait_flags(s.fl(3), 0x0fffffff, vt='v10', va='v11', drain=True)
            a(f's_mul_i32 s87, s86, {672*128}'); a(f's_add_u32 s87, s87, {sGB}')
            if WQ: a(f's_add_u32 s87, s87, {WQ}')
            for i in range(11):
                a(f's_add_u32 {sT1}, s87, {i*64*128}')
                a(f'buffer_load_dword {vDUM}, {vL128}, {WS}, {sT1} offen')
        a.label('L_next')
        a.vm = []; a.lg = []
        a(f's_mul_i32 {sT0}, {sHALF}, 14'); a(f's_lshl_b32 s81, 0x3fff, {sT0}')
        g.wait_flags(s.fl(4), 's81', vt='v10', va='v11', drain=True)
        g.stamp('p4 hop(x2)')
        a(f's_mov_b32 {sL}, 1')
        a('s_branch L_layer')
```

```python
import sys
from asmlib import Asm
from layout import *

NAME = 'interleave_layers__linear_kernel_hedgehog__geglu_ffn__prompt_kernel'

WS='s[4:7]'; WO='s[8:11]'; WG='s[12:15]'; WU='s[16:19]'; WD='s[20:23]'; OUT='s[24:27]'; DBG='s[28:31]'
AX='s[32:35]'; WQKV='s[36:39]'; WPHI='s[40:43]'
sG='s44'; sM='s45'; sW='s46'; sL='s47'; sHEAVY='s48'; sGB='s49'; sTO='s50'
sXIN='s51'; sSTIN='s52'; sX1='s53'; sST1='s54'; sXO='s55'; sSTO='s56'; sO='s57'; sH='s58'; sKV='s59'; sKVC='s60'; sFL='s61'
sXCC='s62'; sHEAD='s63'; sHALF='s64'; sTQ='s65'; sCT='s66'
sUP='s[96:97]'
sT0='s68'; sT1='s69'; sT2='s70'; sT3='s71'; sT4='s72'; sT5='s73'; sT6='s74'; sT7='s75'
sP0='s[76:77]'; sP1='s[78:79]'
vLANE='v0'; vL16='v1'; vTR64='v2'; vTR0='v3'; vTR1='v4'; vD896='v5'; vD3584='v6'; vSTA='v7'; vCS='v8'; vSTAMP='v9'
LDS_TOTAL = 163840
MISC = LDS_TOTAL - 2048
M_MODE = MISC
M_CSQKV = MISC + 128
M_CSFF  = MISC + 512
L_WK=0; L_WV=28672; L_WQ=57344
L_PHI=86016; L_VI=102400; L_KVF=110592
LOG2E = 1.4426950408889634
import os
STSC = os.environ.get('STSC','')
STSC0 = os.environ.get('STSC0','sc1')
CPF = int(os.environ.get('CPF','1'))
WARM = int(os.environ.get('WARM','1'))
TIMEOUT = 100000

def fbits(x):
    import struct
    return '0x%08x' % struct.unpack('<I', struct.pack('<f', x))[0]

class Gen:
    def __init__(s, stop_after=None, stamps=False, force_heavy=False):
        s.a = Asm(); s.stop_after = stop_after; s.stamps = stamps; s.force_heavy = force_heavy
        s.nstamp = 0
        s.stamp_names = []

    def stamp(s, name):
        if not s.stamps: return
        a = s.a
        i = s.nstamp; s.nstamp += 1; s.stamp_names.append(name)
        a('s_waitcnt lgkmcnt(0)'); a.lg = []
        a('s_memtime s[94:95]')
        a('s_waitcnt lgkmcnt(0)')
        a(f's_lshl_b32 s95, {sL}, 5')
        a(f's_add_u32 s95, s95, {i}')
        a('s_mov_b32 s93, m0')
        a('s_mov_b32 m0, s95')
        a(f'v_writelane_b32 {vSTAMP}, s94, m0')
        a('s_mov_b32 m0, s93')

    def wave_only(s, w, fn):
        a = s.a
        L = a.newlabel('Lw')
        a(f's_cmp_lg_u32 {sW}, {w}')
        a(f's_cbranch_scc1 {L}')
        fn()
        a.label(L)

    def wave_in(s, lo, hi, fn):
        a = s.a
        L = a.newlabel('Lw')
        if lo > 0:
            a(f's_cmp_lt_u32 {sW}, {lo}'); a(f's_cbranch_scc1 {L}')
        if hi < 4:
            a(f's_cmp_ge_u32 {sW}, {hi}'); a(f's_cbranch_scc1 {L}')
        fn()
        a.label(L)

    def poll(s, srd, voff, soff, expect, mask=None, sc='sc1', vt='v10'):
        a = s.a
        Lp = a.newlabel('Lpoll'); Ld = a.newlabel('Ldone'); Lt = a.newlabel('Lto')
        a(f's_cmp_lg_u32 {sTO}, 0'); a(f's_cbranch_scc1 {Ld}')
        a(f's_mov_b32 {sT7}, 0')
        a.label(Lp)
        if voff is None:
            a(f'buffer_load_dword {vt}, off, {srd}, {soff} {sc}')
        else:
            a(f'buffer_load_dword {vt}, {voff}, {srd}, {soff} offen {sc}')
        a('s_waitcnt vmcnt(0)')
        a(f'v_cmp_ne_u32 vcc, {expect}, {vt}')
        a(f's_add_u32 {sT7}, {sT7}, 1')
        if mask is not None:
            a(f's_and_b64 vcc, vcc, {mask}')
        a('s_cmp_eq_u64 vcc, 0')
        a(f's_cbranch_scc1 {Ld}')
        a(f's_cmp_lt_u32 {sT7}, {TIMEOUT}')
        a(f's_cbranch_scc1 {Lp}')
        a(f's_mov_b32 {sTO}, 1')
        a.label(Ld)

    def set_flag(s, phase_off):
        a = s.a
        a.wait_all()
        a('s_barrier')
        def w0():
            Lh = a.newlabel('Lh'); Le = a.newlabel('Le')
            a(f's_lshl_b32 {sT0}, {sM}, 2')
            a(f's_add_u32 {sT0}, {sT0}, {phase_off}')
            a('v_mov_b32 v10, 1')
            a('s_mov_b64 exec, 1')
            a(f's_cmp_lg_u32 {sHEAVY}, 0'); a(f's_cbranch_scc1 {Lh}')
            a(f'buffer_store_dword v10, off, {WS}, {sT0}')
            a(f's_branch {Le}')
            a.label(Lh)
            a('buffer_wbl2 sc1')
            a('s_waitcnt vmcnt(0)')
            a(f'buffer_store_dword v10, off, {WS}, {sT0} sc1')
            a.label(Le)
            a('s_mov_b64 exec, -1')
        s.wave_only(0, w0)

    def wait_flags(s, phase_off, mask_lo, vt='v10', va='v11', keep_vm=False, drain=False):
        a = s.a
        vm = list(a.vm)
        def w0():
            a(f's_mov_b32 s76, {mask_lo}'); a('s_mov_b32 s77, 0')
            a(f'v_and_b32 {va}, 31, {vLANE}'); a(f'v_lshlrev_b32 {va}, 2, {va}')
            s.poll(WS, va, phase_off, 1, mask=sP0, vt=vt)
            Le = a.newlabel('Le')
            a(f's_cmp_eq_u32 {sHEAVY}, 0'); a(f's_cbranch_scc1 {Le}')
            a('buffer_inv sc1'); a('s_waitcnt vmcnt(0)')
            a.label(Le)
        s.wave_only(0, w0)
        if drain:
            a.wait_vm0()
        else:
            a.vm = vm
        a('s_barrier')

    def lane_consts(s):
        a = s.a
        a(f'v_lshlrev_b32 {vL16}, 4, {vLANE}')
        a(f'v_lshrrev_b32 v10, 5, {vLANE}')
        a(f'v_and_b32 v11, 15, {vLANE}')
        a('v_lshrrev_b32 v12, 2, v11')
        a(f'v_bfe_u32 v13, {vLANE}, 4, 1')
        a('v_and_b32 v14, 3, v11')
        a('v_lshl_add_u32 v15, v10, 2, v12')
        a('v_lshlrev_b32 v16, 5, v13'); a('v_lshl_add_u32 v16, v14, 3, v16')
        a(f'v_lshl_add_u32 {vTR64}, v15, 6, v16')
        a('v_lshl_add_u32 v17, v15, 7, v16')
        a('v_lshrrev_b32 v18, 1, v12')
        a(f'v_lshl_add_u32 {vTR0}, v18, 6, v17')
        a('v_xor_b32 v18, 1, v18')
        a(f'v_lshl_add_u32 {vTR1}, v18, 6, v17')
        a(f'v_lshrrev_b32 v19, 3, {vLANE}')
        a(f'v_and_b32 v20, 7, {vLANE}')
        a('v_lshlrev_b32 v21, 2, v13')
        a('v_xor_b32 v20, v20, v21'); a('v_lshlrev_b32 v20, 4, v20')
        a(f'v_mul_u32_u24 {vD896}, 896, v19'); a(f'v_add_u32 {vD896}, {vD896}, v20')
        a(f'v_mul_u32_u24 {vD3584}, 3584, v19'); a(f'v_add_u32 {vD3584}, {vD3584}, v20')
        a(f'v_and_b32 v22, 31, {vLANE}'); a('v_lshlrev_b32 v22, 3, v22')
        a(f'v_mul_u32_u24 {vSTA}, 1792, v10'); a(f'v_add_u32 {vSTA}, {vSTA}, v22')
        a(f'v_lshlrev_b32 {vCS}, 4, v10')

    def prologue(s):
        a = s.a
        a('s_cmp_ge_u32 s2, 256'); a('s_cbranch_scc1 L_end')
        a('s_load_dwordx4 s[32:35], s[0:1], 0')
        a('s_load_dwordx2 s[40:41], s[0:1], 16')
        a('s_load_dwordx2 s[8:9], s[0:1], 24')
        a('s_load_dwordx2 s[12:13], s[0:1], 40')
        a('s_load_dwordx2 s[16:17], s[0:1], 48')
        a('s_load_dwordx2 s[20:21], s[0:1], 56')
        a('s_load_dwordx2 s[24:25], s[0:1], 64')
        a('s_load_dwordx2 s[28:29], s[0:1], 72')
        a('s_load_dwordx2 s[4:5], s[0:1], 80')
        a(f's_getreg_b32 {sXCC}, hwreg(HW_REG_XCC_ID, 0, 4)')
        a(f's_and_b32 {sG}, s2, 7'); a(f's_lshr_b32 {sM}, s2, 3')
        a('v_lshrrev_b32 v10, 6, v0')
        a(f'v_and_b32 {vLANE}, 63, v0')
        a(f'v_readfirstlane_b32 {sW}, v10')
        a(f's_mov_b32 {sL}, 0'); a(f's_mov_b32 {sHEAVY}, 0'); a(f's_mov_b32 {sTO}, 0')
        a(f's_mul_i32 {sGB}, {sG}, {GS}'); a(f's_add_u32 {sGB}, {sGB}, {G0}')
        a(f's_and_b32 {sHEAD}, {sM}, 15'); a(f's_lshr_b32 {sHALF}, {sM}, 4')
        a(f's_mul_i32 {sTQ}, {sM}, 37'); a(f's_lshr_b32 {sTQ}, {sTQ}, 8')
        a(f's_mul_i32 {sT0}, {sTQ}, 7'); a(f's_sub_u32 {sCT}, {sM}, {sT0}')
        a('s_mov_b32 s96, 0'); a('s_mov_b32 s97, -1')
        if s.stamps: a(f'v_mov_b32 {vSTAMP}, 0')
        for (b, n) in ((6, WS_BYTES), (10, D*D*2), (14, D*F*2), (18, D*F*2), (22, F*D*2), (26, S*D*2), (30, 256), (42, NH*DH*DH*2)):
            a(f's_mov_b32 s{b}, {n}'); a(f's_mov_b32 s{b+1}, 0x20000')
        a('s_waitcnt lgkmcnt(0)')
        a('s_mov_b32 s36, s34'); a('s_mov_b32 s37, s35')
        a(f's_mov_b32 s34, {S*D*2}'); a('s_mov_b32 s35, 0x20000')
        a(f's_mov_b32 s38, {D*3*D*2}'); a('s_mov_b32 s39, 0x20000')
        s.stamp('start')

    def p0(s):
        a = s.a
        a.c('==== P0')
        XS = 86016; XSW = 18944
        def w0():
            a(f's_lshl_b32 {sFL}, {sG}, 11')
            if FLAGS: a(f's_add_u32 {sFL}, {sFL}, {FLAGS}')
            a(f'v_lshlrev_b32 v11, 7, {vLANE}')
            a('v_mov_b32 v12, 0'); a('v_mov_b32 v13, 0'); a('v_mov_b32 v14, 0'); a('v_mov_b32 v15, 0')
            a('s_mov_b64 exec, 0xffff')
            a(f'buffer_load_dword v254, v11, {WS}, {sFL} offen')
            a(f's_lshl_b32 {sT0}, {sM}, 2'); a(f's_add_u32 {sT0}, {sT0}, {sFL}')
            a(f'buffer_store_dword v12, v11, {WS}, {sT0} offen')
            a('s_mov_b64 exec, -1')
            a(f'v_lshlrev_b32 v16, 4, {vLANE}')
            a(f's_lshl_b32 {sT0}, s2, 10'); a(f's_add_u32 {sT0}, {sT0}, {KV}')
            a(f'buffer_store_dwordx4 v[12:15], v16, {WS}, {sT0} offen sc1')
            L = a.newlabel('Lz')
            a('s_cmp_ge_u32 s2, 32'); a(f's_cbranch_scc1 {L}')
            a(f's_lshl_b32 {sT0}, s2, 7'); a(f's_add_u32 {sT0}, {sT0}, {KVC}')
            a('s_mov_b64 exec, 1')
            a(f'buffer_store_dword v12, off, {WS}, {sT0} sc1')
            a('s_mov_b64 exec, -1')
            a.label(L)
            a(f's_mul_i32 {sT1}, {sXCC}, {sXCC}'); a(f's_lshl_b32 {sT1}, {sT1}, 10'); a(f's_add_u32 {sT1}, {sT1}, {sXCC}')
            a(f's_add_u32 {sT1}, {sT1}, {1<<26}')
            a(f'v_mov_b32 v10, {sT1}')
            a(f's_lshl_b32 {sT2}, {sG}, 5')
            a('s_waitcnt vmcnt(0)')
            a('s_mov_b64 exec, 1')
            a(f'buffer_atomic_add v10, off, {DBG}, {sT2} sc1')
            a('s_mov_b64 exec, -1')
        s.wave_only(0, w0)
        a(f'v_lshrrev_b32 v10, 3, {vLANE}'); a('v_mul_u32_u24 v10, 896, v10')
        a(f'v_and_b32 v11, 7, {vLANE}'); a(f'v_lshrrev_b32 v12, 4, {vLANE}'); a('v_xor_b32 v11, v11, v12')
        a('v_lshl_add_u32 v40, v11, 4, v10'); a('v_xor_b32 v41, 64, v40')
        a(f's_lshl_b32 {sT0}, {sG}, 8'); a(f's_lshl_b32 {sT1}, {sHALF}, 7'); a(f's_add_u32 {sT0}, {sT0}, {sT1}')
        a(f's_lshl_b32 {sT1}, {sW}, 5'); a(f's_add_u32 {sT0}, {sT0}, {sT1}'); a(f's_mul_i32 s82, {sT0}, 896')
        a(f's_mul_i32 s83, {sW}, {XSW}'); a(f's_add_u32 s83, s83, {XS}')
        def xdma(L, Lr, rb):
            a(f's_add_u32 m0, s83, {Lr*4096 + rb*1024}')
            a(f's_add_u32 {sT2}, s82, {rb*8*896 + L*128}')
            a.vmem(f'buffer_load_dwordx4 v{40 + (rb & 1)}, {AX}, {sT2} offen lds', 'x')
        for L in range(4):
            for rb in range(4): xdma(L, L, rb)
        def cpf():
            a('s_getpc_b64 s[78:79]')
            a.rawlabel('L_pc')
            a(f's_sub_u32 s78, s78, L_pc-{NAME}'); a('s_subb_u32 s79, s79, 0')
            a(f's_lshl_b32 {sT0}, {sM}, 11')
            a(f'v_lshlrev_b32 v10, 7, {vLANE}'); a(f'v_add_u32 v10, {sT0}, v10')
            a(f'v_min_u32 v10, CODE_BYTES-4, v10')
            a('s_mov_b64 exec, 0xffff')
            a('global_load_dword v255, v10, s[78:79]')
            a('s_mov_b64 exec, -1')
        if CPF: s.wave_only(3, cpf)
        a(f'v_lshrrev_b32 v10, 2, {vLANE}'); a('v_mul_u32_u24 v10, 2688, v10')
        a(f'v_and_b32 v11, 3, {vLANE}'); a('v_lshl_add_u32 v42, v11, 4, v10')
        a(f's_mul_i32 s84, {sHEAD}, 56'); a(f's_mul_i32 {sT0}, {sW}, {16*2688}'); a(f's_add_u32 s84, s84, {sT0}')
        a(f's_lshl_b32 s85, {sW}, 10')
        def wdma(n):
            slot, i = divmod(n, 7)
            col = (896, 1792, 0)[slot]
            a(f's_add_u32 m0, s85, {slot*28672 + i*4096}')
            a(f's_add_u32 {sT2}, s84, {col + i*4*16*2688}')
            a.vmem(f'buffer_load_dwordx4 v42, {WQKV}, {sT2} offen lds', 'W')
        for n in range(10): wdma(n)
        s.lane_consts()
        a(f'v_and_b32 v10, 31, {vLANE}'); a('v_bfe_u32 v11, v10, 1, 3'); a('v_lshlrev_b32 v11, 4, v11')
        a('v_lshl_add_u32 v11, v10, 7, v11'); a(f'v_lshrrev_b32 v12, 5, {vLANE}'); a('v_lshl_add_u32 v11, v12, 3, v11')
        a('v_add_u32 v11, s83, v11')
        for c in range(8): a(f'v_xor_b32 v{44+c}, {c << 4}, v11')
        for r in range(52, 56): a(f'v_mov_b32 v{r}, 0')
        a('v_mov_b32 v56, 0x3f803f80')
        def xround(lines, Rv):
            for Lr, L in enumerate(lines):
                for q in range(4):
                    ks = 4*L + q
                    for b in range(2):
                        a.ds(f'ds_read_b64 a[{4*ks+2*b}:{4*ks+2*b+1}], v{44+2*q+b} offset:{Lr*4096}', 'xa')
                        R = Rv + 16*Lr + 4*q + 2*b
                        a.ds(f'ds_read_b64 v[{R}:{R+1}], v{44+2*q+b} offset:{Lr*4096}', ('xv', Lr))
            for Lr, L in enumerate(lines):
                a.wait_lg(('xv', Lr))
                for i in range(16):
                    R = Rv + 16*Lr + i
                    a(f'v_dot2c_f32_bf16 v{52 + (i & 1)}, v{R}, v56')
                    a(f'v_dot2c_f32_bf16 v{54 + (i & 1)}, v{R}, v{R}')
            a.wait_lg0()
        s.stamp('p0 issued A')
        a.wait_vm('x')
        s.stamp('p0 x A landed')
        xround((0, 1, 2, 3), 128)
        for L in range(4, 7):
            for rb in range(4): xdma(L, L-4, rb)
        for n in range(10, 14): wdma(n)
        s.wphi_loads(track=True)
        a.vm.append('mark')
        a.vm.pop()
        nq = len(a.vm)
        for n in range(14, 21): wdma(n)
        from phases import Phases
        s.P = Phases(s)
        s.P.persistent_addrs()
        a.wait_vm('x')
        s.stamp('p0 x B landed')
        xround((4, 5, 6), 128)
        a('v_add_f32 v52, v52, v53'); a('v_add_f32 v54, v54, v55')
        a('v_mov_b32 v53, v52'); a('v_mov_b32 v55, v54')
        a('v_permlane32_swap_b32 v52, v53'); a('v_permlane32_swap_b32 v54, v55')
        a('v_add_f32 v52, v52, v53'); a('v_add_f32 v54, v54, v55')
        a(f'v_mul_f32 v234, {fbits(-1.0/448)}, v52'); a(f'v_mul_f32 v54, {fbits(1.0/448)}, v54')
        a('v_fma_f32 v54, -v234, v234, v54'); a('v_max_f32 v54, 0, v54'); a(f'v_add_f32 v54, {fbits(1e-5)}, v54')
        a('v_rsq_f32 v235, v54')
        def warm():
            a(f'v_lshlrev_b32 v15, 7, {vLANE}')
            a(f's_mul_i32 {sT1}, s2, {49*128}')
            a('s_mov_b32 exec_lo, -1'); a('s_mov_b32 exec_hi, 0x1ffff')
            for srd in (WG, WU, WD):
                a(f'buffer_load_dword v254, v15, {srd}, {sT1} offen')
            a(f's_mul_i32 {sT1}, s2, {13*128}')
            a('s_mov_b64 exec, 0x1fff')
            a(f'buffer_load_dword v254, v15, {WO}, {sT1} offen')
            a('s_mov_b64 exec, -1')
        a.wait_vm('wphi')
        if WARM: s.wave_only(3, warm)
        for i in range(8):
            a(f'v_lshl_or_b32 v{96+2*i}, v{97+2*i}, 16, v{96+2*i}')
            a(f'v_accvgpr_write_b32 a{248+i}, v{96+2*i}')
        a('s_barrier')
        a.vm = []; a.lg = []
        s.stamp('p1 W landed')

    def registration_check(s):
        a = s.a
        Lp = a.newlabel('Lreg'); Ld = a.newlabel('Lregd')
        a(f'v_and_b32 v13, 7, {vLANE}'); a('v_lshlrev_b32 v13, 5, v13')
        a(f's_mov_b32 {sT7}, 0')
        a.label(Lp)
        a(f'buffer_load_dword v14, v13, {DBG}, 0 offen sc1')
        a('s_waitcnt vmcnt(0)')
        a('v_lshrrev_b32 v152, 26, v14')
        a('v_cmp_ne_u32 vcc, 32, v152')
        a(f's_add_u32 {sT7}, {sT7}, 1')
        a('s_cmp_eq_u64 vcc, 0'); a(f's_cbranch_scc1 {Ld}')
        a(f's_cmp_lt_u32 {sT7}, {TIMEOUT}'); a(f's_cbranch_scc1 {Lp}')
        a(f's_mov_b32 {sTO}, 1')
        a.label(Ld)
        def w0():
            a(f'v_readlane_b32 {sT3}, v14, {sG}')
            a(f's_mul_i32 {sT1}, {sXCC}, {sXCC}'); a(f's_lshl_b32 {sT1}, {sT1}, 10'); a(f's_add_u32 {sT1}, {sT1}, {sXCC}')
            a(f's_lshl_b32 {sT1}, {sT1}, 5')
            a(f's_and_b32 {sT3}, {sT3}, {(1<<26)-1}')
            a(f's_cmp_lg_u32 {sT3}, {sT1}'); a(f's_cselect_b32 {sHEAVY}, 1, 0')
            if s.force_heavy: a(f's_mov_b32 {sHEAVY}, 1')
            Le = a.newlabel('Le')
            a(f's_cmp_eq_u32 {sHEAVY}, 0'); a(f's_cbranch_scc1 {Le}')
            a(f's_lshl_b32 {sT0}, {sG}, 11')
            if FLAGS: a(f's_add_u32 {sT0}, {sT0}, {FLAGS}')
            a(f's_lshl_b32 {sT1}, {sM}, 2'); a(f's_add_u32 {sT0}, {sT0}, {sT1}')
            a('v_mov_b32 v14, 0'); a(f'v_lshlrev_b32 v13, 7, {vLANE}')
            a('s_mov_b64 exec, 0xffff')
            a(f'buffer_store_dword v14, v13, {WS}, {sT0} offen sc1')
            a('s_waitcnt vmcnt(0)')
            a('s_mov_b64 exec, 1')
            a('v_mov_b32 v14, 1')
            a(f's_lshl_b32 {sT1}, {sG}, 5'); a(f's_add_u32 {sT1}, {sT1}, 8')
            a(f'buffer_atomic_add v14, off, {DBG}, {sT1} sc1')
            a('s_mov_b64 exec, -1')
            s.poll(DBG, None, sT1, 32, vt='v14')
            a.label(Le)
        s.wave_only(0, w0)

    def wphi_loads(s, track=False):
        a = s.a
        a(f'v_and_b32 v10, 31, {vLANE}'); a(f'v_lshrrev_b32 v11, 5, {vLANE}')
        a('v_lshlrev_b32 v12, 1, v10'); a('v_mul_u32_u24 v13, 224, v11'); a('v_add_u32 v12, v12, v13')
        a(f's_mul_i32 {sT5}, {sHEAD}, 1568')
        a('v_mov_b32 v14, 0x40000000')
        a('v_cmp_gt_u32 vcc, 28, v10')
        a('v_cndmask_b32 v12, v14, v12, vcc')
        a(f'v_cndmask_b32 v13, v12, v14, {sUP}')
        for e in range(2):
            for b in range(2):
                for r in range(4):
                    reg = 96 + 8*e + 4*b + r
                    va = 'v13' if (e == 1 and b == 1) else 'v12'
                    t = f'buffer_load_ushort v{reg}, {va}, {WPHI}, {sT5} offen offset:{(16*e+8*b+r)*56}'
                    if track: a.vmem(t, 'wphi')
                    else: a(t)

    def finish(s):
        a = s.a
        a.label('L_fin')
        if s.stamps:
            def w0():
                a(f's_lshl_b32 {sT0}, s2, 8'); a(f's_add_u32 {sT0}, {sT0}, {STAMP}')
                a(f'v_lshlrev_b32 v10, 2, {vLANE}')
                a(f'buffer_store_dword {vSTAMP}, v10, {WS}, {sT0} offen')
            s.wave_only(0, w0)
        a('s_waitcnt vmcnt(0) lgkmcnt(0)')
        a.label('L_end')
        a('s_endpgm')
        a.label('L_code_end')

    def build(s):
        s.prologue()
        s.p0()
        if s.stop_after != 'p0':
            s.P.run()
        s.finish()
        body = s.a.finalize(True)
        hdr = open('interleave_layers__linear_kernel_hedgehog__geglu_ffn__prompt.s.ref').read().split('\n') if False else None
        head = HEADER
        return head + body + '\n' + f'.set CODE_BYTES, L_code_end-{NAME}\n' + FOOTER

HEADER = f'''; Persistent single-launch kernel: 256 workgroups (one per CU), 8 groups of 32 that share an L2.
; @launch grid=(256,1,1) block=(256,1,1) lds={LDS_TOTAL}
.amdgcn_target "amdgcn-amd-amdhsa--gfx950"
.text
.globl {NAME}
.p2align 8
.type {NAME},@function
{NAME}:
'''
FOOTER = f'''.section .rodata,"a"
.p2align 6
.amdhsa_kernel {NAME}
  .amdhsa_next_free_vgpr 512
  .amdhsa_next_free_sgpr 102
  .amdhsa_accum_offset 256
  .amdhsa_group_segment_fixed_size 0
  .amdhsa_kernarg_size 88
  .amdhsa_user_sgpr_count 2
  .amdhsa_user_sgpr_kernarg_segment_ptr 1
  .amdhsa_system_sgpr_workgroup_id_x 1
.end_amdhsa_kernel
'''

if __name__ == '__main__':
    import argparse
    ap = argparse.ArgumentParser()
    ap.add_argument('-o', default='k.s')
    ap.add_argument('--stop', default=None)
    ap.add_argument('--stamps', action='store_true')
    ap.add_argument('--heavy', action='store_true')
    args = ap.parse_args()
    g = Gen(stop_after=args.stop, stamps=args.stamps, force_heavy=args.heavy)
    txt = g.build()
    open(args.o, 'w').write(txt)
    open(args.o+'.stamps','w').write(','.join(g.stamp_names))
    print('written', args.o, len(txt), 'bytes;', 'stamps:', g.stamp_names)
```

```python
from gen import *
import gen as G
import math, os
from collections import deque

C0 = -2.0*LOG2E*math.sqrt(2.0/math.pi)
C1 = C0*0.044715
PRET = int(os.environ.get('PRET', '0'))
IDLEW = int(os.environ.get('IDLEW', '1'))
SAVE_LATE = int(os.environ.get('SAVE_LATE', '1'))
IDLEP = int(os.environ.get('IDLEP', '1'))
PFA = int(os.environ.get('PFA', '1'))
HSC = os.environ.get('HSC', '')
LDSC = os.environ.get('LDSC', 'sc1')

L_WG = 0; L_WU = 104448; L_WO = 45056; WOW = 14336; L_KVF = 40960
RED2 = 45056
RED4 = 86016
RING = 36864; NSLOT = 36
vPHIW='v240'; vVIW='v241'; vPA0='v242'; vPA1='v243'; vVB0='v244'; vVB1='v245'; vKVO='v246'; vL128='v247'
vDUM='v255'

class Side:
    def __init__(s, items=()): s.q = deque(items)
    def emit(s, a, n=1):
        for _ in range(n):
            if not s.q: return
            it = s.q.popleft()
            if callable(it): it()
            else: a(it)
    def flush(s, a): s.emit(a, len(s.q))
    def __len__(s): return len(s.q)

def run_list(a, L, side=None, every=0):
    cnt = 0
    for it in L:
        if callable(it): it()
        else: a(it)
        cnt += 1
        if side is not None and every and cnt % every == 0: side.emit(a)
    if side is not None: side.flush(a)

class Phases:
    def __init__(s, g):
        s.g = g; s.a = g.a
        s.stop = g.stop_after

    def persistent_addrs(s):
        a = s.a
        a(f'v_and_b32 v13, 31, {vLANE}'); a(f's_lshl_b32 {sT0}, {sW}, 5'); a(f'v_add_u32 v14, {sT0}, v13')
        a(f'v_lshrrev_b32 v20, 5, {vLANE}')
        a('v_bfe_u32 v21, v13, 1, 1'); a('v_lshlrev_b32 v21, 3, v21')
        a('v_bfe_u32 v22, v13, 3, 1'); a('v_lshl_or_b32 v21, v22, 2, v21')
        a('v_bfe_u32 v22, v13, 2, 1'); a('v_lshl_or_b32 v21, v22, 1, v21')
        a('v_and_b32 v22, 1, v13'); a('v_or_b32 v21, v21, v22')
        a('v_xor_b32 v21, v21, v20')
        a('v_lshlrev_b32 v21, 3, v21'); a('v_lshl_add_u32 v21, v14, 7, v21')
        a(f'v_add_u32 {vPHIW}, {L_PHI}, v21')
        a('v_bfe_u32 v21, v14, 1, 3'); a('v_xor_b32 v21, v21, v20'); a('v_lshlrev_b32 v21, 3, v21')
        a('v_lshl_add_u32 v21, v14, 6, v21'); a(f'v_add_u32 {vVIW}, {L_VI}, v21')
        a(f'v_and_b32 v13, 15, {vLANE}'); a('v_lshrrev_b32 v14, 2, v13')
        a('v_and_b32 v22, 3, v13'); a(f'v_bfe_u32 v23, {vLANE}, 4, 1')
        a('v_lshl_add_u32 v24, v23, 2, v22')
        a('v_lshl_add_u32 v25, v20, 2, v14')
        a('v_lshrrev_b32 v26, 1, v14'); a('v_lshlrev_b32 v26, 3, v26')
        a('v_lshl_or_b32 v26, v20, 1, v26'); a('v_and_b32 v27, 1, v14'); a('v_or_b32 v26, v26, v27')
        a(f's_and_b32 {sT0}, {sW}, 1'); a(f's_lshl_b32 {sT0}, {sT0}, 3'); a(f'v_add_u32 v27, {sT0}, v24')
        a('v_xor_b32 v27, v27, v26')
        a('v_lshlrev_b32 v27, 3, v27'); a('v_lshl_add_u32 v27, v25, 7, v27')
        a(f'v_add_u32 {vPA0}, {L_PHI}, v27')
        a(f'v_xor_b32 v27, 32, {vPA0}'); a(f'v_add_u32 {vPA1}, {8*128}, v27')
        a('v_lshrrev_b32 v26, 1, v14'); a('v_lshl_or_b32 v26, v20, 1, v26')
        a('v_xor_b32 v26, v26, v24'); a('v_lshlrev_b32 v26, 3, v26')
        a('v_lshl_add_u32 v26, v25, 6, v26'); a(f'v_add_u32 {vVB0}, {L_VI}, v26')
        a(f'v_xor_b32 v27, 32, {vVB0}'); a(f'v_add_u32 {vVB1}, {8*64}, v27')
        a(f'v_and_b32 v13, 31, {vLANE}'); a('v_lshlrev_b32 v13, 2, v13'); a(f'v_lshl_add_u32 {vKVO}, v20, 9, v13')
        a(f'v_lshlrev_b32 {vL128}, 7, {vLANE}')

    def pretouch(s, soff, nlines, tag='pt'):
        if not PRET: return
        a = s.a
        if nlines < 64: a(f's_mov_b64 exec, {hex((1 << nlines)-1)}')
        a.vmem(f'buffer_load_dword {vDUM}, {vL128}, {WS}, {soff} offen', tag)
        if nlines < 64: a('s_mov_b64 exec, -1')

    def stats_load_items(s, dst, sbase, tag):
        a = s.a
        return [(lambda i=i: a.vmem(f'buffer_load_dwordx2 v[{dst+2*i}:{dst+2*i+1}], {vSTA}, {WS}, {sbase} offen offset:{i*256} {LDSC}', tag)) for i in range(7)]

    def stats_list(s, src, vnmean, vrstd, t0, t1):
        S_, Q_ = f'v{src}', f'v{src+1}'
        L = []
        for i in range(1, 7):
            L += [f'v_add_f32 {S_}, {S_}, v{src+2*i}', f'v_add_f32 {Q_}, {Q_}, v{src+2*i+1}']
        L += [f'v_mov_b32 {t0}, {S_}', f'v_mov_b32 {t1}, {Q_}',
              f'v_permlane32_swap_b32 {S_}, {t0}', f'v_permlane32_swap_b32 {Q_}, {t1}',
              f'v_add_f32 {S_}, {S_}, {t0}', f'v_add_f32 {Q_}, {Q_}, {t1}',
              f'v_mul_f32 {vnmean}, {fbits(-1.0/448)}, {S_}', f'v_mul_f32 {Q_}, {fbits(1.0/448)}, {Q_}',
              f'v_fma_f32 {Q_}, -{vnmean}, {vnmean}, {Q_}', f'v_max_f32 {Q_}, 0, {Q_}',
              f'v_add_f32 {Q_}, {fbits(1e-5)}, {Q_}', f'v_rsq_f32 {vrstd}, {Q_}']
        return L

    def cs_read_items(s, dst, lds_off, tag, vaddr):
        a = s.a
        return [(lambda g=g: a.ds(f'ds_read_b128 v[{dst+4*g}:{dst+4*g+3}], {vaddr} offset:{lds_off+32*g}', tag)) for g in range(4)]

    def colsum(s, reads_fn, nks, dst, lds_out, va='v10'):
        a = s.a
        for i in range(4): a(f'v_mov_b32 v{dst+16+i}, 0x3f803f80')
        F = dst + 20
        reads_fn(0, F, ('cs', 0)); reads_fn(1, F+4, ('cs', 1))
        for ks in range(nks):
            if ks+2 < nks: reads_fn(ks+2, F + 4*((ks+2) % 3), ('cs', ks+2))
            a.wait_lg(('cs', ks))
            R = F + 4*(ks % 3)
            c = '0' if ks == 0 else f'v[{dst}:{dst+15}]'
            a(f'v_mfma_f32_32x32x16_bf16 v[{dst}:{dst+15}], v[{R}:{R+3}], v[{dst+16}:{dst+19}], {c}')
        a(f'v_add_u32 {va}, {lds_out}, {vCS}')
        a('s_mov_b32 exec_lo, 1'); a('s_mov_b32 exec_hi, 1')
        for g in range(4):
            a.ds(f'ds_write_b128 {va}, v[{dst+4*g}:{dst+4*g+3}] offset:{32*g}', 'csw')
        a('s_mov_b64 exec, -1')
        a.wait_lg0()

    def colsum_kv(s):
        a = s.a; g = s.g
        def cs_wave():
            a(f's_mul_i32 {sT0}, {sW}, 28672'); a(f'v_add_u32 v31, {sT0}, {vTR64}')
            a(f's_lshl_b32 {sT1}, {sW}, 7'); a(f's_add_u32 {sT1}, {sT1}, {M_CSQKV}')
            def f(ks, reg, tag):
                a.ds(f'ds_read_b64_tr_b16 v[{reg}:{reg+1}], v31 offset:{(16*ks)*64}', tag)
                a.ds(f'ds_read_b64_tr_b16 v[{reg+2}:{reg+3}], v31 offset:{(16*ks+8)*64}', tag)
            s.colsum(f, 28, 192, sT1, va='v30')
        g.wave_in(0, 2, cs_wave)
        a.lg = []

    def softmax_list(s, P, vC, E1, E2, dP, dM, t):
        L = []
        for r in range(12, 16):
            L.append(f'v_cndmask_b32 v{P+r}, v{P+r}, v{P}, {sUP}')
        mx, mn, t2, t3 = f'v{t}', f'v{t+1}', f'v{t+2}', f'v{t+3}'
        L += [f'v_max3_f32 {mx}, v{P}, v{P+1}, v{P+2}', f'v_min3_f32 {mn}, v{P}, v{P+1}, v{P+2}',
              f'v_max3_f32 {t2}, v{P+3}, v{P+4}, v{P+5}', f'v_min3_f32 {t3}, v{P+3}, v{P+4}, v{P+5}']
        for r in (6, 10):
            L += [f'v_max3_f32 {mx}, {mx}, v{P+r}, v{P+r+1}', f'v_min3_f32 {mn}, {mn}, v{P+r}, v{P+r+1}',
                  f'v_max3_f32 {t2}, {t2}, v{P+r+2}, v{P+r+3}', f'v_min3_f32 {t3}, {t3}, v{P+r+2}, v{P+r+3}']
        L += [f'v_max3_f32 {mx}, {mx}, v{P+14}, v{P+15}', f'v_min3_f32 {mn}, {mn}, v{P+14}, v{P+15}',
              f'v_max_f32 {mx}, {mx}, {t2}', f'v_min_f32 {mn}, {mn}, {t3}',
              f'v_mov_b32 {t2}, {mx}', f'v_mov_b32 {t3}, {mn}',
              f'v_permlane32_swap_b32 {mx}, {t2}', f'v_permlane32_swap_b32 {mn}, {t3}',
              f'v_max_f32 {mx}, {mx}, {t2}', f'v_min_f32 {mn}, {mn}, {t3}',
              f'v_mul_f32 {mx}, {mx}, {vC}', f'v_mul_f32 {mn}, {mn}, {vC}']
        c = int(vC[1:]); assert c % 2 == 0 and t % 2 == 0
        cp = f'v[{c}:{c+1}]'; tp = f'v[{t}:{t+1}]'
        for r in range(0, 16, 2):
            L.append(f'v_pk_fma_f32 v[{E1+r}:{E1+r+1}], v[{P+r}:{P+r+1}], {cp}, {tp} op_sel:[0,0,0] op_sel_hi:[1,0,0] neg_lo:[0,0,1] neg_hi:[0,0,1]')
            L.append(f'v_pk_fma_f32 v[{E2+r}:{E2+r+1}], v[{P+r}:{P+r+1}], {cp}, {tp} op_sel:[0,0,1] op_sel_hi:[1,0,1] neg_lo:[1,0,0] neg_hi:[1,0,0]')
        for r in range(16):
            L += [f'v_exp_f32 v{E1+r}, v{E1+r}', f'v_exp_f32 v{E2+r}, v{E2+r}']
        for r in range(12, 16):
            L += [f'v_cndmask_b32 v{E1+r}, v{E1+r}, 0, {sUP}', f'v_cndmask_b32 v{E2+r}, v{E2+r}, 0, {sUP}']
        A1 = f'v[{t}:{t+1}]'; A2 = f'v[{t+2}:{t+3}]'; B1 = f'v[{t+4}:{t+5}]'; B2 = f'v[{t+6}:{t+7}]'
        pr = lambda b, r: f'v[{b+r}:{b+r+1}]'
        L += [f'v_pk_add_f32 {A1}, {pr(E1,0)}, {pr(E1,2)}', f'v_pk_add_f32 {A2}, {pr(E2,0)}, {pr(E2,2)}',
              f'v_pk_add_f32 {B1}, {pr(E1,4)}, {pr(E1,6)}', f'v_pk_add_f32 {B2}, {pr(E2,4)}, {pr(E2,6)}']
        L += [f'v_pk_add_f32 {A1}, {A1}, {pr(E1,8)}', f'v_pk_add_f32 {A2}, {A2}, {pr(E2,8)}',
              f'v_pk_add_f32 {B1}, {B1}, {pr(E1,10)}', f'v_pk_add_f32 {B2}, {B2}, {pr(E2,10)}',
              f'v_pk_add_f32 {A1}, {A1}, {pr(E1,12)}', f'v_pk_add_f32 {A2}, {A2}, {pr(E2,12)}',
              f'v_pk_add_f32 {B1}, {B1}, {pr(E1,14)}', f'v_pk_add_f32 {B2}, {B2}, {pr(E2,14)}',
              f'v_pk_add_f32 {A1}, {A1}, {B1}', f'v_pk_add_f32 {A2}, {A2}, {B2}',
              f'v_add_f32 v{t}, v{t}, v{t+1}', f'v_add_f32 v{t+2}, v{t+2}, v{t+3}',
              f'v_mov_b32 v{t+1}, v{t}', f'v_mov_b32 v{t+3}, v{t+2}',
              f'v_permlane32_swap_b32 v{t}, v{t+1}', f'v_permlane32_swap_b32 v{t+2}, v{t+3}',
              f'v_add_f32 v{t}, v{t}, v{t+1}', f'v_add_f32 v{t+2}, v{t+2}, v{t+3}',
              f'v_rcp_f32 v{t}, v{t}', f'v_rcp_f32 v{t+2}, v{t+2}']
        for r in range(0, 16, 2):
            L.append(f'v_pk_mul_f32 {pr(E1,r)}, {pr(E1,r)}, {A1} op_sel_hi:[1,0]')
            L.append(f'v_pk_mul_f32 {pr(E2,r)}, {pr(E2,r)}, {A2} op_sel_hi:[1,0]')
        for i in range(8):
            L += [f'v_cvt_pk_bf16_f32 v{dP+i}, v{E1+2*i}, v{E1+2*i+1}', f'v_cvt_pk_bf16_f32 v{dM+i}, v{E2+2*i}, v{E2+2*i+1}']
        return L

    def qk_list(s, acc, cs, NMp, vC, frag, P, E1, E2, dP, dM, t):
        L = []
        for r in range(0, 16, 2):
            L.append(f'v_pk_fma_f32 v[{acc+r}:{acc+r+1}], v[{cs+r}:{cs+r+1}], v[{NMp}:{NMp+1}], v[{acc+r}:{acc+r+1}] op_sel_hi:[1,0,1]')
        for i in range(8):
            L.append(f'v_cvt_pk_bf16_f32 v{frag+i}, v{acc+2*i}, v{acc+2*i+1}')
        L.append(f'v_mfma_f32_32x32x16_bf16 v[{P}:{P+15}], a[248:251], v[{frag}:{frag+3}], 0')
        L.append(f'v_mfma_f32_32x32x16_bf16 v[{P}:{P+15}], a[252:255], v[{frag+4}:{frag+7}], v[{P}:{P+15}]')
        L += s.softmax_list(P, vC, E1, E2, dP, dM, t)
        return L

    def dma_item(s, srd, voff, ssrc, srcoff, sdst, dstoff, tag, track=True):
        a = s.a
        def f():
            if sdst is None: a(f's_mov_b32 m0, {dstoff}')
            else: a(f's_add_u32 m0, {sdst}, {dstoff}')
            a(f's_add_u32 s92, {ssrc}, {srcoff}')
            if track: a.vmem(f'buffer_load_dwordx4 {voff}, {srd}, s92 offen lds', tag)
            else: a(f'buffer_load_dwordx4 {voff}, {srd}, s92 offen lds')
        return f

    def wq_items(s):
        a = s.a
        a(f's_mul_i32 s90, {sHEAD}, {WQH}'); a(f's_add_u32 s90, s90, {sGB}')
        if WQ: a(f's_add_u32 s90, s90, {WQ}')
        a(f's_lshl_b32 s91, {sW}, 10'); a(f's_add_u32 s90, s90, s91')
        return [s.dma_item(WS, vL16, 's90', n*4096, 's91', n*4096, 'W') for n in range(21)]

    def layer_setup(s):
        a = s.a
        L0 = a.newlabel('Ll0'); Le = a.newlabel('Lle')
        a(f's_cmp_lg_u32 {sL}, 0'); a(f's_cbranch_scc1 {L0}')
        for r, o in ((sXIN, X0), (sSTIN, ST0), (sX1, X1A), (sST1, ST1A), (sXO, X2A), (sSTO, ST2A), (sO, OA), (sH, HA)):
            a(f's_add_u32 {r}, {sGB}, {o}')
        a(f's_branch {Le}')
        a.label(L0)
        for r, o in ((sXIN, X2A), (sSTIN, ST2A), (sX1, X1A), (sST1, ST1A), (sXO, X2A), (sSTO, ST2A), (sO, OA), (sH, HA)):
            a(f's_add_u32 {r}, {sGB}, {o}')
        a.label(Le)
        a(f's_lshl_b32 {sT0}, {sL}, 4'); a(f's_add_u32 {sT0}, {sT0}, {sHEAD}')
        a(f's_lshl_b32 {sKV}, {sT0}, 13'); a(f's_add_u32 {sKV}, {sKV}, {KV}')
        a(f's_lshl_b32 {sKVC}, {sT0}, 7'); a(f's_add_u32 {sKVC}, {sKVC}, {KVC}')
        a(f's_lshl_b32 {sFL}, {sG}, 11'); a(f's_lshl_b32 {sT0}, {sL}, 9'); a(f's_add_u32 {sFL}, {sFL}, {sT0}')
        if FLAGS: a(f's_add_u32 {sFL}, {sFL}, {FLAGS}')

    def fl(s, p):
        s.a(f's_add_u32 s80, {sFL}, {p*128}')
        return 's80'

    def p1(s):
        a = s.a; g = s.g
        a.c('==== P1')
        XD = 8
        a(f's_lshl_b32 {sT3}, {sHALF}, 2'); a(f's_add_u32 {sT3}, {sT3}, {sW}')
        a(f's_mul_i32 s82, {sT3}, 3584'); a(f's_add_u32 s82, s82, {sSTIN}')
        a(f's_mul_i32 s83, {sT3}, 28672'); a(f's_add_u32 s83, s83, {sXIN}')
        def xload(ks):
            if ks % 4 == 0: a(f's_add_u32 s84, s83, {(ks//4)*4096}')
            a.vmem(f'buffer_load_dwordx4 a[{4*ks}:{4*ks+3}], {vL16}, {WS}, s84 offen offset:{(ks%4)*1024} {LDSC}', ('x', ks))
        a(f's_lshl_b32 {sT4}, {sT3}, 15'); a(f's_add_u32 {sT4}, {sT4}, {sO}'); a(f's_lshl_b32 {sT5}, {sHEAD}, 11'); a(f's_add_u32 s85, {sT4}, {sT5}')
        def rd64(base, va=vTR64):
            def f(ks, reg, tag):
                a.ds(f'ds_read_b64_tr_b16 v[{reg}:{reg+1}], {va} offset:{base+(16*ks)*64}', tag)
                a.ds(f'ds_read_b64_tr_b16 v[{reg+2}:{reg+3}], {va} offset:{base+(16*ks+8)*64}', tag)
            return f
        AK, AV, AQ, FR = 16, 32, 48, 64
        rk, rv, rq = rd64(L_WK), rd64(L_WV), rd64(0, 'v208')
        FRS = (64, 72, 216)
        NM, RS, VC = 'v10', 'v11', 'v12'
        def kvloop(loads):
            side = Side()
            if loads:
                run_list(a, s.stats_load_items(96, 's82', 'st'))
                for ks in range(XD): xload(ks)
                side = Side([lambda: a.wait_vm('st')] + s.stats_list(96, NM, RS, 'v13', 'v14'))
            rk(0, FRS[0], ('fk', 0)); rv(0, FRS[0]+4, ('fv', 0))
            rk(1, FRS[1], ('fk', 1)); rv(1, FRS[1]+4, ('fv', 1))
            for ks in range(28):
                b = FRS[ks % 3]
                if loads: a.wait_vm(('x', ks))
                a.wait_lg(('fk', ks))
                ck = '0' if ks == 0 else f'v[{AK}:{AK+15}]'
                cv = '0' if ks == 0 else f'v[{AV}:{AV+15}]'
                a(f'v_mfma_f32_32x32x16_bf16 v[{AK}:{AK+15}], v[{b}:{b+3}], a[{4*ks}:{4*ks+3}], {ck}')
                if ks+2 < 28: rk(ks+2, FRS[(ks+2) % 3], ('fk', ks+2))
                if loads and ks + XD < 28: xload(ks + XD)
                a.wait_lg(('fv', ks))
                a(f'v_mfma_f32_32x32x16_bf16 v[{AV}:{AV+15}], v[{b+4}:{b+7}], a[{4*ks}:{4*ks+3}], {cv}')
                if ks+2 < 28: rv(ks+2, FRS[(ks+2) % 3]+4, ('fv', ks+2))
                if ks >= 2: side.emit(a, 2)
            side.flush(a)
        L1p = a.newlabel('Lp1l1'); Lj = a.newlabel('Lp1j')
        a(f's_cmp_lg_u32 {sL}, 0'); a(f's_cbranch_scc1 {L1p}')
        a(f'v_and_b32 v13, 7, {vLANE}'); a('v_lshlrev_b32 v233, 5, v13')
        a(f'buffer_load_dword v232, v233, {DBG}, 0 offen sc1')
        a.lg = []
        kvloop(False)
        g.wave_in(0, 2, g.registration_check)
        a('s_barrier')
        a('v_mov_b32 v10, v234'); a('v_mov_b32 v11, v235')
        a(f's_branch {Lj}')
        a.label(L1p)
        a.vm = []; a.lg = []
        kvloop(True)
        a('s_barrier')
        a.label(Lj)
        a.vm = []; a.lg = []
        g.stamp('p1 KV gemm')
        a(f'v_add_u32 v15, {M_CSQKV}, {vCS}')
        run_list(a, s.cs_read_items(112, 0, 'csk', 'v15') + s.cs_read_items(128, 128, 'csv', 'v15'))
        a(f'v_mul_f32 {VC}, {fbits(LOG2E)}, {RS}')
        a.wait_lg('csk')
        a(f's_lshl_b32 s90, {sM}, 7'); a(f's_mul_i32 s91, {sW}, {8*3584}'); a(f's_add_u32 s90, s90, s91')
        a(f's_lshl_b32 s91, {sW}, 10')
        a(f's_add_u32 {sT0}, s91, {112640 - L_WG}'); a(f's_cmp_eq_u32 {sL}, 0'); a(f's_cselect_b32 s91, {sT0}, s91')
        wa = Side([s.dma_item(WG, vD3584, 's90', 4*n*8*3584, 's91', L_WG + 4*n*1024, 'WA') for n in range(10)] if PFA else [])
        L = s.qk_list(AK, 112, 10, VC, 144, 80, 96, 192, 176, 184, 152)
        for T in range(2):
            for gq in range(4):
                R = 176 + 8*T + 2*gq
                L.append(f'v_xor_b32 v{156+(gq&1)}, {(8*T+2*gq) << 3}, {vPHIW}')
                L.append(lambda R=R, gq=gq: a.ds(f'ds_write_b64 v{156+(gq&1)}, v[{R}:{R+1}]', 'pw'))
        L.append(lambda: a.wait_lg('csv'))
        for r in range(0, 16, 2):
            L.append(f'v_pk_fma_f32 v[{AV+r}:{AV+r+1}], v[{128+r}:{129+r}], v[10:11], v[{AV+r}:{AV+r+1}] op_sel_hi:[1,0,1]')
        for r in range(0, 16, 2):
            L.append(f'v_pk_mul_f32 v[{AV+r}:{AV+r+1}], v[{AV+r}:{AV+r+1}], v[10:11] op_sel:[0,1] op_sel_hi:[1,1]')
        L.append(f'v_cndmask_b32 v{AV+12}, v{AV+12}, 1.0, {sUP}')
        for i in range(8):
            L.append(f'v_cvt_pk_bf16_f32 v{144+i}, v{AV+2*i}, v{AV+2*i+1}')
        for gq in range(4):
            L.append(f'v_xor_b32 v{156+(gq&1)}, {(2*gq) << 3}, {vVIW}')
            L.append(lambda gq=gq: a.ds(f'ds_write_b64 v{156+(gq&1)}, v[{144+2*gq}:{145+2*gq}]', 'vw'))
        run_list(a, L, wa, 22)
        a(f's_waitcnt vmcnt({10 if PFA else 0}) lgkmcnt(0)')
        a.lg = []
        a('s_barrier')
        g.stamp('p1 phi/v written')
        s.pretouch('s85', 16)
        def kv():
            def rr(kt, reg, tag):
                a.ds(f'ds_read_b64_tr_b16 v[{reg}:{reg+1}], {vPA0} offset:{kt*2048}', tag)
                a.ds(f'ds_read_b64_tr_b16 v[{reg+2}:{reg+3}], {vPA1} offset:{kt*2048}', tag)
                a.ds(f'ds_read_b64_tr_b16 v[{reg+4}:{reg+5}], {vVB0} offset:{kt*1024}', tag)
                a.ds(f'ds_read_b64_tr_b16 v[{reg+6}:{reg+7}], {vVB1} offset:{kt*1024}', tag)
            KS = (64, 72, 216)
            rr(0, KS[0], ('k', 0)); rr(1, KS[1], ('k', 1))
            for kt in range(8):
                if kt+2 < 8: rr(kt+2, KS[(kt+2) % 3], ('k', kt+2))
                a.wait_lg(('k', kt))
                b = KS[kt % 3]
                c = '0' if kt == 0 else 'v[80:95]'
                a(f'v_mfma_f32_32x32x16_bf16 v[80:95], v[{b}:{b+3}], v[{b+4}:{b+7}], {c}')
            a(f's_lshl_b32 {sT0}, {sW}, 12'); a(f's_add_u32 {sT0}, {sT0}, {sKV}')
            for gq in range(4):
                for r in range(4):
                    a(f'buffer_atomic_add_f32 v{80+4*gq+r}, {vKVO}, {WS}, {sT0} offen offset:{(8*gq+r)*128} sc1')
        g.wave_in(0, 2, kv)
        def csq():
            Lq0 = a.newlabel('Lq0')
            a(f's_cmp_lg_u32 {sL}, 0'); a(f's_cbranch_scc1 {Lq0}')
            a(f'v_add_u32 v209, {2*28672}, {vTR64}')
            a(f's_mov_b32 {sT1}, {M_CSQKV + 256}')
            s.colsum(rd64(0, 'v209'), 28, 112, sT1, va='v152')
            a.label(Lq0)
        g.wave_only(2, csq)
        a.lg = []
        a.vm = []
        a.lg = []
        g.stamp('p1 kv issued')
        a(f'v_add_u32 v208, {L_WQ}, {vTR64}')
        QS = (64, 68, 72)
        rq(0, QS[0], ('f', 0)); rq(1, QS[1], ('f', 1))
        for ks in range(28):
            if ks+2 < 28: rq(ks+2, QS[(ks+2) % 3], ('f', ks+2))
            a.wait_lg(('f', ks))
            b = QS[ks % 3]
            cq = '0' if ks == 0 else f'v[{AQ}:{AQ+15}]'
            a(f'v_mfma_f32_32x32x16_bf16 v[{AQ}:{AQ+15}], v[{b}:{b+3}], a[{4*ks}:{4*ks+3}], {cq}')
        a.wait_lg0()
        Lsv = a.newlabel('Lsv')
        a(f's_cmp_lg_u32 {sL}, 0'); a(f's_cbranch_scc1 {Lsv}')
        g.wave_in(2, 4, lambda: a('s_waitcnt vmcnt(0)'))
        g.wave_in(0, 2, lambda: a('s_waitcnt vmcnt(16)'))
        a(f's_mul_i32 {sT0}, {sHALF}, 42'); a(f's_add_u32 {sT0}, {sT0}, {sW}'); a(f's_lshl_b32 {sT0}, {sT0}, 10')
        a(f'v_add_u32 v13, {sT0}, {vL16}')
        a(f's_mul_i32 {sT1}, {sHEAD}, {WQH}'); a(f's_add_u32 {sT1}, {sT1}, {sGB}'); a(f's_add_u32 {sT1}, {sT1}, {sT0}')
        if WQ: a(f's_add_u32 {sT1}, {sT1}, {WQ}')
        a(f's_mov_b32 s89, {sT1}')
        SV = lambda n: (128 + 4*n) if n < 4 else (176 + 4*(n-4)) if n < 8 else (216 + 4*(n-8)) if n < 10 else 232
        for n in range(11):
            a.ds(f'ds_read_b128 v[{SV(n)}:{SV(n)+3}], v13 offset:{n*4096}', 'sv')
        a.wait_lg0()
        a.label(Lsv)
        a('s_barrier')
        run_list(a, s.cs_read_items(112, 256, 'csq', 'v15'))
        a.wait_lg0()
        g.stamp('p1 q gemm')
        qpost = lambda: s.qk_list(AQ, 112, 10, VC, 144, 80, 96, 192, 160, 168, 152)
        def save_stores(nblk):
            Ls = a.newlabel('Lss')
            a(f's_cmp_lg_u32 {sL}, 0'); a(f's_cbranch_scc1 {Ls}')
            for n in range(nblk):
                a(f's_add_u32 {sT2}, s89, {n*4096}')
                a(f'buffer_store_dwordx4 v[{SV(n)}:{SV(n)+3}], {vL16}, {WS}, {sT2} offen sc1')
            a.label(Ls)
        s.save_stores_fn = save_stores
        Lq = a.newlabel('Lq23'); Lqe = a.newlabel('Lqe')
        a(f's_cmp_ge_u32 {sW}, 2'); a(f's_cbranch_scc1 {Lq}')
        a.vm = []
        run_list(a, qpost())
        a('s_waitcnt vmcnt(0)')
        a('v_mov_b32 v13, 1'); a('s_mov_b64 exec, 1')
        a(f'buffer_atomic_add v13, off, {WS}, {sKVC} sc1')
        a('s_mov_b64 exec, -1')
        save_stores(11)
        s.resid_loads(224, sXIN, track=False, raw_l0=True)
        s.dest_pretouch(sX1, sST1)
        if G.CPF: g.wave_only(1, lambda: g.code_prefetch('L_code_p2b', 'L_code_p4', v='v14'))
        g.stamp('p1 kv counted')
        g.poll(WS, None, sKVC, 32, vt='v13')
        g.stamp('kv hop done')
        a(f's_lshl_b32 {sT0}, {sW}, 12'); a(f's_add_u32 {sT0}, {sT0}, {sKV}')
        for gq in range(4):
            for r in range(4):
                a.vmem(f'buffer_load_dword v{64+4*gq+r}, {vKVO}, {WS}, {sT0} offen offset:{(8*gq+r)*128} sc1', ('kv', gq >> 1))
        for e in range(2):
            a.wait_vm(('kv', e))
            for i in range(4):
                a(f'v_cvt_pk_bf16_f32 v{96+4*e+i}, v{64+8*e+2*i}, v{64+8*e+2*i+1}')
        a(f's_lshl_b32 {sT0}, {sW}, 11'); a(f's_add_u32 {sT0}, {sT0}, {L_KVF}'); a(f'v_add_u32 v13, {sT0}, {vL16}')
        a('ds_write_b128 v13, v[96:99]'); a('ds_write_b128 v13, v[100:103] offset:1024')
        a('s_waitcnt lgkmcnt(0)')
        a(f's_branch {Lqe}')
        a.label(Lq)
        a.vm = []
        save_stores(10)
        a(f's_sub_u32 {sT0}, {sW}, 2')
        a(f's_lshl_b32 s86, {sCT}, 7'); a(f's_mul_i32 {sT1}, {sT0}, {8*896}'); a(f's_add_u32 s86, s86, {sT1}')
        a(f's_lshl_b32 s87, {sT0}, 10')
        a(f's_lshl_b32 s88, {sM}, 7'); a(f's_mul_i32 {sT1}, {sT0}, {8*3584}'); a(f's_add_u32 s88, s88, {sT1}')
        items = [s.dma_item(WO, vD896, 's86', 2*n*8*896, 's87', L_WO + 2*n*1024, 'W1') for n in range(28)]
        if not PFA: items += [s.dma_item(WG, vD3584, 's88', 2*n*8*3584, 's87', L_WG + 2*n*1024, 'W1') for n in range(20)]
        items += [s.dma_item(WU, vD3584, 's88', 2*n*8*3584, 's87', L_WU + 2*n*1024, 'W1', track=False) for n in range(28)]
        s.resid_loads(224, sXIN, track=False, raw_l0=True)
        s.dest_pretouch(sX1, sST1)
        run_list(a, qpost(), Side(items), 2)
        if PFA:
            Lwg = a.newlabel('Lwg')
            a(f's_cmp_lg_u32 {sL}, 0'); a(f's_cbranch_scc1 {Lwg}')
            for n in range(20):
                s.dma_item(WG, vD3584, 's88', 2*n*8*3584, 's87', L_WG + 2*n*1024, 'W1', track=False)()
            a.label(Lwg)
        a.label(Lqe)
        a.vm = []; a.lg = []
        a('s_barrier')
        g.stamp('kv frags ready')

    def p2a(s):
        a = s.a; g = s.g
        a.c('==== P2a')
        a(f'v_add_u32 v13, {L_KVF}, {vL16}')
        for k in range(4):
            a.ds(f'ds_read_b128 v[{96+4*k}:{99+4*k}], v13 offset:{k*1024}', ('kf', k))
        for k in range(4):
            a.wait_lg(('kf', k))
            c = '0' if k == 0 else 'v[16:31]'
            a(f'v_mfma_f32_32x32x16_bf16 v[16:31], v[{96+4*k}:{99+4*k}], v[{160+4*k}:{163+4*k}], {c}')
        a('v_mov_b32 v32, v28'); a('v_mov_b32 v33, v28')
        a('v_permlane32_swap_b32 v32, v33')
        a(f'v_add_f32 v33, {fbits(1e-6)}, v33')
        a('v_rcp_f32 v34, v33')
        for r in range(0, 16, 2):
            a(f'v_pk_mul_f32 v[{16+r}:{17+r}], v[{16+r}:{17+r}], v[34:35] op_sel_hi:[1,0]')
        for r in range(12, 16):
            a(f'v_cndmask_b32 v{16+r}, v{16+r}, 0, {sUP}')
        for i in range(8):
            a(f'v_cvt_pk_bf16_f32 v{40+i}, v{16+2*i}, v{16+2*i+1}')
        a(f'buffer_store_dwordx4 v[40:43], {vL16}, {WS}, s85 offen {STSC}')
        a(f'buffer_store_dwordx4 v[44:47], {vL16}, {WS}, s85 offen offset:1024 {STSC}')
        g.set_flag(s.fl(1))
        g.stamp('p2a done')

    def tile_coords(s):
        a = s.a
        a(f's_and_b32 {sT1}, {sW}, 1'); a(f's_lshl_b32 {sT2}, {sTQ}, 1'); a(f's_add_u32 {sT1}, {sT1}, {sT2}')
        a(f's_lshr_b32 {sT2}, {sW}, 1'); a(f's_lshl_b32 {sT3}, {sCT}, 1'); a(f's_add_u32 {sT2}, {sT2}, {sT3}')

    def resid_loads(s, dst, sX, track=True, raw_l0=False):
        a = s.a
        s.tile_coords()
        f = a.vmem if track else (lambda t, tag: a(t))
        Lr = Le = None
        if raw_l0:
            Lr = a.newlabel('Lrr'); Le = a.newlabel('Lre')
            a(f's_cmp_eq_u32 {sL}, 0'); a(f's_cbranch_scc1 {Lr}')
        a(f's_mul_i32 {sT4}, {sT1}, 28672'); a(f's_lshl_b32 {sT2}, {sT2}, 11'); a(f's_add_u32 {sT4}, {sT4}, {sT2}')
        a(f's_add_u32 {sT4}, {sT4}, {sX}')
        f(f'buffer_load_dwordx4 v[{dst}:{dst+3}], {vL16}, {WS}, {sT4} offen {LDSC}', 'res')
        f(f'buffer_load_dwordx4 v[{dst+4}:{dst+7}], {vL16}, {WS}, {sT4} offen offset:1024 {LDSC}', 'res')
        if raw_l0:
            a(f's_branch {Le}')
            a.label(Lr)
            a(f's_lshl_b32 {sT4}, {sG}, 8'); a(f's_lshl_b32 {sT5}, {sT1}, 5'); a(f's_add_u32 {sT4}, {sT4}, {sT5}')
            a(f's_mul_i32 {sT4}, {sT4}, 896'); a(f's_lshl_b32 {sT5}, {sT2}, 6'); a(f's_add_u32 {sT4}, {sT4}, {sT5}')
            a(f'v_and_b32 v13, 31, {vLANE}'); a('v_mul_u32_u24 v13, 896, v13')
            a(f'v_lshrrev_b32 v14, 5, {vLANE}'); a('v_lshl_add_u32 v13, v14, 3, v13')
            for gq in range(4):
                a(f'buffer_load_dwordx2 v[{dst+2*gq}:{dst+2*gq+1}], v13, {AX}, {sT4} offen offset:{16*gq}')
            a.label(Le)

    def dest_pretouch(s, sXdst, sSTdst):
        if not PRET: return
        a = s.a
        s.tile_coords()
        a(f's_mul_i32 {sT4}, {sT1}, 28672'); a(f's_lshl_b32 {sT5}, {sT2}, 11'); a(f's_add_u32 {sT4}, {sT4}, {sT5}')
        a(f's_add_u32 {sT4}, {sT4}, {sXdst}')
        s.pretouch(sT4, 16)
        a(f's_mul_i32 {sT4}, {sT1}, 14'); a(f's_add_u32 {sT4}, {sT4}, {sT2}'); a(f's_lshl_b32 {sT4}, {sT4}, 8')
        a(f's_add_u32 {sT4}, {sT4}, {sSTdst}')
        s.pretouch(sT4, 2)

    def red_write(s, ACC, RED, parts=(1, 2, 3), side=None):
        a = s.a
        n = len(parts)
        for k, (slot, x) in enumerate(parts):
            a(f's_xor_b32 {sT0}, {sW}, {x}'); a(f's_mul_i32 {sT0}, {sT0}, {n}'); a(f's_add_u32 {sT0}, {sT0}, {k}')
            a(f's_lshl_b32 {sT0}, {sT0}, 12'); a(f's_add_u32 {sT0}, {sT0}, {RED}')
            a(f'v_add_u32 v{11+k}, {sT0}, {vL16}')
        for k, (slot, x) in enumerate(parts):
            for q in range(4):
                R = ACC + 16*slot + 4*q
                a.ds(f'ds_write_b128 v{11+k}, v[{R}:{R+3}] offset:{q*1024}', 'rw')
                if side is not None and q % 2 == 1: side.emit(a)
        a(f's_mul_i32 {sT0}, {sW}, {n*4096}'); a(f's_add_u32 {sT0}, {sT0}, {RED}')
        a(f'v_add_u32 v10, {sT0}, {vL16}')
        a.wait_lg0()
        a('s_barrier')

    def red_list(s, ACC, resid, n=3):
        a = s.a
        T = ACC + 16
        L = []
        for k in range(n):
            for q in range(4):
                R = T + 16*k + 4*q
                L.append(lambda R=R, k=k, q=q: a.ds(f'ds_read_b128 v[{R}:{R+3}], v10 offset:{k*4096+q*1024}', ('rr', k)))
        U = ACC + 64
        for i in range(8):
            L += [f'v_lshlrev_b32 v{U+2*i}, 16, v{resid+i}', f'v_and_b32 v{U+2*i+1}, 0xffff0000, v{resid+i}']
        pr = lambda b, r: f'v[{b+r}:{b+r+1}]'
        for r in range(0, 16, 2):
            L.append(f'v_pk_add_f32 {pr(ACC,r)}, {pr(ACC,r)}, {pr(U,r)}')
        for k in range(n):
            L.append(lambda k=k: a.wait_lg(('rr', k)))
            for r in range(0, 16, 2):
                L.append(f'v_pk_add_f32 {pr(ACC,r)}, {pr(ACC,r)}, {pr(T+16*k,r)}')
        PK = ACC + 48 + 0
        for i in range(8):
            L.append(f'v_cvt_pk_bf16_f32 v{PK+i}, v{ACC+2*i}, v{ACC+2*i+1}')
        return L

    def store_x_list(s, ACC, sXdst, sSTdst):
        a = s.a
        PK = ACC + 48
        L = []
        def addr():
            s.tile_coords()
            a(f's_mul_i32 {sT4}, {sT1}, 28672'); a(f's_lshl_b32 {sT5}, {sT2}, 11'); a(f's_add_u32 {sT4}, {sT4}, {sT5}')
            a(f's_add_u32 {sT4}, {sT4}, {sXdst}')
            a.vmem(f'buffer_store_dwordx4 v[{PK}:{PK+3}], {vL16}, {WS}, {sT4} offen {STSC}', 'xs')
            a.vmem(f'buffer_store_dwordx4 v[{PK+4}:{PK+7}], {vL16}, {WS}, {sT4} offen offset:1024 {STSC}', 'xs')
        L.append(addr)
        pr = lambda b, r: f'v[{b+r}:{b+r+1}]'
        L += [f'v_pk_add_f32 v[12:13], {pr(ACC,0)}, {pr(ACC,2)}', f'v_pk_mul_f32 v[14:15], {pr(ACC,0)}, {pr(ACC,0)}']
        L.append(f'v_pk_fma_f32 v[14:15], {pr(ACC,2)}, {pr(ACC,2)}, v[14:15]')
        for r in range(4, 16, 2):
            L += [f'v_pk_add_f32 v[12:13], v[12:13], {pr(ACC,r)}', f'v_pk_fma_f32 v[14:15], {pr(ACC,r)}, {pr(ACC,r)}, v[14:15]']
        L += ['v_add_f32 v12, v12, v13', 'v_add_f32 v14, v14, v15', 'v_mov_b32 v13, v12', 'v_mov_b32 v15, v14',
              'v_permlane32_swap_b32 v12, v13', 'v_permlane32_swap_b32 v14, v15',
              'v_add_f32 v12, v12, v13', 'v_add_f32 v13, v14, v15', f'v_lshlrev_b32 v11, 3, {vLANE}']
        def st():
            a(f's_mul_i32 {sT4}, {sT1}, 14'); a(f's_add_u32 {sT4}, {sT4}, {sT2}'); a(f's_lshl_b32 {sT4}, {sT4}, 8')
            a(f's_add_u32 {sT4}, {sT4}, {sSTdst}')
            a('s_mov_b64 exec, 0xffffffff')
            a.vmem(f'buffer_store_dwordx2 v[12:13], v11, {WS}, {sT4} offen {STSC}', 'xs')
            a('s_mov_b64 exec, -1')
        L.append(st)
        return L

    def store_out_list(s, ACC):
        a = s.a
        PK = ACC + 48
        L = []
        for e in range(2):
            L += [f'v_permlane32_swap_b32 v{PK+4*e}, v{PK+4*e+2}', f'v_permlane32_swap_b32 v{PK+4*e+1}, v{PK+4*e+3}']
        def st():
            s.tile_coords()
            a(f's_lshl_b32 {sT4}, {sG}, 8'); a(f's_lshl_b32 {sT5}, {sT1}, 5'); a(f's_add_u32 {sT4}, {sT4}, {sT5}')
            a(f's_mul_i32 {sT4}, {sT4}, 896'); a(f's_lshl_b32 {sT5}, {sT2}, 6'); a(f's_add_u32 {sT4}, {sT4}, {sT5}')
            a(f'v_and_b32 v12, 31, {vLANE}'); a('v_mul_u32_u24 v12, 896, v12')
            a(f'v_lshrrev_b32 v13, 5, {vLANE}'); a('v_lshl_add_u32 v12, v13, 4, v12')
            a(f'buffer_store_dwordx4 v[{PK}:{PK+3}], v12, {OUT}, {sT4} offen')
            a(f'buffer_store_dwordx4 v[{PK+4}:{PK+7}], v12, {OUT}, {sT4} offen offset:32')
        L.append(st)
        return L

    def tile_addrs(s, sbase):
        a = s.a
        a(f's_lshr_b32 {sT0}, {sW}, 1'); a(f's_lshl_b32 {sT0}, {sT0}, 6')
        a(f'v_xor_b32 v14, {sT0}, {vTR0}')
        a(f'v_add_u32 v14, {sbase}, v14')
        a('v_xor_b32 v15, 64, v14')

    def p2b(s):
        a = s.a; g = s.g
        a.c('==== P2b')
        a.rawlabel('L_code_p2b')
        a(f's_lshr_b32 {sT5}, {sW}, 1'); a(f's_mul_i32 {sT5}, {sT5}, 28672'); a(f's_add_u32 {sT5}, {sT5}, {L_WO}')
        s.tile_addrs(sT5)
        a(f'v_lshrrev_b32 v12, 5, {vLANE}'); a('v_lshlrev_b32 v12, 9, v12')
        a('v_sub_u32 v13, v15, v12'); a('v_sub_u32 v12, v14, v12')
        a(f's_lshr_b32 {sT0}, {sTQ}, 1'); a(f's_lshl_b32 {sT0}, {sT0}, 4'); a(f's_lshl_b32 s81, 0xffff, {sT0}')
        a(f's_and_b32 {sT0}, {sW}, 1'); a(f's_lshl_b32 {sT1}, {sTQ}, 1')
        a(f's_add_u32 {sT0}, {sT0}, {sT1}'); a(f's_lshl_b32 {sT0}, {sT0}, 15'); a(f's_add_u32 {sT0}, {sT0}, {sO}')
        a(f's_lshr_b32 {sT1}, {sW}, 1'); a(f's_lshl_b32 {sT1}, {sT1}, 14'); a(f's_add_u32 s82, {sT0}, {sT1}')
        g.wait_flags(s.fl(1), 's81', vt='v10', va='v11')
        a.vm = []
        g.stamp('p2b hop done')
        def oload(i):
            if i % 4 == 0: a(f's_add_u32 s84, s82, {(i//4)*4096}')
            a.vmem(f'buffer_load_dwordx4 a[{4*i}:{4*i+3}], {vL16}, {WS}, s84 offen offset:{(i%4)*1024} {LDSC}', ('o', i))
        ACC = 16; FS = (80, 88, 104)
        def rd(i, reg, tag):
            off = (28*(i >> 1) + 16*(i & 1))*128
            for sl in range(2):
                va = ('v14', 'v15')[sl]
                vb = ('v12', 'v13')[sl] if (i & 1) else va
                a.ds(f'ds_read_b64_tr_b16 v[{reg+4*sl}:{reg+4*sl+1}], {va} offset:{off}', tag)
                a.ds(f'ds_read_b64_tr_b16 v[{reg+4*sl+2}:{reg+4*sl+3}], {vb} offset:{off+8*128}', tag)
        OD = 6
        for i in range(OD): oload(i)
        rd(0, FS[0], ('f', 0)); rd(1, FS[1], ('f', 1))
        for i in range(16):
            if i+2 < 16: rd(i+2, FS[(i+2) % 3], ('f', i+2))
            a.wait_lg(('f', i))
            a.wait_vm(('o', i))
            b0 = FS[i % 3]
            for sa in range(2):
                R = ACC + 16*sa
                c = '0' if i == 0 else f'v[{R}:{R+15}]'
                a(f'v_mfma_f32_32x32x16_bf16 v[{R}:{R+15}], v[{b0+4*sa}:{b0+4*sa+3}], a[{4*i}:{4*i+3}], {c}')
                if sa == 0 and i + OD < 16: oload(i + OD)
        g.stamp('p2b gemm')
        a('s_barrier')
        s.red_write(ACC, RED2, parts=((1, 2),))
        run_list(a, s.red_list(ACC, 224, n=1) + s.store_x_list(ACC, sX1, sST1))
        g.set_flag(s.fl(2))
        if G.CPF: g.wave_only(1, lambda: g.code_prefetch('L_code_p4', 'L_code_end', v='v14'))
        def late():
            a(f's_sub_u32 {sT0}, {sW}, 1')
            a(f's_lshl_b32 s90, {sM}, 7'); a(f's_mul_i32 s91, {sT0}, {8*3584}'); a(f's_add_u32 s90, s90, s91')
            a(f's_lshl_b32 s91, {sT0}, 10')
            for n in range(6):
                if n == 5:
                    Lx = a.newlabel('Lx'); a(f's_cmp_lg_u32 {sW}, 1'); a(f's_cbranch_scc1 {Lx}')
                s.dma_item(WG, vD3584, 's90', (40+3*n)*8*3584, 's91', L_WG + (40+3*n)*1024, 'late')()
                if n == 5: a.label(Lx)
        g.wave_in(1, 4, late)
        a.vm = []
        g.stamp('p2b done')

    def gelu_list(s, G, U, csg, csu, NM, RS, T, PK, packed):
        L = []
        pr = lambda b, r: f'v[{b+r}:{b+r+1}]'
        if packed:
            nm = int(NM[1:]); nmp = f'v[{nm & ~1}:{(nm & ~1)+1}]'; ns = nm & 1
            rs = int(RS[1:]); rsp = f'v[{rs & ~1}:{(rs & ~1)+1}]'; rss = rs & 1
            for r in range(0, 16, 2): L.append(f'v_pk_fma_f32 {pr(G,r)}, {pr(csg,r)}, {nmp}, {pr(G,r)} op_sel:[0,{ns},0] op_sel_hi:[1,{ns},1]')
            for r in range(0, 16, 2): L.append(f'v_pk_fma_f32 {pr(U,r)}, {pr(csu,r)}, {nmp}, {pr(U,r)} op_sel:[0,{ns},0] op_sel_hi:[1,{ns},1]')
            for r in range(0, 16, 2): L.append(f'v_pk_mul_f32 {pr(G,r)}, {pr(G,r)}, {rsp} op_sel:[0,{rss}] op_sel_hi:[1,{rss}]')
            for r in range(0, 16, 2): L.append(f'v_pk_mul_f32 {pr(T,r)}, {pr(G,r)}, {pr(G,r)}')
            for r in range(0, 16, 2): L.append(f'v_pk_fma_f32 {pr(T,r)}, {pr(T,r)}, v[236:237], v[236:237] op_sel:[0,0,1] op_sel_hi:[1,0,1]')
            for r in range(0, 16, 2): L.append(f'v_pk_mul_f32 {pr(T,r)}, {pr(T,r)}, {pr(G,r)}')
            for r in range(16): L.append(f'v_exp_f32 v{T+r}, v{T+r}')
            for r in range(0, 16, 2): L.append(f'v_pk_mul_f32 {pr(U,r)}, {pr(U,r)}, {pr(G,r)}')
            for r in range(0, 16, 2): L.append(f'v_pk_add_f32 {pr(T,r)}, {pr(T,r)}, v[238:239] op_sel_hi:[1,0]')
            for r in range(16): L.append(f'v_rcp_f32 v{T+r}, v{T+r}')
            for r in range(0, 16, 2): L.append(f'v_pk_mul_f32 {pr(U,r)}, {pr(U,r)}, {rsp} op_sel:[0,{rss}] op_sel_hi:[1,{rss}]')
            for r in range(0, 16, 2): L.append(f'v_pk_mul_f32 {pr(U,r)}, {pr(U,r)}, {pr(T,r)}')
        else:
            for r in range(16): L.append(f'v_fmac_f32 v{G+r}, {NM}, v{csg+r}')
            for r in range(16): L.append(f'v_fmac_f32 v{U+r}, {NM}, v{csu+r}')
            for r in range(16): L.append(f'v_mul_f32 v{G+r}, {RS}, v{G+r}')
            for r in range(16): L.append(f'v_mul_f32 v{T+r}, v{G+r}, v{G+r}')
            for r in range(16): L.append(f'v_fma_f32 v{T+r}, v{T+r}, v236, v237')
            for r in range(16): L.append(f'v_mul_f32 v{T+r}, v{T+r}, v{G+r}')
            for r in range(16):
                L += [f'v_exp_f32 v{T+r}, v{T+r}', f'v_mul_f32 v{U+r}, v{U+r}, v{G+r}']
            for r in range(16): L.append(f'v_add_f32 v{T+r}, 1.0, v{T+r}')
            for r in range(16):
                L += [f'v_rcp_f32 v{T+r}, v{T+r}', f'v_mul_f32 v{U+r}, {RS}, v{U+r}']
            for r in range(16): L.append(f'v_mul_f32 v{U+r}, v{U+r}, v{T+r}')
        for i in range(8):
            L.append(f'v_cvt_pk_bf16_f32 v{PK+i}, v{U+2*i}, v{U+2*i+1}')
        return L

    def p3(s):
        a = s.a; g = s.g
        a.c('==== P3')
        a(f'v_add_u32 v12, {L_WU}, {vTR0}'); a(f'v_add_u32 v13, {L_WU}, {vTR1}')
        for b in range(2):
            a(f's_lshl_b32 {sT0}, {sW}, 1'); a(f's_add_u32 {sT0}, {sT0}, {b}')
            a(f's_mul_i32 s{82+b}, {sT0}, 28672'); a(f's_add_u32 s{82+b}, s{82+b}, {sX1}')
            a(f's_mul_i32 s{86+b}, {sT0}, 3584'); a(f's_add_u32 s{86+b}, s{86+b}, {sST1}')
            a(f's_mul_i32 s{88+b}, {sT0}, 114688'); a(f's_add_u32 s{88+b}, s{88+b}, {sH}')
            a(f's_lshl_b32 {sT1}, {sM}, 12'); a(f's_add_u32 s{88+b}, s{88+b}, {sT1}')
        a(f'v_mov_b32 v236, {fbits(C1)}'); a(f'v_mov_b32 v237, {fbits(C0)}'); a('v_mov_b32 v238, 1.0')
        g.wait_flags(s.fl(2), 0x0fffffff, vt='v10', va='v11', keep_vm=True)
        g.stamp('p3 hop done')
        def xload(ks, b):
            a(f's_add_u32 {sT6}, s{82+b}, {(ks//4)*4096}')
            a.vmem(f'buffer_load_dwordx4 a[{8*ks+4*b}:{8*ks+4*b+3}], {vL16}, {WS}, {sT6} offen offset:{(ks%4)*1024} {LDSC}', ('x', ks, b))
        XD = 4
        for ks in range(XD):
            xload(ks, 0); xload(ks, 1)
        GU = (((16, 32), (48, 64)), ((80, 96), (112, 128)))
        FS = (144, 152, 160)
        NM = ('v10', 'v11'); RS = ('v14', 'v15')
        STR = (168, 184); CSG = 168; CSU = 184; T = 200; PK = 216
        misc = Side(s.stats_load_items(STR[0], 's86', 'st') + s.stats_load_items(STR[1], 's87', 'st'))
        def unit(c, side, per_beat):
            vg = vTR0 if c == 0 else vTR1
            vu = 'v12' if c == 0 else 'v13'
            def rdg(ks):
                reg = FS[ks % 3]
                a.ds(f'ds_read_b64_tr_b16 v[{reg}:{reg+1}], {vg} offset:{L_WG+(16*ks)*128}', ('fg', ks))
                a.ds(f'ds_read_b64_tr_b16 v[{reg+2}:{reg+3}], {vg} offset:{L_WG+(16*ks+8)*128}', ('fg', ks))
            def rdu(ks):
                reg = FS[ks % 3] + 4
                a.ds(f'ds_read_b64_tr_b16 v[{reg}:{reg+1}], {vu} offset:{(16*ks)*128}', ('fu', ks))
                a.ds(f'ds_read_b64_tr_b16 v[{reg+2}:{reg+3}], {vu} offset:{(16*ks+8)*128}', ('fu', ks))
            (G_, U_) = GU[c]
            rdg(0); rdu(0); rdg(1); rdu(1)
            for ks in range(28):
                b0 = FS[ks % 3]
                if c == 0 and ks == 18:
                    a('s_barrier')
                for j, (acc, fo, b) in enumerate(((G_[0], 0, 0), (G_[1], 0, 1), (U_[0], 4, 0), (U_[1], 4, 1))):
                    if c == 0 and j < 2: a.wait_vm(('x', ks, b))
                    if j == 0: a.wait_lg(('fg', ks))
                    if j == 2: a.wait_lg(('fu', ks))
                    cc = '0' if ks == 0 else f'v[{acc}:{acc+15}]'
                    a(f'v_mfma_f32_32x32x16_bf16 v[{acc}:{acc+15}], v[{b0+fo}:{b0+fo+3}], a[{8*ks+4*b}:{8*ks+4*b+3}], {cc}')
                    if j == 0 and ks+2 < 28: rdg(ks+2)
                    if j == 2 and ks+2 < 28: rdu(ks+2)
                    if c == 0:
                        if j in (0, 2) and ks + XD < 28: xload(ks+XD, j >> 1)
                        if j == 3 and ks >= 8: side.emit(a)
                    else:
                        side.emit(a, per_beat[(4*ks+j) % len(per_beat)])
            side.flush(a)
        unit(0, misc, None)
        vm_st = None
        s.resid_loads(224, sX1)
        if not IDLEP:
            if not HSC:
                s.pretouch('s88', 32); s.pretouch('s89', 32)
            s.dest_pretouch(sXO, sSTO)
        g.stamp('p3 gemm 0')
        Lcs = a.newlabel('Lcs')
        a(f's_cmp_lg_u32 {sL}, 0'); a(f's_cbranch_scc1 {Lcs}')
        a(f's_and_b32 {sT0}, {sW}, 1'); a(f's_lshl_b32 {sT0}, {sT0}, 6'); a(f'v_xor_b32 v11, {sT0}, {vTR0}')
        a(f's_lshr_b32 {sT0}, {sW}, 1'); a(f's_mul_i32 {sT0}, {sT0}, {L_WU}'); a(f'v_add_u32 v11, {sT0}, v11')
        def f(ks, reg, tag):
            a.ds(f'ds_read_b64_tr_b16 v[{reg}:{reg+1}], v11 offset:{(16*ks)*128}', tag)
            a.ds(f'ds_read_b64_tr_b16 v[{reg+2}:{reg+3}], v11 offset:{(16*ks+8)*128}', tag)
        a(f's_lshl_b32 {sT1}, {sW}, 7'); a(f's_add_u32 {sT1}, {sT1}, {M_CSFF}')
        s.colsum(f, 28, 80, sT1)
        a('s_barrier')
        a.label(Lcs)
        a.wait_vm('st')
        run_list(a, s.stats_list(STR[0], NM[0], RS[0], 'v234', 'v235') + s.stats_list(STR[1], NM[1], RS[1], 'v234', 'v235'))
        a(f'v_add_u32 v232, {M_CSFF}, {vCS}')
        def epi(c, packed):
            L = []
            L += s.cs_read_items(CSG, 128*c, 'cs', 'v232') + s.cs_read_items(CSU, 256+128*c, 'cs', 'v232')
            L.append(lambda: a.wait_lg('cs'))
            for b in range(2):
                L += s.gelu_list(GU[c][0][b], GU[c][1][b], CSG, CSU, NM[b], RS[b], T, PK, packed)
                def st(b=b):
                    a.vmem(f'buffer_store_dwordx4 v[{PK}:{PK+3}], {vL16}, {WS}, s{88+b} offen offset:{2*c*1024} {HSC or STSC}', 'hs')
                    a.vmem(f'buffer_store_dwordx4 v[{PK+4}:{PK+7}], {vL16}, {WS}, s{88+b} offen offset:{(2*c+1)*1024} {HSC or STSC}', 'hs')
                L.append(st)
            return L
        g.stamp('p3 stats')
        e0 = epi(0, False)
        n0 = len(e0)
        base = n0 // 112; extra = n0 - base*112
        per = [base + (1 if (i*extra)//112 != ((i+1)*extra)//112 else 0) for i in range(112)]
        unit(1, Side(e0), per)
        g.stamp('p3 gemm 1')
        a('s_barrier')
        a(f's_mul_i32 s90, {sW}, {448*896}'); a(f's_lshl_b32 {sT1}, {sCT}, 7'); a(f's_add_u32 s90, s90, {sT1}')
        a(f's_mul_i32 s91, {sW}, {RING}')
        wd = lambda i: s.dma_item(WD, vD896, 's90', i*8*896, 's91', (i % NSLOT)*1024, ('W', i))
        NA = 20
        e1 = epi(1, True)
        run_list(a, e1, Side([wd(i) for i in range(NA)]), max(1, len(e1)//(NA+2)))
        g.stamp('p3 epi 1')
        g.set_flag(s.fl(3))
        for i in range(NA, NSLOT): wd(i)()
        g.stamp('p3 done')

    def p4(s):
        a = s.a; g = s.g
        a.c('==== P4')
        a.rawlabel('L_code_p4')
        a(f's_mov_b32 {sT5}, s91')
        s.tile_addrs(sT5)
        for b in range(2):
            a(f's_and_b32 {sT0}, {sW}, 1'); a(f's_xor_b32 {sT0}, {sT0}, {b}'); a(f's_lshl_b32 {sT1}, {sTQ}, 1')
            a(f's_add_u32 {sT0}, {sT0}, {sT1}'); a(f's_mul_i32 {sT0}, {sT0}, 114688'); a(f's_add_u32 {sT0}, {sT0}, {sH}')
            a(f's_mul_i32 {sT1}, {sW}, {28*1024}'); a(f's_add_u32 s{82+b}, {sT0}, {sT1}')
        g.wait_flags(s.fl(3), 0x0fffffff, vt='v10', va='v11', keep_vm=True)
        g.stamp('p4 hop done')
        wd = lambda i: s.dma_item(WD, vD896, 's90', i*8*896, 's91', (i % NSLOT)*1024, ('W', i))
        def hload(ks, b):
            a(f's_add_u32 {sT6}, s{82+b}, {(ks//4)*4096}')
            a.vmem(f'buffer_load_dwordx4 a[{8*ks+4*b}:{8*ks+4*b+3}], {vL16}, {WS}, {sT6} offen offset:{(ks%4)*1024} {LDSC}', ('h', ks, b))
        HD = 4
        for ks in range(HD):
            hload(ks, 0); hload(ks, 1)
        ACC = 16; FS = (80, 88, 104)
        def rd(ks):
            reg = FS[ks % 3]
            off = ((2*ks) % NSLOT)*1024
            a.wait_vm(('W', 2*ks+1))
            for sl in range(2):
                va = 'v14' if sl == 0 else 'v15'
                a.ds(f'ds_read_b64_tr_b16 v[{reg+4*sl}:{reg+4*sl+1}], {va} offset:{off}', ('f', ks, sl))
                a.ds(f'ds_read_b64_tr_b16 v[{reg+4*sl+2}:{reg+4*sl+3}], {va} offset:{off+1024}', ('f', ks, sl))
        rd(0); rd(1)
        for ks in range(28):
            b0 = FS[ks % 3]
            for j, (sa, sb) in enumerate(((0, 0), (0, 1), (1, 0), (1, 1))):
                if j < 2: a.wait_vm(('h', ks, sb))
                if j in (0, 2): a.wait_lg(('f', ks, sa))
                R = ACC + 16*(2*sa+sb)
                c = '0' if ks == 0 else f'v[{R}:{R+15}]'
                a(f'v_mfma_f32_32x32x16_bf16 v[{R}:{R+15}], v[{b0+4*sa}:{b0+4*sa+3}], a[{8*ks+4*sb}:{8*ks+4*sb+3}], {c}')
                if j == 0 and ks+2 < 28: rd(ks+2)
                if j in (0, 2) and ks + HD < 28: hload(ks+HD, j >> 1)
                if j in (1, 3) and ks >= 1 and 2*(ks-1) + NSLOT < 56: wd(2*(ks-1) + NSLOT + (j >> 1))()
        g.stamp('p4 gemm')
        a('s_barrier')
        P3W = ((1, 1), (2, 2), (3, 3))
        Lf = a.newlabel('Lfin'); Le = a.newlabel('Lp4e')
        a(f's_cmp_lg_u32 {sL}, 0'); a(f's_cbranch_scc1 {Lf}')
        side = Side(s.wq_items())
        s.red_write(ACC, RED4, parts=P3W, side=side)
        Lr = s.red_list(ACC, 224)
        n_in = 8
        part = Side([side.q.popleft() for _ in range(n_in)])
        run_list(a, Lr, part, max(1, len(Lr)//(n_in+1)))
        run_list(a, s.store_x_list(ACC, sXO, sSTO))
        g.set_flag(s.fl(4))
        side.flush(a)
        a(f's_branch {Le}')
        a.label(Lf)
        a.vm = []; a.lg = []
        s.red_write(ACC, RED4, parts=P3W)
        run_list(a, s.red_list(ACC, 224) + s.store_out_list(ACC))
        a('s_branch L_fin')
        a.label(Le)
        g.stamp('p4 epi')

    def run(s):
        a = s.a; g = s.g; stop = s.stop
        a.label('L_layer')
        s.layer_setup()
        s.p1()
        s.p2a()
        a(f's_cmp_ge_u32 {sM}, 28'); a('s_cbranch_scc1 L_idle')
        s.p2b()
        s.p3()
        s.p4()
        a('s_branch L_next')
        a.label('L_idle')
        a.vm = []; a.lg = []
        a(f's_sub_u32 {sT0}, {sM}, 28'); a(f's_lshl_b32 {sT0}, {sT0}, 2'); a(f's_add_u32 s86, {sT0}, {sW}')
        if IDLEP and PRET:
            if not HSC:
                a(f's_mul_i32 s87, s86, {448*128}'); a(f's_add_u32 s87, s87, {sH}')
                for i in range(7):
                    a(f's_add_u32 {sT1}, s87, {i*64*128}')
                    a(f'buffer_load_dword {vDUM}, {vL128}, {WS}, {sT1} offen')
        if IDLEW:
            a(f's_mul_i32 s87, s86, {784*128}')
            for i in range(13):
                a(f's_add_u32 {sT1}, s87, {i*64*128}')
                a(f'buffer_load_dword {vDUM}, {vL128}, {WD}, {sT1} offen')
        a(f's_cmp_lg_u32 {sL}, 0'); a('s_cbranch_scc1 L_fin')
        if IDLEP and PRET:
            a(f's_mul_i32 s87, s86, {112*128}'); a(f's_add_u32 s87, s87, {sXO}')
            for i in range(2):
                a(f's_add_u32 {sT1}, s87, {i*64*128}')
                if i == 1: a('s_mov_b32 exec_hi, 0xffff')
                a(f'buffer_load_dword {vDUM}, {vL128}, {WS}, {sT1} offen')
                if i == 1: a('s_mov_b64 exec, -1')
            a(f's_mul_i32 s87, s86, {14*128}'); a(f's_add_u32 s87, s87, {sSTO}')
            a('s_mov_b64 exec, 0x3fff')
            a(f'buffer_load_dword {vDUM}, {vL128}, {WS}, s87 offen')
            a('s_mov_b64 exec, -1')
        g.wait_flags(s.fl(2), 0x0fffffff, vt='v10', va='v11', drain=True)
        for it in s.wq_items(): it()
        if IDLEW:
            g.wait_flags(s.fl(3), 0x0fffffff, vt='v10', va='v11', drain=True)
            a(f's_mul_i32 s87, s86, {672*128}'); a(f's_add_u32 s87, s87, {sGB}')
            if WQ: a(f's_add_u32 s87, s87, {WQ}')
            for i in range(11):
                a(f's_add_u32 {sT1}, s87, {i*64*128}')
                a(f'buffer_load_dword {vDUM}, {vL128}, {WS}, {sT1} offen')
        a.label('L_next')
        a.vm = []; a.lg = []
        a(f's_mul_i32 {sT0}, {sHALF}, 14'); a(f's_lshl_b32 s81, 0x3fff, {sT0}')
        g.wait_flags(s.fl(4), 's81', vt='v10', va='v11', drain=True)
        g.stamp('p4 hop(x2)')
        a(f's_mov_b32 {sL}, 1')
        a('s_branch L_layer')
```

```python
import sys
from asmlib import Asm
from layout import *

NAME = 'interleave_layers__linear_kernel_hedgehog__geglu_ffn__prompt_kernel'

WS='s[4:7]'; WO='s[8:11]'; WG='s[12:15]'; WU='s[16:19]'; WD='s[20:23]'; OUT='s[24:27]'; DBG='s[28:31]'
AX='s[32:35]'; WQKV='s[36:39]'; WPHI='s[40:43]'
sG='s44'; sM='s45'; sW='s46'; sL='s47'; sHEAVY='s48'; sGB='s49'; sTO='s50'
sXIN='s51'; sSTIN='s52'; sX1='s53'; sST1='s54'; sXO='s55'; sSTO='s56'; sO='s57'; sH='s58'; sKV='s59'; sKVC='s60'; sFL='s61'
sXCC='s62'; sHEAD='s63'; sHALF='s64'; sTQ='s65'; sCT='s66'
sUP='s[96:97]'
sT0='s68'; sT1='s69'; sT2='s70'; sT3='s71'; sT4='s72'; sT5='s73'; sT6='s74'; sT7='s75'
sP0='s[76:77]'; sP1='s[78:79]'
vLANE='v0'; vL16='v1'; vTR64='v2'; vTR0='v3'; vTR1='v4'; vD896='v5'; vD3584='v6'; vSTA='v7'; vCS='v8'; vSTAMP='v9'
LDS_TOTAL = 163840
MISC = LDS_TOTAL - 2048
M_MODE = MISC
M_CSQKV = MISC + 128
M_CSFF  = MISC + 512
L_WK=0; L_WV=28672; L_WQ=57344
L_PHI=86016; L_VI=102400; L_KVF=110592
LOG2E = 1.4426950408889634
import os
STSC = os.environ.get('STSC','')
STSC0 = os.environ.get('STSC0','sc1')
CPF = int(os.environ.get('CPF','1'))
WARM = int(os.environ.get('WARM','1'))
TIMEOUT = 100000
TOUCH0 = int(os.environ.get('TOUCH0','1'))

def fbits(x):
    import struct
    return '0x%08x' % struct.unpack('<I', struct.pack('<f', x))[0]

class Gen:
    def __init__(s, stop_after=None, stamps=False, force_heavy=False):
        s.a = Asm(); s.stop_after = stop_after; s.stamps = stamps; s.force_heavy = force_heavy
        s.nstamp = 0
        s.stamp_names = []

    def stamp(s, name):
        if not s.stamps: return
        a = s.a
        i = s.nstamp; s.nstamp += 1; s.stamp_names.append(name)
        a('s_waitcnt lgkmcnt(0)'); a.lg = []
        a('s_memtime s[94:95]')
        a('s_waitcnt lgkmcnt(0)')
        a(f's_lshl_b32 s95, {sL}, 5')
        a(f's_add_u32 s95, s95, {i}')
        a('s_mov_b32 s93, m0')
        a('s_mov_b32 m0, s95')
        a(f'v_writelane_b32 {vSTAMP}, s94, m0')
        a('s_mov_b32 m0, s93')

    def wave_only(s, w, fn):
        a = s.a
        L = a.newlabel('Lw')
        a(f's_cmp_lg_u32 {sW}, {w}')
        a(f's_cbranch_scc1 {L}')
        fn()
        a.label(L)

    def wave_in(s, lo, hi, fn):
        a = s.a
        L = a.newlabel('Lw')
        if lo > 0:
            a(f's_cmp_lt_u32 {sW}, {lo}'); a(f's_cbranch_scc1 {L}')
        if hi < 4:
            a(f's_cmp_ge_u32 {sW}, {hi}'); a(f's_cbranch_scc1 {L}')
        fn()
        a.label(L)

    def poll(s, srd, voff, soff, expect, mask=None, sc='sc1', vt='v10'):
        a = s.a
        Lp = a.newlabel('Lpoll'); Ld = a.newlabel('Ldone'); Lt = a.newlabel('Lto')
        a(f's_cmp_lg_u32 {sTO}, 0'); a(f's_cbranch_scc1 {Ld}')
        a(f's_mov_b32 {sT7}, 0')
        a.label(Lp)
        if voff is None:
            a(f'buffer_load_dword {vt}, off, {srd}, {soff} {sc}')
        else:
            a(f'buffer_load_dword {vt}, {voff}, {srd}, {soff} offen {sc}')
        a('s_waitcnt vmcnt(0)')
        a(f'v_cmp_ne_u32 vcc, {expect}, {vt}')
        a(f's_add_u32 {sT7}, {sT7}, 1')
        if mask is not None:
            a(f's_and_b64 vcc, vcc, {mask}')
        a('s_cmp_eq_u64 vcc, 0')
        a(f's_cbranch_scc1 {Ld}')
        a(f's_cmp_lt_u32 {sT7}, {TIMEOUT}')
        a(f's_cbranch_scc1 {Lp}')
        a(f's_mov_b32 {sTO}, 1')
        a.label(Ld)

    def set_flag(s, phase_off):
        a = s.a
        a.wait_all()
        a('s_barrier')
        def w0():
            Lh = a.newlabel('Lh'); Le = a.newlabel('Le')
            a(f's_lshl_b32 {sT0}, {sM}, 2')
            a(f's_add_u32 {sT0}, {sT0}, {phase_off}')
            a('v_mov_b32 v10, 1')
            a('s_mov_b64 exec, 1')
            a(f's_cmp_lg_u32 {sHEAVY}, 0'); a(f's_cbranch_scc1 {Lh}')
            a(f'buffer_store_dword v10, off, {WS}, {sT0}')
            a(f's_branch {Le}')
            a.label(Lh)
            a('buffer_wbl2 sc1')
            a('s_waitcnt vmcnt(0)')
            a(f'buffer_store_dword v10, off, {WS}, {sT0} sc1')
            a.label(Le)
            a('s_mov_b64 exec, -1')
        s.wave_only(0, w0)

    def wait_flags(s, phase_off, mask_lo, vt='v10', va='v11', keep_vm=False, drain=False):
        a = s.a
        vm = list(a.vm)
        def w0():
            a(f's_mov_b32 s76, {mask_lo}'); a('s_mov_b32 s77, 0')
            a(f'v_and_b32 {va}, 31, {vLANE}'); a(f'v_lshlrev_b32 {va}, 2, {va}')
            s.poll(WS, va, phase_off, 1, mask=sP0, vt=vt)
            Le = a.newlabel('Le')
            a(f's_cmp_eq_u32 {sHEAVY}, 0'); a(f's_cbranch_scc1 {Le}')
            a('buffer_inv sc1'); a('s_waitcnt vmcnt(0)')
            a.label(Le)
        s.wave_only(0, w0)
        if drain:
            a.wait_vm0()
        else:
            a.vm = vm
        a('s_barrier')

    def lane_consts(s):
        a = s.a
        a(f'v_lshlrev_b32 {vL16}, 4, {vLANE}')
        a(f'v_lshrrev_b32 v10, 5, {vLANE}')
        a(f'v_and_b32 v11, 15, {vLANE}')
        a('v_lshrrev_b32 v12, 2, v11')
        a(f'v_bfe_u32 v13, {vLANE}, 4, 1')
        a('v_and_b32 v14, 3, v11')
        a('v_lshl_add_u32 v15, v10, 2, v12')
        a('v_lshlrev_b32 v16, 5, v13'); a('v_lshl_add_u32 v16, v14, 3, v16')
        a(f'v_lshl_add_u32 {vTR64}, v15, 6, v16')
        a('v_lshl_add_u32 v17, v15, 7, v16')
        a('v_lshrrev_b32 v18, 1, v12')
        a(f'v_lshl_add_u32 {vTR0}, v18, 6, v17')
        a('v_xor_b32 v18, 1, v18')
        a(f'v_lshl_add_u32 {vTR1}, v18, 6, v17')
        a(f'v_lshrrev_b32 v19, 3, {vLANE}')
        a(f'v_and_b32 v20, 7, {vLANE}')
        a('v_lshlrev_b32 v21, 2, v13')
        a('v_xor_b32 v20, v20, v21'); a('v_lshlrev_b32 v20, 4, v20')
        a(f'v_mul_u32_u24 {vD896}, 896, v19'); a(f'v_add_u32 {vD896}, {vD896}, v20')
        a(f'v_mul_u32_u24 {vD3584}, 3584, v19'); a(f'v_add_u32 {vD3584}, {vD3584}, v20')
        a(f'v_and_b32 v22, 31, {vLANE}'); a('v_lshlrev_b32 v22, 3, v22')
        a(f'v_mul_u32_u24 {vSTA}, 1792, v10'); a(f'v_add_u32 {vSTA}, {vSTA}, v22')
        a(f'v_lshlrev_b32 {vCS}, 4, v10')

    def prologue(s):
        a = s.a
        a('s_cmp_ge_u32 s2, 256'); a('s_cbranch_scc1 L_end')
        a('s_load_dwordx4 s[32:35], s[0:1], 0')
        a('s_load_dwordx2 s[40:41], s[0:1], 16')
        a('s_load_dwordx2 s[8:9], s[0:1], 24')
        a('s_load_dwordx2 s[12:13], s[0:1], 40')
        a('s_load_dwordx2 s[16:17], s[0:1], 48')
        a('s_load_dwordx2 s[20:21], s[0:1], 56')
        a('s_load_dwordx2 s[24:25], s[0:1], 64')
        a('s_load_dwordx2 s[28:29], s[0:1], 72')
        a('s_load_dwordx2 s[4:5], s[0:1], 80')
        a(f's_getreg_b32 {sXCC}, hwreg(HW_REG_XCC_ID, 0, 4)')
        a(f's_and_b32 {sG}, s2, 7'); a(f's_lshr_b32 {sM}, s2, 3')
        a('v_lshrrev_b32 v10, 6, v0')
        a(f'v_and_b32 {vLANE}, 63, v0')
        a(f'v_readfirstlane_b32 {sW}, v10')
        a(f's_mov_b32 {sL}, 0'); a(f's_mov_b32 {sHEAVY}, 0'); a(f's_mov_b32 {sTO}, 0')
        a(f's_mul_i32 {sGB}, {sG}, {GS}'); a(f's_add_u32 {sGB}, {sGB}, {G0}')
        a(f's_and_b32 {sHEAD}, {sM}, 15'); a(f's_lshr_b32 {sHALF}, {sM}, 4')
        a(f's_mul_i32 {sTQ}, {sM}, 37'); a(f's_lshr_b32 {sTQ}, {sTQ}, 8')
        a(f's_mul_i32 {sT0}, {sTQ}, 7'); a(f's_sub_u32 {sCT}, {sM}, {sT0}')
        a('s_mov_b32 s96, 0'); a('s_mov_b32 s97, -1')
        a('s_getpc_b64 s[98:99]')
        a.rawlabel('L_pc')
        a(f's_sub_u32 s98, s98, L_pc-{NAME}'); a('s_subb_u32 s99, s99, 0')
        if s.stamps: a(f'v_mov_b32 {vSTAMP}, 0')
        for (b, n) in ((6, WS_BYTES), (10, D*D*2), (14, D*F*2), (18, D*F*2), (22, F*D*2), (26, S*D*2), (30, 256), (42, NH*DH*DH*2)):
            a(f's_mov_b32 s{b}, {n}'); a(f's_mov_b32 s{b+1}, 0x20000')
        a('s_waitcnt lgkmcnt(0)')
        a('s_mov_b32 s36, s34'); a('s_mov_b32 s37, s35')
        a(f's_mov_b32 s34, {S*D*2}'); a('s_mov_b32 s35, 0x20000')
        a(f's_mov_b32 s38, {D*3*D*2}'); a('s_mov_b32 s39, 0x20000')
        s.stamp('start')
        if s.stamps:
            a('s_memrealtime s[100:101]'); a('s_waitcnt lgkmcnt(0)')

    def p0(s):
        a = s.a
        a.c('==== P0')
        XS = 47104; XSW = 28672
        from phases import Phases
        s.P = Phases(s)
        def w0():
            a(f's_lshl_b32 {sFL}, {sG}, 11')
            if FLAGS: a(f's_add_u32 {sFL}, {sFL}, {FLAGS}')
            a(f'v_lshlrev_b32 v11, 7, {vLANE}')
            a('v_mov_b32 v12, 0'); a('v_mov_b32 v13, 0'); a('v_mov_b32 v14, 0'); a('v_mov_b32 v15, 0')
            a('s_mov_b64 exec, 0xffff')
            a(f'buffer_load_dword v254, v11, {WS}, {sFL} offen')
            a(f's_lshl_b32 {sT0}, {sM}, 2'); a(f's_add_u32 {sT0}, {sT0}, {sFL}')
            a(f'buffer_store_dword v12, v11, {WS}, {sT0} offen')
            a('s_mov_b64 exec, -1')
            a(f'v_lshlrev_b32 v16, 4, {vLANE}')
            a(f's_lshl_b32 {sT0}, s2, 10'); a(f's_add_u32 {sT0}, {sT0}, {KV}')
            a(f'buffer_store_dwordx4 v[12:15], v16, {WS}, {sT0} offen sc1')
            L = a.newlabel('Lz')
            a('s_cmp_ge_u32 s2, 32'); a(f's_cbranch_scc1 {L}')
            a(f's_lshl_b32 {sT0}, s2, 7'); a(f's_add_u32 {sT0}, {sT0}, {KVC}')
            a('s_mov_b64 exec, 1')
            a(f'buffer_store_dword v12, off, {WS}, {sT0} sc1')
            a('s_mov_b64 exec, -1')
            a.label(L)
        s.wave_only(0, w0)
        a(f'v_lshrrev_b32 v10, 3, {vLANE}'); a('v_mul_u32_u24 v10, 896, v10')
        a(f'v_and_b32 v11, 7, {vLANE}'); a(f'v_lshrrev_b32 v12, 4, {vLANE}'); a('v_xor_b32 v11, v11, v12')
        a('v_lshl_add_u32 v40, v11, 4, v10'); a('v_xor_b32 v41, 64, v40')
        a(f's_lshl_b32 {sT0}, {sG}, 8'); a(f's_lshl_b32 {sT1}, {sHALF}, 7'); a(f's_add_u32 {sT0}, {sT0}, {sT1}')
        a(f's_lshl_b32 {sT1}, {sW}, 5'); a(f's_add_u32 {sT0}, {sT0}, {sT1}'); a(f's_mul_i32 s82, {sT0}, 896')
        a(f's_mul_i32 s83, {sW}, {XSW}'); a(f's_add_u32 s83, s83, {XS}')
        for L in range(7):
            for rb in range(4):
                a(f's_add_u32 m0, s83, {L*4096 + rb*1024}')
                a(f's_add_u32 {sT2}, s82, {rb*8*896 + L*128}')
                a.vmem(f'buffer_load_dwordx4 v{40 + (rb & 1)}, {AX}, {sT2} offen lds', 'x')
        s.stamp('p0 x issued')
        def reg():
            a(f's_mul_i32 {sT1}, {sXCC}, {sXCC}'); a(f's_lshl_b32 {sT1}, {sT1}, 10'); a(f's_add_u32 {sT1}, {sT1}, {sXCC}')
            a(f's_add_u32 {sT1}, {sT1}, {1<<26}')
            a(f'v_mov_b32 v10, {sT1}')
            a(f's_lshl_b32 {sT2}, {sG}, 5')
            a('s_waitcnt vmcnt(28)')
            a('s_mov_b64 exec, 1')
            a(f'buffer_atomic_add v10, off, {DBG}, {sT2} sc1')
            a('s_mov_b64 exec, -1')
        s.wave_only(0, reg)
        if CPF: s.wave_only(3, lambda: s.code_prefetch(NAME, 'L_code_p2b'))
        a(f'v_lshrrev_b32 v10, 2, {vLANE}'); a('v_mul_u32_u24 v10, 2688, v10')
        a(f'v_and_b32 v11, 3, {vLANE}'); a('v_lshl_add_u32 v42, v11, 4, v10')
        a(f's_mul_i32 s84, {sHEAD}, 56'); a(f's_mul_i32 {sT0}, {sW}, {16*2688}'); a(f's_add_u32 s84, s84, {sT0}')
        a(f's_lshl_b32 s85, {sW}, 10')
        def wdma(slot, i, tag):
            col = (896, 1792, 0)[slot]
            a(f's_add_u32 m0, s85, {slot*28672 + i*4096}')
            a(f's_add_u32 {sT2}, s84, {col + i*4*16*2688}')
            a.vmem(f'buffer_load_dwordx4 v42, {WQKV}, {sT2} offen lds', tag)
        from phases import Side
        wearly = Side([(lambda i=i: wdma(0, i, 'Wkv')) for i in range(7)] + [(lambda i=i: wdma(1, i, 'Wkv')) for i in range(4)])
        wearly.emit(a, 2)
        s.lane_consts()
        s.P.persistent_addrs()
        a(f'v_and_b32 v10, 31, {vLANE}'); a('v_bfe_u32 v11, v10, 1, 3'); a('v_lshlrev_b32 v11, 4, v11')
        a('v_lshl_add_u32 v11, v10, 7, v11'); a(f'v_lshrrev_b32 v12, 5, {vLANE}'); a('v_lshl_add_u32 v11, v12, 3, v11')
        a('v_add_u32 v11, s83, v11')
        for c in range(8): a(f'v_xor_b32 v{44+c}, {c << 4}, v11')
        a('v_mov_b32 v54, 0'); a('v_mov_b32 v55, 0')
        for r in range(60, 64): a(f'v_mov_b32 v{r}, 0x3f803f80')
        a.wait_vm('x')
        s.stamp('p0 x landed')
        def reads(L):
            for q in range(4):
                ks = 4*L + q
                for b in range(2):
                    a.ds(f'ds_read_b64 a[{4*ks+2*b}:{4*ks+2*b+1}], v{44+2*q+b} offset:{L*4096}', ('xa', L))
            for q in range(4):
                for b in range(2):
                    R = 128 + 16*(L % 3) + 4*q + 2*b
                    a.ds(f'ds_read_b64 v[{R}:{R+1}], v{44+2*q+b} offset:{L*4096}', ('xv', L))
        reads(0)
        for L in range(7):
            if L+1 < 7: reads(L+1)
            a.wait_lg(('xv', L))
            for q in range(4):
                ks = 4*L + q
                c = '0' if ks == 0 else 'v[64:79]'
                a(f'v_mfma_f32_32x32x16_bf16 v[64:79], v[60:63], a[{4*ks}:{4*ks+3}], {c}')
                for i in range(4):
                    R = 128 + 16*(L % 3) + 4*q + i
                    a(f'v_dot2c_f32_bf16 v{54 + (i & 1)}, v{R}, v{R}')
                if q & 1: wearly.emit(a)
        wearly.flush(a)
        a.wait_lg0()
        a('s_barrier')
        s.stamp('p0 x read')
        for i in range(4, 7): wdma(1, i, 'Wkv')
        def wp():
            a(f's_mul_i32 {sT0}, {sHEAD}, 1568'); a(f's_mov_b32 m0, {L_PHI}')
            a(f'buffer_load_dwordx4 {vL16}, {WPHI}, {sT0} offen lds')
            a(f's_add_u32 {sT0}, {sT0}, 1024'); a(f's_mov_b32 m0, {L_PHI + 1024}')
            a(f'buffer_load_dwordx4 {vL16}, {WPHI}, {sT0} offen lds')
        s.wave_only(0, wp)
        for i in range(7): wdma(2, i, 'Wq')
        a('v_add_f32 v54, v54, v55')
        a('v_mov_b32 v55, v54')
        a('v_permlane32_swap_b32 v54, v55')
        a('v_add_f32 v54, v54, v55')
        a(f'v_mul_f32 v234, {fbits(-1.0/448)}, v64'); a(f'v_mul_f32 v54, {fbits(1.0/448)}, v54')
        a('v_fma_f32 v54, -v234, v234, v54'); a('v_max_f32 v54, 0, v54'); a(f'v_add_f32 v54, {fbits(1e-5)}, v54')
        a('v_rsq_f32 v235, v54')
        a.wait_vm('Wkv')
        def wpw(): a('s_waitcnt vmcnt(7)')
        s.wave_only(0, wpw)
        a('s_barrier')
        s.stamp('p1 W landed')
        a(f'v_and_b32 v10, 31, {vLANE}'); a(f'v_lshrrev_b32 v11, 5, {vLANE}')
        a('v_lshlrev_b32 v12, 1, v10'); a('v_mul_u32_u24 v13, 224, v11'); a('v_add_u32 v12, v12, v13'); a(f'v_add_u32 v12, {L_PHI}, v12')
        for e in range(2):
            for b in range(2):
                for r in range(4):
                    a.ds(f'ds_read_u16 v{96 + 8*e + 4*b + r}, v12 offset:{(16*e+8*b+r)*56}', 'wp')
        def warm():
            a(f'v_lshlrev_b32 v15, 7, {vLANE}')
            a(f's_mul_i32 {sT1}, s2, {49*128}')
            a('s_mov_b32 exec_lo, -1'); a('s_mov_b32 exec_hi, 0x1ffff')
            for srd in (WG, WU, WD):
                a(f'buffer_load_dword v254, v15, {srd}, {sT1} offen')
            a(f's_mul_i32 {sT1}, s2, {13*128}')
            a('s_mov_b64 exec, 0x1fff')
            a(f'buffer_load_dword v254, v15, {WO}, {sT1} offen')
            a('s_mov_b64 exec, -1')
        if WARM: s.wave_only(3, warm)
        s.P.colsum_kv()
        a('v_cmp_gt_u32 vcc, 28, v10')
        a.wait_lg0()
        for i in range(8):
            a(f'v_lshl_or_b32 v{96+2*i}, v{97+2*i}, 16, v{96+2*i}')
        for i in range(8):
            a(f'v_cndmask_b32 v{96+2*i}, 0, v{96+2*i}, vcc')
        for i in (6, 7):
            a(f'v_cndmask_b32 v{96+2*i}, v{96+2*i}, 0, {sUP}')
        for i in range(8):
            a(f'v_accvgpr_write_b32 a{248+i}, v{96+2*i}')
        a.vm = []; a.lg = []
        s.stamp('p0 done')

    def code_prefetch(s, l0, l1, v='v10', vd='v255'):
        a = s.a
        a(f's_mul_i32 {sT0}, {sM}, ((({l1}-{l0})+4095)/4096)*128')
        a(f's_add_u32 {sT0}, {sT0}, {l0}-{NAME}')
        a(f'v_lshlrev_b32 {v}, 7, {vLANE}'); a(f'v_add_u32 {v}, {sT0}, {v}')
        a(f'v_min_u32 {v}, CODE_BYTES-4, {v}')
        a(f's_mov_b32 exec_lo, (1<<((({l1}-{l0})+4095)/4096))-1'); a('s_mov_b32 exec_hi, 0')
        a(f'global_load_dword {vd}, {v}, s[98:99]')
        a('s_mov_b64 exec, -1')

    def registration_check(s):
        a = s.a
        Lp = a.newlabel('Lreg'); Ld = a.newlabel('Lregd'); Lc = a.newlabel('Lregc')
        a(f's_mov_b32 {sT7}, 0')
        a(f's_branch {Lc}')
        a.label(Lp)
        a(f'buffer_load_dword v232, v233, {DBG}, 0 offen sc1')
        a.label(Lc)
        a('s_waitcnt vmcnt(0)')
        a('v_lshrrev_b32 v13, 26, v232')
        a('v_cmp_ne_u32 vcc, 32, v13')
        a(f's_add_u32 {sT7}, {sT7}, 1')
        a('s_cmp_eq_u64 vcc, 0'); a(f's_cbranch_scc1 {Ld}')
        a(f's_cmp_lt_u32 {sT7}, {TIMEOUT}'); a(f's_cbranch_scc1 {Lp}')
        a(f's_mov_b32 {sTO}, 1')
        a.label(Ld)
        def w0():
            a(f'v_readlane_b32 {sT3}, v232, {sG}')
            a(f's_mul_i32 {sT1}, {sXCC}, {sXCC}'); a(f's_lshl_b32 {sT1}, {sT1}, 10'); a(f's_add_u32 {sT1}, {sT1}, {sXCC}')
            a(f's_lshl_b32 {sT1}, {sT1}, 5')
            a(f's_and_b32 {sT3}, {sT3}, {(1<<26)-1}')
            a(f's_cmp_lg_u32 {sT3}, {sT1}'); a(f's_cselect_b32 {sHEAVY}, 1, 0')
            if s.force_heavy: a(f's_mov_b32 {sHEAVY}, 1')
            Le = a.newlabel('Le')
            a(f's_cmp_eq_u32 {sHEAVY}, 0'); a(f's_cbranch_scc1 {Le}')
            a(f's_lshl_b32 {sT0}, {sG}, 11')
            if FLAGS: a(f's_add_u32 {sT0}, {sT0}, {FLAGS}')
            a(f's_lshl_b32 {sT1}, {sM}, 2'); a(f's_add_u32 {sT0}, {sT0}, {sT1}')
            a('v_mov_b32 v14, 0'); a(f'v_lshlrev_b32 v13, 7, {vLANE}')
            a('s_mov_b64 exec, 0xffff')
            a(f'buffer_store_dword v14, v13, {WS}, {sT0} offen sc1')
            a('s_waitcnt vmcnt(0)')
            a('s_mov_b64 exec, 1')
            a('v_mov_b32 v14, 1')
            a(f's_lshl_b32 {sT1}, {sG}, 5'); a(f's_add_u32 {sT1}, {sT1}, 8')
            a(f'buffer_atomic_add v14, off, {DBG}, {sT1} sc1')
            a('s_mov_b64 exec, -1')
            s.poll(DBG, None, sT1, 32, vt='v14')
            a.label(Le)
        s.wave_only(0, w0)

    def wphi_loads(s, track=False):
        a = s.a
        a(f'v_and_b32 v10, 31, {vLANE}'); a(f'v_lshrrev_b32 v11, 5, {vLANE}')
        a('v_lshlrev_b32 v12, 1, v10'); a('v_mul_u32_u24 v13, 224, v11'); a('v_add_u32 v12, v12, v13')
        a(f's_mul_i32 {sT5}, {sHEAD}, 1568')
        a('v_mov_b32 v14, 0x40000000')
        a('v_cmp_gt_u32 vcc, 28, v10')
        a('v_cndmask_b32 v12, v14, v12, vcc')
        a(f'v_cndmask_b32 v13, v12, v14, {sUP}')
        for e in range(2):
            for b in range(2):
                for r in range(4):
                    reg = 96 + 8*e + 4*b + r
                    va = 'v13' if (e == 1 and b == 1) else 'v12'
                    t = f'buffer_load_ushort v{reg}, {va}, {WPHI}, {sT5} offen offset:{(16*e+8*b+r)*56}'
                    if track: a.vmem(t, 'wphi')
                    else: a(t)

    def finish(s):
        a = s.a
        a.label('L_fin')
        if s.stamps:
            a('s_memrealtime s[94:95]'); a('s_waitcnt lgkmcnt(0)')
            a('s_sub_u32 s100, s94, s100')
            a(f'v_writelane_b32 {vSTAMP}, s100, 63')
            a('s_memtime s[94:95]'); a('s_waitcnt lgkmcnt(0)')
            a(f'v_writelane_b32 {vSTAMP}, s94, 62')
            def w0():
                a(f's_lshl_b32 {sT0}, s2, 8'); a(f's_add_u32 {sT0}, {sT0}, {STAMP}')
                a(f'v_lshlrev_b32 v10, 2, {vLANE}')
                a(f'buffer_store_dword {vSTAMP}, v10, {WS}, {sT0} offen')
            s.wave_only(int(os.environ.get('STAMPW','0')), w0)
        a('s_waitcnt vmcnt(0) lgkmcnt(0)')
        a.label('L_end')
        a('s_endpgm')
        a.label('L_code_end')

    def build(s):
        s.prologue()
        s.p0()
        if s.stop_after != 'p0':
            s.P.run()
        s.finish()
        body = s.a.finalize(True)
        hdr = open('interleave_layers__linear_kernel_hedgehog__geglu_ffn__prompt.s.ref').read().split('\n') if False else None
        head = HEADER
        return head + body + '\n' + f'.set CODE_BYTES, L_code_end-{NAME}\n' + FOOTER

HEADER = f'''; Persistent single-launch kernel: 256 workgroups (one per CU), 8 groups of 32 that share an L2.
; @launch grid=(256,1,1) block=(256,1,1) lds={LDS_TOTAL}
.amdgcn_target "amdgcn-amd-amdhsa--gfx950"
.text
.globl {NAME}
.p2align 8
.type {NAME},@function
{NAME}:
'''
FOOTER = f'''.section .rodata,"a"
.p2align 6
.amdhsa_kernel {NAME}
  .amdhsa_next_free_vgpr 512
  .amdhsa_next_free_sgpr 102
  .amdhsa_accum_offset 256
  .amdhsa_group_segment_fixed_size 0
  .amdhsa_kernarg_size 88
  .amdhsa_user_sgpr_count 2
  .amdhsa_user_sgpr_kernarg_segment_ptr 1
  .amdhsa_system_sgpr_workgroup_id_x 1
.end_amdhsa_kernel
'''

if __name__ == '__main__':
    import argparse
    ap = argparse.ArgumentParser()
    ap.add_argument('-o', default='k.s')
    ap.add_argument('--stop', default=None)
    ap.add_argument('--stamps', action='store_true')
    ap.add_argument('--heavy', action='store_true')
    args = ap.parse_args()
    g = Gen(stop_after=args.stop, stamps=args.stamps, force_heavy=args.heavy)
    txt = g.build()
    open(args.o, 'w').write(txt)
    open(args.o+'.stamps','w').write(','.join(g.stamp_names))
    print('written', args.o, len(txt), 'bytes;', 'stamps:', g.stamp_names)
```

```python
import sys
from asmlib import Asm
from layout import *

NAME = 'interleave_layers__linear_kernel_hedgehog__geglu_ffn__prompt_kernel'

WS='s[4:7]'; WO='s[8:11]'; WG='s[12:15]'; WU='s[16:19]'; WD='s[20:23]'; OUT='s[24:27]'; DBG='s[28:31]'
AX='s[32:35]'; WQKV='s[36:39]'; WPHI='s[40:43]'
sG='s44'; sM='s45'; sW='s46'; sL='s47'; sHEAVY='s48'; sGB='s49'; sTO='s50'
sXIN='s51'; sSTIN='s52'; sX1='s53'; sST1='s54'; sXO='s55'; sSTO='s56'; sO='s57'; sH='s58'; sKV='s59'; sKVC='s60'; sFL='s61'
sXCC='s62'; sHEAD='s63'; sHALF='s64'; sTQ='s65'; sCT='s66'
sUP='s[96:97]'
sT0='s68'; sT1='s69'; sT2='s70'; sT3='s71'; sT4='s72'; sT5='s73'; sT6='s74'; sT7='s75'
sP0='s[76:77]'; sP1='s[78:79]'
vLANE='v0'; vL16='v1'; vTR64='v2'; vTR0='v3'; vTR1='v4'; vD896='v5'; vD3584='v6'; vSTA='v7'; vCS='v8'; vSTAMP='v9'
LDS_TOTAL = 163840
MISC = LDS_TOTAL - 2048
M_MODE = MISC
M_CSQKV = MISC + 128
M_CSFF  = MISC + 512
L_WK=0; L_WV=28672; L_WQ=57344
L_PHI=86016; L_VI=102400; L_KVF=110592
LOG2E = 1.4426950408889634
import os
STSC = os.environ.get('STSC','')
STSC0 = os.environ.get('STSC0','sc1')
CPF = int(os.environ.get('CPF','1'))
WARM = int(os.environ.get('WARM','1'))
TIMEOUT = 100000
TOUCH0 = int(os.environ.get('TOUCH0','1'))

def fbits(x):
    import struct
    return '0x%08x' % struct.unpack('<I', struct.pack('<f', x))[0]

class Gen:
    def __init__(s, stop_after=None, stamps=False, force_heavy=False):
        s.a = Asm(); s.stop_after = stop_after; s.stamps = stamps; s.force_heavy = force_heavy
        s.nstamp = 0
        s.stamp_names = []

    def stamp(s, name):
        if not s.stamps: return
        a = s.a
        i = s.nstamp; s.nstamp += 1; s.stamp_names.append(name)
        a('s_waitcnt lgkmcnt(0)'); a.lg = []
        a('s_memtime s[94:95]')
        a('s_waitcnt lgkmcnt(0)')
        a(f's_lshl_b32 s95, {sL}, 5')
        a(f's_add_u32 s95, s95, {i}')
        a('s_mov_b32 s93, m0')
        a('s_mov_b32 m0, s95')
        a(f'v_writelane_b32 {vSTAMP}, s94, m0')
        a('s_mov_b32 m0, s93')

    def wave_only(s, w, fn):
        a = s.a
        L = a.newlabel('Lw')
        a(f's_cmp_lg_u32 {sW}, {w}')
        a(f's_cbranch_scc1 {L}')
        fn()
        a.label(L)

    def wave_in(s, lo, hi, fn):
        a = s.a
        L = a.newlabel('Lw')
        if lo > 0:
            a(f's_cmp_lt_u32 {sW}, {lo}'); a(f's_cbranch_scc1 {L}')
        if hi < 4:
            a(f's_cmp_ge_u32 {sW}, {hi}'); a(f's_cbranch_scc1 {L}')
        fn()
        a.label(L)

    def poll(s, srd, voff, soff, expect, mask=None, sc='sc1', vt='v10'):
        a = s.a
        Lp = a.newlabel('Lpoll'); Ld = a.newlabel('Ldone'); Lt = a.newlabel('Lto')
        a(f's_cmp_lg_u32 {sTO}, 0'); a(f's_cbranch_scc1 {Ld}')
        a(f's_mov_b32 {sT7}, 0')
        a.label(Lp)
        if voff is None:
            a(f'buffer_load_dword {vt}, off, {srd}, {soff} {sc}')
        else:
            a(f'buffer_load_dword {vt}, {voff}, {srd}, {soff} offen {sc}')
        a('s_waitcnt vmcnt(0)')
        a(f'v_cmp_ne_u32 vcc, {expect}, {vt}')
        a(f's_add_u32 {sT7}, {sT7}, 1')
        if mask is not None:
            a(f's_and_b64 vcc, vcc, {mask}')
        a('s_cmp_eq_u64 vcc, 0')
        a(f's_cbranch_scc1 {Ld}')
        a(f's_cmp_lt_u32 {sT7}, {TIMEOUT}')
        a(f's_cbranch_scc1 {Lp}')
        a(f's_mov_b32 {sTO}, 1')
        a.label(Ld)

    def set_flag(s, phase_off):
        a = s.a
        a.wait_all()
        a('s_barrier')
        def w0():
            Lh = a.newlabel('Lh'); Le = a.newlabel('Le')
            a(f's_lshl_b32 {sT0}, {sM}, 2')
            a(f's_add_u32 {sT0}, {sT0}, {phase_off}')
            a('v_mov_b32 v10, 1')
            a('s_mov_b64 exec, 1')
            a(f's_cmp_lg_u32 {sHEAVY}, 0'); a(f's_cbranch_scc1 {Lh}')
            a(f'buffer_store_dword v10, off, {WS}, {sT0}')
            a(f's_branch {Le}')
            a.label(Lh)
            a('buffer_wbl2 sc1')
            a('s_waitcnt vmcnt(0)')
            a(f'buffer_store_dword v10, off, {WS}, {sT0} sc1')
            a.label(Le)
            a('s_mov_b64 exec, -1')
        s.wave_only(0, w0)

    def wait_flags(s, phase_off, mask_lo, vt='v10', va='v11', keep_vm=False, drain=False):
        a = s.a
        vm = list(a.vm)
        def w0():
            a(f's_mov_b32 s76, {mask_lo}'); a('s_mov_b32 s77, 0')
            a(f'v_and_b32 {va}, 31, {vLANE}'); a(f'v_lshlrev_b32 {va}, 2, {va}')
            s.poll(WS, va, phase_off, 1, mask=sP0, vt=vt)
            Le = a.newlabel('Le')
            a(f's_cmp_eq_u32 {sHEAVY}, 0'); a(f's_cbranch_scc1 {Le}')
            a('buffer_inv sc1'); a('s_waitcnt vmcnt(0)')
            a.label(Le)
        s.wave_only(0, w0)
        if drain:
            a.wait_vm0()
        else:
            a.vm = vm
        a('s_barrier')

    def lane_consts(s):
        a = s.a
        a(f'v_lshlrev_b32 {vL16}, 4, {vLANE}')
        a(f'v_lshrrev_b32 v10, 5, {vLANE}')
        a(f'v_and_b32 v11, 15, {vLANE}')
        a('v_lshrrev_b32 v12, 2, v11')
        a(f'v_bfe_u32 v13, {vLANE}, 4, 1')
        a('v_and_b32 v14, 3, v11')
        a('v_lshl_add_u32 v15, v10, 2, v12')
        a('v_lshlrev_b32 v16, 5, v13'); a('v_lshl_add_u32 v16, v14, 3, v16')
        a(f'v_lshl_add_u32 {vTR64}, v15, 6, v16')
        a('v_lshl_add_u32 v17, v15, 7, v16')
        a('v_lshrrev_b32 v18, 1, v12')
        a(f'v_lshl_add_u32 {vTR0}, v18, 6, v17')
        a('v_xor_b32 v18, 1, v18')
        a(f'v_lshl_add_u32 {vTR1}, v18, 6, v17')
        a(f'v_lshrrev_b32 v19, 3, {vLANE}')
        a(f'v_and_b32 v20, 7, {vLANE}')
        a('v_lshlrev_b32 v21, 2, v13')
        a('v_xor_b32 v20, v20, v21'); a('v_lshlrev_b32 v20, 4, v20')
        a(f'v_mul_u32_u24 {vD896}, 896, v19'); a(f'v_add_u32 {vD896}, {vD896}, v20')
        a(f'v_mul_u32_u24 {vD3584}, 3584, v19'); a(f'v_add_u32 {vD3584}, {vD3584}, v20')
        a(f'v_and_b32 v22, 31, {vLANE}'); a('v_lshlrev_b32 v22, 3, v22')
        a(f'v_mul_u32_u24 {vSTA}, 1792, v10'); a(f'v_add_u32 {vSTA}, {vSTA}, v22')
        a(f'v_lshlrev_b32 {vCS}, 4, v10')

    def prologue(s):
        a = s.a
        a('s_cmp_ge_u32 s2, 256'); a('s_cbranch_scc1 L_end')
        a('s_load_dwordx4 s[32:35], s[0:1], 0')
        a('s_load_dwordx2 s[40:41], s[0:1], 16')
        a('s_load_dwordx2 s[8:9], s[0:1], 24')
        a('s_load_dwordx2 s[12:13], s[0:1], 40')
        a('s_load_dwordx2 s[16:17], s[0:1], 48')
        a('s_load_dwordx2 s[20:21], s[0:1], 56')
        a('s_load_dwordx2 s[24:25], s[0:1], 64')
        a('s_load_dwordx2 s[28:29], s[0:1], 72')
        a('s_load_dwordx2 s[4:5], s[0:1], 80')
        a(f's_getreg_b32 {sXCC}, hwreg(HW_REG_XCC_ID, 0, 4)')
        a(f's_and_b32 {sG}, s2, 7'); a(f's_lshr_b32 {sM}, s2, 3')
        a('v_lshrrev_b32 v10, 6, v0')
        a(f'v_and_b32 {vLANE}, 63, v0')
        a(f'v_readfirstlane_b32 {sW}, v10')
        a(f's_mov_b32 {sL}, 0'); a(f's_mov_b32 {sHEAVY}, 0'); a(f's_mov_b32 {sTO}, 0')
        a(f's_mul_i32 {sGB}, {sG}, {GS}'); a(f's_add_u32 {sGB}, {sGB}, {G0}')
        a(f's_and_b32 {sHEAD}, {sM}, 15'); a(f's_lshr_b32 {sHALF}, {sM}, 4')
        a(f's_mul_i32 {sTQ}, {sM}, 37'); a(f's_lshr_b32 {sTQ}, {sTQ}, 8')
        a(f's_mul_i32 {sT0}, {sTQ}, 7'); a(f's_sub_u32 {sCT}, {sM}, {sT0}')
        a('s_mov_b32 s96, 0'); a('s_mov_b32 s97, -1')
        a('s_getpc_b64 s[98:99]')
        a.rawlabel('L_pc')
        a(f's_sub_u32 s98, s98, L_pc-{NAME}'); a('s_subb_u32 s99, s99, 0')
        if s.stamps: a(f'v_mov_b32 {vSTAMP}, 0')
        for (b, n) in ((6, WS_BYTES), (10, D*D*2), (14, D*F*2), (18, D*F*2), (22, F*D*2), (26, S*D*2), (30, 256), (42, NH*DH*DH*2)):
            a(f's_mov_b32 s{b}, {n}'); a(f's_mov_b32 s{b+1}, 0x20000')
        a('s_waitcnt lgkmcnt(0)')
        a('s_mov_b32 s36, s34'); a('s_mov_b32 s37, s35')
        a(f's_mov_b32 s34, {S*D*2}'); a('s_mov_b32 s35, 0x20000')
        a(f's_mov_b32 s38, {D*3*D*2}'); a('s_mov_b32 s39, 0x20000')
        s.stamp('start')
        if s.stamps:
            a('s_memrealtime s[100:101]'); a('s_waitcnt lgkmcnt(0)')

    def p0(s):
        a = s.a
        a.c('==== P0')
        XS = 47104; XSW = 28672
        from phases import Phases
        s.P = Phases(s)
        def w0():
            a(f's_lshl_b32 {sFL}, {sG}, 11')
            if FLAGS: a(f's_add_u32 {sFL}, {sFL}, {FLAGS}')
            a(f'v_lshlrev_b32 v11, 7, {vLANE}')
            a('v_mov_b32 v12, 0'); a('v_mov_b32 v13, 0'); a('v_mov_b32 v14, 0'); a('v_mov_b32 v15, 0')
            a('s_mov_b64 exec, 0xffff')
            a(f'buffer_load_dword v254, v11, {WS}, {sFL} offen')
            a(f's_lshl_b32 {sT0}, {sM}, 2'); a(f's_add_u32 {sT0}, {sT0}, {sFL}')
            a(f'buffer_store_dword v12, v11, {WS}, {sT0} offen')
            a('s_mov_b64 exec, -1')
            a(f'v_lshlrev_b32 v16, 4, {vLANE}')
            a(f's_lshl_b32 {sT0}, s2, 10'); a(f's_add_u32 {sT0}, {sT0}, {KV}')
            a(f'buffer_store_dwordx4 v[12:15], v16, {WS}, {sT0} offen sc1')
            L = a.newlabel('Lz')
            a('s_cmp_ge_u32 s2, 32'); a(f's_cbranch_scc1 {L}')
            a(f's_lshl_b32 {sT0}, s2, 7'); a(f's_add_u32 {sT0}, {sT0}, {KVC}')
            a('s_mov_b64 exec, 1')
            a(f'buffer_store_dword v12, off, {WS}, {sT0} sc1')
            a('s_mov_b64 exec, -1')
            a.label(L)
        s.wave_only(0, w0)
        a(f'v_lshrrev_b32 v10, 3, {vLANE}'); a('v_mul_u32_u24 v10, 896, v10')
        a(f'v_and_b32 v11, 7, {vLANE}'); a(f'v_lshrrev_b32 v12, 4, {vLANE}'); a('v_xor_b32 v11, v11, v12')
        a('v_lshl_add_u32 v40, v11, 4, v10'); a('v_xor_b32 v41, 64, v40')
        a(f's_lshl_b32 {sT0}, {sG}, 8'); a(f's_lshl_b32 {sT1}, {sHALF}, 7'); a(f's_add_u32 {sT0}, {sT0}, {sT1}')
        a(f's_lshl_b32 {sT1}, {sW}, 5'); a(f's_add_u32 {sT0}, {sT0}, {sT1}'); a(f's_mul_i32 s82, {sT0}, 896')
        a(f's_mul_i32 s83, {sW}, {XSW}'); a(f's_add_u32 s83, s83, {XS}')
        for L in range(7):
            for rb in range(4):
                a(f's_add_u32 m0, s83, {L*4096 + rb*1024}')
                a(f's_add_u32 {sT2}, s82, {rb*8*896 + L*128}')
                a.vmem(f'buffer_load_dwordx4 v{40 + (rb & 1)}, {AX}, {sT2} offen lds', 'x')
        s.stamp('p0 x issued')
        def reg():
            a(f's_mul_i32 {sT1}, {sXCC}, {sXCC}'); a(f's_lshl_b32 {sT1}, {sT1}, 10'); a(f's_add_u32 {sT1}, {sT1}, {sXCC}')
            a(f's_add_u32 {sT1}, {sT1}, {1<<26}')
            a(f'v_mov_b32 v10, {sT1}')
            a(f's_lshl_b32 {sT2}, {sG}, 5')
            a('s_waitcnt vmcnt(28)')
            a('s_mov_b64 exec, 1')
            a(f'buffer_atomic_add v10, off, {DBG}, {sT2} sc1')
            a('s_mov_b64 exec, -1')
        s.wave_only(0, reg)
        if CPF: s.wave_only(3, lambda: s.code_prefetch(NAME, 'L_code_p2b'))
        a(f'v_lshrrev_b32 v10, 2, {vLANE}'); a('v_mul_u32_u24 v10, 2688, v10')
        a(f'v_and_b32 v11, 3, {vLANE}'); a('v_lshl_add_u32 v42, v11, 4, v10')
        a(f's_mul_i32 s84, {sHEAD}, 56'); a(f's_mul_i32 {sT0}, {sW}, {16*2688}'); a(f's_add_u32 s84, s84, {sT0}')
        a(f's_lshl_b32 s85, {sW}, 10')
        def wdma(slot, i, tag):
            col = (896, 1792, 0)[slot]
            a(f's_add_u32 m0, s85, {slot*28672 + i*4096}')
            a(f's_add_u32 {sT2}, s84, {col + i*4*16*2688}')
            a.vmem(f'buffer_load_dwordx4 v42, {WQKV}, {sT2} offen lds', tag)
        from phases import Side
        wearly = Side([(lambda i=i: wdma(0, i, 'Wkv')) for i in range(7)] + [(lambda i=i: wdma(1, i, 'Wkv')) for i in range(4)])
        wearly.emit(a, 2)
        s.lane_consts()
        s.P.persistent_addrs()
        a(f'v_and_b32 v10, 31, {vLANE}'); a('v_bfe_u32 v11, v10, 1, 3'); a('v_lshlrev_b32 v11, 4, v11')
        a('v_lshl_add_u32 v11, v10, 7, v11'); a(f'v_lshrrev_b32 v12, 5, {vLANE}'); a('v_lshl_add_u32 v11, v12, 3, v11')
        a('v_add_u32 v11, s83, v11')
        for c in range(8): a(f'v_xor_b32 v{44+c}, {c << 4}, v11')
        a('v_mov_b32 v54, 0'); a('v_mov_b32 v55, 0')
        for r in range(60, 64): a(f'v_mov_b32 v{r}, 0x3f803f80')
        a.wait_vm('x')
        s.stamp('p0 x landed')
        def reads(L):
            for q in range(4):
                ks = 4*L + q
                for b in range(2):
                    a.ds(f'ds_read_b64 a[{4*ks+2*b}:{4*ks+2*b+1}], v{44+2*q+b} offset:{L*4096}', ('xa', L))
            for q in range(4):
                for b in range(2):
                    R = 128 + 16*(L % 3) + 4*q + 2*b
                    a.ds(f'ds_read_b64 v[{R}:{R+1}], v{44+2*q+b} offset:{L*4096}', ('xv', L))
        reads(0)
        for L in range(7):
            if L+1 < 7: reads(L+1)
            a.wait_lg(('xv', L))
            for q in range(4):
                ks = 4*L + q
                c = '0' if ks == 0 else 'v[64:79]'
                a(f'v_mfma_f32_32x32x16_bf16 v[64:79], v[60:63], a[{4*ks}:{4*ks+3}], {c}')
                for i in range(4):
                    R = 128 + 16*(L % 3) + 4*q + i
                    a(f'v_dot2c_f32_bf16 v{54 + (i & 1)}, v{R}, v{R}')
                if q & 1: wearly.emit(a)
        wearly.flush(a)
        a.wait_lg0()
        a('s_barrier')
        s.stamp('p0 x read')
        for i in range(4, 7): wdma(1, i, 'Wkv')
        def wp():
            a(f's_mul_i32 {sT0}, {sHEAD}, 1568'); a(f's_mov_b32 m0, {L_PHI}')
            a(f'buffer_load_dwordx4 {vL16}, {WPHI}, {sT0} offen lds')
            a(f's_add_u32 {sT0}, {sT0}, 1024'); a(f's_mov_b32 m0, {L_PHI + 1024}')
            a(f'buffer_load_dwordx4 {vL16}, {WPHI}, {sT0} offen lds')
        s.wave_only(0, wp)
        for i in range(7): wdma(2, i, 'Wq')
        a('v_add_f32 v54, v54, v55')
        a('v_mov_b32 v55, v54')
        a('v_permlane32_swap_b32 v54, v55')
        a('v_add_f32 v54, v54, v55')
        a(f'v_mul_f32 v234, {fbits(-1.0/448)}, v64'); a(f'v_mul_f32 v54, {fbits(1.0/448)}, v54')
        a('v_fma_f32 v54, -v234, v234, v54'); a('v_max_f32 v54, 0, v54'); a(f'v_add_f32 v54, {fbits(1e-5)}, v54')
        a('v_rsq_f32 v235, v54')
        a.wait_vm('Wkv')
        def wpw(): a('s_waitcnt vmcnt(7)')
        s.wave_only(0, wpw)
        a('s_barrier')
        s.stamp('p1 W landed')
        a(f'v_and_b32 v10, 31, {vLANE}'); a(f'v_lshrrev_b32 v11, 5, {vLANE}')
        a('v_lshlrev_b32 v12, 1, v10'); a('v_mul_u32_u24 v13, 224, v11'); a('v_add_u32 v12, v12, v13'); a(f'v_add_u32 v12, {L_PHI}, v12')
        for e in range(2):
            for b in range(2):
                for r in range(4):
                    a.ds(f'ds_read_u16 v{96 + 8*e + 4*b + r}, v12 offset:{(16*e+8*b+r)*56}', 'wp')
        def warm():
            a(f'v_lshlrev_b32 v15, 7, {vLANE}')
            a(f's_mul_i32 {sT1}, s2, {49*128}')
            a('s_mov_b32 exec_lo, -1'); a('s_mov_b32 exec_hi, 0x1ffff')
            for srd in (WG, WU, WD):
                a(f'buffer_load_dword v254, v15, {srd}, {sT1} offen')
            a(f's_mul_i32 {sT1}, s2, {13*128}')
            a('s_mov_b64 exec, 0x1fff')
            a(f'buffer_load_dword v254, v15, {WO}, {sT1} offen')
            a('s_mov_b64 exec, -1')
        if WARM: s.wave_only(3, warm)
        s.P.colsum_kv()
        a('v_cmp_gt_u32 vcc, 28, v10')
        a.wait_lg0()
        for i in range(8):
            a(f'v_lshl_or_b32 v{96+2*i}, v{97+2*i}, 16, v{96+2*i}')
        for i in range(8):
            a(f'v_cndmask_b32 v{96+2*i}, 0, v{96+2*i}, vcc')
        for i in (6, 7):
            a(f'v_cndmask_b32 v{96+2*i}, v{96+2*i}, 0, {sUP}')
        for i in range(8):
            a(f'v_accvgpr_write_b32 a{248+i}, v{96+2*i}')
        a.vm = []; a.lg = []
        s.stamp('p0 done')

    def code_prefetch(s, l0, l1, v='v10', vd='v255'):
        a = s.a
        a(f's_mul_i32 {sT0}, {sM}, ((({l1}-{l0})+4095)/4096)*128')
        a(f's_add_u32 {sT0}, {sT0}, {l0}-{NAME}')
        a(f'v_lshlrev_b32 {v}, 7, {vLANE}'); a(f'v_add_u32 {v}, {sT0}, {v}')
        a(f'v_min_u32 {v}, CODE_BYTES-4, {v}')
        a(f's_mov_b32 exec_lo, (1<<((({l1}-{l0})+4095)/4096))-1'); a('s_mov_b32 exec_hi, 0')
        a(f'global_load_dword {vd}, {v}, s[98:99]')
        a('s_mov_b64 exec, -1')

    def registration_check(s):
        a = s.a
        Lp = a.newlabel('Lreg'); Ld = a.newlabel('Lregd'); Lc = a.newlabel('Lregc')
        a(f's_mov_b32 {sT7}, 0')
        a(f's_branch {Lc}')
        a.label(Lp)
        a(f'buffer_load_dword v232, v233, {DBG}, 0 offen sc1')
        a.label(Lc)
        a('s_waitcnt vmcnt(0)')
        a('v_lshrrev_b32 v13, 26, v232')
        a('v_cmp_ne_u32 vcc, 32, v13')
        a(f's_add_u32 {sT7}, {sT7}, 1')
        a('s_cmp_eq_u64 vcc, 0'); a(f's_cbranch_scc1 {Ld}')
        a(f's_cmp_lt_u32 {sT7}, {TIMEOUT}'); a(f's_cbranch_scc1 {Lp}')
        a(f's_mov_b32 {sTO}, 1')
        a.label(Ld)
        def w0():
            a(f'v_readlane_b32 {sT3}, v232, {sG}')
            a(f's_mul_i32 {sT1}, {sXCC}, {sXCC}'); a(f's_lshl_b32 {sT1}, {sT1}, 10'); a(f's_add_u32 {sT1}, {sT1}, {sXCC}')
            a(f's_lshl_b32 {sT1}, {sT1}, 5')
            a(f's_and_b32 {sT3}, {sT3}, {(1<<26)-1}')
            a(f's_cmp_lg_u32 {sT3}, {sT1}'); a(f's_cselect_b32 {sHEAVY}, 1, 0')
            if s.force_heavy: a(f's_mov_b32 {sHEAVY}, 1')
            Le = a.newlabel('Le')
            a(f's_cmp_eq_u32 {sHEAVY}, 0'); a(f's_cbranch_scc1 {Le}')
            a(f's_lshl_b32 {sT0}, {sG}, 11')
            if FLAGS: a(f's_add_u32 {sT0}, {sT0}, {FLAGS}')
            a(f's_lshl_b32 {sT1}, {sM}, 2'); a(f's_add_u32 {sT0}, {sT0}, {sT1}')
            a('v_mov_b32 v14, 0'); a(f'v_lshlrev_b32 v13, 7, {vLANE}')
            a('s_mov_b64 exec, 0xffff')
            a(f'buffer_store_dword v14, v13, {WS}, {sT0} offen sc1')
            a('s_waitcnt vmcnt(0)')
            a('s_mov_b64 exec, 1')
            a('v_mov_b32 v14, 1')
            a(f's_lshl_b32 {sT1}, {sG}, 5'); a(f's_add_u32 {sT1}, {sT1}, 8')
            a(f'buffer_atomic_add v14, off, {DBG}, {sT1} sc1')
            a('s_mov_b64 exec, -1')
            s.poll(DBG, None, sT1, 32, vt='v14')
            a.label(Le)
        s.wave_only(0, w0)

    def wphi_loads(s, track=False):
        a = s.a
        a(f'v_and_b32 v10, 31, {vLANE}'); a(f'v_lshrrev_b32 v11, 5, {vLANE}')
        a('v_lshlrev_b32 v12, 1, v10'); a('v_mul_u32_u24 v13, 224, v11'); a('v_add_u32 v12, v12, v13')
        a(f's_mul_i32 {sT5}, {sHEAD}, 1568')
        a('v_mov_b32 v14, 0x40000000')
        a('v_cmp_gt_u32 vcc, 28, v10')
        a('v_cndmask_b32 v12, v14, v12, vcc')
        a(f'v_cndmask_b32 v13, v12, v14, {sUP}')
        for e in range(2):
            for b in range(2):
                for r in range(4):
                    reg = 96 + 8*e + 4*b + r
                    va = 'v13' if (e == 1 and b == 1) else 'v12'
                    t = f'buffer_load_ushort v{reg}, {va}, {WPHI}, {sT5} offen offset:{(16*e+8*b+r)*56}'
                    if track: a.vmem(t, 'wphi')
                    else: a(t)

    def finish(s):
        a = s.a
        a.label('L_fin')
        if s.stamps:
            a('s_memrealtime s[94:95]'); a('s_waitcnt lgkmcnt(0)')
            a('s_sub_u32 s100, s94, s100')
            a(f'v_writelane_b32 {vSTAMP}, s100, 63')
            a('s_memtime s[94:95]'); a('s_waitcnt lgkmcnt(0)')
            a(f'v_writelane_b32 {vSTAMP}, s94, 62')
            def w0():
                a(f's_lshl_b32 {sT0}, s2, 8'); a(f's_add_u32 {sT0}, {sT0}, {STAMP}')
                a(f'v_lshlrev_b32 v10, 2, {vLANE}')
                a(f'buffer_store_dword {vSTAMP}, v10, {WS}, {sT0} offen')
            s.wave_only(int(os.environ.get('STAMPW','0')), w0)
            if os.environ.get('DBGOUT'):
                def wd():
                    L = a.newlabel('Ld'); a('s_cmp_lg_u32 s2, 0'); a(f's_cbranch_scc1 {L}')
                    idx = [int(x) for x in os.environ['DBGOUT'].split(',')]
                    a(f'v_readlane_b32 s93, {vSTAMP}, 0')
                    slots = [3,4,5,6,7,9,10,11,12,13,14,15]
                    for sl, i in zip(slots, idx):
                        a(f'v_readlane_b32 s94, {vSTAMP}, {i}')
                        if i != 63: a('s_sub_u32 s94, s94, s93')
                        a('v_mov_b32 v10, s94'); a('s_mov_b64 exec, 1'); a(f's_mov_b32 s95, {sl*4}')
                        a(f'buffer_store_dword v10, off, {DBG}, s95'); a('s_mov_b64 exec, -1'); a('s_nop 1')
                    a.label(L)
                s.wave_only(0, wd)
        a('s_waitcnt vmcnt(0) lgkmcnt(0)')
        a.label('L_end')
        a('s_endpgm')
        a.label('L_code_end')

    def build(s):
        s.prologue()
        s.p0()
        if s.stop_after != 'p0':
            s.P.run()
        s.finish()
        body = s.a.finalize(True)
        hdr = open('interleave_layers__linear_kernel_hedgehog__geglu_ffn__prompt.s.ref').read().split('\n') if False else None
        head = HEADER
        return head + body + '\n' + f'.set CODE_BYTES, L_code_end-{NAME}\n' + FOOTER

HEADER = f'''; Persistent single-launch kernel: 256 workgroups (one per CU), 8 groups of 32 that share an L2.
; @launch grid=(256,1,1) block=(256,1,1) lds={LDS_TOTAL}
.amdgcn_target "amdgcn-amd-amdhsa--gfx950"
.text
.globl {NAME}
.p2align 8
.type {NAME},@function
{NAME}:
'''
FOOTER = f'''.section .rodata,"a"
.p2align 6
.amdhsa_kernel {NAME}
  .amdhsa_next_free_vgpr 512
  .amdhsa_next_free_sgpr 102
  .amdhsa_accum_offset 256
  .amdhsa_group_segment_fixed_size 0
  .amdhsa_kernarg_size 88
  .amdhsa_user_sgpr_count 2
  .amdhsa_user_sgpr_kernarg_segment_ptr 1
  .amdhsa_system_sgpr_workgroup_id_x 1
.end_amdhsa_kernel
'''

if __name__ == '__main__':
    import argparse
    ap = argparse.ArgumentParser()
    ap.add_argument('-o', default='k.s')
    ap.add_argument('--stop', default=None)
    ap.add_argument('--stamps', action='store_true')
    ap.add_argument('--heavy', action='store_true')
    args = ap.parse_args()
    g = Gen(stop_after=args.stop, stamps=args.stamps, force_heavy=args.heavy)
    txt = g.build()
    open(args.o, 'w').write(txt)
    open(args.o+'.stamps','w').write(','.join(g.stamp_names))
    print('written', args.o, len(txt), 'bytes;', 'stamps:', g.stamp_names)
```

```python
from gen import *
import gen as G
import math, os
from collections import deque

C0 = -2.0*LOG2E*math.sqrt(2.0/math.pi)
C1 = C0*0.044715
PRET = int(os.environ.get('PRET', '0'))
IDLEW = int(os.environ.get('IDLEW', '1'))
WBL = int(os.environ.get('WBL', '0'))
OUTSC = os.environ.get('OUTSC', '')
SAVE_LATE = int(os.environ.get('SAVE_LATE', '1'))
IDLEP = int(os.environ.get('IDLEP', '1'))
PFA = int(os.environ.get('PFA', '1'))
HSC = os.environ.get('HSC', '')
LDSC = os.environ.get('LDSC', 'sc1')

L_WG = 0; L_WU = 104448; L_WO = 45056; WOW = 14336; L_KVF = 40960
RED2 = 45056
RED4 = 86016
RING = 36864; NSLOT = 36
vPHIW='v240'; vVIW='v241'; vPA0='v242'; vPA1='v243'; vVB0='v244'; vVB1='v245'; vKVO='v246'; vL128='v247'
vDUM='v255'

class Side:
    def __init__(s, items=()): s.q = deque(items)
    def emit(s, a, n=1):
        for _ in range(n):
            if not s.q: return
            it = s.q.popleft()
            if callable(it): it()
            else: a(it)
    def flush(s, a): s.emit(a, len(s.q))
    def __len__(s): return len(s.q)

def run_list(a, L, side=None, every=0):
    cnt = 0
    for it in L:
        if callable(it): it()
        else: a(it)
        cnt += 1
        if side is not None and every and cnt % every == 0: side.emit(a)
    if side is not None: side.flush(a)

class Phases:
    def __init__(s, g):
        s.g = g; s.a = g.a
        s.stop = g.stop_after

    def persistent_addrs(s):
        a = s.a
        a(f'v_and_b32 v13, 31, {vLANE}'); a(f's_lshl_b32 {sT0}, {sW}, 5'); a(f'v_add_u32 v14, {sT0}, v13')
        a(f'v_lshrrev_b32 v20, 5, {vLANE}')
        a('v_bfe_u32 v21, v13, 1, 1'); a('v_lshlrev_b32 v21, 3, v21')
        a('v_bfe_u32 v22, v13, 3, 1'); a('v_lshl_or_b32 v21, v22, 2, v21')
        a('v_bfe_u32 v22, v13, 2, 1'); a('v_lshl_or_b32 v21, v22, 1, v21')
        a('v_and_b32 v22, 1, v13'); a('v_or_b32 v21, v21, v22')
        a('v_xor_b32 v21, v21, v20')
        a('v_lshlrev_b32 v21, 3, v21'); a('v_lshl_add_u32 v21, v14, 7, v21')
        a(f'v_add_u32 {vPHIW}, {L_PHI}, v21')
        a('v_bfe_u32 v21, v14, 1, 3'); a('v_xor_b32 v21, v21, v20'); a('v_lshlrev_b32 v21, 3, v21')
        a('v_lshl_add_u32 v21, v14, 6, v21'); a(f'v_add_u32 {vVIW}, {L_VI}, v21')
        a(f'v_and_b32 v13, 15, {vLANE}'); a('v_lshrrev_b32 v14, 2, v13')
        a('v_and_b32 v22, 3, v13'); a(f'v_bfe_u32 v23, {vLANE}, 4, 1')
        a('v_lshl_add_u32 v24, v23, 2, v22')
        a('v_lshl_add_u32 v25, v20, 2, v14')
        a('v_lshrrev_b32 v26, 1, v14'); a('v_lshlrev_b32 v26, 3, v26')
        a('v_lshl_or_b32 v26, v20, 1, v26'); a('v_and_b32 v27, 1, v14'); a('v_or_b32 v26, v26, v27')
        a(f's_and_b32 {sT0}, {sW}, 1'); a(f's_lshl_b32 {sT0}, {sT0}, 3'); a(f'v_add_u32 v27, {sT0}, v24')
        a('v_xor_b32 v27, v27, v26')
        a('v_lshlrev_b32 v27, 3, v27'); a('v_lshl_add_u32 v27, v25, 7, v27')
        a(f'v_add_u32 {vPA0}, {L_PHI}, v27')
        a(f'v_xor_b32 v27, 32, {vPA0}'); a(f'v_add_u32 {vPA1}, {8*128}, v27')
        a('v_lshrrev_b32 v26, 1, v14'); a('v_lshl_or_b32 v26, v20, 1, v26')
        a('v_xor_b32 v26, v26, v24'); a('v_lshlrev_b32 v26, 3, v26')
        a('v_lshl_add_u32 v26, v25, 6, v26'); a(f'v_add_u32 {vVB0}, {L_VI}, v26')
        a(f'v_xor_b32 v27, 32, {vVB0}'); a(f'v_add_u32 {vVB1}, {8*64}, v27')
        a(f'v_and_b32 v13, 31, {vLANE}'); a('v_lshlrev_b32 v13, 2, v13'); a(f'v_lshl_add_u32 {vKVO}, v20, 9, v13')
        a(f'v_lshlrev_b32 {vL128}, 7, {vLANE}')

    def pretouch(s, soff, nlines, tag='pt'):
        if not PRET: return
        a = s.a
        if nlines < 64: a(f's_mov_b64 exec, {hex((1 << nlines)-1)}')
        a.vmem(f'buffer_load_dword {vDUM}, {vL128}, {WS}, {soff} offen', tag)
        if nlines < 64: a('s_mov_b64 exec, -1')

    def stats_load_items(s, dst, sbase, tag):
        a = s.a
        return [(lambda i=i: a.vmem(f'buffer_load_dwordx2 v[{dst+2*i}:{dst+2*i+1}], {vSTA}, {WS}, {sbase} offen offset:{i*256} {LDSC}', tag)) for i in range(7)]

    def stats_list(s, src, vnmean, vrstd, t0, t1):
        S_, Q_ = f'v{src}', f'v{src+1}'
        L = []
        for i in range(1, 7):
            L += [f'v_add_f32 {S_}, {S_}, v{src+2*i}', f'v_add_f32 {Q_}, {Q_}, v{src+2*i+1}']
        L += [f'v_mov_b32 {t0}, {S_}', f'v_mov_b32 {t1}, {Q_}',
              f'v_permlane32_swap_b32 {S_}, {t0}', f'v_permlane32_swap_b32 {Q_}, {t1}',
              f'v_add_f32 {S_}, {S_}, {t0}', f'v_add_f32 {Q_}, {Q_}, {t1}',
              f'v_mul_f32 {vnmean}, {fbits(-1.0/448)}, {S_}', f'v_mul_f32 {Q_}, {fbits(1.0/448)}, {Q_}',
              f'v_fma_f32 {Q_}, -{vnmean}, {vnmean}, {Q_}', f'v_max_f32 {Q_}, 0, {Q_}',
              f'v_add_f32 {Q_}, {fbits(1e-5)}, {Q_}', f'v_rsq_f32 {vrstd}, {Q_}']
        return L

    def cs_read_items(s, dst, lds_off, tag, vaddr):
        a = s.a
        return [(lambda g=g: a.ds(f'ds_read_b128 v[{dst+4*g}:{dst+4*g+3}], {vaddr} offset:{lds_off+32*g}', tag)) for g in range(4)]

    def colsum(s, reads_fn, nks, dst, lds_out, va='v10'):
        a = s.a
        for i in range(4): a(f'v_mov_b32 v{dst+16+i}, 0x3f803f80')
        F = dst + 20
        reads_fn(0, F, ('cs', 0)); reads_fn(1, F+4, ('cs', 1))
        for ks in range(nks):
            if ks+2 < nks: reads_fn(ks+2, F + 4*((ks+2) % 3), ('cs', ks+2))
            a.wait_lg(('cs', ks))
            R = F + 4*(ks % 3)
            c = '0' if ks == 0 else f'v[{dst}:{dst+15}]'
            a(f'v_mfma_f32_32x32x16_bf16 v[{dst}:{dst+15}], v[{R}:{R+3}], v[{dst+16}:{dst+19}], {c}')
        a(f'v_add_u32 {va}, {lds_out}, {vCS}')
        a('s_mov_b32 exec_lo, 1'); a('s_mov_b32 exec_hi, 1')
        for g in range(4):
            a.ds(f'ds_write_b128 {va}, v[{dst+4*g}:{dst+4*g+3}] offset:{32*g}', 'csw')
        a('s_mov_b64 exec, -1')
        a.wait_lg0()

    def colsum_kv(s):
        a = s.a; g = s.g
        def cs_wave():
            a(f's_mul_i32 {sT0}, {sW}, 28672'); a(f'v_add_u32 v31, {sT0}, {vTR64}')
            a(f's_lshl_b32 {sT1}, {sW}, 7'); a(f's_add_u32 {sT1}, {sT1}, {M_CSQKV}')
            def f(ks, reg, tag):
                a.ds(f'ds_read_b64_tr_b16 v[{reg}:{reg+1}], v31 offset:{(16*ks)*64}', tag)
                a.ds(f'ds_read_b64_tr_b16 v[{reg+2}:{reg+3}], v31 offset:{(16*ks+8)*64}', tag)
            s.colsum(f, 28, 192, sT1, va='v30')
        g.wave_in(0, 2, cs_wave)
        a.lg = []

    def softmax_list(s, P, vC, E1, E2, dP, dM, t):
        L = []
        for r in range(12, 16):
            L.append(f'v_cndmask_b32 v{P+r}, v{P+r}, v{P}, {sUP}')
        mx, mn, t2, t3 = f'v{t}', f'v{t+1}', f'v{t+2}', f'v{t+3}'
        L += [f'v_max3_f32 {mx}, v{P}, v{P+1}, v{P+2}', f'v_min3_f32 {mn}, v{P}, v{P+1}, v{P+2}',
              f'v_max3_f32 {t2}, v{P+3}, v{P+4}, v{P+5}', f'v_min3_f32 {t3}, v{P+3}, v{P+4}, v{P+5}']
        for r in (6, 10):
            L += [f'v_max3_f32 {mx}, {mx}, v{P+r}, v{P+r+1}', f'v_min3_f32 {mn}, {mn}, v{P+r}, v{P+r+1}',
                  f'v_max3_f32 {t2}, {t2}, v{P+r+2}, v{P+r+3}', f'v_min3_f32 {t3}, {t3}, v{P+r+2}, v{P+r+3}']
        L += [f'v_max3_f32 {mx}, {mx}, v{P+14}, v{P+15}', f'v_min3_f32 {mn}, {mn}, v{P+14}, v{P+15}',
              f'v_max_f32 {mx}, {mx}, {t2}', f'v_min_f32 {mn}, {mn}, {t3}',
              f'v_mov_b32 {t2}, {mx}', f'v_mov_b32 {t3}, {mn}',
              f'v_permlane32_swap_b32 {mx}, {t2}', f'v_permlane32_swap_b32 {mn}, {t3}',
              f'v_max_f32 {mx}, {mx}, {t2}', f'v_min_f32 {mn}, {mn}, {t3}',
              f'v_mul_f32 {mx}, {mx}, {vC}', f'v_mul_f32 {mn}, {mn}, {vC}']
        c = int(vC[1:]); assert c % 2 == 0 and t % 2 == 0
        cp = f'v[{c}:{c+1}]'; tp = f'v[{t}:{t+1}]'
        for r in range(0, 16, 2):
            L.append(f'v_pk_fma_f32 v[{E1+r}:{E1+r+1}], v[{P+r}:{P+r+1}], {cp}, {tp} op_sel:[0,0,0] op_sel_hi:[1,0,0] neg_lo:[0,0,1] neg_hi:[0,0,1]')
            L.append(f'v_pk_fma_f32 v[{E2+r}:{E2+r+1}], v[{P+r}:{P+r+1}], {cp}, {tp} op_sel:[0,0,1] op_sel_hi:[1,0,1] neg_lo:[1,0,0] neg_hi:[1,0,0]')
        for r in range(16):
            L += [f'v_exp_f32 v{E1+r}, v{E1+r}', f'v_exp_f32 v{E2+r}, v{E2+r}']
        for r in range(12, 16):
            L += [f'v_cndmask_b32 v{E1+r}, v{E1+r}, 0, {sUP}', f'v_cndmask_b32 v{E2+r}, v{E2+r}, 0, {sUP}']
        A1 = f'v[{t}:{t+1}]'; A2 = f'v[{t+2}:{t+3}]'; B1 = f'v[{t+4}:{t+5}]'; B2 = f'v[{t+6}:{t+7}]'
        pr = lambda b, r: f'v[{b+r}:{b+r+1}]'
        L += [f'v_pk_add_f32 {A1}, {pr(E1,0)}, {pr(E1,2)}', f'v_pk_add_f32 {A2}, {pr(E2,0)}, {pr(E2,2)}',
              f'v_pk_add_f32 {B1}, {pr(E1,4)}, {pr(E1,6)}', f'v_pk_add_f32 {B2}, {pr(E2,4)}, {pr(E2,6)}']
        L += [f'v_pk_add_f32 {A1}, {A1}, {pr(E1,8)}', f'v_pk_add_f32 {A2}, {A2}, {pr(E2,8)}',
              f'v_pk_add_f32 {B1}, {B1}, {pr(E1,10)}', f'v_pk_add_f32 {B2}, {B2}, {pr(E2,10)}',
              f'v_pk_add_f32 {A1}, {A1}, {pr(E1,12)}', f'v_pk_add_f32 {A2}, {A2}, {pr(E2,12)}',
              f'v_pk_add_f32 {B1}, {B1}, {pr(E1,14)}', f'v_pk_add_f32 {B2}, {B2}, {pr(E2,14)}',
              f'v_pk_add_f32 {A1}, {A1}, {B1}', f'v_pk_add_f32 {A2}, {A2}, {B2}',
              f'v_add_f32 v{t}, v{t}, v{t+1}', f'v_add_f32 v{t+2}, v{t+2}, v{t+3}',
              f'v_mov_b32 v{t+1}, v{t}', f'v_mov_b32 v{t+3}, v{t+2}',
              f'v_permlane32_swap_b32 v{t}, v{t+1}', f'v_permlane32_swap_b32 v{t+2}, v{t+3}',
              f'v_add_f32 v{t}, v{t}, v{t+1}', f'v_add_f32 v{t+2}, v{t+2}, v{t+3}',
              f'v_rcp_f32 v{t}, v{t}', f'v_rcp_f32 v{t+2}, v{t+2}']
        for r in range(0, 16, 2):
            L.append(f'v_pk_mul_f32 {pr(E1,r)}, {pr(E1,r)}, {A1} op_sel_hi:[1,0]')
            L.append(f'v_pk_mul_f32 {pr(E2,r)}, {pr(E2,r)}, {A2} op_sel_hi:[1,0]')
        for i in range(8):
            L += [f'v_cvt_pk_bf16_f32 v{dP+i}, v{E1+2*i}, v{E1+2*i+1}', f'v_cvt_pk_bf16_f32 v{dM+i}, v{E2+2*i}, v{E2+2*i+1}']
        return L

    def qk_list(s, acc, cs, NMp, vC, frag, P, E1, E2, dP, dM, t):
        L = []
        for r in range(0, 16, 2):
            L.append(f'v_pk_fma_f32 v[{acc+r}:{acc+r+1}], v[{cs+r}:{cs+r+1}], v[{NMp}:{NMp+1}], v[{acc+r}:{acc+r+1}] op_sel_hi:[1,0,1]')
        for i in range(8):
            L.append(f'v_cvt_pk_bf16_f32 v{frag+i}, v{acc+2*i}, v{acc+2*i+1}')
        L.append(f'v_mfma_f32_32x32x16_bf16 v[{P}:{P+15}], a[248:251], v[{frag}:{frag+3}], 0')
        L.append(f'v_mfma_f32_32x32x16_bf16 v[{P}:{P+15}], a[252:255], v[{frag+4}:{frag+7}], v[{P}:{P+15}]')
        L += s.softmax_list(P, vC, E1, E2, dP, dM, t)
        return L

    def dma_item(s, srd, voff, ssrc, srcoff, sdst, dstoff, tag, track=True):
        a = s.a
        def f():
            if sdst is None: a(f's_mov_b32 m0, {dstoff}')
            else: a(f's_add_u32 m0, {sdst}, {dstoff}')
            a(f's_add_u32 s92, {ssrc}, {srcoff}')
            if track: a.vmem(f'buffer_load_dwordx4 {voff}, {srd}, s92 offen lds', tag)
            else: a(f'buffer_load_dwordx4 {voff}, {srd}, s92 offen lds')
        return f

    def wq_items(s):
        a = s.a
        a(f's_mul_i32 s90, {sHEAD}, {WQH}'); a(f's_add_u32 s90, s90, {sGB}')
        if WQ: a(f's_add_u32 s90, s90, {WQ}')
        a(f's_lshl_b32 s91, {sW}, 10'); a(f's_add_u32 s90, s90, s91')
        return [s.dma_item(WS, vL16, 's90', n*4096, 's91', n*4096, 'W') for n in range(21)]

    def layer_setup(s):
        a = s.a
        L0 = a.newlabel('Ll0'); Le = a.newlabel('Lle')
        a(f's_cmp_lg_u32 {sL}, 0'); a(f's_cbranch_scc1 {L0}')
        for r, o in ((sXIN, X0), (sSTIN, ST0), (sX1, X1A), (sST1, ST1A), (sXO, X2A), (sSTO, ST2A), (sO, OA), (sH, HA)):
            a(f's_add_u32 {r}, {sGB}, {o}')
        a(f's_branch {Le}')
        a.label(L0)
        for r, o in ((sXIN, X2A), (sSTIN, ST2A), (sX1, X1A), (sST1, ST1A), (sXO, X2A), (sSTO, ST2A), (sO, OA), (sH, HA)):
            a(f's_add_u32 {r}, {sGB}, {o}')
        a.label(Le)
        a(f's_lshl_b32 {sT0}, {sL}, 4'); a(f's_add_u32 {sT0}, {sT0}, {sHEAD}')
        a(f's_lshl_b32 {sKV}, {sT0}, 13'); a(f's_add_u32 {sKV}, {sKV}, {KV}')
        a(f's_lshl_b32 {sKVC}, {sT0}, 7'); a(f's_add_u32 {sKVC}, {sKVC}, {KVC}')
        a(f's_lshl_b32 {sFL}, {sG}, 11'); a(f's_lshl_b32 {sT0}, {sL}, 9'); a(f's_add_u32 {sFL}, {sFL}, {sT0}')
        if FLAGS: a(f's_add_u32 {sFL}, {sFL}, {FLAGS}')

    def fl(s, p):
        s.a(f's_add_u32 s80, {sFL}, {p*128}')
        return 's80'

    def p1(s):
        a = s.a; g = s.g
        a.c('==== P1')
        XD = 8
        a(f's_lshl_b32 {sT3}, {sHALF}, 2'); a(f's_add_u32 {sT3}, {sT3}, {sW}')
        a(f's_mul_i32 s82, {sT3}, 3584'); a(f's_add_u32 s82, s82, {sSTIN}')
        a(f's_mul_i32 s83, {sT3}, 28672'); a(f's_add_u32 s83, s83, {sXIN}')
        def xload(ks):
            if ks % 4 == 0: a(f's_add_u32 s84, s83, {(ks//4)*4096}')
            a.vmem(f'buffer_load_dwordx4 a[{4*ks}:{4*ks+3}], {vL16}, {WS}, s84 offen offset:{(ks%4)*1024} {LDSC}', ('x', ks))
        a(f's_lshl_b32 {sT4}, {sT3}, 15'); a(f's_add_u32 {sT4}, {sT4}, {sO}'); a(f's_lshl_b32 {sT5}, {sHEAD}, 11'); a(f's_add_u32 s85, {sT4}, {sT5}')
        def rd64(base, va=vTR64):
            def f(ks, reg, tag):
                a.ds(f'ds_read_b64_tr_b16 v[{reg}:{reg+1}], {va} offset:{base+(16*ks)*64}', tag)
                a.ds(f'ds_read_b64_tr_b16 v[{reg+2}:{reg+3}], {va} offset:{base+(16*ks+8)*64}', tag)
            return f
        AK, AV, AQ, FR = 16, 32, 48, 64
        rk, rv, rq = rd64(L_WK), rd64(L_WV), rd64(0, 'v208')
        FRS = (64, 72, 216)
        NM, RS, VC = 'v10', 'v11', 'v12'
        def kvloop(loads):
            side = Side()
            if loads:
                run_list(a, s.stats_load_items(96, 's82', 'st'))
                for ks in range(XD): xload(ks)
                side = Side([lambda: a.wait_vm('st')] + s.stats_list(96, NM, RS, 'v13', 'v14'))
            rk(0, FRS[0], ('fk', 0)); rv(0, FRS[0]+4, ('fv', 0))
            rk(1, FRS[1], ('fk', 1)); rv(1, FRS[1]+4, ('fv', 1))
            for ks in range(28):
                b = FRS[ks % 3]
                if loads: a.wait_vm(('x', ks))
                a.wait_lg(('fk', ks))
                ck = '0' if ks == 0 else f'v[{AK}:{AK+15}]'
                cv = '0' if ks == 0 else f'v[{AV}:{AV+15}]'
                a(f'v_mfma_f32_32x32x16_bf16 v[{AK}:{AK+15}], v[{b}:{b+3}], a[{4*ks}:{4*ks+3}], {ck}')
                if ks+2 < 28: rk(ks+2, FRS[(ks+2) % 3], ('fk', ks+2))
                if loads and ks + XD < 28: xload(ks + XD)
                a.wait_lg(('fv', ks))
                a(f'v_mfma_f32_32x32x16_bf16 v[{AV}:{AV+15}], v[{b+4}:{b+7}], a[{4*ks}:{4*ks+3}], {cv}')
                if ks+2 < 28: rv(ks+2, FRS[(ks+2) % 3]+4, ('fv', ks+2))
                if ks >= 2: side.emit(a, 2)
            side.flush(a)
        L1p = a.newlabel('Lp1l1'); Lj = a.newlabel('Lp1j')
        a(f's_cmp_lg_u32 {sL}, 0'); a(f's_cbranch_scc1 {L1p}')
        a(f'v_and_b32 v13, 7, {vLANE}'); a('v_lshlrev_b32 v233, 5, v13')
        a(f'buffer_load_dword v232, v233, {DBG}, 0 offen sc1')
        a.lg = []
        kvloop(False)
        g.wave_in(0, 2, g.registration_check)
        a('s_barrier')
        a('v_mov_b32 v10, v234'); a('v_mov_b32 v11, v235')
        a(f's_branch {Lj}')
        a.label(L1p)
        a.vm = []; a.lg = []
        kvloop(True)
        a('s_barrier')
        a.label(Lj)
        a.vm = []; a.lg = []
        g.stamp('p1 KV gemm')
        a(f'v_add_u32 v15, {M_CSQKV}, {vCS}')
        run_list(a, s.cs_read_items(112, 0, 'csk', 'v15') + s.cs_read_items(128, 128, 'csv', 'v15'))
        a(f'v_mul_f32 {VC}, {fbits(LOG2E)}, {RS}')
        a.wait_lg('csk')
        a(f's_lshl_b32 s90, {sM}, 7'); a(f's_mul_i32 s91, {sW}, {8*3584}'); a(f's_add_u32 s90, s90, s91')
        a(f's_lshl_b32 s91, {sW}, 10')
        a(f's_add_u32 {sT0}, s91, {112640 - L_WG}'); a(f's_cmp_eq_u32 {sL}, 0'); a(f's_cselect_b32 s91, {sT0}, s91')
        wa = Side([s.dma_item(WG, vD3584, 's90', 4*n*8*3584, 's91', L_WG + 4*n*1024, 'WA') for n in range(10)] if PFA else [])
        L = s.qk_list(AK, 112, 10, VC, 144, 80, 96, 192, 176, 184, 152)
        for T in range(2):
            for gq in range(4):
                R = 176 + 8*T + 2*gq
                L.append(f'v_xor_b32 v{156+(gq&1)}, {(8*T+2*gq) << 3}, {vPHIW}')
                L.append(lambda R=R, gq=gq: a.ds(f'ds_write_b64 v{156+(gq&1)}, v[{R}:{R+1}]', 'pw'))
        L.append(lambda: a.wait_lg('csv'))
        for r in range(0, 16, 2):
            L.append(f'v_pk_fma_f32 v[{AV+r}:{AV+r+1}], v[{128+r}:{129+r}], v[10:11], v[{AV+r}:{AV+r+1}] op_sel_hi:[1,0,1]')
        for r in range(0, 16, 2):
            L.append(f'v_pk_mul_f32 v[{AV+r}:{AV+r+1}], v[{AV+r}:{AV+r+1}], v[10:11] op_sel:[0,1] op_sel_hi:[1,1]')
        L.append(f'v_cndmask_b32 v{AV+12}, v{AV+12}, 1.0, {sUP}')
        for i in range(8):
            L.append(f'v_cvt_pk_bf16_f32 v{144+i}, v{AV+2*i}, v{AV+2*i+1}')
        for gq in range(4):
            L.append(f'v_xor_b32 v{156+(gq&1)}, {(2*gq) << 3}, {vVIW}')
            L.append(lambda gq=gq: a.ds(f'ds_write_b64 v{156+(gq&1)}, v[{144+2*gq}:{145+2*gq}]', 'vw'))
        run_list(a, L, wa, 22)
        a(f's_waitcnt vmcnt({10 if PFA else 0}) lgkmcnt(0)')
        a.lg = []
        a('s_barrier')
        g.stamp('p1 phi/v written')
        s.pretouch('s85', 16)
        def kv():
            def rr(kt, reg, tag):
                a.ds(f'ds_read_b64_tr_b16 v[{reg}:{reg+1}], {vPA0} offset:{kt*2048}', tag)
                a.ds(f'ds_read_b64_tr_b16 v[{reg+2}:{reg+3}], {vPA1} offset:{kt*2048}', tag)
                a.ds(f'ds_read_b64_tr_b16 v[{reg+4}:{reg+5}], {vVB0} offset:{kt*1024}', tag)
                a.ds(f'ds_read_b64_tr_b16 v[{reg+6}:{reg+7}], {vVB1} offset:{kt*1024}', tag)
            KS = (64, 72, 216)
            rr(0, KS[0], ('k', 0)); rr(1, KS[1], ('k', 1))
            for kt in range(8):
                if kt+2 < 8: rr(kt+2, KS[(kt+2) % 3], ('k', kt+2))
                a.wait_lg(('k', kt))
                b = KS[kt % 3]
                c = '0' if kt == 0 else 'v[80:95]'
                a(f'v_mfma_f32_32x32x16_bf16 v[80:95], v[{b}:{b+3}], v[{b+4}:{b+7}], {c}')
            a(f's_lshl_b32 {sT0}, {sW}, 12'); a(f's_add_u32 {sT0}, {sT0}, {sKV}')
            for gq in range(4):
                for r in range(4):
                    a(f'buffer_atomic_add_f32 v{80+4*gq+r}, {vKVO}, {WS}, {sT0} offen offset:{(8*gq+r)*128} sc1')
        g.wave_in(0, 2, kv)
        def csq():
            Lq0 = a.newlabel('Lq0')
            a(f's_cmp_lg_u32 {sL}, 0'); a(f's_cbranch_scc1 {Lq0}')
            a(f'v_add_u32 v209, {2*28672}, {vTR64}')
            a(f's_mov_b32 {sT1}, {M_CSQKV + 256}')
            s.colsum(rd64(0, 'v209'), 28, 112, sT1, va='v152')
            a.label(Lq0)
        g.wave_only(2, csq)
        a.lg = []
        a.vm = []
        a.lg = []
        g.stamp('p1 kv issued')
        a(f'v_add_u32 v208, {L_WQ}, {vTR64}')
        QS = (64, 68, 72)
        rq(0, QS[0], ('f', 0)); rq(1, QS[1], ('f', 1))
        for ks in range(28):
            if ks+2 < 28: rq(ks+2, QS[(ks+2) % 3], ('f', ks+2))
            a.wait_lg(('f', ks))
            b = QS[ks % 3]
            cq = '0' if ks == 0 else f'v[{AQ}:{AQ+15}]'
            a(f'v_mfma_f32_32x32x16_bf16 v[{AQ}:{AQ+15}], v[{b}:{b+3}], a[{4*ks}:{4*ks+3}], {cq}')
        a.wait_lg0()
        Lsv = a.newlabel('Lsv')
        a(f's_cmp_lg_u32 {sL}, 0'); a(f's_cbranch_scc1 {Lsv}')
        g.wave_in(2, 4, lambda: a('s_waitcnt vmcnt(0)'))
        g.wave_in(0, 2, lambda: a('s_waitcnt vmcnt(16)'))
        a(f's_mul_i32 {sT0}, {sHALF}, 42'); a(f's_add_u32 {sT0}, {sT0}, {sW}'); a(f's_lshl_b32 {sT0}, {sT0}, 10')
        a(f'v_add_u32 v13, {sT0}, {vL16}')
        a(f's_mul_i32 {sT1}, {sHEAD}, {WQH}'); a(f's_add_u32 {sT1}, {sT1}, {sGB}'); a(f's_add_u32 {sT1}, {sT1}, {sT0}')
        if WQ: a(f's_add_u32 {sT1}, {sT1}, {WQ}')
        a(f's_mov_b32 s89, {sT1}')
        SV = lambda n: (128 + 4*n) if n < 4 else (176 + 4*(n-4)) if n < 8 else (216 + 4*(n-8)) if n < 10 else 232
        for n in range(11):
            a.ds(f'ds_read_b128 v[{SV(n)}:{SV(n)+3}], v13 offset:{n*4096}', 'sv')
        a.wait_lg0()
        a.label(Lsv)
        a('s_barrier')
        run_list(a, s.cs_read_items(112, 256, 'csq', 'v15'))
        a.wait_lg0()
        g.stamp('p1 q gemm')
        qpost = lambda: s.qk_list(AQ, 112, 10, VC, 144, 80, 96, 192, 160, 168, 152)
        def save_stores(nblk):
            Ls = a.newlabel('Lss')
            a(f's_cmp_lg_u32 {sL}, 0'); a(f's_cbranch_scc1 {Ls}')
            for n in range(nblk):
                a(f's_add_u32 {sT2}, s89, {n*4096}')
                a(f'buffer_store_dwordx4 v[{SV(n)}:{SV(n)+3}], {vL16}, {WS}, {sT2} offen sc1')
            a.label(Ls)
        s.save_stores_fn = save_stores
        Lq = a.newlabel('Lq23'); Lqe = a.newlabel('Lqe')
        a(f's_cmp_ge_u32 {sW}, 2'); a(f's_cbranch_scc1 {Lq}')
        a.vm = []
        run_list(a, qpost())
        a('s_waitcnt vmcnt(0)')
        a('v_mov_b32 v13, 1'); a('s_mov_b64 exec, 1')
        a(f'buffer_atomic_add v13, off, {WS}, {sKVC} sc1')
        a('s_mov_b64 exec, -1')
        save_stores(11)
        s.resid_loads(224, sXIN, track=False, raw_l0=True)
        s.dest_pretouch(sX1, sST1)
        if G.CPF: g.wave_only(1, lambda: g.code_prefetch('L_code_p2b', 'L_code_p4', v='v14'))
        g.stamp('p1 kv counted')
        g.poll(WS, None, sKVC, 32, vt='v13')
        g.stamp('kv hop done')
        a(f's_lshl_b32 {sT0}, {sW}, 12'); a(f's_add_u32 {sT0}, {sT0}, {sKV}')
        for gq in range(4):
            for r in range(4):
                a.vmem(f'buffer_load_dword v{64+4*gq+r}, {vKVO}, {WS}, {sT0} offen offset:{(8*gq+r)*128} sc1', ('kv', gq >> 1))
        for e in range(2):
            a.wait_vm(('kv', e))
            for i in range(4):
                a(f'v_cvt_pk_bf16_f32 v{96+4*e+i}, v{64+8*e+2*i}, v{64+8*e+2*i+1}')
        a(f's_lshl_b32 {sT0}, {sW}, 11'); a(f's_add_u32 {sT0}, {sT0}, {L_KVF}'); a(f'v_add_u32 v13, {sT0}, {vL16}')
        a('ds_write_b128 v13, v[96:99]'); a('ds_write_b128 v13, v[100:103] offset:1024')
        a('s_waitcnt lgkmcnt(0)')
        a(f's_branch {Lqe}')
        a.label(Lq)
        a.vm = []
        save_stores(10)
        a(f's_sub_u32 {sT0}, {sW}, 2')
        a(f's_lshl_b32 s86, {sCT}, 7'); a(f's_mul_i32 {sT1}, {sT0}, {8*896}'); a(f's_add_u32 s86, s86, {sT1}')
        a(f's_lshl_b32 s87, {sT0}, 10')
        a(f's_lshl_b32 s88, {sM}, 7'); a(f's_mul_i32 {sT1}, {sT0}, {8*3584}'); a(f's_add_u32 s88, s88, {sT1}')
        items = [s.dma_item(WO, vD896, 's86', 2*n*8*896, 's87', L_WO + 2*n*1024, 'W1') for n in range(28)]
        if not PFA: items += [s.dma_item(WG, vD3584, 's88', 2*n*8*3584, 's87', L_WG + 2*n*1024, 'W1') for n in range(20)]
        items += [s.dma_item(WU, vD3584, 's88', 2*n*8*3584, 's87', L_WU + 2*n*1024, 'W1', track=False) for n in range(28)]
        s.resid_loads(224, sXIN, track=False, raw_l0=True)
        s.dest_pretouch(sX1, sST1)
        run_list(a, qpost(), Side(items), 2)
        if PFA:
            Lwg = a.newlabel('Lwg')
            a(f's_cmp_lg_u32 {sL}, 0'); a(f's_cbranch_scc1 {Lwg}')
            for n in range(20):
                s.dma_item(WG, vD3584, 's88', 2*n*8*3584, 's87', L_WG + 2*n*1024, 'W1', track=False)()
            a.label(Lwg)
        a.label(Lqe)
        a.vm = []; a.lg = []
        a('s_barrier')
        g.stamp('kv frags ready')

    def p2a(s):
        a = s.a; g = s.g
        a.c('==== P2a')
        a(f'v_add_u32 v13, {L_KVF}, {vL16}')
        for k in range(4):
            a.ds(f'ds_read_b128 v[{96+4*k}:{99+4*k}], v13 offset:{k*1024}', ('kf', k))
        for k in range(4):
            a.wait_lg(('kf', k))
            c = '0' if k == 0 else 'v[16:31]'
            a(f'v_mfma_f32_32x32x16_bf16 v[16:31], v[{96+4*k}:{99+4*k}], v[{160+4*k}:{163+4*k}], {c}')
        a('v_mov_b32 v32, v28'); a('v_mov_b32 v33, v28')
        a('v_permlane32_swap_b32 v32, v33')
        a(f'v_add_f32 v33, {fbits(1e-6)}, v33')
        a('v_rcp_f32 v34, v33')
        for r in range(0, 16, 2):
            a(f'v_pk_mul_f32 v[{16+r}:{17+r}], v[{16+r}:{17+r}], v[34:35] op_sel_hi:[1,0]')
        for r in range(12, 16):
            a(f'v_cndmask_b32 v{16+r}, v{16+r}, 0, {sUP}')
        for i in range(8):
            a(f'v_cvt_pk_bf16_f32 v{40+i}, v{16+2*i}, v{16+2*i+1}')
        a(f'buffer_store_dwordx4 v[40:43], {vL16}, {WS}, s85 offen {STSC}')
        a(f'buffer_store_dwordx4 v[44:47], {vL16}, {WS}, s85 offen offset:1024 {STSC}')
        g.set_flag(s.fl(1))
        g.stamp('p2a done')

    def tile_coords(s):
        a = s.a
        a(f's_and_b32 {sT1}, {sW}, 1'); a(f's_lshl_b32 {sT2}, {sTQ}, 1'); a(f's_add_u32 {sT1}, {sT1}, {sT2}')
        a(f's_lshr_b32 {sT2}, {sW}, 1'); a(f's_lshl_b32 {sT3}, {sCT}, 1'); a(f's_add_u32 {sT2}, {sT2}, {sT3}')

    def resid_loads(s, dst, sX, track=True, raw_l0=False):
        a = s.a
        s.tile_coords()
        f = a.vmem if track else (lambda t, tag: a(t))
        Lr = Le = None
        if raw_l0:
            Lr = a.newlabel('Lrr'); Le = a.newlabel('Lre')
            a(f's_cmp_eq_u32 {sL}, 0'); a(f's_cbranch_scc1 {Lr}')
        a(f's_mul_i32 {sT4}, {sT1}, 28672'); a(f's_lshl_b32 {sT2}, {sT2}, 11'); a(f's_add_u32 {sT4}, {sT4}, {sT2}')
        a(f's_add_u32 {sT4}, {sT4}, {sX}')
        f(f'buffer_load_dwordx4 v[{dst}:{dst+3}], {vL16}, {WS}, {sT4} offen {LDSC}', 'res')
        f(f'buffer_load_dwordx4 v[{dst+4}:{dst+7}], {vL16}, {WS}, {sT4} offen offset:1024 {LDSC}', 'res')
        if raw_l0:
            a(f's_branch {Le}')
            a.label(Lr)
            a(f's_lshl_b32 {sT4}, {sG}, 8'); a(f's_lshl_b32 {sT5}, {sT1}, 5'); a(f's_add_u32 {sT4}, {sT4}, {sT5}')
            a(f's_mul_i32 {sT4}, {sT4}, 896'); a(f's_lshl_b32 {sT5}, {sT2}, 6'); a(f's_add_u32 {sT4}, {sT4}, {sT5}')
            a(f'v_and_b32 v13, 31, {vLANE}'); a('v_mul_u32_u24 v13, 896, v13')
            a(f'v_lshrrev_b32 v14, 5, {vLANE}'); a('v_lshl_add_u32 v13, v14, 3, v13')
            for gq in range(4):
                a(f'buffer_load_dwordx2 v[{dst+2*gq}:{dst+2*gq+1}], v13, {AX}, {sT4} offen offset:{16*gq}')
            a.label(Le)

    def dest_pretouch(s, sXdst, sSTdst):
        if not PRET: return
        a = s.a
        s.tile_coords()
        a(f's_mul_i32 {sT4}, {sT1}, 28672'); a(f's_lshl_b32 {sT5}, {sT2}, 11'); a(f's_add_u32 {sT4}, {sT4}, {sT5}')
        a(f's_add_u32 {sT4}, {sT4}, {sXdst}')
        s.pretouch(sT4, 16)
        a(f's_mul_i32 {sT4}, {sT1}, 14'); a(f's_add_u32 {sT4}, {sT4}, {sT2}'); a(f's_lshl_b32 {sT4}, {sT4}, 8')
        a(f's_add_u32 {sT4}, {sT4}, {sSTdst}')
        s.pretouch(sT4, 2)

    def red_write(s, ACC, RED, parts=(1, 2, 3), side=None):
        a = s.a
        n = len(parts)
        for k, (slot, x) in enumerate(parts):
            a(f's_xor_b32 {sT0}, {sW}, {x}'); a(f's_mul_i32 {sT0}, {sT0}, {n}'); a(f's_add_u32 {sT0}, {sT0}, {k}')
            a(f's_lshl_b32 {sT0}, {sT0}, 12'); a(f's_add_u32 {sT0}, {sT0}, {RED}')
            a(f'v_add_u32 v{11+k}, {sT0}, {vL16}')
        for k, (slot, x) in enumerate(parts):
            for q in range(4):
                R = ACC + 16*slot + 4*q
                a.ds(f'ds_write_b128 v{11+k}, v[{R}:{R+3}] offset:{q*1024}', 'rw')
                if side is not None and q % 2 == 1: side.emit(a)
        a(f's_mul_i32 {sT0}, {sW}, {n*4096}'); a(f's_add_u32 {sT0}, {sT0}, {RED}')
        a(f'v_add_u32 v10, {sT0}, {vL16}')
        a.wait_lg0()
        a('s_barrier')

    def red_list(s, ACC, resid, n=3):
        a = s.a
        T = ACC + 16
        L = []
        for k in range(n):
            for q in range(4):
                R = T + 16*k + 4*q
                L.append(lambda R=R, k=k, q=q: a.ds(f'ds_read_b128 v[{R}:{R+3}], v10 offset:{k*4096+q*1024}', ('rr', k)))
        U = ACC + 64
        for i in range(8):
            L += [f'v_lshlrev_b32 v{U+2*i}, 16, v{resid+i}', f'v_and_b32 v{U+2*i+1}, 0xffff0000, v{resid+i}']
        pr = lambda b, r: f'v[{b+r}:{b+r+1}]'
        for r in range(0, 16, 2):
            L.append(f'v_pk_add_f32 {pr(ACC,r)}, {pr(ACC,r)}, {pr(U,r)}')
        for k in range(n):
            L.append(lambda k=k: a.wait_lg(('rr', k)))
            for r in range(0, 16, 2):
                L.append(f'v_pk_add_f32 {pr(ACC,r)}, {pr(ACC,r)}, {pr(T+16*k,r)}')
        PK = ACC + 48 + 0
        for i in range(8):
            L.append(f'v_cvt_pk_bf16_f32 v{PK+i}, v{ACC+2*i}, v{ACC+2*i+1}')
        return L

    def store_x_list(s, ACC, sXdst, sSTdst):
        a = s.a
        PK = ACC + 48
        L = []
        def addr():
            s.tile_coords()
            a(f's_mul_i32 {sT4}, {sT1}, 28672'); a(f's_lshl_b32 {sT5}, {sT2}, 11'); a(f's_add_u32 {sT4}, {sT4}, {sT5}')
            a(f's_add_u32 {sT4}, {sT4}, {sXdst}')
            a.vmem(f'buffer_store_dwordx4 v[{PK}:{PK+3}], {vL16}, {WS}, {sT4} offen {STSC}', 'xs')
            a.vmem(f'buffer_store_dwordx4 v[{PK+4}:{PK+7}], {vL16}, {WS}, {sT4} offen offset:1024 {STSC}', 'xs')
        L.append(addr)
        pr = lambda b, r: f'v[{b+r}:{b+r+1}]'
        L += [f'v_pk_add_f32 v[12:13], {pr(ACC,0)}, {pr(ACC,2)}', f'v_pk_mul_f32 v[14:15], {pr(ACC,0)}, {pr(ACC,0)}']
        L.append(f'v_pk_fma_f32 v[14:15], {pr(ACC,2)}, {pr(ACC,2)}, v[14:15]')
        for r in range(4, 16, 2):
            L += [f'v_pk_add_f32 v[12:13], v[12:13], {pr(ACC,r)}', f'v_pk_fma_f32 v[14:15], {pr(ACC,r)}, {pr(ACC,r)}, v[14:15]']
        L += ['v_add_f32 v12, v12, v13', 'v_add_f32 v14, v14, v15', 'v_mov_b32 v13, v12', 'v_mov_b32 v15, v14',
              'v_permlane32_swap_b32 v12, v13', 'v_permlane32_swap_b32 v14, v15',
              'v_add_f32 v12, v12, v13', 'v_add_f32 v13, v14, v15', f'v_lshlrev_b32 v11, 3, {vLANE}']
        def st():
            a(f's_mul_i32 {sT4}, {sT1}, 14'); a(f's_add_u32 {sT4}, {sT4}, {sT2}'); a(f's_lshl_b32 {sT4}, {sT4}, 8')
            a(f's_add_u32 {sT4}, {sT4}, {sSTdst}')
            a('s_mov_b64 exec, 0xffffffff')
            a.vmem(f'buffer_store_dwordx2 v[12:13], v11, {WS}, {sT4} offen {STSC}', 'xs')
            a('s_mov_b64 exec, -1')
        L.append(st)
        return L

    def store_out_list(s, ACC):
        a = s.a
        PK = ACC + 48
        L = []
        for e in range(2):
            L += [f'v_permlane32_swap_b32 v{PK+4*e}, v{PK+4*e+2}', f'v_permlane32_swap_b32 v{PK+4*e+1}, v{PK+4*e+3}']
        def st():
            s.tile_coords()
            a(f's_lshl_b32 {sT4}, {sG}, 8'); a(f's_lshl_b32 {sT5}, {sT1}, 5'); a(f's_add_u32 {sT4}, {sT4}, {sT5}')
            a(f's_mul_i32 {sT4}, {sT4}, 896'); a(f's_lshl_b32 {sT5}, {sT2}, 6'); a(f's_add_u32 {sT4}, {sT4}, {sT5}')
            a(f'v_and_b32 v12, 31, {vLANE}'); a('v_mul_u32_u24 v12, 896, v12')
            a(f'v_lshrrev_b32 v13, 5, {vLANE}'); a('v_lshl_add_u32 v12, v13, 4, v12')
            a(f'buffer_store_dwordx4 v[{PK}:{PK+3}], v12, {OUT}, {sT4} offen {OUTSC}')
            a(f'buffer_store_dwordx4 v[{PK+4}:{PK+7}], v12, {OUT}, {sT4} offen offset:32 {OUTSC}')
        L.append(st)
        return L

    def tile_addrs(s, sbase):
        a = s.a
        a(f's_lshr_b32 {sT0}, {sW}, 1'); a(f's_lshl_b32 {sT0}, {sT0}, 6')
        a(f'v_xor_b32 v14, {sT0}, {vTR0}')
        a(f'v_add_u32 v14, {sbase}, v14')
        a('v_xor_b32 v15, 64, v14')

    def p2b(s):
        a = s.a; g = s.g
        a.c('==== P2b')
        a.rawlabel('L_code_p2b')
        a(f's_lshr_b32 {sT5}, {sW}, 1'); a(f's_mul_i32 {sT5}, {sT5}, 28672'); a(f's_add_u32 {sT5}, {sT5}, {L_WO}')
        s.tile_addrs(sT5)
        a(f'v_lshrrev_b32 v12, 5, {vLANE}'); a('v_lshlrev_b32 v12, 9, v12')
        a('v_sub_u32 v13, v15, v12'); a('v_sub_u32 v12, v14, v12')
        a(f's_lshr_b32 {sT0}, {sTQ}, 1'); a(f's_lshl_b32 {sT0}, {sT0}, 4'); a(f's_lshl_b32 s81, 0xffff, {sT0}')
        a(f's_and_b32 {sT0}, {sW}, 1'); a(f's_lshl_b32 {sT1}, {sTQ}, 1')
        a(f's_add_u32 {sT0}, {sT0}, {sT1}'); a(f's_lshl_b32 {sT0}, {sT0}, 15'); a(f's_add_u32 {sT0}, {sT0}, {sO}')
        a(f's_lshr_b32 {sT1}, {sW}, 1'); a(f's_lshl_b32 {sT1}, {sT1}, 14'); a(f's_add_u32 s82, {sT0}, {sT1}')
        g.wait_flags(s.fl(1), 's81', vt='v10', va='v11')
        a.vm = []
        g.stamp('p2b hop done')
        def oload(i):
            if i % 4 == 0: a(f's_add_u32 s84, s82, {(i//4)*4096}')
            a.vmem(f'buffer_load_dwordx4 a[{4*i}:{4*i+3}], {vL16}, {WS}, s84 offen offset:{(i%4)*1024} {LDSC}', ('o', i))
        ACC = 16; FS = (80, 88, 104)
        def rd(i, reg, tag):
            off = (28*(i >> 1) + 16*(i & 1))*128
            for sl in range(2):
                va = ('v14', 'v15')[sl]
                vb = ('v12', 'v13')[sl] if (i & 1) else va
                a.ds(f'ds_read_b64_tr_b16 v[{reg+4*sl}:{reg+4*sl+1}], {va} offset:{off}', tag)
                a.ds(f'ds_read_b64_tr_b16 v[{reg+4*sl+2}:{reg+4*sl+3}], {vb} offset:{off+8*128}', tag)
        OD = 6
        for i in range(OD): oload(i)
        rd(0, FS[0], ('f', 0)); rd(1, FS[1], ('f', 1))
        for i in range(16):
            if i+2 < 16: rd(i+2, FS[(i+2) % 3], ('f', i+2))
            a.wait_lg(('f', i))
            a.wait_vm(('o', i))
            b0 = FS[i % 3]
            for sa in range(2):
                R = ACC + 16*sa
                c = '0' if i == 0 else f'v[{R}:{R+15}]'
                a(f'v_mfma_f32_32x32x16_bf16 v[{R}:{R+15}], v[{b0+4*sa}:{b0+4*sa+3}], a[{4*i}:{4*i+3}], {c}')
                if sa == 0 and i + OD < 16: oload(i + OD)
        g.stamp('p2b gemm')
        a('s_barrier')
        s.red_write(ACC, RED2, parts=((1, 2),))
        run_list(a, s.red_list(ACC, 224, n=1) + s.store_x_list(ACC, sX1, sST1))
        g.set_flag(s.fl(2))
        if G.CPF: g.wave_only(1, lambda: g.code_prefetch('L_code_p4', 'L_code_end', v='v14'))
        def late():
            a(f's_sub_u32 {sT0}, {sW}, 1')
            a(f's_lshl_b32 s90, {sM}, 7'); a(f's_mul_i32 s91, {sT0}, {8*3584}'); a(f's_add_u32 s90, s90, s91')
            a(f's_lshl_b32 s91, {sT0}, 10')
            for n in range(6):
                if n == 5:
                    Lx = a.newlabel('Lx'); a(f's_cmp_lg_u32 {sW}, 1'); a(f's_cbranch_scc1 {Lx}')
                s.dma_item(WG, vD3584, 's90', (40+3*n)*8*3584, 's91', L_WG + (40+3*n)*1024, 'late')()
                if n == 5: a.label(Lx)
        g.wave_in(1, 4, late)
        a.vm = []
        g.stamp('p2b done')

    def gelu_list(s, G, U, csg, csu, NM, RS, T, PK, packed):
        L = []
        pr = lambda b, r: f'v[{b+r}:{b+r+1}]'
        if packed:
            nm = int(NM[1:]); nmp = f'v[{nm & ~1}:{(nm & ~1)+1}]'; ns = nm & 1
            rs = int(RS[1:]); rsp = f'v[{rs & ~1}:{(rs & ~1)+1}]'; rss = rs & 1
            for r in range(0, 16, 2): L.append(f'v_pk_fma_f32 {pr(G,r)}, {pr(csg,r)}, {nmp}, {pr(G,r)} op_sel:[0,{ns},0] op_sel_hi:[1,{ns},1]')
            for r in range(0, 16, 2): L.append(f'v_pk_fma_f32 {pr(U,r)}, {pr(csu,r)}, {nmp}, {pr(U,r)} op_sel:[0,{ns},0] op_sel_hi:[1,{ns},1]')
            for r in range(0, 16, 2): L.append(f'v_pk_mul_f32 {pr(G,r)}, {pr(G,r)}, {rsp} op_sel:[0,{rss}] op_sel_hi:[1,{rss}]')
            for r in range(0, 16, 2): L.append(f'v_pk_mul_f32 {pr(T,r)}, {pr(G,r)}, {pr(G,r)}')
            for r in range(0, 16, 2): L.append(f'v_pk_fma_f32 {pr(T,r)}, {pr(T,r)}, v[236:237], v[236:237] op_sel:[0,0,1] op_sel_hi:[1,0,1]')
            for r in range(0, 16, 2): L.append(f'v_pk_mul_f32 {pr(T,r)}, {pr(T,r)}, {pr(G,r)}')
            for r in range(16): L.append(f'v_exp_f32 v{T+r}, v{T+r}')
            for r in range(0, 16, 2): L.append(f'v_pk_mul_f32 {pr(U,r)}, {pr(U,r)}, {pr(G,r)}')
            for r in range(0, 16, 2): L.append(f'v_pk_add_f32 {pr(T,r)}, {pr(T,r)}, v[238:239] op_sel_hi:[1,0]')
            for r in range(16): L.append(f'v_rcp_f32 v{T+r}, v{T+r}')
            for r in range(0, 16, 2): L.append(f'v_pk_mul_f32 {pr(U,r)}, {pr(U,r)}, {rsp} op_sel:[0,{rss}] op_sel_hi:[1,{rss}]')
            for r in range(0, 16, 2): L.append(f'v_pk_mul_f32 {pr(U,r)}, {pr(U,r)}, {pr(T,r)}')
        else:
            for r in range(16): L.append(f'v_fmac_f32 v{G+r}, {NM}, v{csg+r}')
            for r in range(16): L.append(f'v_fmac_f32 v{U+r}, {NM}, v{csu+r}')
            for r in range(16): L.append(f'v_mul_f32 v{G+r}, {RS}, v{G+r}')
            for r in range(16): L.append(f'v_mul_f32 v{T+r}, v{G+r}, v{G+r}')
            for r in range(16): L.append(f'v_fma_f32 v{T+r}, v{T+r}, v236, v237')
            for r in range(16): L.append(f'v_mul_f32 v{T+r}, v{T+r}, v{G+r}')
            for r in range(16):
                L += [f'v_exp_f32 v{T+r}, v{T+r}', f'v_mul_f32 v{U+r}, v{U+r}, v{G+r}']
            for r in range(16): L.append(f'v_add_f32 v{T+r}, 1.0, v{T+r}')
            for r in range(16):
                L += [f'v_rcp_f32 v{T+r}, v{T+r}', f'v_mul_f32 v{U+r}, {RS}, v{U+r}']
            for r in range(16): L.append(f'v_mul_f32 v{U+r}, v{U+r}, v{T+r}')
        for i in range(8):
            L.append(f'v_cvt_pk_bf16_f32 v{PK+i}, v{U+2*i}, v{U+2*i+1}')
        return L

    def p3(s):
        a = s.a; g = s.g
        a.c('==== P3')
        a(f'v_add_u32 v12, {L_WU}, {vTR0}'); a(f'v_add_u32 v13, {L_WU}, {vTR1}')
        for b in range(2):
            a(f's_lshl_b32 {sT0}, {sW}, 1'); a(f's_add_u32 {sT0}, {sT0}, {b}')
            a(f's_mul_i32 s{82+b}, {sT0}, 28672'); a(f's_add_u32 s{82+b}, s{82+b}, {sX1}')
            a(f's_mul_i32 s{86+b}, {sT0}, 3584'); a(f's_add_u32 s{86+b}, s{86+b}, {sST1}')
            a(f's_mul_i32 s{88+b}, {sT0}, 114688'); a(f's_add_u32 s{88+b}, s{88+b}, {sH}')
            a(f's_lshl_b32 {sT1}, {sM}, 12'); a(f's_add_u32 s{88+b}, s{88+b}, {sT1}')
        a(f'v_mov_b32 v236, {fbits(C1)}'); a(f'v_mov_b32 v237, {fbits(C0)}'); a('v_mov_b32 v238, 1.0')
        g.wait_flags(s.fl(2), 0x0fffffff, vt='v10', va='v11', keep_vm=True)
        g.stamp('p3 hop done')
        def xload(ks, b):
            a(f's_add_u32 {sT6}, s{82+b}, {(ks//4)*4096}')
            a.vmem(f'buffer_load_dwordx4 a[{8*ks+4*b}:{8*ks+4*b+3}], {vL16}, {WS}, {sT6} offen offset:{(ks%4)*1024} {LDSC}', ('x', ks, b))
        XD = 4
        for ks in range(XD):
            xload(ks, 0); xload(ks, 1)
        GU = (((16, 32), (48, 64)), ((80, 96), (112, 128)))
        FS = (144, 152, 160)
        NM = ('v10', 'v11'); RS = ('v14', 'v15')
        STR = (168, 184); CSG = 168; CSU = 184; T = 200; PK = 216
        misc = Side(s.stats_load_items(STR[0], 's86', 'st') + s.stats_load_items(STR[1], 's87', 'st'))
        def unit(c, side, per_beat):
            vg = vTR0 if c == 0 else vTR1
            vu = 'v12' if c == 0 else 'v13'
            def rdg(ks):
                reg = FS[ks % 3]
                a.ds(f'ds_read_b64_tr_b16 v[{reg}:{reg+1}], {vg} offset:{L_WG+(16*ks)*128}', ('fg', ks))
                a.ds(f'ds_read_b64_tr_b16 v[{reg+2}:{reg+3}], {vg} offset:{L_WG+(16*ks+8)*128}', ('fg', ks))
            def rdu(ks):
                reg = FS[ks % 3] + 4
                a.ds(f'ds_read_b64_tr_b16 v[{reg}:{reg+1}], {vu} offset:{(16*ks)*128}', ('fu', ks))
                a.ds(f'ds_read_b64_tr_b16 v[{reg+2}:{reg+3}], {vu} offset:{(16*ks+8)*128}', ('fu', ks))
            (G_, U_) = GU[c]
            rdg(0); rdu(0); rdg(1); rdu(1)
            for ks in range(28):
                b0 = FS[ks % 3]
                if c == 0 and ks == 18:
                    a('s_barrier')
                for j, (acc, fo, b) in enumerate(((G_[0], 0, 0), (G_[1], 0, 1), (U_[0], 4, 0), (U_[1], 4, 1))):
                    if c == 0 and j < 2: a.wait_vm(('x', ks, b))
                    if j == 0: a.wait_lg(('fg', ks))
                    if j == 2: a.wait_lg(('fu', ks))
                    cc = '0' if ks == 0 else f'v[{acc}:{acc+15}]'
                    a(f'v_mfma_f32_32x32x16_bf16 v[{acc}:{acc+15}], v[{b0+fo}:{b0+fo+3}], a[{8*ks+4*b}:{8*ks+4*b+3}], {cc}')
                    if j == 0 and ks+2 < 28: rdg(ks+2)
                    if j == 2 and ks+2 < 28: rdu(ks+2)
                    if c == 0:
                        if j in (0, 2) and ks + XD < 28: xload(ks+XD, j >> 1)
                        if j == 3 and ks >= 8: side.emit(a)
                    else:
                        side.emit(a, per_beat[(4*ks+j) % len(per_beat)])
            side.flush(a)
        unit(0, misc, None)
        vm_st = None
        s.resid_loads(224, sX1)
        if not IDLEP:
            if not HSC:
                s.pretouch('s88', 32); s.pretouch('s89', 32)
            s.dest_pretouch(sXO, sSTO)
        g.stamp('p3 gemm 0')
        Lcs = a.newlabel('Lcs')
        a(f's_cmp_lg_u32 {sL}, 0'); a(f's_cbranch_scc1 {Lcs}')
        a(f's_and_b32 {sT0}, {sW}, 1'); a(f's_lshl_b32 {sT0}, {sT0}, 6'); a(f'v_xor_b32 v11, {sT0}, {vTR0}')
        a(f's_lshr_b32 {sT0}, {sW}, 1'); a(f's_mul_i32 {sT0}, {sT0}, {L_WU}'); a(f'v_add_u32 v11, {sT0}, v11')
        def f(ks, reg, tag):
            a.ds(f'ds_read_b64_tr_b16 v[{reg}:{reg+1}], v11 offset:{(16*ks)*128}', tag)
            a.ds(f'ds_read_b64_tr_b16 v[{reg+2}:{reg+3}], v11 offset:{(16*ks+8)*128}', tag)
        a(f's_lshl_b32 {sT1}, {sW}, 7'); a(f's_add_u32 {sT1}, {sT1}, {M_CSFF}')
        s.colsum(f, 28, 80, sT1)
        a('s_barrier')
        a.label(Lcs)
        a.wait_vm('st')
        run_list(a, s.stats_list(STR[0], NM[0], RS[0], 'v234', 'v235') + s.stats_list(STR[1], NM[1], RS[1], 'v234', 'v235'))
        a(f'v_add_u32 v232, {M_CSFF}, {vCS}')
        def epi(c, packed):
            L = []
            L += s.cs_read_items(CSG, 128*c, 'cs', 'v232') + s.cs_read_items(CSU, 256+128*c, 'cs', 'v232')
            L.append(lambda: a.wait_lg('cs'))
            for b in range(2):
                L += s.gelu_list(GU[c][0][b], GU[c][1][b], CSG, CSU, NM[b], RS[b], T, PK, packed)
                def st(b=b):
                    a.vmem(f'buffer_store_dwordx4 v[{PK}:{PK+3}], {vL16}, {WS}, s{88+b} offen offset:{2*c*1024} {HSC or STSC}', 'hs')
                    a.vmem(f'buffer_store_dwordx4 v[{PK+4}:{PK+7}], {vL16}, {WS}, s{88+b} offen offset:{(2*c+1)*1024} {HSC or STSC}', 'hs')
                L.append(st)
            return L
        g.stamp('p3 stats')
        e0 = epi(0, False)
        n0 = len(e0)
        base = n0 // 112; extra = n0 - base*112
        per = [base + (1 if (i*extra)//112 != ((i+1)*extra)//112 else 0) for i in range(112)]
        unit(1, Side(e0), per)
        g.stamp('p3 gemm 1')
        a('s_barrier')
        a(f's_mul_i32 s90, {sW}, {448*896}'); a(f's_lshl_b32 {sT1}, {sCT}, 7'); a(f's_add_u32 s90, s90, {sT1}')
        a(f's_mul_i32 s91, {sW}, {RING}')
        wd = lambda i: s.dma_item(WD, vD896, 's90', i*8*896, 's91', (i % NSLOT)*1024, ('W', i))
        NA = 20
        e1 = epi(1, True)
        run_list(a, e1, Side([wd(i) for i in range(NA)]), max(1, len(e1)//(NA+2)))
        g.stamp('p3 epi 1')
        g.set_flag(s.fl(3))
        for i in range(NA, NSLOT): wd(i)()
        g.stamp('p3 done')

    def p4(s):
        a = s.a; g = s.g
        a.c('==== P4')
        a.rawlabel('L_code_p4')
        a(f's_mov_b32 {sT5}, s91')
        s.tile_addrs(sT5)
        for b in range(2):
            a(f's_and_b32 {sT0}, {sW}, 1'); a(f's_xor_b32 {sT0}, {sT0}, {b}'); a(f's_lshl_b32 {sT1}, {sTQ}, 1')
            a(f's_add_u32 {sT0}, {sT0}, {sT1}'); a(f's_mul_i32 {sT0}, {sT0}, 114688'); a(f's_add_u32 {sT0}, {sT0}, {sH}')
            a(f's_mul_i32 {sT1}, {sW}, {28*1024}'); a(f's_add_u32 s{82+b}, {sT0}, {sT1}')
        g.wait_flags(s.fl(3), 0x0fffffff, vt='v10', va='v11', keep_vm=True)
        g.stamp('p4 hop done')
        wd = lambda i: s.dma_item(WD, vD896, 's90', i*8*896, 's91', (i % NSLOT)*1024, ('W', i))
        def hload(ks, b):
            a(f's_add_u32 {sT6}, s{82+b}, {(ks//4)*4096}')
            a.vmem(f'buffer_load_dwordx4 a[{8*ks+4*b}:{8*ks+4*b+3}], {vL16}, {WS}, {sT6} offen offset:{(ks%4)*1024} {LDSC}', ('h', ks, b))
        HD = 4
        for ks in range(HD):
            hload(ks, 0); hload(ks, 1)
        ACC = 16; FS = (80, 88, 104)
        def rd(ks):
            reg = FS[ks % 3]
            off = ((2*ks) % NSLOT)*1024
            a.wait_vm(('W', 2*ks+1))
            for sl in range(2):
                va = 'v14' if sl == 0 else 'v15'
                a.ds(f'ds_read_b64_tr_b16 v[{reg+4*sl}:{reg+4*sl+1}], {va} offset:{off}', ('f', ks, sl))
                a.ds(f'ds_read_b64_tr_b16 v[{reg+4*sl+2}:{reg+4*sl+3}], {va} offset:{off+1024}', ('f', ks, sl))
        rd(0); rd(1)
        for ks in range(28):
            b0 = FS[ks % 3]
            for j, (sa, sb) in enumerate(((0, 0), (0, 1), (1, 0), (1, 1))):
                if j < 2: a.wait_vm(('h', ks, sb))
                if j in (0, 2): a.wait_lg(('f', ks, sa))
                R = ACC + 16*(2*sa+sb)
                c = '0' if ks == 0 else f'v[{R}:{R+15}]'
                a(f'v_mfma_f32_32x32x16_bf16 v[{R}:{R+15}], v[{b0+4*sa}:{b0+4*sa+3}], a[{8*ks+4*sb}:{8*ks+4*sb+3}], {c}')
                if j == 0 and ks+2 < 28: rd(ks+2)
                if j in (0, 2) and ks + HD < 28: hload(ks+HD, j >> 1)
                if j in (1, 3) and ks >= 1 and 2*(ks-1) + NSLOT < 56: wd(2*(ks-1) + NSLOT + (j >> 1))()
        g.stamp('p4 gemm')
        a('s_barrier')
        P3W = ((1, 1), (2, 2), (3, 3))
        Lf = a.newlabel('Lfin'); Le = a.newlabel('Lp4e')
        a(f's_cmp_lg_u32 {sL}, 0'); a(f's_cbranch_scc1 {Lf}')
        side = Side(s.wq_items())
        s.red_write(ACC, RED4, parts=P3W, side=side)
        Lr = s.red_list(ACC, 224)
        n_in = 8
        part = Side([side.q.popleft() for _ in range(n_in)])
        run_list(a, Lr, part, max(1, len(Lr)//(n_in+1)))
        run_list(a, s.store_x_list(ACC, sXO, sSTO))
        g.set_flag(s.fl(4))
        side.flush(a)
        a(f's_branch {Le}')
        a.label(Lf)
        a.vm = []; a.lg = []
        s.red_write(ACC, RED4, parts=P3W)
        run_list(a, s.red_list(ACC, 224) + s.store_out_list(ACC))
        a('s_branch L_fin')
        a.label(Le)
        g.stamp('p4 epi')

    def run(s):
        a = s.a; g = s.g; stop = s.stop
        a.label('L_layer')
        s.layer_setup()
        s.p1()
        s.p2a()
        a(f's_cmp_ge_u32 {sM}, 28'); a('s_cbranch_scc1 L_idle')
        s.p2b()
        s.p3()
        s.p4()
        a('s_branch L_next')
        a.label('L_idle')
        a.vm = []; a.lg = []
        a(f's_sub_u32 {sT0}, {sM}, 28'); a(f's_lshl_b32 {sT0}, {sT0}, 2'); a(f's_add_u32 s86, {sT0}, {sW}')
        if IDLEP and PRET:
            if not HSC:
                a(f's_mul_i32 s87, s86, {448*128}'); a(f's_add_u32 s87, s87, {sH}')
                for i in range(7):
                    a(f's_add_u32 {sT1}, s87, {i*64*128}')
                    a(f'buffer_load_dword {vDUM}, {vL128}, {WS}, {sT1} offen')
        if IDLEW:
            a(f's_mul_i32 s87, s86, {784*128}')
            for i in range(13):
                a(f's_add_u32 {sT1}, s87, {i*64*128}')
                a(f'buffer_load_dword {vDUM}, {vL128}, {WD}, {sT1} offen')
        Li0 = a.newlabel('Lidle0')
        a(f's_cmp_eq_u32 {sL}, 0'); a(f's_cbranch_scc1 {Li0}')
        if WBL:
            g.wait_flags(s.fl(3), 0x0fffffff, vt='v10', va='v11', drain=True)
            def wb():
                Lx = a.newlabel('Lx'); a(f's_cmp_lg_u32 {sM}, 28'); a(f's_cbranch_scc1 {Lx}')
                a('buffer_wbl2 sc1'); a('s_waitcnt vmcnt(0)')
                a.label(Lx)
            g.wave_only(0, wb)
        a('s_branch L_fin')
        a.label(Li0)
        if IDLEP and PRET:
            a(f's_mul_i32 s87, s86, {112*128}'); a(f's_add_u32 s87, s87, {sXO}')
            for i in range(2):
                a(f's_add_u32 {sT1}, s87, {i*64*128}')
                if i == 1: a('s_mov_b32 exec_hi, 0xffff')
                a(f'buffer_load_dword {vDUM}, {vL128}, {WS}, {sT1} offen')
                if i == 1: a('s_mov_b64 exec, -1')
            a(f's_mul_i32 s87, s86, {14*128}'); a(f's_add_u32 s87, s87, {sSTO}')
            a('s_mov_b64 exec, 0x3fff')
            a(f'buffer_load_dword {vDUM}, {vL128}, {WS}, s87 offen')
            a('s_mov_b64 exec, -1')
        g.wait_flags(s.fl(2), 0x0fffffff, vt='v10', va='v11', drain=True)
        for it in s.wq_items(): it()
        if IDLEW:
            g.wait_flags(s.fl(3), 0x0fffffff, vt='v10', va='v11', drain=True)
            a(f's_mul_i32 s87, s86, {672*128}'); a(f's_add_u32 s87, s87, {sGB}')
            if WQ: a(f's_add_u32 s87, s87, {WQ}')
            for i in range(11):
                a(f's_add_u32 {sT1}, s87, {i*64*128}')
                a(f'buffer_load_dword {vDUM}, {vL128}, {WS}, {sT1} offen')
        a.label('L_next')
        a.vm = []; a.lg = []
        a(f's_mul_i32 {sT0}, {sHALF}, 14'); a(f's_lshl_b32 s81, 0x3fff, {sT0}')
        g.wait_flags(s.fl(4), 's81', vt='v10', va='v11', drain=True)
        g.stamp('p4 hop(x2)')
        a(f's_mov_b32 {sL}, 1')
        a('s_branch L_layer')
```

```python
from gen import *
import gen as G
import math, os
from collections import deque

C0 = -2.0*LOG2E*math.sqrt(2.0/math.pi)
C1 = C0*0.044715
PRET = int(os.environ.get('PRET', '0'))
IDLEW = int(os.environ.get('IDLEW', '0'))
BUD_A = int(os.environ.get('BUD_A', '4')); BUD_B = int(os.environ.get('BUD_B', '4'))
MAINW = int(os.environ.get('MAINW', '1'))
IDLEQ = int(os.environ.get('IDLEQ', '1'))
LATEU = int(os.environ.get('LATEU', '1'))
WBL = int(os.environ.get('WBL', '0'))
OUTSC = os.environ.get('OUTSC', '')
SAVE_LATE = int(os.environ.get('SAVE_LATE', '1'))
IDLEP = int(os.environ.get('IDLEP', '1'))
PFA = int(os.environ.get('PFA', '1'))
HSC = os.environ.get('HSC', '')
LDSC = os.environ.get('LDSC', 'sc1')

L_WG = 0; L_WU = 104448; L_WO = 45056; WOW = 14336; L_KVF = 40960
RED2 = 45056
RED4 = 86016
RING = 36864; NSLOT = 36
vPHIW='v240'; vVIW='v241'; vPA0='v242'; vPA1='v243'; vVB0='v244'; vVB1='v245'; vKVO='v246'; vL128='v247'; vKVR='v248'; vKVW='v249'
vDUM='v255'

class Side:
    def __init__(s, items=()): s.q = deque(items)
    def emit(s, a, n=1):
        for _ in range(n):
            if not s.q: return
            it = s.q.popleft()
            if callable(it): it()
            else: a(it)
    def flush(s, a): s.emit(a, len(s.q))
    @staticmethod
    def cost(it):
        if callable(it): return getattr(it, 'cost', 1)
        op = it.split()[0]
        return 2 if op in ('v_exp_f32', 'v_rcp_f32', 'v_rsq_f32', 'v_log_f32') else 1
    def emit_budget(s, a, budget):
        b = budget + getattr(s, 'carry', 0)
        while s.q and Side.cost(s.q[0]) <= b:
            b -= Side.cost(s.q[0]); s.emit(a)
        s.carry = min(b, 2)
    def __len__(s): return len(s.q)

def run_list(a, L, side=None, every=0):
    cnt = 0
    for it in L:
        if callable(it): it()
        else: a(it)
        cnt += 1
        if side is not None and every and cnt % every == 0: side.emit(a)
    if side is not None: side.flush(a)

class Phases:
    def __init__(s, g):
        s.g = g; s.a = g.a
        s.stop = g.stop_after

    def persistent_addrs(s):
        a = s.a
        a(f'v_and_b32 v13, 31, {vLANE}'); a(f's_lshl_b32 {sT0}, {sW}, 5'); a(f'v_add_u32 v14, {sT0}, v13')
        a(f'v_lshrrev_b32 v20, 5, {vLANE}')
        a('v_bfe_u32 v21, v13, 1, 1'); a('v_lshlrev_b32 v21, 3, v21')
        a('v_bfe_u32 v22, v13, 3, 1'); a('v_lshl_or_b32 v21, v22, 2, v21')
        a('v_bfe_u32 v22, v13, 2, 1'); a('v_lshl_or_b32 v21, v22, 1, v21')
        a('v_and_b32 v22, 1, v13'); a('v_or_b32 v21, v21, v22')
        a('v_xor_b32 v21, v21, v20')
        a('v_lshlrev_b32 v21, 3, v21'); a('v_lshl_add_u32 v21, v14, 7, v21')
        a(f'v_add_u32 {vPHIW}, {L_PHI}, v21')
        a('v_bfe_u32 v21, v14, 1, 3'); a('v_xor_b32 v21, v21, v20'); a('v_lshlrev_b32 v21, 3, v21')
        a('v_lshl_add_u32 v21, v14, 6, v21'); a(f'v_add_u32 {vVIW}, {L_VI}, v21')
        a(f'v_and_b32 v13, 15, {vLANE}'); a('v_lshrrev_b32 v14, 2, v13')
        a('v_and_b32 v22, 3, v13'); a(f'v_bfe_u32 v23, {vLANE}, 4, 1')
        a('v_lshl_add_u32 v24, v23, 2, v22')
        a('v_lshl_add_u32 v25, v20, 2, v14')
        a('v_lshrrev_b32 v26, 1, v14'); a('v_lshlrev_b32 v26, 3, v26')
        a('v_lshl_or_b32 v26, v20, 1, v26'); a('v_and_b32 v27, 1, v14'); a('v_or_b32 v26, v26, v27')
        a(f's_and_b32 {sT0}, {sW}, 1'); a(f's_lshl_b32 {sT0}, {sT0}, 3'); a(f'v_add_u32 v27, {sT0}, v24')
        a('v_xor_b32 v27, v27, v26')
        a('v_lshlrev_b32 v27, 3, v27'); a('v_lshl_add_u32 v27, v25, 7, v27')
        a(f'v_add_u32 {vPA0}, {L_PHI}, v27')
        a(f'v_xor_b32 v27, 32, {vPA0}'); a(f'v_add_u32 {vPA1}, {8*128}, v27')
        a('v_lshrrev_b32 v26, 1, v14'); a('v_lshl_or_b32 v26, v20, 1, v26')
        a('v_xor_b32 v26, v26, v24'); a('v_lshlrev_b32 v26, 3, v26')
        a('v_lshl_add_u32 v26, v25, 6, v26'); a(f'v_add_u32 {vVB0}, {L_VI}, v26')
        a(f'v_xor_b32 v27, 32, {vVB0}'); a(f'v_add_u32 {vVB1}, {8*64}, v27')
        a(f'v_and_b32 v13, 31, {vLANE}'); a('v_lshlrev_b32 v13, 2, v13'); a(f'v_lshl_add_u32 {vKVO}, v20, 10, v13')
        a(f'v_lshrrev_b32 v13, 3, {vLANE}'); a(f'v_and_b32 v14, 7, {vLANE}')
        a('v_lshlrev_b32 v21, 8, v13'); a(f'v_lshl_add_u32 {vKVR}, v14, 4, v21')
        a('v_and_b32 v21, 1, v14'); a('v_lshl_add_u32 v21, v21, 5, v13'); a('v_lshlrev_b32 v21, 4, v21')
        a('v_bfe_u32 v22, v14, 1, 1'); a('v_lshl_add_u32 v21, v22, 3, v21')
        a('v_lshrrev_b32 v22, 2, v14'); a('v_lshl_add_u32 v21, v22, 10, v21')
        a(f's_and_b32 {sT0}, {sW}, 1'); a(f's_lshl_b32 {sT0}, {sT0}, 11'); a(f's_add_u32 {sT0}, {sT0}, {L_KVF}')
        a(f'v_add_u32 {vKVW}, {sT0}, v21')
        a(f'v_lshlrev_b32 {vL128}, 7, {vLANE}')

    def pretouch(s, soff, nlines, tag='pt'):
        if not PRET: return
        a = s.a
        if nlines < 64: a(f's_mov_b64 exec, {hex((1 << nlines)-1)}')
        a.vmem(f'buffer_load_dword {vDUM}, {vL128}, {WS}, {soff} offen', tag)
        if nlines < 64: a('s_mov_b64 exec, -1')

    def stats_load_items(s, dst, sbase, tag):
        a = s.a
        return [(lambda i=i: a.vmem(f'buffer_load_dwordx2 v[{dst+2*i}:{dst+2*i+1}], {vSTA}, {WS}, {sbase} offen offset:{i*256} {LDSC}', tag)) for i in range(7)]

    def stats_list(s, src, vnmean, vrstd, t0, t1):
        S_, Q_ = f'v{src}', f'v{src+1}'
        L = []
        for i in range(1, 7):
            L += [f'v_add_f32 {S_}, {S_}, v{src+2*i}', f'v_add_f32 {Q_}, {Q_}, v{src+2*i+1}']
        L += [f'v_mov_b32 {t0}, {S_}', f'v_mov_b32 {t1}, {Q_}',
              f'v_permlane32_swap_b32 {S_}, {t0}', f'v_permlane32_swap_b32 {Q_}, {t1}',
              f'v_add_f32 {S_}, {S_}, {t0}', f'v_add_f32 {Q_}, {Q_}, {t1}',
              f'v_mul_f32 {vnmean}, {fbits(-1.0/448)}, {S_}', f'v_mul_f32 {Q_}, {fbits(1.0/448)}, {Q_}',
              f'v_fma_f32 {Q_}, -{vnmean}, {vnmean}, {Q_}', f'v_max_f32 {Q_}, 0, {Q_}',
              f'v_add_f32 {Q_}, {fbits(1e-5)}, {Q_}', f'v_rsq_f32 {vrstd}, {Q_}']
        return L

    def cs_read_items(s, dst, lds_off, tag, vaddr):
        a = s.a
        return [(lambda g=g: a.ds(f'ds_read_b128 v[{dst+4*g}:{dst+4*g+3}], {vaddr} offset:{lds_off+32*g}', tag)) for g in range(4)]

    def colsum(s, reads_fn, nks, dst, lds_out, va='v10'):
        a = s.a
        for i in range(4): a(f'v_mov_b32 v{dst+16+i}, 0x3f803f80')
        F = dst + 20
        reads_fn(0, F, ('cs', 0)); reads_fn(1, F+4, ('cs', 1))
        for ks in range(nks):
            if ks+2 < nks: reads_fn(ks+2, F + 4*((ks+2) % 3), ('cs', ks+2))
            a.wait_lg(('cs', ks))
            R = F + 4*(ks % 3)
            c = '0' if ks == 0 else f'v[{dst}:{dst+15}]'
            a(f'v_mfma_f32_32x32x16_bf16 v[{dst}:{dst+15}], v[{R}:{R+3}], v[{dst+16}:{dst+19}], {c}')
        a(f'v_add_u32 {va}, {lds_out}, {vCS}')
        a('s_mov_b32 exec_lo, 1'); a('s_mov_b32 exec_hi, 1')
        for g in range(4):
            a.ds(f'ds_write_b128 {va}, v[{dst+4*g}:{dst+4*g+3}] offset:{32*g}', 'csw')
        a('s_mov_b64 exec, -1')
        a.wait_lg0()

    def colsum_kv(s):
        a = s.a; g = s.g
        def cs_wave():
            a(f's_mul_i32 {sT0}, {sW}, 28672'); a(f'v_add_u32 v31, {sT0}, {vTR64}')
            a(f's_lshl_b32 {sT1}, {sW}, 7'); a(f's_add_u32 {sT1}, {sT1}, {M_CSQKV}')
            def f(ks, reg, tag):
                a.ds(f'ds_read_b64_tr_b16 v[{reg}:{reg+1}], v31 offset:{(16*ks)*64}', tag)
                a.ds(f'ds_read_b64_tr_b16 v[{reg+2}:{reg+3}], v31 offset:{(16*ks+8)*64}', tag)
            s.colsum(f, 28, 192, sT1, va='v30')
        g.wave_in(0, 2, cs_wave)
        a.lg = []

    def softmax_list(s, P, vC, E1, E2, dP, dM, t):
        L = []
        for r in (3, 7, 11, 15):
            L.append(f'v_cndmask_b32 v{P+r}, v{P+r}, v{P}, {sUP}')
        mx, mn, t2, t3 = f'v{t}', f'v{t+1}', f'v{t+2}', f'v{t+3}'
        L += [f'v_max3_f32 {mx}, v{P}, v{P+1}, v{P+2}', f'v_min3_f32 {mn}, v{P}, v{P+1}, v{P+2}',
              f'v_max3_f32 {t2}, v{P+3}, v{P+4}, v{P+5}', f'v_min3_f32 {t3}, v{P+3}, v{P+4}, v{P+5}']
        for r in (6, 10):
            L += [f'v_max3_f32 {mx}, {mx}, v{P+r}, v{P+r+1}', f'v_min3_f32 {mn}, {mn}, v{P+r}, v{P+r+1}',
                  f'v_max3_f32 {t2}, {t2}, v{P+r+2}, v{P+r+3}', f'v_min3_f32 {t3}, {t3}, v{P+r+2}, v{P+r+3}']
        L += [f'v_max3_f32 {mx}, {mx}, v{P+14}, v{P+15}', f'v_min3_f32 {mn}, {mn}, v{P+14}, v{P+15}',
              f'v_max_f32 {mx}, {mx}, {t2}', f'v_min_f32 {mn}, {mn}, {t3}',
              f'v_mov_b32 {t2}, {mx}', f'v_mov_b32 {t3}, {mn}',
              f'v_permlane32_swap_b32 {mx}, {t2}', f'v_permlane32_swap_b32 {mn}, {t3}',
              f'v_max_f32 {mx}, {mx}, {t2}', f'v_min_f32 {mn}, {mn}, {t3}',
              f'v_mul_f32 {mx}, {mx}, {vC}', f'v_mul_f32 {mn}, {mn}, {vC}']
        c = int(vC[1:]); assert c % 2 == 0 and t % 2 == 0
        cp = f'v[{c}:{c+1}]'; tp = f'v[{t}:{t+1}]'
        for r in range(0, 16, 2):
            L.append(f'v_pk_fma_f32 v[{E1+r}:{E1+r+1}], v[{P+r}:{P+r+1}], {cp}, {tp} op_sel:[0,0,0] op_sel_hi:[1,0,0] neg_lo:[0,0,1] neg_hi:[0,0,1]')
            L.append(f'v_pk_fma_f32 v[{E2+r}:{E2+r+1}], v[{P+r}:{P+r+1}], {cp}, {tp} op_sel:[0,0,1] op_sel_hi:[1,0,1] neg_lo:[1,0,0] neg_hi:[1,0,0]')
        for r in range(16):
            L += [f'v_exp_f32 v{E1+r}, v{E1+r}', f'v_exp_f32 v{E2+r}, v{E2+r}']
        for r in (3, 7, 11, 15):
            L += [f'v_cndmask_b32 v{E1+r}, v{E1+r}, 0, {sUP}', f'v_cndmask_b32 v{E2+r}, v{E2+r}, 0, {sUP}']
        A1 = f'v[{t}:{t+1}]'; A2 = f'v[{t+2}:{t+3}]'; B1 = f'v[{t+4}:{t+5}]'; B2 = f'v[{t+6}:{t+7}]'
        pr = lambda b, r: f'v[{b+r}:{b+r+1}]'
        L += [f'v_pk_add_f32 {A1}, {pr(E1,0)}, {pr(E1,2)}', f'v_pk_add_f32 {A2}, {pr(E2,0)}, {pr(E2,2)}',
              f'v_pk_add_f32 {B1}, {pr(E1,4)}, {pr(E1,6)}', f'v_pk_add_f32 {B2}, {pr(E2,4)}, {pr(E2,6)}']
        L += [f'v_pk_add_f32 {A1}, {A1}, {pr(E1,8)}', f'v_pk_add_f32 {A2}, {A2}, {pr(E2,8)}',
              f'v_pk_add_f32 {B1}, {B1}, {pr(E1,10)}', f'v_pk_add_f32 {B2}, {B2}, {pr(E2,10)}',
              f'v_pk_add_f32 {A1}, {A1}, {pr(E1,12)}', f'v_pk_add_f32 {A2}, {A2}, {pr(E2,12)}',
              f'v_pk_add_f32 {B1}, {B1}, {pr(E1,14)}', f'v_pk_add_f32 {B2}, {B2}, {pr(E2,14)}',
              f'v_pk_add_f32 {A1}, {A1}, {B1}', f'v_pk_add_f32 {A2}, {A2}, {B2}',
              f'v_add_f32 v{t}, v{t}, v{t+1}', f'v_add_f32 v{t+2}, v{t+2}, v{t+3}',
              f'v_mov_b32 v{t+1}, v{t}', f'v_mov_b32 v{t+3}, v{t+2}',
              f'v_permlane32_swap_b32 v{t}, v{t+1}', f'v_permlane32_swap_b32 v{t+2}, v{t+3}',
              f'v_add_f32 v{t}, v{t}, v{t+1}', f'v_add_f32 v{t+2}, v{t+2}, v{t+3}',
              f'v_rcp_f32 v{t}, v{t}', f'v_rcp_f32 v{t+2}, v{t+2}']
        for r in range(0, 16, 2):
            L.append(f'v_pk_mul_f32 {pr(E1,r)}, {pr(E1,r)}, {A1} op_sel_hi:[1,0]')
            L.append(f'v_pk_mul_f32 {pr(E2,r)}, {pr(E2,r)}, {A2} op_sel_hi:[1,0]')
        for i in range(8):
            L += [f'v_cvt_pk_bf16_f32 v{dP+i}, v{E1+2*i}, v{E1+2*i+1}', f'v_cvt_pk_bf16_f32 v{dM+i}, v{E2+2*i}, v{E2+2*i+1}']
        return L

    def qk_list(s, acc, cs, NMp, vC, frag, P, E1, E2, dP, dM, t):
        L = []
        for r in range(0, 16, 2):
            L.append(f'v_pk_fma_f32 v[{acc+r}:{acc+r+1}], v[{cs+r}:{cs+r+1}], v[{NMp}:{NMp+1}], v[{acc+r}:{acc+r+1}] op_sel_hi:[1,0,1]')
        for i in range(8):
            L.append(f'v_cvt_pk_bf16_f32 v{frag+i}, v{acc+2*i}, v{acc+2*i+1}')
        L.append(f'v_mfma_f32_32x32x16_bf16 v[{P}:{P+15}], a[248:251], v[{frag}:{frag+3}], 0')
        L.append(f'v_mfma_f32_32x32x16_bf16 v[{P}:{P+15}], a[252:255], v[{frag+4}:{frag+7}], v[{P}:{P+15}]')
        L += s.softmax_list(P, vC, E1, E2, dP, dM, t)
        return L

    def dma_item(s, srd, voff, ssrc, srcoff, sdst, dstoff, tag, track=True):
        a = s.a
        def f():
            if sdst is None: a(f's_mov_b32 m0, {dstoff}')
            else: a(f's_add_u32 m0, {sdst}, {dstoff}')
            a(f's_add_u32 s92, {ssrc}, {srcoff}')
            if track: a.vmem(f'buffer_load_dwordx4 {voff}, {srd}, s92 offen lds', tag)
            else: a(f'buffer_load_dwordx4 {voff}, {srd}, s92 offen lds')
        return f

    def wq_items(s):
        a = s.a
        a(f's_mul_i32 s90, {sHEAD}, {WQH}'); a(f's_add_u32 s90, s90, {G0 + WQ}')
        a(f's_lshl_b32 s91, {sW}, 10'); a(f's_add_u32 s90, s90, s91')
        return [s.dma_item(WS, vL16, 's90', n*4096, 's91', n*4096, 'W') for n in range(21)]

    def layer_setup(s):
        a = s.a
        L0 = a.newlabel('Ll0'); Le = a.newlabel('Lle')
        a(f's_cmp_lg_u32 {sL}, 0'); a(f's_cbranch_scc1 {L0}')
        for r, o in ((sXIN, X0), (sSTIN, ST0), (sX1, X1A), (sST1, ST1A), (sXO, X2A), (sSTO, ST2A), (sO, OA), (sH, HA)):
            a(f's_add_u32 {r}, {sGB}, {o}')
        a(f's_branch {Le}')
        a.label(L0)
        for r, o in ((sXIN, X2A), (sSTIN, ST2A), (sX1, X1A), (sST1, ST1A), (sXO, X2A), (sSTO, ST2A), (sO, OA), (sH, HA)):
            a(f's_add_u32 {r}, {sGB}, {o}')
        a.label(Le)
        a(f's_lshl_b32 {sT0}, {sL}, 4'); a(f's_add_u32 {sT0}, {sT0}, {sHEAD}')
        a(f's_lshl_b32 {sKV}, {sT0}, 13'); a(f's_add_u32 {sKV}, {sKV}, {KV}')
        a(f's_lshl_b32 {sKVC}, {sT0}, 7'); a(f's_add_u32 {sKVC}, {sKVC}, {KVC}')
        a(f's_lshl_b32 {sFL}, {sG}, 11'); a(f's_lshl_b32 {sT0}, {sL}, 9'); a(f's_add_u32 {sFL}, {sFL}, {sT0}')
        if FLAGS: a(f's_add_u32 {sFL}, {sFL}, {FLAGS}')

    def wait_saved(s, all_heads=False):
        a = s.a; g = s.g
        def w0():
            Lx = a.newlabel('Lx'); a(f's_cmp_lg_u32 {sL}, 0'); a(f's_cbranch_scc1 {Lx}')
            if all_heads:
                a(f'v_and_b32 v11, 15, {vLANE}'); a('v_lshlrev_b32 v11, 7, v11')
                a(f's_mov_b32 {sT0}, {KVC}')
                g.poll(WS, 'v11', sT0, 16, vt='v10')
            else:
                a(f's_lshl_b32 {sT0}, {sHEAD}, 7'); a(f's_add_u32 {sT0}, {sT0}, {KVC}')
                g.poll(WS, None, sT0, 16, vt='v10')
            a.label(Lx)
        g.wave_only(0, w0)

    def fl(s, p):
        s.a(f's_add_u32 s80, {sFL}, {p*128}')
        return 's80'

    def p1(s):
        a = s.a; g = s.g
        a.c('==== P1')
        XD = 8
        a(f's_lshl_b32 {sT3}, {sHALF}, 2'); a(f's_add_u32 {sT3}, {sT3}, {sW}')
        a(f's_mul_i32 s82, {sT3}, 3584'); a(f's_add_u32 s82, s82, {sSTIN}')
        a(f's_mul_i32 s83, {sT3}, 28672'); a(f's_add_u32 s83, s83, {sXIN}')
        def xload(ks):
            if ks % 4 == 0: a(f's_add_u32 s84, s83, {(ks//4)*4096}')
            a.vmem(f'buffer_load_dwordx4 a[{4*ks}:{4*ks+3}], {vL16}, {WS}, s84 offen offset:{(ks%4)*1024} {LDSC}', ('x', ks))
        a(f's_lshl_b32 {sT4}, {sT3}, 15'); a(f's_add_u32 {sT4}, {sT4}, {sO}'); a(f's_lshl_b32 {sT5}, {sHEAD}, 11'); a(f's_add_u32 s85, {sT4}, {sT5}')
        def rd64(base, va=vTR64):
            def f(ks, reg, tag):
                a.ds(f'ds_read_b64_tr_b16 v[{reg}:{reg+1}], {va} offset:{base+(16*ks)*64}', tag)
                a.ds(f'ds_read_b64_tr_b16 v[{reg+2}:{reg+3}], {va} offset:{base+(16*ks+8)*64}', tag)
            return f
        AK, AV, AQ, FR = 16, 32, 48, 64
        rk, rv, rq = rd64(L_WK), rd64(L_WV), rd64(0, 'v208')
        FRS = (64, 72, 216)
        NM, RS, VC = 'v10', 'v11', 'v12'
        def kvloop(loads):
            side = Side()
            if loads:
                run_list(a, s.stats_load_items(96, 's82', 'st'))
                for ks in range(XD): xload(ks)
                side = Side([lambda: a.wait_vm('st')] + s.stats_list(96, NM, RS, 'v13', 'v14'))
            rk(0, FRS[0], ('fk', 0)); rv(0, FRS[0]+4, ('fv', 0))
            rk(1, FRS[1], ('fk', 1)); rv(1, FRS[1]+4, ('fv', 1))
            for ks in range(28):
                b = FRS[ks % 3]
                if loads: a.wait_vm(('x', ks))
                a.wait_lg(('fk', ks))
                ck = '0' if ks == 0 else f'v[{AK}:{AK+15}]'
                cv = '0' if ks == 0 else f'v[{AV}:{AV+15}]'
                a(f'v_mfma_f32_32x32x16_bf16 v[{AK}:{AK+15}], v[{b}:{b+3}], a[{4*ks}:{4*ks+3}], {ck}')
                if ks+2 < 28: rk(ks+2, FRS[(ks+2) % 3], ('fk', ks+2))
                if loads and ks + XD < 28: xload(ks + XD)
                a.wait_lg(('fv', ks))
                a(f'v_mfma_f32_32x32x16_bf16 v[{AV}:{AV+15}], v[{b+4}:{b+7}], a[{4*ks}:{4*ks+3}], {cv}')
                if ks+2 < 28: rv(ks+2, FRS[(ks+2) % 3]+4, ('fv', ks+2))
                if ks >= 2: side.emit(a, 2)
            side.flush(a)
        L1p = a.newlabel('Lp1l1'); Lj = a.newlabel('Lp1j')
        a(f's_cmp_lg_u32 {sL}, 0'); a(f's_cbranch_scc1 {L1p}')
        a(f'v_and_b32 v13, 7, {vLANE}'); a('v_lshlrev_b32 v233, 5, v13')
        a(f'buffer_load_dword v232, v233, {DBG}, 0 offen sc1')
        a.lg = []
        kvloop(False)
        a('s_waitcnt vmcnt(0)')
        g.wave_in(0, 2, g.registration_check)
        a('s_barrier')
        a(f's_lshl_b32 {sT0}, {sG}, 1'); a(f's_add_u32 {sT0}, {sT0}, {sHALF}'); a(f's_lshl_b32 {sT1}, {sW}, 4'); a(f's_add_u32 {sT0}, {sT0}, {sT1}')
        a(f's_add_u32 {sT1}, {sT0}, 64')
        a(f's_cmp_lt_u32 {sT1}, 84'); a(f's_cselect_b32 {sT2}, {sT1}, {sT0}')
        a(f's_lshl_b32 {sT0}, {sT0}, 10'); a(f's_lshl_b32 {sT2}, {sT2}, 10')
        a(f'v_add_u32 v13, {sT0}, {vL16}'); a(f'v_add_u32 v14, {sT2}, {vL16}')
        a('ds_read_b128 v[128:131], v13'); a('ds_read_b128 v[132:135], v14')
        a(f's_mul_i32 {sT1}, {sHEAD}, {WQH}'); a(f's_add_u32 {sT1}, {sT1}, {G0 + WQ}')
        a(f's_add_u32 {sT0}, {sT0}, {sT1}'); a(f's_add_u32 {sT2}, {sT2}, {sT1}')
        a('s_waitcnt lgkmcnt(0)')
        a(f'buffer_store_dwordx4 v[128:131], {vL16}, {WS}, {sT0} offen sc1')
        a(f'buffer_store_dwordx4 v[132:135], {vL16}, {WS}, {sT2} offen sc1')
        a('s_barrier')
        a('v_mov_b32 v10, v234'); a('v_mov_b32 v11, v235')
        a(f's_branch {Lj}')
        a.label(L1p)
        a.vm = []; a.lg = []
        kvloop(True)
        a('s_barrier')
        a.label(Lj)
        a.vm = []; a.lg = []
        g.stamp('p1 KV gemm')
        a(f'v_add_u32 v15, {M_CSQKV}, {vCS}')
        run_list(a, s.cs_read_items(112, 0, 'csk', 'v15') + s.cs_read_items(128, 128, 'csv', 'v15'))
        a(f'v_mul_f32 {VC}, {fbits(LOG2E)}, {RS}')
        a.wait_lg('csk')
        a(f's_lshl_b32 s90, {sM}, 7'); a(f's_mul_i32 s91, {sW}, {8*3584}'); a(f's_add_u32 s90, s90, s91')
        a(f's_lshl_b32 s91, {sW}, 10')
        wa = Side([s.dma_item(WG, vD3584, 's90', 4*n*8*3584, 's91', L_WG + 4*n*1024, 'WA') for n in range(10)] if PFA else [])
        L = s.qk_list(AK, 112, 10, VC, 144, 80, 96, 192, 176, 184, 152)
        for T in range(2):
            for gq in range(4):
                R = 176 + 8*T + 2*gq
                L.append(f'v_xor_b32 v{156+(gq&1)}, {(8*T+2*gq) << 3}, {vPHIW}')
                L.append(lambda R=R, gq=gq: a.ds(f'ds_write_b64 v{156+(gq&1)}, v[{R}:{R+1}]', 'pw'))
        L.append(lambda: a.wait_lg('csv'))
        for r in range(0, 16, 2):
            L.append(f'v_pk_fma_f32 v[{AV+r}:{AV+r+1}], v[{128+r}:{129+r}], v[10:11], v[{AV+r}:{AV+r+1}] op_sel_hi:[1,0,1]')
        for r in range(0, 16, 2):
            L.append(f'v_pk_mul_f32 v[{AV+r}:{AV+r+1}], v[{AV+r}:{AV+r+1}], v[10:11] op_sel:[0,1] op_sel_hi:[1,1]')
        L.append(f'v_cndmask_b32 v{AV+12}, v{AV+12}, 1.0, {sUP}')
        for i in range(8):
            L.append(f'v_cvt_pk_bf16_f32 v{144+i}, v{AV+2*i}, v{AV+2*i+1}')
        for gq in range(4):
            L.append(f'v_xor_b32 v{156+(gq&1)}, {(2*gq) << 3}, {vVIW}')
            L.append(lambda gq=gq: a.ds(f'ds_write_b64 v{156+(gq&1)}, v[{144+2*gq}:{145+2*gq}]', 'vw'))
        run_list(a, L, wa, 22)
        a(f's_waitcnt vmcnt({10 if PFA else 0}) lgkmcnt(0)')
        a.lg = []
        a('s_barrier')
        g.stamp('p1 phi/v written')
        s.pretouch('s85', 16)
        def kv():
            def rr(kt, reg, tag):
                a.ds(f'ds_read_b64_tr_b16 v[{reg}:{reg+1}], {vPA0} offset:{kt*2048}', tag)
                a.ds(f'ds_read_b64_tr_b16 v[{reg+2}:{reg+3}], {vPA1} offset:{kt*2048}', tag)
                a.ds(f'ds_read_b64_tr_b16 v[{reg+4}:{reg+5}], {vVB0} offset:{kt*1024}', tag)
                a.ds(f'ds_read_b64_tr_b16 v[{reg+6}:{reg+7}], {vVB1} offset:{kt*1024}', tag)
            KS = (64, 72, 216)
            rr(0, KS[0], ('k', 0)); rr(1, KS[1], ('k', 1))
            for kt in range(8):
                if kt+2 < 8: rr(kt+2, KS[(kt+2) % 3], ('k', kt+2))
                a.wait_lg(('k', kt))
                b = KS[kt % 3]
                c = '0' if kt == 0 else 'v[80:95]'
                a(f'v_mfma_f32_32x32x16_bf16 v[80:95], v[{b+4}:{b+7}], v[{b}:{b+3}], {c}')
            a(f's_lshl_b32 {sT0}, {sW}, 7'); a(f's_add_u32 {sT0}, {sT0}, {sKV}'); a(f's_add_u32 {sT1}, {sT0}, 4096')
            a('s_mov_b32 s78, 0x80808080'); a('s_mov_b32 s79, 0x80808080')
            for r in range(16):
                a(f'v_cndmask_b32 v{80+r}, v{80+r}, 1.0, s[78:79]')
            for gq in range(4):
                for r in range(4):
                    so = sT0 if gq < 2 else sT1
                    a(f'buffer_atomic_add_f32 v{80+4*gq+r}, {vKVO}, {WS}, {so} offen offset:{((8*gq+r)*256) % 4096} sc1')
        g.wave_in(0, 2, kv)
        def csq():
            Lq0 = a.newlabel('Lq0')
            a(f's_cmp_lg_u32 {sL}, 0'); a(f's_cbranch_scc1 {Lq0}')
            a(f'v_add_u32 v209, {2*28672}, {vTR64}')
            a(f's_mov_b32 {sT1}, {M_CSQKV + 256}')
            s.colsum(rd64(0, 'v209'), 28, 112, sT1, va='v152')
            a.label(Lq0)
        g.wave_only(2, csq)
        a.lg = []
        a.vm = []
        a.lg = []
        g.stamp('p1 kv issued')
        a(f'v_add_u32 v208, {L_WQ}, {vTR64}')
        QS = (64, 68, 72)
        rq(0, QS[0], ('f', 0)); rq(1, QS[1], ('f', 1))
        for ks in range(28):
            if ks+2 < 28: rq(ks+2, QS[(ks+2) % 3], ('f', ks+2))
            a.wait_lg(('f', ks))
            b = QS[ks % 3]
            cq = '0' if ks == 0 else f'v[{AQ}:{AQ+15}]'
            a(f'v_mfma_f32_32x32x16_bf16 v[{AQ}:{AQ+15}], v[{b}:{b+3}], a[{4*ks}:{4*ks+3}], {cq}')
        a.wait_lg0()
        a('s_barrier')
        run_list(a, s.cs_read_items(112, 256, 'csq', 'v15'))
        a.wait_lg0()
        g.stamp('p1 q gemm')
        qpost = lambda: s.qk_list(AQ, 112, 10, VC, 144, 80, 96, 192, 160, 168, 152)
        Lq = a.newlabel('Lq23'); Lqe = a.newlabel('Lqe')
        a(f's_cmp_ge_u32 {sW}, 2'); a(f's_cbranch_scc1 {Lq}')
        a.vm = []
        run_list(a, qpost())
        s.resid_loads(224, sXIN, track=False, raw_l0=True)
        s.dest_pretouch(sX1, sST1)
        if G.CPF: g.wave_only(1, lambda: g.code_prefetch('L_code_p2b', 'L_code_p4', v='v14'))
        g.stamp('p1 kv counted')
        Lp = a.newlabel('Lkvp'); Ld = a.newlabel('Lkvd')
        a(f's_lshl_b32 {sT0}, {sW}, 7'); a(f's_add_u32 {sT0}, {sT0}, {sKV}'); a(f's_add_u32 {sT1}, {sT0}, 4096')
        a('s_mov_b32 s78, 0xaaaaaaaa'); a('s_mov_b32 s79, 0xaaaaaaaa')
        a(f's_mov_b32 {sT7}, 0')
        a.label(Lp)
        for q in range(4):
            so = sT0 if q < 2 else sT1
            a(f'buffer_load_dwordx4 v[{64+4*q}:{67+4*q}], {vKVR}, {WS}, {so} offen offset:{(q*2048) % 4096} sc1')
        a('s_waitcnt vmcnt(0)')
        for q in range(1, 4):
            a(f'v_sub_f32 v{96+q}, 0x41800000, v{67+4*q}')
        a('v_sub_f32 v96, 0x41800000, v67')
        a('v_or_b32 v96, v96, v97'); a('v_or_b32 v98, v98, v99'); a('v_or_b32 v96, v96, v98')
        a('v_lshlrev_b32 v96, 1, v96')
        a('v_cmp_ne_u32 vcc, 0, v96')
        a(f's_add_u32 {sT7}, {sT7}, 1')
        a('s_and_b64 vcc, vcc, s[78:79]')
        a('s_cmp_eq_u64 vcc, 0'); a(f's_cbranch_scc1 {Ld}')
        a(f's_cmp_lt_u32 {sT7}, {G.TIMEOUT}'); a(f's_cbranch_scc1 {Lp}')
        a(f's_mov_b32 {sTO}, 1')
        a.label(Ld)
        g.stamp('kv hop done')
        for q in range(4):
            a(f'v_cvt_pk_bf16_f32 v{96+2*q}, v{64+4*q}, v{65+4*q}'); a(f'v_cvt_pk_bf16_f32 v{97+2*q}, v{66+4*q}, v{67+4*q}')
        for q in range(4):
            a(f'ds_write_b64 {vKVW}, v[{96+2*q}:{97+2*q}] offset:{q*128}')
        a('s_waitcnt lgkmcnt(0)')
        a(f's_branch {Lqe}')
        a.label(Lq)
        a.vm = []
        a(f's_sub_u32 {sT0}, {sW}, 2')
        a(f's_lshl_b32 s86, {sCT}, 7'); a(f's_mul_i32 {sT1}, {sT0}, {8*896}'); a(f's_add_u32 s86, s86, {sT1}')
        a(f's_lshl_b32 s87, {sT0}, 10')
        a(f's_lshl_b32 s88, {sM}, 7'); a(f's_mul_i32 {sT1}, {sT0}, {8*3584}'); a(f's_add_u32 s88, s88, {sT1}')
        items = [s.dma_item(WO, vD896, 's86', 2*n*8*896, 's87', L_WO + 2*n*1024, 'W1') for n in range(28)]
        if not PFA: items += [s.dma_item(WG, vD3584, 's88', 2*n*8*3584, 's87', L_WG + 2*n*1024, 'W1') for n in range(20)]
        items += [s.dma_item(WU, vD3584, 's88', 2*n*8*3584, 's87', L_WU + 2*n*1024, 'W1', track=False) for n in range(14 if LATEU else 28)]
        s.resid_loads(224, sXIN, track=False, raw_l0=True)
        s.dest_pretouch(sX1, sST1)
        run_list(a, qpost(), Side(items), 2)
        a.label(Lqe)
        a.vm = []; a.lg = []
        a('s_barrier')
        g.stamp('kv frags ready')

    def p2a(s):
        a = s.a; g = s.g
        a.c('==== P2a')
        a(f'v_add_u32 v13, {L_KVF}, {vL16}')
        for k in range(4):
            a.ds(f'ds_read_b128 v[{96+4*k}:{99+4*k}], v13 offset:{k*1024}', ('kf', k))
        for k in range(4):
            a.wait_lg(('kf', k))
            c = '0' if k == 0 else 'v[16:31]'
            a(f'v_mfma_f32_32x32x16_bf16 v[16:31], v[{96+4*k}:{99+4*k}], v[{160+4*k}:{163+4*k}], {c}')
        a('v_mov_b32 v32, v28'); a('v_mov_b32 v33, v28')
        a('v_permlane32_swap_b32 v32, v33')
        a(f'v_add_f32 v33, {fbits(1e-6)}, v33')
        a('v_rcp_f32 v34, v33')
        for r in range(0, 16, 2):
            a(f'v_pk_mul_f32 v[{16+r}:{17+r}], v[{16+r}:{17+r}], v[34:35] op_sel_hi:[1,0]')
        for r in range(12, 16):
            a(f'v_cndmask_b32 v{16+r}, v{16+r}, 0, {sUP}')
        for i in range(8):
            a(f'v_cvt_pk_bf16_f32 v{40+i}, v{16+2*i}, v{16+2*i+1}')
        a(f'buffer_store_dwordx4 v[40:43], {vL16}, {WS}, s85 offen {STSC}')
        a(f'buffer_store_dwordx4 v[44:47], {vL16}, {WS}, s85 offen offset:1024 {STSC}')
        g.set_flag(s.fl(1))
        def svc():
            Lx = a.newlabel('Lx'); a(f's_cmp_lg_u32 {sL}, 0'); a(f's_cbranch_scc1 {Lx}')
            a(f's_lshl_b32 {sT0}, {sHEAD}, 7'); a(f's_add_u32 {sT0}, {sT0}, {KVC}')
            a('v_mov_b32 v10, 1'); a('s_mov_b64 exec, 1')
            a(f'buffer_atomic_add v10, off, {WS}, {sT0} sc1')
            a('s_mov_b64 exec, -1')
            a.label(Lx)
        g.wave_only(3, svc)
        g.stamp('p2a done')

    def tile_coords(s):
        a = s.a
        a(f's_and_b32 {sT1}, {sW}, 1'); a(f's_lshl_b32 {sT2}, {sTQ}, 1'); a(f's_add_u32 {sT1}, {sT1}, {sT2}')
        a(f's_lshr_b32 {sT2}, {sW}, 1'); a(f's_lshl_b32 {sT3}, {sCT}, 1'); a(f's_add_u32 {sT2}, {sT2}, {sT3}')

    def resid_loads(s, dst, sX, track=True, raw_l0=False):
        a = s.a
        s.tile_coords()
        f = a.vmem if track else (lambda t, tag: a(t))
        Lr = Le = None
        if raw_l0:
            Lr = a.newlabel('Lrr'); Le = a.newlabel('Lre')
            a(f's_cmp_eq_u32 {sL}, 0'); a(f's_cbranch_scc1 {Lr}')
        a(f's_mul_i32 {sT4}, {sT1}, 28672'); a(f's_lshl_b32 {sT2}, {sT2}, 11'); a(f's_add_u32 {sT4}, {sT4}, {sT2}')
        a(f's_add_u32 {sT4}, {sT4}, {sX}')
        f(f'buffer_load_dwordx4 v[{dst}:{dst+3}], {vL16}, {WS}, {sT4} offen {LDSC}', 'res')
        f(f'buffer_load_dwordx4 v[{dst+4}:{dst+7}], {vL16}, {WS}, {sT4} offen offset:1024 {LDSC}', 'res')
        if raw_l0:
            a(f's_branch {Le}')
            a.label(Lr)
            a(f's_lshl_b32 {sT4}, {sG}, 8'); a(f's_lshl_b32 {sT5}, {sT1}, 5'); a(f's_add_u32 {sT4}, {sT4}, {sT5}')
            a(f's_mul_i32 {sT4}, {sT4}, 896'); a(f's_lshl_b32 {sT5}, {sT2}, 6'); a(f's_add_u32 {sT4}, {sT4}, {sT5}')
            a(f'v_and_b32 v13, 31, {vLANE}'); a('v_mul_u32_u24 v13, 896, v13')
            a(f'v_lshrrev_b32 v14, 5, {vLANE}'); a('v_lshl_add_u32 v13, v14, 3, v13')
            for gq in range(4):
                a(f'buffer_load_dwordx2 v[{dst+2*gq}:{dst+2*gq+1}], v13, {AX}, {sT4} offen offset:{16*gq}')
            a.label(Le)

    def dest_pretouch(s, sXdst, sSTdst):
        if not PRET: return
        a = s.a
        s.tile_coords()
        a(f's_mul_i32 {sT4}, {sT1}, 28672'); a(f's_lshl_b32 {sT5}, {sT2}, 11'); a(f's_add_u32 {sT4}, {sT4}, {sT5}')
        a(f's_add_u32 {sT4}, {sT4}, {sXdst}')
        s.pretouch(sT4, 16)
        a(f's_mul_i32 {sT4}, {sT1}, 14'); a(f's_add_u32 {sT4}, {sT4}, {sT2}'); a(f's_lshl_b32 {sT4}, {sT4}, 8')
        a(f's_add_u32 {sT4}, {sT4}, {sSTdst}')
        s.pretouch(sT4, 2)

    def red_write(s, ACC, RED, parts=(1, 2, 3), side=None):
        a = s.a
        n = len(parts)
        for k, (slot, x) in enumerate(parts):
            a(f's_xor_b32 {sT0}, {sW}, {x}'); a(f's_mul_i32 {sT0}, {sT0}, {n}'); a(f's_add_u32 {sT0}, {sT0}, {k}')
            a(f's_lshl_b32 {sT0}, {sT0}, 12'); a(f's_add_u32 {sT0}, {sT0}, {RED}')
            a(f'v_add_u32 v{11+k}, {sT0}, {vL16}')
        for k, (slot, x) in enumerate(parts):
            for q in range(4):
                R = ACC + 16*slot + 4*q
                a.ds(f'ds_write_b128 v{11+k}, v[{R}:{R+3}] offset:{q*1024}', 'rw')
                if side is not None and q % 2 == 1: side.emit(a)
        a(f's_mul_i32 {sT0}, {sW}, {n*4096}'); a(f's_add_u32 {sT0}, {sT0}, {RED}')
        a(f'v_add_u32 v10, {sT0}, {vL16}')
        a.wait_lg0()
        a('s_barrier')

    def red_list(s, ACC, resid, n=3):
        a = s.a
        T = ACC + 16
        L = []
        for k in range(n):
            for q in range(4):
                R = T + 16*k + 4*q
                L.append(lambda R=R, k=k, q=q: a.ds(f'ds_read_b128 v[{R}:{R+3}], v10 offset:{k*4096+q*1024}', ('rr', k)))
        U = ACC + 64
        for i in range(8):
            L += [f'v_lshlrev_b32 v{U+2*i}, 16, v{resid+i}', f'v_and_b32 v{U+2*i+1}, 0xffff0000, v{resid+i}']
        pr = lambda b, r: f'v[{b+r}:{b+r+1}]'
        for r in range(0, 16, 2):
            L.append(f'v_pk_add_f32 {pr(ACC,r)}, {pr(ACC,r)}, {pr(U,r)}')
        for k in range(n):
            L.append(lambda k=k: a.wait_lg(('rr', k)))
            for r in range(0, 16, 2):
                L.append(f'v_pk_add_f32 {pr(ACC,r)}, {pr(ACC,r)}, {pr(T+16*k,r)}')
        PK = ACC + 48 + 0
        for i in range(8):
            L.append(f'v_cvt_pk_bf16_f32 v{PK+i}, v{ACC+2*i}, v{ACC+2*i+1}')
        return L

    def store_x_list(s, ACC, sXdst, sSTdst):
        a = s.a
        PK = ACC + 48
        L = []
        def addr():
            s.tile_coords()
            a(f's_mul_i32 {sT4}, {sT1}, 28672'); a(f's_lshl_b32 {sT5}, {sT2}, 11'); a(f's_add_u32 {sT4}, {sT4}, {sT5}')
            a(f's_add_u32 {sT4}, {sT4}, {sXdst}')
            a.vmem(f'buffer_store_dwordx4 v[{PK}:{PK+3}], {vL16}, {WS}, {sT4} offen {STSC}', 'xs')
            a.vmem(f'buffer_store_dwordx4 v[{PK+4}:{PK+7}], {vL16}, {WS}, {sT4} offen offset:1024 {STSC}', 'xs')
        L.append(addr)
        pr = lambda b, r: f'v[{b+r}:{b+r+1}]'
        L += [f'v_pk_add_f32 v[12:13], {pr(ACC,0)}, {pr(ACC,2)}', f'v_pk_mul_f32 v[14:15], {pr(ACC,0)}, {pr(ACC,0)}']
        L.append(f'v_pk_fma_f32 v[14:15], {pr(ACC,2)}, {pr(ACC,2)}, v[14:15]')
        for r in range(4, 16, 2):
            L += [f'v_pk_add_f32 v[12:13], v[12:13], {pr(ACC,r)}', f'v_pk_fma_f32 v[14:15], {pr(ACC,r)}, {pr(ACC,r)}, v[14:15]']
        L += ['v_add_f32 v12, v12, v13', 'v_add_f32 v14, v14, v15', 'v_mov_b32 v13, v12', 'v_mov_b32 v15, v14',
              'v_permlane32_swap_b32 v12, v13', 'v_permlane32_swap_b32 v14, v15',
              'v_add_f32 v12, v12, v13', 'v_add_f32 v13, v14, v15', f'v_lshlrev_b32 v11, 3, {vLANE}']
        def st():
            a(f's_mul_i32 {sT4}, {sT1}, 14'); a(f's_add_u32 {sT4}, {sT4}, {sT2}'); a(f's_lshl_b32 {sT4}, {sT4}, 8')
            a(f's_add_u32 {sT4}, {sT4}, {sSTdst}')
            a('s_mov_b64 exec, 0xffffffff')
            a.vmem(f'buffer_store_dwordx2 v[12:13], v11, {WS}, {sT4} offen {STSC}', 'xs')
            a('s_mov_b64 exec, -1')
        L.append(st)
        return L

    def store_out_list(s, ACC):
        a = s.a
        PK = ACC + 48
        L = []
        for e in range(2):
            L += [f'v_permlane32_swap_b32 v{PK+4*e}, v{PK+4*e+2}', f'v_permlane32_swap_b32 v{PK+4*e+1}, v{PK+4*e+3}']
        def st():
            s.tile_coords()
            a(f's_lshl_b32 {sT4}, {sG}, 8'); a(f's_lshl_b32 {sT5}, {sT1}, 5'); a(f's_add_u32 {sT4}, {sT4}, {sT5}')
            a(f's_mul_i32 {sT4}, {sT4}, 896'); a(f's_lshl_b32 {sT5}, {sT2}, 6'); a(f's_add_u32 {sT4}, {sT4}, {sT5}')
            a(f'v_and_b32 v12, 31, {vLANE}'); a('v_mul_u32_u24 v12, 896, v12')
            a(f'v_lshrrev_b32 v13, 5, {vLANE}'); a('v_lshl_add_u32 v12, v13, 4, v12')
            a(f'buffer_store_dwordx4 v[{PK}:{PK+3}], v12, {OUT}, {sT4} offen {OUTSC}')
            a(f'buffer_store_dwordx4 v[{PK+4}:{PK+7}], v12, {OUT}, {sT4} offen offset:32 {OUTSC}')
        L.append(st)
        return L

    def tile_addrs(s, sbase):
        a = s.a
        a(f's_lshr_b32 {sT0}, {sW}, 1'); a(f's_lshl_b32 {sT0}, {sT0}, 6')
        a(f'v_xor_b32 v14, {sT0}, {vTR0}')
        a(f'v_add_u32 v14, {sbase}, v14')
        a('v_xor_b32 v15, 64, v14')

    def p2b(s):
        a = s.a; g = s.g
        a.c('==== P2b')
        a.rawlabel('L_code_p2b')
        a(f's_lshr_b32 {sT5}, {sW}, 1'); a(f's_mul_i32 {sT5}, {sT5}, 28672'); a(f's_add_u32 {sT5}, {sT5}, {L_WO}')
        s.tile_addrs(sT5)
        a(f'v_lshrrev_b32 v12, 5, {vLANE}'); a('v_lshlrev_b32 v12, 9, v12')
        a('v_sub_u32 v13, v15, v12'); a('v_sub_u32 v12, v14, v12')
        a(f's_lshr_b32 {sT0}, {sTQ}, 1'); a(f's_lshl_b32 {sT0}, {sT0}, 4'); a(f's_lshl_b32 s81, 0xffff, {sT0}')
        a(f's_and_b32 {sT0}, {sW}, 1'); a(f's_lshl_b32 {sT1}, {sTQ}, 1')
        a(f's_add_u32 {sT0}, {sT0}, {sT1}'); a(f's_lshl_b32 {sT0}, {sT0}, 15'); a(f's_add_u32 {sT0}, {sT0}, {sO}')
        a(f's_lshr_b32 {sT1}, {sW}, 1'); a(f's_lshl_b32 {sT1}, {sT1}, 14'); a(f's_add_u32 s82, {sT0}, {sT1}')
        g.wait_flags(s.fl(1), 's81', vt='v10', va='v11')
        a.vm = []
        g.stamp('p2b hop done')
        def oload(i):
            if i % 4 == 0: a(f's_add_u32 s84, s82, {(i//4)*4096}')
            a.vmem(f'buffer_load_dwordx4 a[{4*i}:{4*i+3}], {vL16}, {WS}, s84 offen offset:{(i%4)*1024} {LDSC}', ('o', i))
        ACC = 16; FS = (80, 88, 104)
        def rd(i, reg, tag):
            off = (28*(i >> 1) + 16*(i & 1))*128
            for sl in range(2):
                va = ('v14', 'v15')[sl]
                vb = ('v12', 'v13')[sl] if (i & 1) else va
                a.ds(f'ds_read_b64_tr_b16 v[{reg+4*sl}:{reg+4*sl+1}], {va} offset:{off}', tag)
                a.ds(f'ds_read_b64_tr_b16 v[{reg+4*sl+2}:{reg+4*sl+3}], {vb} offset:{off+8*128}', tag)
        OD = 6
        for i in range(OD): oload(i)
        rd(0, FS[0], ('f', 0)); rd(1, FS[1], ('f', 1))
        for i in range(16):
            if i+2 < 16: rd(i+2, FS[(i+2) % 3], ('f', i+2))
            a.wait_lg(('f', i))
            a.wait_vm(('o', i))
            b0 = FS[i % 3]
            for sa in range(2):
                R = ACC + 16*sa
                c = '0' if i == 0 else f'v[{R}:{R+15}]'
                a(f'v_mfma_f32_32x32x16_bf16 v[{R}:{R+15}], v[{b0+4*sa}:{b0+4*sa+3}], a[{4*i}:{4*i+3}], {c}')
                if sa == 0 and i + OD < 16: oload(i + OD)
        g.stamp('p2b gemm')
        a('s_barrier')
        s.red_write(ACC, RED2, parts=((1, 2),))
        run_list(a, s.red_list(ACC, 224, n=1) + s.store_x_list(ACC, sX1, sST1))
        g.set_flag(s.fl(2))
        if G.CPF: g.wave_only(1, lambda: g.code_prefetch('L_code_p4', 'L_code_end', v='v14'))
        def late():
            a(f's_sub_u32 {sT0}, {sW}, 1')
            a(f's_lshl_b32 s90, {sM}, 7'); a(f's_mul_i32 s91, {sT0}, {8*3584}'); a(f's_add_u32 s90, s90, s91')
            a(f's_lshl_b32 s91, {sT0}, 10')
            def grp(srd, base, blk0, nblk):
                for n in range((nblk + 2)//3):
                    lastpartial = 3*n + 2 >= nblk
                    if lastpartial:
                        Lx = a.newlabel('Lx'); a(f's_cmp_gt_u32 {sW}, {nblk - 3*n}'); a(f's_cbranch_scc1 {Lx}')
                    s.dma_item(srd, vD3584, 's90', (blk0+3*n)*8*3584, 's91', base + (blk0+3*n)*1024, 'late', track=False)()
                    if lastpartial: a.label(Lx)
            if LATEU: grp(WU, L_WU, 28, 28)
            grp(WG, L_WG, 40, 16)
        g.wave_in(1, 4, late)
        a.vm = []
        g.stamp('p2b done')

    def gelu_list(s, G, U, csg, csu, NM, K, T, PK, packed):
        L = []
        pr = lambda b, r: f'v[{b+r}:{b+r+1}]'
        vA, vB, vV = f'v{K}', f'v{K+1}', f'v{K+2}'
        if packed:
            nm = int(NM[1:]); nmp = f'v[{nm & ~1}:{(nm & ~1)+1}]'; ns = nm & 1
            AB = f'v[{K}:{K+1}]'; VV = f'v[{K+2}:{K+3}]'
            for r in range(0, 16, 2): L.append(f'v_pk_fma_f32 {pr(G,r)}, {pr(csg,r)}, {nmp}, {pr(G,r)} op_sel:[0,{ns},0] op_sel_hi:[1,{ns},1]')
            for r in range(0, 16, 2): L.append(f'v_pk_fma_f32 {pr(U,r)}, {pr(csu,r)}, {nmp}, {pr(U,r)} op_sel:[0,{ns},0] op_sel_hi:[1,{ns},1]')
            for r in range(0, 16, 2): L.append(f'v_pk_mul_f32 {pr(T,r)}, {pr(G,r)}, {pr(G,r)}')
            for r in range(0, 16, 2): L.append(f'v_pk_fma_f32 {pr(T,r)}, {pr(T,r)}, {AB}, {AB} op_sel:[0,1,0] op_sel_hi:[1,1,0]')
            for r in range(0, 16, 2): L.append(f'v_pk_mul_f32 {pr(T,r)}, {pr(T,r)}, {pr(G,r)}')
            for r in range(0, 16, 2):
                L += [f'v_exp_f32 v{T+r}, v{T+r}', f'v_exp_f32 v{T+r+1}, v{T+r+1}', f'v_pk_mul_f32 {pr(U,r)}, {pr(U,r)}, {pr(G,r)}']
            for r in range(0, 16, 2): L.append(f'v_pk_fma_f32 {pr(T,r)}, {pr(T,r)}, {VV}, {VV} op_sel:[0,0,0] op_sel_hi:[1,0,0]')
            for r in range(16): L.append(f'v_rcp_f32 v{T+r}, v{T+r}')
            for r in range(0, 16, 2): L.append(f'v_pk_mul_f32 {pr(U,r)}, {pr(U,r)}, {pr(T,r)}')
        else:
            for r in range(16): L.append(f'v_fmac_f32 v{G+r}, {NM}, v{csg+r}')
            for r in range(16): L.append(f'v_fmac_f32 v{U+r}, {NM}, v{csu+r}')
            for r in range(16): L.append(f'v_mul_f32 v{T+r}, v{G+r}, v{G+r}')
            for r in range(16): L.append(f'v_fma_f32 v{T+r}, v{T+r}, {vB}, {vA}')
            for r in range(16): L.append(f'v_mul_f32 v{T+r}, v{T+r}, v{G+r}')
            for r in range(16):
                L += [f'v_exp_f32 v{T+r}, v{T+r}', f'v_mul_f32 v{U+r}, v{U+r}, v{G+r}']
            for r in range(16): L.append(f'v_fma_f32 v{T+r}, v{T+r}, {vV}, {vV}')
            for r in range(16): L.append(f'v_rcp_f32 v{T+r}, v{T+r}')
            for r in range(16): L.append(f'v_mul_f32 v{U+r}, v{U+r}, v{T+r}')
        for i in range(8):
            L.append(f'v_cvt_pk_bf16_f32 v{PK+i}, v{U+2*i}, v{U+2*i+1}')
        return L

    def p3(s):
        a = s.a; g = s.g
        a.c('==== P3')
        a(f'v_add_u32 v12, {L_WU}, {vTR0}'); a(f'v_add_u32 v13, {L_WU}, {vTR1}')
        for b in range(2):
            a(f's_lshl_b32 {sT0}, {sW}, 1'); a(f's_add_u32 {sT0}, {sT0}, {b}')
            a(f's_mul_i32 s{82+b}, {sT0}, 28672'); a(f's_add_u32 s{82+b}, s{82+b}, {sX1}')
            a(f's_mul_i32 s{86+b}, {sT0}, 3584'); a(f's_add_u32 s{86+b}, s{86+b}, {sST1}')
            a(f's_mul_i32 s{88+b}, {sT0}, 114688'); a(f's_add_u32 s{88+b}, s{88+b}, {sH}')
            a(f's_lshl_b32 {sT1}, {sM}, 12'); a(f's_add_u32 s{88+b}, s{88+b}, {sT1}')
        g.wait_flags(s.fl(2), 0x0fffffff, vt='v10', va='v11', keep_vm=True)
        g.stamp('p3 hop done')
        def xload(ks, b):
            a(f's_add_u32 {sT6}, s{82+b}, {(ks//4)*4096}')
            a.vmem(f'buffer_load_dwordx4 a[{8*ks+4*b}:{8*ks+4*b+3}], {vL16}, {WS}, {sT6} offen offset:{(ks%4)*1024} {LDSC}', ('x', ks, b))
        XD = 4
        for ks in range(XD):
            xload(ks, 0); xload(ks, 1)
        GU = (((16, 32), (48, 64)), ((80, 96), (112, 128)))
        FS = (144, 152, 160)
        NM = ('v10', 'v11'); RS = ('v14', 'v15')
        STR = (168, 184); CSG = 168; CSU = 184; T = 200; PK = 216
        misc = Side(s.stats_load_items(STR[0], 's86', 'st') + s.stats_load_items(STR[1], 's87', 'st'))
        def unit(c, side, per_beat):
            vg = vTR0 if c == 0 else vTR1
            vu = 'v12' if c == 0 else 'v13'
            def rdg(ks):
                reg = FS[ks % 3]
                a.ds(f'ds_read_b64_tr_b16 v[{reg}:{reg+1}], {vg} offset:{L_WG+(16*ks)*128}', ('fg', ks))
                a.ds(f'ds_read_b64_tr_b16 v[{reg+2}:{reg+3}], {vg} offset:{L_WG+(16*ks+8)*128}', ('fg', ks))
            def rdu(ks):
                reg = FS[ks % 3] + 4
                a.ds(f'ds_read_b64_tr_b16 v[{reg}:{reg+1}], {vu} offset:{(16*ks)*128}', ('fu', ks))
                a.ds(f'ds_read_b64_tr_b16 v[{reg+2}:{reg+3}], {vu} offset:{(16*ks+8)*128}', ('fu', ks))
            (G_, U_) = GU[c]
            CF = (100, 104, 108)
            def rdc(ks):
                reg = CF[ks % 3]
                a.ds(f'ds_read_b64_tr_b16 v[{reg}:{reg+1}], v233 offset:{(16*ks)*128}', ('fc', ks))
                a.ds(f'ds_read_b64_tr_b16 v[{reg+2}:{reg+3}], v233 offset:{(16*ks+8)*128}', ('fc', ks))
            rdg(0); rdu(0); rdg(1); rdu(1)
            if c == 0: rdc(0); rdc(1)
            for ks in range(28):
                b0 = FS[ks % 3]
                if c == 0 and ks == (12 if LATEU else 18):
                    a('s_barrier')
                for j, (acc, fo, b) in enumerate(((G_[0], 0, 0), (G_[1], 0, 1), (U_[0], 4, 0), (U_[1], 4, 1))):
                    if c == 0 and j < 2: a.wait_vm(('x', ks, b))
                    if j == 0: a.wait_lg(('fg', ks))
                    if j == 2: a.wait_lg(('fu', ks))
                    cc = '0' if ks == 0 else f'v[{acc}:{acc+15}]'
                    a(f'v_mfma_f32_32x32x16_bf16 v[{acc}:{acc+15}], v[{b0+fo}:{b0+fo+3}], a[{8*ks+4*b}:{8*ks+4*b+3}], {cc}')
                    if j == 0 and ks+2 < 28: rdg(ks+2)
                    if j == 2 and ks+2 < 28: rdu(ks+2)
                    if c == 0 and j == 3:
                        a.wait_lg(('fc', ks))
                        reg = CF[ks % 3]
                        cc2 = '0' if ks == 0 else 'v[80:95]'
                        a(f'v_mfma_f32_32x32x16_bf16 v[80:95], v[{reg}:{reg+3}], v[96:99], {cc2}')
                        if ks+2 < 28: rdc(ks+2)
                    if c == 0:
                        if j in (0, 2) and ks + XD < 28: xload(ks+XD, j >> 1)
                        if j == 3 and ks >= 8: side.emit(a)
                    else:
                        side.emit_budget(a, per_beat[j])
            side.flush(a)
        a(f's_and_b32 {sT0}, {sW}, 1'); a(f's_lshl_b32 {sT0}, {sT0}, 6'); a(f'v_xor_b32 v233, {sT0}, {vTR0}')
        a(f's_lshr_b32 {sT0}, {sW}, 1'); a(f's_mul_i32 {sT0}, {sT0}, {L_WU}'); a(f'v_add_u32 v233, {sT0}, v233')
        for i in range(4): a(f'v_mov_b32 v{96+i}, 0x3f803f80')
        unit(0, misc, None)
        vm_st = None
        s.resid_loads(224, sX1)
        if not IDLEP:
            if not HSC:
                s.pretouch('s88', 32); s.pretouch('s89', 32)
        g.stamp('p3 gemm 0')
        a(f's_lshl_b32 {sT1}, {sW}, 7'); a(f's_add_u32 {sT1}, {sT1}, {M_CSFF}')
        a(f'v_add_u32 v232, {sT1}, {vCS}')
        a('s_mov_b32 exec_lo, 1'); a('s_mov_b32 exec_hi, 1')
        for gq in range(4):
            a.ds(f'ds_write_b128 v232, v[{80+4*gq}:{83+4*gq}] offset:{32*gq}', 'csw')
        a('s_mov_b64 exec, -1')
        a.wait_lg0()
        a('s_barrier')
        a.wait_vm('st')
        run_list(a, s.stats_list(STR[0], NM[0], RS[0], 'v234', 'v235') + s.stats_list(STR[1], NM[1], RS[1], 'v234', 'v235'))
        KC = (224+8+0, 236)
        KC = (228+0, 236)
        for b in range(2):
            K = (250, 236)[b]
            V = f'v{STR[b]+1}'
            a(f'v_mul_f32 v234, {RS[b]}, {RS[b]}')
            a(f'v_mov_b32 v{K+2}, {V}')
            a(f'v_mul_f32 v{K}, {fbits(C0)}, {RS[b]}')
            a(f'v_mul_f32 v234, v234, {RS[b]}')
            a(f'v_mul_f32 v{K+1}, {fbits(C1)}, v234')
        KC = (250, 236)
        a(f'v_add_u32 v232, {M_CSFF}, {vCS}')
        def epi(c, packed):
            L = []
            L += s.cs_read_items(CSG, 128*c, 'cs', 'v232') + s.cs_read_items(CSU, 256+128*c, 'cs', 'v232')
            L.append(lambda: a.wait_lg('cs'))
            for b in range(2):
                L += s.gelu_list(GU[c][0][b], GU[c][1][b], CSG, CSU, NM[b], KC[b], T, PK, packed)
                def st(b=b):
                    a.vmem(f'buffer_store_dwordx4 v[{PK}:{PK+3}], {vL16}, {WS}, s{88+b} offen offset:{2*c*1024} {HSC or STSC}', 'hs')
                    a.vmem(f'buffer_store_dwordx4 v[{PK+4}:{PK+7}], {vL16}, {WS}, s{88+b} offen offset:{(2*c+1)*1024} {HSC or STSC}', 'hs')
                L.append(st)
            return L
        g.stamp('p3 stats')
        e0 = epi(0, False)
        if MAINW:
            def wdt(i):
                def f():
                    a(f's_add_u32 {sT0}, s67, {16*i*896}')
                    a('s_mov_b64 exec, 0xffff')
                    a.vmem(f'buffer_load_dword {vDUM}, v233, {WD}, {sT0} offen', 'tw')
                    a('s_mov_b64 exec, -1')
                f.cost = 2
                return f
            a(f'v_mul_u32_u24 v233, 896, {vLANE}')
            a(f's_mul_i32 {sT0}, {sTQ}, 448'); a(f's_mul_i32 {sT1}, {sW}, 112'); a(f's_add_u32 {sT0}, {sT0}, {sT1}')
            a(f's_mul_i32 {sT0}, {sT0}, 896'); a(f's_lshl_b32 {sT1}, {sCT}, 7'); a(f's_add_u32 s67, {sT0}, {sT1}')
            step = (len(e0) - 30)//7
            out = []
            for i in range(7):
                out += e0[i*step:(i+1)*step] + [wdt(i)]
            e0 = out + e0[7*step:]
        unit(1, Side(e0), (BUD_A, BUD_B, BUD_A, BUD_B))
        g.stamp('p3 gemm 1')
        a('s_barrier')
        a(f's_mul_i32 s90, {sW}, {448*896}'); a(f's_lshl_b32 {sT1}, {sCT}, 7'); a(f's_add_u32 s90, s90, {sT1}')
        a(f's_mul_i32 s91, {sW}, {RING}')
        wd = lambda i: s.dma_item(WD, vD896, 's90', i*8*896, 's91', (i % NSLOT)*1024, ('W', i))
        NA = 20
        e1 = epi(1, True)
        run_list(a, e1, Side([wd(i) for i in range(NA)]), max(1, len(e1)//(NA+2)))
        g.stamp('p3 epi 1')
        g.set_flag(s.fl(3))
        for i in range(NA, NSLOT): wd(i)()
        g.stamp('p3 done')

    def p4(s):
        a = s.a; g = s.g
        a.c('==== P4')
        a.rawlabel('L_code_p4')
        a(f's_mov_b32 {sT5}, s91')
        s.tile_addrs(sT5)
        for b in range(2):
            a(f's_and_b32 {sT0}, {sW}, 1'); a(f's_xor_b32 {sT0}, {sT0}, {b}'); a(f's_lshl_b32 {sT1}, {sTQ}, 1')
            a(f's_add_u32 {sT0}, {sT0}, {sT1}'); a(f's_mul_i32 {sT0}, {sT0}, 114688'); a(f's_add_u32 {sT0}, {sT0}, {sH}')
            a(f's_mul_i32 {sT1}, {sW}, {28*1024}'); a(f's_add_u32 s{82+b}, {sT0}, {sT1}')
        s.wait_saved()
        g.wait_flags(s.fl(3), 0x0fffffff, vt='v10', va='v11', keep_vm=True)
        g.stamp('p4 hop done')
        wd = lambda i: s.dma_item(WD, vD896, 's90', i*8*896, 's91', (i % NSLOT)*1024, ('W', i))
        def hload(ks, b):
            a(f's_add_u32 {sT6}, s{82+b}, {(ks//4)*4096}')
            a.vmem(f'buffer_load_dwordx4 a[{8*ks+4*b}:{8*ks+4*b+3}], {vL16}, {WS}, {sT6} offen offset:{(ks%4)*1024} {LDSC}', ('h', ks, b))
        HD = 4
        for ks in range(HD):
            hload(ks, 0); hload(ks, 1)
        ACC = 16; FS = (80, 88, 104)
        def rd(ks):
            reg = FS[ks % 3]
            off = ((2*ks) % NSLOT)*1024
            a.wait_vm(('W', 2*ks+1))
            for sl in range(2):
                va = 'v14' if sl == 0 else 'v15'
                a.ds(f'ds_read_b64_tr_b16 v[{reg+4*sl}:{reg+4*sl+1}], {va} offset:{off}', ('f', ks, sl))
                a.ds(f'ds_read_b64_tr_b16 v[{reg+4*sl+2}:{reg+4*sl+3}], {va} offset:{off+1024}', ('f', ks, sl))
        rd(0); rd(1)
        for ks in range(28):
            b0 = FS[ks % 3]
            for j, (sa, sb) in enumerate(((0, 0), (0, 1), (1, 0), (1, 1))):
                if j < 2: a.wait_vm(('h', ks, sb))
                if j in (0, 2): a.wait_lg(('f', ks, sa))
                R = ACC + 16*(2*sa+sb)
                c = '0' if ks == 0 else f'v[{R}:{R+15}]'
                a(f'v_mfma_f32_32x32x16_bf16 v[{R}:{R+15}], v[{b0+4*sa}:{b0+4*sa+3}], a[{8*ks+4*sb}:{8*ks+4*sb+3}], {c}')
                if j == 0 and ks+2 < 28: rd(ks+2)
                if j in (0, 2) and ks + HD < 28: hload(ks+HD, j >> 1)
                if j in (1, 3) and ks >= 1 and 2*(ks-1) + NSLOT < 56: wd(2*(ks-1) + NSLOT + (j >> 1))()
        g.stamp('p4 gemm')
        a('s_barrier')
        P3W = ((1, 1), (2, 2), (3, 3))
        Lf = a.newlabel('Lfin'); Le = a.newlabel('Lp4e')
        a(f's_cmp_lg_u32 {sL}, 0'); a(f's_cbranch_scc1 {Lf}')
        side = Side(s.wq_items())
        s.red_write(ACC, RED4, parts=P3W, side=side)
        Lr = s.red_list(ACC, 224)
        n_in = int(os.environ.get('NIN', '8'))
        part = Side([side.q.popleft() for _ in range(n_in)])
        run_list(a, Lr, part, max(1, len(Lr)//(n_in+1)))
        run_list(a, s.store_x_list(ACC, sXO, sSTO))
        g.set_flag(s.fl(4))
        side.flush(a)
        a(f's_branch {Le}')
        a.label(Lf)
        a.vm = []; a.lg = []
        s.red_write(ACC, RED4, parts=P3W)
        run_list(a, s.red_list(ACC, 224) + s.store_out_list(ACC))
        a('s_branch L_fin')
        a.label(Le)
        g.stamp('p4 epi')

    def run(s):
        a = s.a; g = s.g; stop = s.stop
        a.label('L_layer')
        s.layer_setup()
        s.p1()
        s.p2a()
        a(f's_cmp_ge_u32 {sM}, 28'); a('s_cbranch_scc1 L_idle')
        s.p2b()
        s.p3()
        s.p4()
        a('s_branch L_next')
        a.label('L_idle')
        a.vm = []; a.lg = []
        a(f's_sub_u32 {sT0}, {sM}, 28'); a(f's_lshl_b32 {sT0}, {sT0}, 2'); a(f's_add_u32 s86, {sT0}, {sW}')
        if LATEU:
            a(f's_mul_i32 s87, s86, {392*128}'); a(f's_add_u32 s87, s87, {224*3584}')
            for i in range(7):
                a(f's_add_u32 {sT1}, s87, {i*64*128}')
                if i == 6: a('s_mov_b64 exec, 0xff')
                a(f'buffer_load_dword {vDUM}, {vL128}, {WU}, {sT1} offen')
                if i == 6: a('s_mov_b64 exec, -1')
            a(f's_mul_i32 s87, s86, {224*128}'); a(f's_add_u32 s87, s87, {320*3584}')
            for i in range(4):
                a(f's_add_u32 {sT1}, s87, {i*64*128}')
                if i == 3: a('s_mov_b64 exec, 0xffffffff')
                a(f'buffer_load_dword {vDUM}, {vL128}, {WG}, {sT1} offen')
                if i == 3: a('s_mov_b64 exec, -1')
        if IDLEP and PRET:
            if not HSC:
                a(f's_mul_i32 s87, s86, {448*128}'); a(f's_add_u32 s87, s87, {sH}')
                for i in range(7):
                    a(f's_add_u32 {sT1}, s87, {i*64*128}')
                    a(f'buffer_load_dword {vDUM}, {vL128}, {WS}, {sT1} offen')
        if IDLEW:
            a(f's_mul_i32 s87, s86, {784*128}')
            for i in range(13):
                a(f's_add_u32 {sT1}, s87, {i*64*128}')
                a(f'buffer_load_dword {vDUM}, {vL128}, {WD}, {sT1} offen')
        Li0 = a.newlabel('Lidle0')
        a(f's_cmp_eq_u32 {sL}, 0'); a(f's_cbranch_scc1 {Li0}')
        if WBL:
            g.wait_flags(s.fl(3), 0x0fffffff, vt='v10', va='v11', drain=True)
            def wb():
                Lx = a.newlabel('Lx'); a(f's_cmp_lg_u32 {sM}, 28'); a(f's_cbranch_scc1 {Lx}')
                a('buffer_wbl2 sc1'); a('s_waitcnt vmcnt(0)')
                a.label(Lx)
            g.wave_only(0, wb)
        a('s_branch L_fin')
        a.label(Li0)
        if IDLEP and PRET:
            a(f's_mul_i32 s87, s86, {112*128}'); a(f's_add_u32 s87, s87, {sXO}')
            for i in range(2):
                a(f's_add_u32 {sT1}, s87, {i*64*128}')
                if i == 1: a('s_mov_b32 exec_hi, 0xffff')
                a(f'buffer_load_dword {vDUM}, {vL128}, {WS}, {sT1} offen')
                if i == 1: a('s_mov_b64 exec, -1')
            a(f's_mul_i32 s87, s86, {14*128}'); a(f's_add_u32 s87, s87, {sSTO}')
            a('s_mov_b64 exec, 0x3fff')
            a(f'buffer_load_dword {vDUM}, {vL128}, {WS}, s87 offen')
            a('s_mov_b64 exec, -1')
        s.wait_saved(all_heads=True)
        a('s_waitcnt vmcnt(0)'); a('s_barrier')
        for it in s.wq_items(): it()
        if IDLEQ:
            g.wait_flags(s.fl(3), 0x0fffffff, vt='v10', va='v11', drain=True)
            a(f's_mul_i32 s87, s86, {672*128}'); a(f's_add_u32 s87, s87, {G0 + WQ}')
            for i in range(11):
                a(f's_add_u32 {sT1}, s87, {i*64*128}')
                a(f'buffer_load_dword {vDUM}, {vL128}, {WS}, {sT1} offen')
        a.label('L_next')
        a.vm = []; a.lg = []
        a(f's_mul_i32 {sT0}, {sHALF}, 14'); a(f's_lshl_b32 s81, 0x3fff, {sT0}')
        g.wait_flags(s.fl(4), 's81', vt='v10', va='v11', drain=True)
        g.stamp('p4 hop(x2)')
        a(f's_mov_b32 {sL}, 1')
        a('s_branch L_layer')
```

```python
import sys
from asmlib import Asm
from layout import *

NAME = 'interleave_layers__linear_kernel_hedgehog__geglu_ffn__prompt_kernel'

WS='s[4:7]'; WO='s[8:11]'; WG='s[12:15]'; WU='s[16:19]'; WD='s[20:23]'; OUT='s[24:27]'; DBG='s[28:31]'
AX='s[32:35]'; WQKV='s[36:39]'; WPHI='s[40:43]'
sG='s44'; sM='s45'; sW='s46'; sL='s47'; sHEAVY='s48'; sGB='s49'; sTO='s50'
sXIN='s51'; sSTIN='s52'; sX1='s53'; sST1='s54'; sXO='s55'; sSTO='s56'; sO='s57'; sH='s58'; sKV='s59'; sKVC='s60'; sFL='s61'
sXCC='s62'; sHEAD='s63'; sHALF='s64'; sTQ='s65'; sCT='s66'
sUP='s[96:97]'
sT0='s68'; sT1='s69'; sT2='s70'; sT3='s71'; sT4='s72'; sT5='s73'; sT6='s74'; sT7='s75'
sP0='s[76:77]'; sP1='s[78:79]'
vLANE='v0'; vL16='v1'; vTR64='v2'; vTR0='v3'; vTR1='v4'; vD896='v5'; vD3584='v6'; vSTA='v7'; vCS='v8'; vSTAMP='v9'
LDS_TOTAL = 163840
MISC = LDS_TOTAL - 2048
M_MODE = MISC
M_CSQKV = MISC + 128
M_CSFF  = MISC + 512
L_WK=0; L_WV=28672; L_WQ=57344
L_PHI=86016; L_VI=102400; L_KVF=110592
LOG2E = 1.4426950408889634
import os
STSC = os.environ.get('STSC','')
STSC0 = os.environ.get('STSC0','sc1')
CPF = int(os.environ.get('CPF','1'))
WARM = int(os.environ.get('WARM','1'))
TIMEOUT = 100000
TOUCH0 = int(os.environ.get('TOUCH0','1'))

def fbits(x):
    import struct
    return '0x%08x' % struct.unpack('<I', struct.pack('<f', x))[0]

class Gen:
    def __init__(s, stop_after=None, stamps=False, force_heavy=False):
        s.a = Asm(); s.stop_after = stop_after; s.stamps = stamps; s.force_heavy = force_heavy
        s.nstamp = 0
        s.stamp_names = []

    def stamp(s, name):
        if not s.stamps: return
        a = s.a
        i = s.nstamp; s.nstamp += 1; s.stamp_names.append(name)
        a('s_waitcnt lgkmcnt(0)'); a.lg = []
        a('s_memtime s[94:95]')
        a('s_waitcnt lgkmcnt(0)')
        a(f's_lshl_b32 s95, {sL}, 5')
        a(f's_add_u32 s95, s95, {i}')
        a('s_mov_b32 s93, m0')
        a('s_mov_b32 m0, s95')
        a(f'v_writelane_b32 {vSTAMP}, s94, m0')
        a('s_mov_b32 m0, s93')

    def wave_only(s, w, fn):
        a = s.a
        L = a.newlabel('Lw')
        a(f's_cmp_lg_u32 {sW}, {w}')
        a(f's_cbranch_scc1 {L}')
        fn()
        a.label(L)

    def wave_in(s, lo, hi, fn):
        a = s.a
        L = a.newlabel('Lw')
        if lo > 0:
            a(f's_cmp_lt_u32 {sW}, {lo}'); a(f's_cbranch_scc1 {L}')
        if hi < 4:
            a(f's_cmp_ge_u32 {sW}, {hi}'); a(f's_cbranch_scc1 {L}')
        fn()
        a.label(L)

    def poll(s, srd, voff, soff, expect, mask=None, sc='sc1', vt='v10'):
        a = s.a
        Lp = a.newlabel('Lpoll'); Ld = a.newlabel('Ldone'); Lt = a.newlabel('Lto')
        a(f's_cmp_lg_u32 {sTO}, 0'); a(f's_cbranch_scc1 {Ld}')
        a(f's_mov_b32 {sT7}, 0')
        a.label(Lp)
        if voff is None:
            a(f'buffer_load_dword {vt}, off, {srd}, {soff} {sc}')
        else:
            a(f'buffer_load_dword {vt}, {voff}, {srd}, {soff} offen {sc}')
        a('s_waitcnt vmcnt(0)')
        a(f'v_cmp_ne_u32 vcc, {expect}, {vt}')
        a(f's_add_u32 {sT7}, {sT7}, 1')
        if mask is not None:
            a(f's_and_b64 vcc, vcc, {mask}')
        a('s_cmp_eq_u64 vcc, 0')
        a(f's_cbranch_scc1 {Ld}')
        a(f's_cmp_lt_u32 {sT7}, {TIMEOUT}')
        a(f's_cbranch_scc1 {Lp}')
        a(f's_mov_b32 {sTO}, 1')
        a.label(Ld)

    def set_flag(s, phase_off):
        a = s.a
        a.wait_all()
        a('s_barrier')
        def w0():
            Lh = a.newlabel('Lh'); Le = a.newlabel('Le')
            a(f's_lshl_b32 {sT0}, {sM}, 2')
            a(f's_add_u32 {sT0}, {sT0}, {phase_off}')
            a('v_mov_b32 v10, 1')
            a('s_mov_b64 exec, 1')
            a(f's_cmp_lg_u32 {sHEAVY}, 0'); a(f's_cbranch_scc1 {Lh}')
            a(f'buffer_store_dword v10, off, {WS}, {sT0}')
            a(f's_branch {Le}')
            a.label(Lh)
            a('buffer_wbl2 sc1')
            a('s_waitcnt vmcnt(0)')
            a(f'buffer_store_dword v10, off, {WS}, {sT0} sc1')
            a.label(Le)
            a('s_mov_b64 exec, -1')
        s.wave_only(0, w0)

    def wait_flags(s, phase_off, mask_lo, vt='v10', va='v11', keep_vm=False, drain=False):
        a = s.a
        vm = list(a.vm)
        def w0():
            a(f's_mov_b32 s76, {mask_lo}'); a('s_mov_b32 s77, 0')
            a(f'v_and_b32 {va}, 31, {vLANE}'); a(f'v_lshlrev_b32 {va}, 2, {va}')
            s.poll(WS, va, phase_off, 1, mask=sP0, vt=vt)
            Le = a.newlabel('Le')
            a(f's_cmp_eq_u32 {sHEAVY}, 0'); a(f's_cbranch_scc1 {Le}')
            a('buffer_inv sc1'); a('s_waitcnt vmcnt(0)')
            a.label(Le)
        s.wave_only(0, w0)
        if drain:
            a.wait_vm0()
        else:
            a.vm = vm
        a('s_barrier')

    def lane_consts(s):
        a = s.a
        a(f'v_lshlrev_b32 {vL16}, 4, {vLANE}')
        a(f'v_lshrrev_b32 v10, 5, {vLANE}')
        a(f'v_and_b32 v11, 15, {vLANE}')
        a('v_lshrrev_b32 v12, 2, v11')
        a(f'v_bfe_u32 v13, {vLANE}, 4, 1')
        a('v_and_b32 v14, 3, v11')
        a('v_lshl_add_u32 v15, v10, 2, v12')
        a('v_lshlrev_b32 v16, 5, v13'); a('v_lshl_add_u32 v16, v14, 3, v16')
        a(f'v_lshl_add_u32 {vTR64}, v15, 6, v16')
        a('v_lshl_add_u32 v17, v15, 7, v16')
        a('v_lshrrev_b32 v18, 1, v12')
        a(f'v_lshl_add_u32 {vTR0}, v18, 6, v17')
        a('v_xor_b32 v18, 1, v18')
        a(f'v_lshl_add_u32 {vTR1}, v18, 6, v17')
        a(f'v_lshrrev_b32 v19, 3, {vLANE}')
        a(f'v_and_b32 v20, 7, {vLANE}')
        a('v_lshlrev_b32 v21, 2, v13')
        a('v_xor_b32 v20, v20, v21'); a('v_lshlrev_b32 v20, 4, v20')
        a(f'v_mul_u32_u24 {vD896}, 896, v19'); a(f'v_add_u32 {vD896}, {vD896}, v20')
        a(f'v_mul_u32_u24 {vD3584}, 3584, v19'); a(f'v_add_u32 {vD3584}, {vD3584}, v20')
        a(f'v_and_b32 v22, 31, {vLANE}'); a('v_lshlrev_b32 v22, 3, v22')
        a(f'v_mul_u32_u24 {vSTA}, 1792, v10'); a(f'v_add_u32 {vSTA}, {vSTA}, v22')
        a(f'v_lshlrev_b32 {vCS}, 4, v10')

    def prologue(s):
        a = s.a
        a('s_cmp_ge_u32 s2, 256'); a('s_cbranch_scc1 L_end')
        a('s_load_dwordx4 s[32:35], s[0:1], 0')
        a('s_load_dwordx2 s[40:41], s[0:1], 16')
        a('s_load_dwordx2 s[8:9], s[0:1], 24')
        a('s_load_dwordx2 s[12:13], s[0:1], 40')
        a('s_load_dwordx2 s[16:17], s[0:1], 48')
        a('s_load_dwordx2 s[20:21], s[0:1], 56')
        a('s_load_dwordx2 s[24:25], s[0:1], 64')
        a('s_load_dwordx2 s[28:29], s[0:1], 72')
        a('s_load_dwordx2 s[4:5], s[0:1], 80')
        a(f's_getreg_b32 {sXCC}, hwreg(HW_REG_XCC_ID, 0, 4)')
        a(f's_and_b32 {sG}, s2, 7'); a(f's_lshr_b32 {sM}, s2, 3')
        a('v_lshrrev_b32 v10, 6, v0')
        a(f'v_and_b32 {vLANE}, 63, v0')
        a(f'v_readfirstlane_b32 {sW}, v10')
        a(f's_mov_b32 {sL}, 0'); a(f's_mov_b32 {sHEAVY}, 0'); a(f's_mov_b32 {sTO}, 0')
        a(f's_mul_i32 {sGB}, {sG}, {GS}'); a(f's_add_u32 {sGB}, {sGB}, {G0}')
        a(f's_and_b32 {sHEAD}, {sM}, 15'); a(f's_lshr_b32 {sHALF}, {sM}, 4')
        a(f's_mul_i32 {sTQ}, {sM}, 37'); a(f's_lshr_b32 {sTQ}, {sTQ}, 8')
        a(f's_mul_i32 {sT0}, {sTQ}, 7'); a(f's_sub_u32 {sCT}, {sM}, {sT0}')
        a('s_mov_b32 s96, 0'); a('s_mov_b32 s97, -1')
        a('s_getpc_b64 s[98:99]')
        a.rawlabel('L_pc')
        a(f's_sub_u32 s98, s98, L_pc-{NAME}'); a('s_subb_u32 s99, s99, 0')
        if s.stamps: a(f'v_mov_b32 {vSTAMP}, 0')
        for (b, n) in ((6, WS_BYTES), (10, D*D*2), (14, D*F*2), (18, D*F*2), (22, F*D*2), (26, S*D*2), (30, 256), (42, NH*DH*DH*2)):
            a(f's_mov_b32 s{b}, {n}'); a(f's_mov_b32 s{b+1}, 0x20000')
        a('s_waitcnt lgkmcnt(0)')
        a('s_mov_b32 s36, s34'); a('s_mov_b32 s37, s35')
        a(f's_mov_b32 s34, {S*D*2}'); a('s_mov_b32 s35, 0x20000')
        a(f's_mov_b32 s38, {D*3*D*2}'); a('s_mov_b32 s39, 0x20000')
        s.stamp('start')
        if s.stamps:
            a('s_memrealtime s[100:101]'); a('s_waitcnt lgkmcnt(0)')

    def p0(s):
        a = s.a
        a.c('==== P0')
        XS = 47104; XSW = 28672
        from phases import Phases
        s.P = Phases(s)
        def w0():
            a(f's_lshl_b32 {sFL}, {sG}, 11')
            if FLAGS: a(f's_add_u32 {sFL}, {sFL}, {FLAGS}')
            a(f'v_lshlrev_b32 v11, 7, {vLANE}')
            a('v_mov_b32 v12, 0'); a('v_mov_b32 v13, 0'); a('v_mov_b32 v14, 0'); a('v_mov_b32 v15, 0')
            a('s_mov_b64 exec, 0xffff')
            a(f'buffer_load_dword v254, v11, {WS}, {sFL} offen')
            a(f's_lshl_b32 {sT0}, {sM}, 2'); a(f's_add_u32 {sT0}, {sT0}, {sFL}')
            a(f'buffer_store_dword v12, v11, {WS}, {sT0} offen')
            a('s_mov_b64 exec, -1')
            a(f'v_lshlrev_b32 v16, 4, {vLANE}')
            a(f's_lshl_b32 {sT0}, s2, 10'); a(f's_add_u32 {sT0}, {sT0}, {KV}')
            a(f'buffer_store_dwordx4 v[12:15], v16, {WS}, {sT0} offen sc1')
            L = a.newlabel('Lz')
            a('s_cmp_ge_u32 s2, 32'); a(f's_cbranch_scc1 {L}')
            a(f's_lshl_b32 {sT0}, s2, 7'); a(f's_add_u32 {sT0}, {sT0}, {KVC}')
            a('s_mov_b64 exec, 1')
            a(f'buffer_store_dword v12, off, {WS}, {sT0} sc1')
            a('s_mov_b64 exec, -1')
            a.label(L)
        s.wave_only(0, w0)
        a(f'v_lshrrev_b32 v10, 3, {vLANE}'); a('v_mul_u32_u24 v10, 896, v10')
        a(f'v_and_b32 v11, 7, {vLANE}'); a(f'v_lshrrev_b32 v12, 4, {vLANE}'); a('v_xor_b32 v11, v11, v12')
        a('v_lshl_add_u32 v40, v11, 4, v10'); a('v_xor_b32 v41, 64, v40')
        a(f's_lshl_b32 {sT0}, {sG}, 8'); a(f's_lshl_b32 {sT1}, {sHALF}, 7'); a(f's_add_u32 {sT0}, {sT0}, {sT1}')
        a(f's_lshl_b32 {sT1}, {sW}, 5'); a(f's_add_u32 {sT0}, {sT0}, {sT1}'); a(f's_mul_i32 s82, {sT0}, 896')
        a(f's_mul_i32 s83, {sW}, {XSW}'); a(f's_add_u32 s83, s83, {XS}')
        for L in range(7):
            for rb in range(4):
                a(f's_add_u32 m0, s83, {L*4096 + rb*1024}')
                a(f's_add_u32 {sT2}, s82, {rb*8*896 + L*128}')
                a.vmem(f'buffer_load_dwordx4 v{40 + (rb & 1)}, {AX}, {sT2} offen lds', 'x')
        s.stamp('p0 x issued')
        def reg():
            a(f's_mul_i32 {sT1}, {sXCC}, {sXCC}'); a(f's_lshl_b32 {sT1}, {sT1}, 10'); a(f's_add_u32 {sT1}, {sT1}, {sXCC}')
            a(f's_add_u32 {sT1}, {sT1}, {1<<26}')
            a(f'v_mov_b32 v10, {sT1}')
            a(f's_lshl_b32 {sT2}, {sG}, 5')
            a('s_waitcnt vmcnt(28)')
            a('s_mov_b64 exec, 1')
            a(f'buffer_atomic_add v10, off, {DBG}, {sT2} sc1')
            a('s_mov_b64 exec, -1')
        s.wave_only(0, reg)
        if CPF: s.wave_only(3, lambda: s.code_prefetch(NAME, 'L_code_p2b'))
        a(f'v_lshrrev_b32 v10, 2, {vLANE}'); a('v_mul_u32_u24 v10, 2688, v10')
        a(f'v_and_b32 v11, 3, {vLANE}'); a('v_lshl_add_u32 v42, v11, 4, v10')
        a(f's_mul_i32 s84, {sHEAD}, 56'); a(f's_mul_i32 {sT0}, {sW}, {16*2688}'); a(f's_add_u32 s84, s84, {sT0}')
        a(f's_lshl_b32 s85, {sW}, 10')
        def wdma(slot, i, tag):
            col = (896, 1792, 0)[slot]
            a(f's_add_u32 m0, s85, {slot*28672 + i*4096}')
            a(f's_add_u32 {sT2}, s84, {col + i*4*16*2688}')
            a.vmem(f'buffer_load_dwordx4 v42, {WQKV}, {sT2} offen lds', tag)
        from phases import Side
        wearly = Side([(lambda i=i: wdma(0, i, 'Wkv')) for i in range(7)] + [(lambda i=i: wdma(1, i, 'Wkv')) for i in range(4)])
        wearly.emit(a, 2)
        s.lane_consts()
        s.P.persistent_addrs()
        a(f'v_and_b32 v10, 31, {vLANE}'); a('v_bfe_u32 v11, v10, 1, 3'); a('v_lshlrev_b32 v11, 4, v11')
        a('v_lshl_add_u32 v11, v10, 7, v11'); a(f'v_lshrrev_b32 v12, 5, {vLANE}'); a('v_lshl_add_u32 v11, v12, 3, v11')
        a('v_add_u32 v11, s83, v11')
        for c in range(8): a(f'v_xor_b32 v{44+c}, {c << 4}, v11')
        a('v_mov_b32 v54, 0'); a('v_mov_b32 v55, 0')
        for r in range(60, 64): a(f'v_mov_b32 v{r}, 0x3f803f80')
        a.wait_vm('x')
        s.stamp('p0 x landed')
        def reads(L):
            for q in range(4):
                ks = 4*L + q
                for b in range(2):
                    a.ds(f'ds_read_b64 a[{4*ks+2*b}:{4*ks+2*b+1}], v{44+2*q+b} offset:{L*4096}', ('xa', L))
            for q in range(4):
                for b in range(2):
                    R = 128 + 16*(L % 3) + 4*q + 2*b
                    a.ds(f'ds_read_b64 v[{R}:{R+1}], v{44+2*q+b} offset:{L*4096}', ('xv', L))
        reads(0)
        for L in range(7):
            if L+1 < 7: reads(L+1)
            a.wait_lg(('xv', L))
            for q in range(4):
                ks = 4*L + q
                c = '0' if ks == 0 else 'v[64:79]'
                a(f'v_mfma_f32_32x32x16_bf16 v[64:79], v[60:63], a[{4*ks}:{4*ks+3}], {c}')
                for i in range(4):
                    R = 128 + 16*(L % 3) + 4*q + i
                    a(f'v_dot2c_f32_bf16 v{54 + (i & 1)}, v{R}, v{R}')
                if q & 1: wearly.emit(a)
        wearly.flush(a)
        a.wait_lg0()
        a('s_barrier')
        s.stamp('p0 x read')
        for i in range(4, 7): wdma(1, i, 'Wkv')
        def wp():
            a(f's_mul_i32 {sT0}, {sHEAD}, 1568'); a(f's_mov_b32 m0, {L_PHI}')
            a(f'buffer_load_dwordx4 {vL16}, {WPHI}, {sT0} offen lds')
            a(f's_add_u32 {sT0}, {sT0}, 1024'); a(f's_mov_b32 m0, {L_PHI + 1024}')
            a(f'buffer_load_dwordx4 {vL16}, {WPHI}, {sT0} offen lds')
        s.wave_only(0, wp)
        for i in range(7): wdma(2, i, 'Wq')
        a('v_add_f32 v54, v54, v55')
        a('v_mov_b32 v55, v54')
        a('v_permlane32_swap_b32 v54, v55')
        a('v_add_f32 v54, v54, v55')
        a(f'v_mul_f32 v234, {fbits(-1.0/448)}, v64'); a(f'v_mul_f32 v54, {fbits(1.0/448)}, v54')
        a('v_fma_f32 v54, -v234, v234, v54'); a('v_max_f32 v54, 0, v54'); a(f'v_add_f32 v54, {fbits(1e-5)}, v54')
        a('v_rsq_f32 v235, v54')
        a.wait_vm('Wkv')
        def wpw(): a('s_waitcnt vmcnt(7)')
        s.wave_only(0, wpw)
        a('s_barrier')
        s.stamp('p1 W landed')
        a(f'v_and_b32 v10, 31, {vLANE}'); a(f'v_lshrrev_b32 v11, 5, {vLANE}')
        a('v_lshrrev_b32 v12, 3, v10'); a('v_sub_u32 v12, v10, v12')
        a('v_lshlrev_b32 v12, 1, v12'); a('v_mul_u32_u24 v13, 224, v11'); a('v_add_u32 v12, v12, v13'); a(f'v_add_u32 v12, {L_PHI}, v12')
        a('v_and_b32 v10, 7, v10')
        for e in range(2):
            for b in range(2):
                for r in range(4):
                    a.ds(f'ds_read_u16 v{96 + 8*e + 4*b + r}, v12 offset:{(16*e+8*b+r)*56}', 'wp')
        def warm():
            a(f'v_lshlrev_b32 v15, 7, {vLANE}')
            a(f's_mul_i32 {sT1}, s2, {49*128}')
            a('s_mov_b32 exec_lo, -1'); a('s_mov_b32 exec_hi, 0x1ffff')
            for srd in (WG, WU, WD):
                a(f'buffer_load_dword v254, v15, {srd}, {sT1} offen')
            a(f's_mul_i32 {sT1}, s2, {13*128}')
            a('s_mov_b64 exec, 0x1fff')
            a(f'buffer_load_dword v254, v15, {WO}, {sT1} offen')
            a('s_mov_b64 exec, -1')
        if WARM: s.wave_only(3, warm)
        s.P.colsum_kv()
        a('v_cmp_gt_u32 vcc, 7, v10')
        a.wait_lg0()
        for i in range(8):
            a(f'v_lshl_or_b32 v{96+2*i}, v{97+2*i}, 16, v{96+2*i}')
        for i in range(8):
            a(f'v_cndmask_b32 v{96+2*i}, 0, v{96+2*i}, vcc')
        for i in (6, 7):
            a(f'v_cndmask_b32 v{96+2*i}, v{96+2*i}, 0, {sUP}')
        for i in range(8):
            a(f'v_accvgpr_write_b32 a{248+i}, v{96+2*i}')
        a.vm = []; a.lg = []
        s.stamp('p0 done')

    def code_prefetch(s, l0, l1, v='v10', vd='v255'):
        a = s.a
        a(f's_mul_i32 {sT0}, {sM}, ((({l1}-{l0})+4095)/4096)*128')
        a(f's_add_u32 {sT0}, {sT0}, {l0}-{NAME}')
        a(f'v_lshlrev_b32 {v}, 7, {vLANE}'); a(f'v_add_u32 {v}, {sT0}, {v}')
        a(f'v_min_u32 {v}, CODE_BYTES-4, {v}')
        a(f's_mov_b32 exec_lo, (1<<((({l1}-{l0})+4095)/4096))-1'); a('s_mov_b32 exec_hi, 0')
        a(f'global_load_dword {vd}, {v}, s[98:99]')
        a('s_mov_b64 exec, -1')

    def registration_check(s):
        a = s.a
        Lp = a.newlabel('Lreg'); Ld = a.newlabel('Lregd'); Lc = a.newlabel('Lregc')
        a(f's_mov_b32 {sT7}, 0')
        a(f's_branch {Lc}')
        a.label(Lp)
        a(f'buffer_load_dword v232, v233, {DBG}, 0 offen sc1')
        a.label(Lc)
        a('s_waitcnt vmcnt(0)')
        a('v_lshrrev_b32 v13, 26, v232')
        a('v_cmp_ne_u32 vcc, 32, v13')
        a(f's_add_u32 {sT7}, {sT7}, 1')
        a('s_cmp_eq_u64 vcc, 0'); a(f's_cbranch_scc1 {Ld}')
        a(f's_cmp_lt_u32 {sT7}, {TIMEOUT}'); a(f's_cbranch_scc1 {Lp}')
        a(f's_mov_b32 {sTO}, 1')
        a.label(Ld)
        def w0():
            a(f'v_readlane_b32 {sT3}, v232, {sG}')
            a(f's_mul_i32 {sT1}, {sXCC}, {sXCC}'); a(f's_lshl_b32 {sT1}, {sT1}, 10'); a(f's_add_u32 {sT1}, {sT1}, {sXCC}')
            a(f's_lshl_b32 {sT1}, {sT1}, 5')
            a(f's_and_b32 {sT3}, {sT3}, {(1<<26)-1}')
            a(f's_cmp_lg_u32 {sT3}, {sT1}'); a(f's_cselect_b32 {sHEAVY}, 1, 0')
            if s.force_heavy: a(f's_mov_b32 {sHEAVY}, 1')
            Le = a.newlabel('Le')
            a(f's_cmp_eq_u32 {sHEAVY}, 0'); a(f's_cbranch_scc1 {Le}')
            a(f's_lshl_b32 {sT0}, {sG}, 11')
            if FLAGS: a(f's_add_u32 {sT0}, {sT0}, {FLAGS}')
            a(f's_lshl_b32 {sT1}, {sM}, 2'); a(f's_add_u32 {sT0}, {sT0}, {sT1}')
            a('v_mov_b32 v14, 0'); a(f'v_lshlrev_b32 v13, 7, {vLANE}')
            a('s_mov_b64 exec, 0xffff')
            a(f'buffer_store_dword v14, v13, {WS}, {sT0} offen sc1')
            a('s_waitcnt vmcnt(0)')
            a('s_mov_b64 exec, 1')
            a('v_mov_b32 v14, 1')
            a(f's_lshl_b32 {sT1}, {sG}, 5'); a(f's_add_u32 {sT1}, {sT1}, 8')
            a(f'buffer_atomic_add v14, off, {DBG}, {sT1} sc1')
            a('s_mov_b64 exec, -1')
            s.poll(DBG, None, sT1, 32, vt='v14')
            a.label(Le)
        s.wave_only(0, w0)

    def wphi_loads(s, track=False):
        a = s.a
        a(f'v_and_b32 v10, 31, {vLANE}'); a(f'v_lshrrev_b32 v11, 5, {vLANE}')
        a('v_lshlrev_b32 v12, 1, v10'); a('v_mul_u32_u24 v13, 224, v11'); a('v_add_u32 v12, v12, v13')
        a(f's_mul_i32 {sT5}, {sHEAD}, 1568')
        a('v_mov_b32 v14, 0x40000000')
        a('v_cmp_gt_u32 vcc, 28, v10')
        a('v_cndmask_b32 v12, v14, v12, vcc')
        a(f'v_cndmask_b32 v13, v12, v14, {sUP}')
        for e in range(2):
            for b in range(2):
                for r in range(4):
                    reg = 96 + 8*e + 4*b + r
                    va = 'v13' if (e == 1 and b == 1) else 'v12'
                    t = f'buffer_load_ushort v{reg}, {va}, {WPHI}, {sT5} offen offset:{(16*e+8*b+r)*56}'
                    if track: a.vmem(t, 'wphi')
                    else: a(t)

    def finish(s):
        a = s.a
        a.label('L_fin')
        if s.stamps:
            a('s_memrealtime s[94:95]'); a('s_waitcnt lgkmcnt(0)')
            a('s_sub_u32 s100, s94, s100')
            a(f'v_writelane_b32 {vSTAMP}, s100, 63')
            a('s_memtime s[94:95]'); a('s_waitcnt lgkmcnt(0)')
            a(f'v_writelane_b32 {vSTAMP}, s94, 62')
            def w0():
                a(f's_lshl_b32 {sT0}, s2, 8'); a(f's_add_u32 {sT0}, {sT0}, {STAMP}')
                a(f'v_lshlrev_b32 v10, 2, {vLANE}')
                a(f'buffer_store_dword {vSTAMP}, v10, {WS}, {sT0} offen')
            s.wave_only(int(os.environ.get('STAMPW','0')), w0)
            if os.environ.get('DBGOUT'):
                def wd():
                    L = a.newlabel('Ld'); a('s_cmp_lg_u32 s2, 0'); a(f's_cbranch_scc1 {L}')
                    idx = [int(x) for x in os.environ['DBGOUT'].split(',')]
                    a(f'v_readlane_b32 s93, {vSTAMP}, 0')
                    slots = [3,4,5,6,7,9,10,11,12,13,14,15]
                    for sl, i in zip(slots, idx):
                        a(f'v_readlane_b32 s94, {vSTAMP}, {i}')
                        if i != 63: a('s_sub_u32 s94, s94, s93')
                        a('v_mov_b32 v10, s94'); a('s_mov_b64 exec, 1'); a(f's_mov_b32 s95, {sl*4}')
                        a(f'buffer_store_dword v10, off, {DBG}, s95'); a('s_mov_b64 exec, -1'); a('s_nop 1')
                    a.label(L)
                s.wave_only(0, wd)
        a('s_waitcnt vmcnt(0) lgkmcnt(0)')
        a.label('L_end')
        a('s_endpgm')
        a.label('L_code_end')

    def build(s):
        s.prologue()
        s.p0()
        if s.stop_after != 'p0':
            s.P.run()
        s.finish()
        body = s.a.finalize(True)
        hdr = open('interleave_layers__linear_kernel_hedgehog__geglu_ffn__prompt.s.ref').read().split('\n') if False else None
        head = HEADER
        return head + body + '\n' + f'.set CODE_BYTES, L_code_end-{NAME}\n' + FOOTER

HEADER = f'''; Persistent single-launch kernel: 256 workgroups (one per CU), 8 groups of 32 that share an L2.
; @launch grid=(256,1,1) block=(256,1,1) lds={LDS_TOTAL}
.amdgcn_target "amdgcn-amd-amdhsa--gfx950"
.text
.globl {NAME}
.p2align 8
.type {NAME},@function
{NAME}:
'''
FOOTER = f'''.section .rodata,"a"
.p2align 6
.amdhsa_kernel {NAME}
  .amdhsa_next_free_vgpr 512
  .amdhsa_next_free_sgpr 102
  .amdhsa_accum_offset 256
  .amdhsa_group_segment_fixed_size 0
  .amdhsa_kernarg_size 88
  .amdhsa_user_sgpr_count 2
  .amdhsa_user_sgpr_kernarg_segment_ptr 1
  .amdhsa_system_sgpr_workgroup_id_x 1
.end_amdhsa_kernel
'''

if __name__ == '__main__':
    import argparse
    ap = argparse.ArgumentParser()
    ap.add_argument('-o', default='k.s')
    ap.add_argument('--stop', default=None)
    ap.add_argument('--stamps', action='store_true')
    ap.add_argument('--heavy', action='store_true')
    args = ap.parse_args()
    g = Gen(stop_after=args.stop, stamps=args.stamps, force_heavy=args.heavy)
    txt = g.build()
    open(args.o, 'w').write(txt)
    open(args.o+'.stamps','w').write(','.join(g.stamp_names))
    print('written', args.o, len(txt), 'bytes;', 'stamps:', g.stamp_names)
```

```python
from gen import *
import gen as G
import math, os
from collections import deque

C0 = -2.0*LOG2E*math.sqrt(2.0/math.pi)
C1 = C0*0.044715
PRET = int(os.environ.get('PRET', '0'))
IDLEW = int(os.environ.get('IDLEW', '0'))
CS1 = int(os.environ.get('CS1', '0'))
BUD_A = int(os.environ.get('BUD_A', '4')); BUD_B = int(os.environ.get('BUD_B', '5'))
MAINW = int(os.environ.get('MAINW', '1'))
IDLEQ = int(os.environ.get('IDLEQ', '1'))
LATEU = int(os.environ.get('LATEU', '1'))
WBL = int(os.environ.get('WBL', '0'))
OUTSC = os.environ.get('OUTSC', '')
SAVE_LATE = int(os.environ.get('SAVE_LATE', '1'))
IDLEP = int(os.environ.get('IDLEP', '1'))
PFA = int(os.environ.get('PFA', '1'))
HSC = os.environ.get('HSC', '')
LDSC = os.environ.get('LDSC', 'sc1')

L_WG = 0; L_WU = 104448; L_WO = 45056; WOW = 14336; L_KVF = 40960
RED2 = 45056
RED4 = 86016
RA = 57344; NRA = 11; NSLOT = 39
vPHIW='v240'; vVIW='v241'; vPA0='v242'; vPA1='v243'; vVB0='v244'; vVB1='v245'; vKVO='v246'; vL128='v247'; vKVR='v248'; vKVW='v249'
vDUM='v255'

class Side:
    def __init__(s, items=()): s.q = deque(items)
    def emit(s, a, n=1):
        for _ in range(n):
            if not s.q: return
            it = s.q.popleft()
            if callable(it): it()
            else: a(it)
    def flush(s, a): s.emit(a, len(s.q))
    @staticmethod
    def cost(it):
        if callable(it): return getattr(it, 'cost', 1)
        op = it.split()[0]
        return 2 if op in ('v_exp_f32', 'v_rcp_f32', 'v_rsq_f32', 'v_log_f32') else 1
    def emit_budget(s, a, budget):
        b = budget + getattr(s, 'carry', 0)
        while s.q and (Side.cost(s.q[0]) <= b or (Side.cost(s.q[0]) > budget and b > 0)):
            b -= Side.cost(s.q[0]); s.emit(a)
        s.carry = min(b, 2)
    def __len__(s): return len(s.q)

def run_list(a, L, side=None, every=0):
    cnt = 0
    for it in L:
        if callable(it): it()
        else: a(it)
        cnt += 1
        if side is not None and every and cnt % every == 0: side.emit(a)
    if side is not None: side.flush(a)

class Phases:
    def __init__(s, g):
        s.g = g; s.a = g.a
        s.stop = g.stop_after

    def persistent_addrs(s):
        a = s.a
        a(f'v_and_b32 v13, 31, {vLANE}'); a(f's_lshl_b32 {sT0}, {sW}, 5'); a(f'v_add_u32 v14, {sT0}, v13')
        a(f'v_lshrrev_b32 v20, 5, {vLANE}')
        a('v_bfe_u32 v21, v13, 1, 1'); a('v_lshlrev_b32 v21, 3, v21')
        a('v_bfe_u32 v22, v13, 3, 1'); a('v_lshl_or_b32 v21, v22, 2, v21')
        a('v_bfe_u32 v22, v13, 2, 1'); a('v_lshl_or_b32 v21, v22, 1, v21')
        a('v_and_b32 v22, 1, v13'); a('v_or_b32 v21, v21, v22')
        a('v_xor_b32 v21, v21, v20')
        a('v_lshlrev_b32 v21, 3, v21'); a('v_lshl_add_u32 v21, v14, 7, v21')
        a(f'v_add_u32 {vPHIW}, {L_PHI}, v21')
        a('v_bfe_u32 v21, v14, 1, 3'); a('v_xor_b32 v21, v21, v20'); a('v_lshlrev_b32 v21, 3, v21')
        a('v_lshl_add_u32 v21, v14, 6, v21'); a(f'v_add_u32 {vVIW}, {L_VI}, v21')
        a(f'v_and_b32 v13, 15, {vLANE}'); a('v_lshrrev_b32 v14, 2, v13')
        a('v_and_b32 v22, 3, v13'); a(f'v_bfe_u32 v23, {vLANE}, 4, 1')
        a('v_lshl_add_u32 v24, v23, 2, v22')
        a('v_lshl_add_u32 v25, v20, 2, v14')
        a('v_lshrrev_b32 v26, 1, v14'); a('v_lshlrev_b32 v26, 3, v26')
        a('v_lshl_or_b32 v26, v20, 1, v26'); a('v_and_b32 v27, 1, v14'); a('v_or_b32 v26, v26, v27')
        a(f's_and_b32 {sT0}, {sW}, 1'); a(f's_lshl_b32 {sT0}, {sT0}, 3'); a(f'v_add_u32 v27, {sT0}, v24')
        a('v_xor_b32 v27, v27, v26')
        a('v_lshlrev_b32 v27, 3, v27'); a('v_lshl_add_u32 v27, v25, 7, v27')
        a(f'v_add_u32 {vPA0}, {L_PHI}, v27')
        a(f'v_xor_b32 v27, 32, {vPA0}'); a(f'v_add_u32 {vPA1}, {8*128}, v27')
        a('v_lshrrev_b32 v26, 1, v14'); a('v_lshl_or_b32 v26, v20, 1, v26')
        a('v_xor_b32 v26, v26, v24'); a('v_lshlrev_b32 v26, 3, v26')
        a('v_lshl_add_u32 v26, v25, 6, v26'); a(f'v_add_u32 {vVB0}, {L_VI}, v26')
        a(f'v_xor_b32 v27, 32, {vVB0}'); a(f'v_add_u32 {vVB1}, {8*64}, v27')
        a(f'v_and_b32 v13, 31, {vLANE}'); a('v_lshlrev_b32 v13, 2, v13'); a(f'v_lshl_add_u32 {vKVO}, v20, 10, v13')
        a(f'v_lshrrev_b32 v13, 3, {vLANE}'); a(f'v_and_b32 v14, 7, {vLANE}')
        a('v_lshlrev_b32 v21, 8, v13'); a(f'v_lshl_add_u32 {vKVR}, v14, 4, v21')
        a('v_and_b32 v21, 1, v14'); a('v_lshl_add_u32 v21, v21, 5, v13'); a('v_lshlrev_b32 v21, 4, v21')
        a('v_bfe_u32 v22, v14, 1, 1'); a('v_lshl_add_u32 v21, v22, 3, v21')
        a('v_lshrrev_b32 v22, 2, v14'); a('v_lshl_add_u32 v21, v22, 10, v21')
        a(f's_and_b32 {sT0}, {sW}, 1'); a(f's_lshl_b32 {sT0}, {sT0}, 11'); a(f's_add_u32 {sT0}, {sT0}, {L_KVF}')
        a(f'v_add_u32 {vKVW}, {sT0}, v21')
        a(f'v_lshlrev_b32 {vL128}, 7, {vLANE}')

    def pretouch(s, soff, nlines, tag='pt'):
        if not PRET: return
        a = s.a
        if nlines < 64: a(f's_mov_b64 exec, {hex((1 << nlines)-1)}')
        a.vmem(f'buffer_load_dword {vDUM}, {vL128}, {WS}, {soff} offen', tag)
        if nlines < 64: a('s_mov_b64 exec, -1')

    def stats_load_items(s, dst, sbase, tag, vtmp):
        a = s.a
        def last():
            a(f'v_mov_b32 {vtmp}, 0x40000000')
            a(f'v_cndmask_b32 {vtmp}, {vSTA}, {vtmp}, {sUP}')
            a.vmem(f'buffer_load_dwordx4 v[{dst+12}:{dst+15}], {vtmp}, {WS}, {sbase} offen offset:{3*512} {LDSC}', tag)
        return [(lambda i=i: a.vmem(f'buffer_load_dwordx4 v[{dst+4*i}:{dst+4*i+3}], {vSTA}, {WS}, {sbase} offen offset:{i*512} {LDSC}', tag)) for i in range(3)] + [last]

    def stats_list(s, src, vnmean, vrstd, t0, t1):
        S_, Q_ = f'v{src}', f'v{src+1}'
        L = []
        L += [f'v_add_f32 v{src+2}, v{src+2}, v{src+6}', f'v_add_f32 v{src+3}, v{src+3}, v{src+7}']
        L += [f'v_add_f32 {S_}, {S_}, v{src+4}', f'v_add_f32 {Q_}, {Q_}, v{src+5}']
        L += [f'v_add_f32 v{src+2}, v{src+2}, v{src+10}', f'v_add_f32 v{src+3}, v{src+3}, v{src+11}']
        L += [f'v_add_f32 {S_}, {S_}, v{src+8}', f'v_add_f32 {Q_}, {Q_}, v{src+9}']
        L += [f'v_add_f32 v{src+2}, v{src+2}, v{src+14}', f'v_add_f32 v{src+3}, v{src+3}, v{src+15}']
        L += [f'v_add_f32 {S_}, {S_}, v{src+12}', f'v_add_f32 {Q_}, {Q_}, v{src+13}']
        L += [f'v_add_f32 {S_}, {S_}, v{src+2}', f'v_add_f32 {Q_}, {Q_}, v{src+3}']
        L += [f'v_mov_b32 {t0}, {S_}', f'v_mov_b32 {t1}, {Q_}', 's_nop 0',
              f'v_permlane32_swap_b32 {S_}, {t0}', f'v_permlane32_swap_b32 {Q_}, {t1}',
              f'v_add_f32 {S_}, {S_}, {t0}', f'v_add_f32 {Q_}, {Q_}, {t1}',
              f'v_mul_f32 {vnmean}, {fbits(-1.0/448)}, {S_}', f'v_mul_f32 {Q_}, {fbits(1.0/448)}, {Q_}',
              f'v_fma_f32 {Q_}, -{vnmean}, {vnmean}, {Q_}', f'v_max_f32 {Q_}, 0, {Q_}',
              f'v_add_f32 {Q_}, {fbits(1e-5)}, {Q_}', f'v_rsq_f32 {vrstd}, {Q_}']
        L.remove('s_nop 0')
        return L

    def cs_read_items(s, dst, lds_off, tag, vaddr):
        a = s.a
        return [(lambda g=g: a.ds(f'ds_read_b128 v[{dst+4*g}:{dst+4*g+3}], {vaddr} offset:{lds_off+32*g}', tag)) for g in range(4)]

    def colsum(s, reads_fn, nks, dst, lds_out, va='v10'):
        a = s.a
        for i in range(4): a(f'v_mov_b32 v{dst+16+i}, 0x3f803f80')
        F = dst + 20
        reads_fn(0, F, ('cs', 0)); reads_fn(1, F+4, ('cs', 1))
        for ks in range(nks):
            if ks+2 < nks: reads_fn(ks+2, F + 4*((ks+2) % 3), ('cs', ks+2))
            a.wait_lg(('cs', ks))
            R = F + 4*(ks % 3)
            c = '0' if ks == 0 else f'v[{dst}:{dst+15}]'
            a(f'v_mfma_f32_32x32x16_bf16 v[{dst}:{dst+15}], v[{R}:{R+3}], v[{dst+16}:{dst+19}], {c}')
        a(f'v_add_u32 {va}, {lds_out}, {vCS}')
        a('s_mov_b32 exec_lo, 1'); a('s_mov_b32 exec_hi, 1')
        for g in range(4):
            a.ds(f'ds_write_b128 {va}, v[{dst+4*g}:{dst+4*g+3}] offset:{32*g}', 'csw')
        a('s_mov_b64 exec, -1')
        a.wait_lg0()

    def colsum_kv(s):
        a = s.a; g = s.g
        def cs_wave():
            a(f's_mul_i32 {sT0}, {sW}, 28672'); a(f'v_add_u32 v31, {sT0}, {vTR64}')
            a(f's_lshl_b32 {sT1}, {sW}, 7'); a(f's_add_u32 {sT1}, {sT1}, {M_CSQKV}')
            def f(ks, reg, tag):
                a.ds(f'ds_read_b64_tr_b16 v[{reg}:{reg+1}], v31 offset:{(16*ks)*64}', tag)
                a.ds(f'ds_read_b64_tr_b16 v[{reg+2}:{reg+3}], v31 offset:{(16*ks+8)*64}', tag)
            s.colsum(f, 28, 192, sT1, va='v30')
        g.wave_in(0, 2, cs_wave)
        a.lg = []

    def softmax_list(s, P, vC, E1, E2, dP, dM, t):
        L = []
        for r in (3, 7, 11, 15):
            L.append(f'v_cndmask_b32 v{P+r}, v{P+r}, v{P}, {sUP}')
        mx, mn, t2, t3 = f'v{t}', f'v{t+1}', f'v{t+2}', f'v{t+3}'
        L += [f'v_max3_f32 {mx}, v{P}, v{P+1}, v{P+2}', f'v_min3_f32 {mn}, v{P}, v{P+1}, v{P+2}',
              f'v_max3_f32 {t2}, v{P+3}, v{P+4}, v{P+5}', f'v_min3_f32 {t3}, v{P+3}, v{P+4}, v{P+5}']
        for r in (6, 10):
            L += [f'v_max3_f32 {mx}, {mx}, v{P+r}, v{P+r+1}', f'v_min3_f32 {mn}, {mn}, v{P+r}, v{P+r+1}',
                  f'v_max3_f32 {t2}, {t2}, v{P+r+2}, v{P+r+3}', f'v_min3_f32 {t3}, {t3}, v{P+r+2}, v{P+r+3}']
        L += [f'v_max3_f32 {mx}, {mx}, v{P+14}, v{P+15}', f'v_min3_f32 {mn}, {mn}, v{P+14}, v{P+15}',
              f'v_max_f32 {mx}, {mx}, {t2}', f'v_min_f32 {mn}, {mn}, {t3}',
              f'v_mov_b32 {t2}, {mx}', f'v_mov_b32 {t3}, {mn}',
              f'v_permlane32_swap_b32 {mx}, {t2}', f'v_permlane32_swap_b32 {mn}, {t3}',
              f'v_max_f32 {mx}, {mx}, {t2}', f'v_min_f32 {mn}, {mn}, {t3}',
              f'v_mul_f32 {mx}, {mx}, {vC}', f'v_mul_f32 {mn}, {mn}, {vC}']
        c = int(vC[1:]); assert c % 2 == 0 and t % 2 == 0
        cp = f'v[{c}:{c+1}]'; tp = f'v[{t}:{t+1}]'
        for r in range(0, 16, 2):
            L.append(f'v_pk_fma_f32 v[{E1+r}:{E1+r+1}], v[{P+r}:{P+r+1}], {cp}, {tp} op_sel:[0,0,0] op_sel_hi:[1,0,0] neg_lo:[0,0,1] neg_hi:[0,0,1]')
            L.append(f'v_pk_fma_f32 v[{E2+r}:{E2+r+1}], v[{P+r}:{P+r+1}], {cp}, {tp} op_sel:[0,0,1] op_sel_hi:[1,0,1] neg_lo:[1,0,0] neg_hi:[1,0,0]')
        for r in range(16):
            L += [f'v_exp_f32 v{E1+r}, v{E1+r}', f'v_exp_f32 v{E2+r}, v{E2+r}']
        for r in (3, 7, 11, 15):
            L += [f'v_cndmask_b32 v{E1+r}, v{E1+r}, 0, {sUP}', f'v_cndmask_b32 v{E2+r}, v{E2+r}, 0, {sUP}']
        A1 = f'v[{t}:{t+1}]'; A2 = f'v[{t+2}:{t+3}]'; B1 = f'v[{t+4}:{t+5}]'; B2 = f'v[{t+6}:{t+7}]'
        pr = lambda b, r: f'v[{b+r}:{b+r+1}]'
        L += [f'v_pk_add_f32 {A1}, {pr(E1,0)}, {pr(E1,2)}', f'v_pk_add_f32 {A2}, {pr(E2,0)}, {pr(E2,2)}',
              f'v_pk_add_f32 {B1}, {pr(E1,4)}, {pr(E1,6)}', f'v_pk_add_f32 {B2}, {pr(E2,4)}, {pr(E2,6)}']
        L += [f'v_pk_add_f32 {A1}, {A1}, {pr(E1,8)}', f'v_pk_add_f32 {A2}, {A2}, {pr(E2,8)}',
              f'v_pk_add_f32 {B1}, {B1}, {pr(E1,10)}', f'v_pk_add_f32 {B2}, {B2}, {pr(E2,10)}',
              f'v_pk_add_f32 {A1}, {A1}, {pr(E1,12)}', f'v_pk_add_f32 {A2}, {A2}, {pr(E2,12)}',
              f'v_pk_add_f32 {B1}, {B1}, {pr(E1,14)}', f'v_pk_add_f32 {B2}, {B2}, {pr(E2,14)}',
              f'v_pk_add_f32 {A1}, {A1}, {B1}', f'v_pk_add_f32 {A2}, {A2}, {B2}',
              f'v_add_f32 v{t}, v{t}, v{t+1}', f'v_add_f32 v{t+2}, v{t+2}, v{t+3}',
              f'v_mov_b32 v{t+1}, v{t}', f'v_mov_b32 v{t+3}, v{t+2}',
              f'v_permlane32_swap_b32 v{t}, v{t+1}', f'v_permlane32_swap_b32 v{t+2}, v{t+3}',
              f'v_add_f32 v{t}, v{t}, v{t+1}', f'v_add_f32 v{t+2}, v{t+2}, v{t+3}',
              f'v_rcp_f32 v{t}, v{t}', f'v_rcp_f32 v{t+2}, v{t+2}']
        for r in range(0, 16, 2):
            L.append(f'v_pk_mul_f32 {pr(E1,r)}, {pr(E1,r)}, {A1} op_sel_hi:[1,0]')
            L.append(f'v_pk_mul_f32 {pr(E2,r)}, {pr(E2,r)}, {A2} op_sel_hi:[1,0]')
        for i in range(8):
            L += [f'v_cvt_pk_bf16_f32 v{dP+i}, v{E1+2*i}, v{E1+2*i+1}', f'v_cvt_pk_bf16_f32 v{dM+i}, v{E2+2*i}, v{E2+2*i+1}']
        return L

    def qk_list(s, acc, cs, NMp, vC, frag, P, E1, E2, dP, dM, t):
        L = []
        for r in range(0, 16, 2):
            L.append(f'v_pk_fma_f32 v[{acc+r}:{acc+r+1}], v[{cs+r}:{cs+r+1}], v[{NMp}:{NMp+1}], v[{acc+r}:{acc+r+1}] op_sel_hi:[1,0,1]')
        for i in range(8):
            L.append(f'v_cvt_pk_bf16_f32 v{frag+i}, v{acc+2*i}, v{acc+2*i+1}')
        L.append(f'v_mfma_f32_32x32x16_bf16 v[{P}:{P+15}], a[248:251], v[{frag}:{frag+3}], 0')
        L.append(f'v_mfma_f32_32x32x16_bf16 v[{P}:{P+15}], a[252:255], v[{frag+4}:{frag+7}], v[{P}:{P+15}]')
        L += s.softmax_list(P, vC, E1, E2, dP, dM, t)
        return L

    def dma_item(s, srd, voff, ssrc, srcoff, sdst, dstoff, tag, track=True):
        a = s.a
        def f():
            if sdst is None: a(f's_mov_b32 m0, {dstoff}')
            else: a(f's_add_u32 m0, {sdst}, {dstoff}')
            a(f's_add_u32 s92, {ssrc}, {srcoff}')
            if track: a.vmem(f'buffer_load_dwordx4 {voff}, {srd}, s92 offen lds', tag)
            else: a(f'buffer_load_dwordx4 {voff}, {srd}, s92 offen lds')
        return f

    def wq_items(s):
        a = s.a
        a(f's_mul_i32 s90, {sHEAD}, {WQH}'); a(f's_add_u32 s90, s90, {G0 + WQ}')
        a(f's_lshl_b32 s91, {sW}, 10'); a(f's_add_u32 s90, s90, s91')
        return [s.dma_item(WS, vL16, 's90', n*4096, 's91', n*4096, 'W') for n in range(21)]

    def layer_setup(s):
        a = s.a
        L0 = a.newlabel('Ll0'); Le = a.newlabel('Lle')
        a(f's_cmp_lg_u32 {sL}, 0'); a(f's_cbranch_scc1 {L0}')
        for r, o in ((sXIN, X0), (sSTIN, ST0), (sX1, X1A), (sST1, ST1A), (sXO, X2A), (sSTO, ST2A), (sO, OA), (sH, HA)):
            a(f's_add_u32 {r}, {sGB}, {o}')
        a(f's_branch {Le}')
        a.label(L0)
        for r, o in ((sXIN, X2A), (sSTIN, ST2A), (sX1, X1A), (sST1, ST1A), (sXO, X2A), (sSTO, ST2A), (sO, OA), (sH, HA)):
            a(f's_add_u32 {r}, {sGB}, {o}')
        a.label(Le)
        a(f's_lshl_b32 {sT0}, {sL}, 4'); a(f's_add_u32 {sT0}, {sT0}, {sHEAD}')
        a(f's_lshl_b32 {sKV}, {sT0}, 13'); a(f's_add_u32 {sKV}, {sKV}, {KV}')
        a(f's_lshl_b32 {sKVC}, {sT0}, 7'); a(f's_add_u32 {sKVC}, {sKVC}, {KVC}')
        a(f's_lshl_b32 {sFL}, {sG}, 11'); a(f's_lshl_b32 {sT0}, {sL}, 9'); a(f's_add_u32 {sFL}, {sFL}, {sT0}')
        if FLAGS: a(f's_add_u32 {sFL}, {sFL}, {FLAGS}')

    def wait_saved(s, all_heads=False):
        a = s.a; g = s.g
        def w0():
            Lx = a.newlabel('Lx'); a(f's_cmp_lg_u32 {sL}, 0'); a(f's_cbranch_scc1 {Lx}')
            if all_heads:
                a(f'v_and_b32 v11, 15, {vLANE}'); a('v_lshlrev_b32 v11, 7, v11')
                a(f's_mov_b32 {sT0}, {KVC}')
                g.poll(WS, 'v11', sT0, 16, vt='v10')
            else:
                a(f's_lshl_b32 {sT0}, {sHEAD}, 7'); a(f's_add_u32 {sT0}, {sT0}, {KVC}')
                g.poll(WS, None, sT0, 16, vt='v10')
            a.label(Lx)
        g.wave_only(0, w0)

    def fl(s, p):
        s.a(f's_add_u32 s80, {sFL}, {p*128}')
        return 's80'

    def p1(s):
        a = s.a; g = s.g
        a.c('==== P1')
        XD = int(os.environ.get('XD1', '8'))
        a(f's_lshl_b32 {sT3}, {sHALF}, 2'); a(f's_add_u32 {sT3}, {sT3}, {sW}')
        a(f's_mul_i32 s82, {sT3}, 3584'); a(f's_add_u32 s82, s82, {sSTIN}')
        a(f's_mul_i32 s83, {sT3}, 28672'); a(f's_add_u32 s83, s83, {sXIN}')
        def xload(ks):
            if ks % 4 == 0: a(f's_add_u32 s84, s83, {(ks//4)*4096}')
            a.vmem(f'buffer_load_dwordx4 a[{4*ks}:{4*ks+3}], {vL16}, {WS}, s84 offen offset:{(ks%4)*1024} {LDSC}', ('x', ks))
        a(f's_lshl_b32 {sT4}, {sT3}, 15'); a(f's_add_u32 {sT4}, {sT4}, {sO}'); a(f's_lshl_b32 {sT5}, {sHEAD}, 11'); a(f's_add_u32 s85, {sT4}, {sT5}')
        def rd64(base, va=vTR64):
            def f(ks, reg, tag):
                a.ds(f'ds_read_b64_tr_b16 v[{reg}:{reg+1}], {va} offset:{base+(16*ks)*64}', tag)
                a.ds(f'ds_read_b64_tr_b16 v[{reg+2}:{reg+3}], {va} offset:{base+(16*ks+8)*64}', tag)
            return f
        AK, AV, AQ, FR = 16, 32, 48, 64
        rk, rv, rq = rd64(L_WK), rd64(L_WV), rd64(0, 'v208')
        FRS = (64, 72, 216)
        NM, RS, VC = 'v10', 'v11', 'v12'
        def kvloop(loads):
            side = Side()
            if loads:
                run_list(a, s.stats_load_items(96, 's82', 'st', 'v14'))
                for ks in range(XD): xload(ks)
                side = Side([lambda: a.wait_vm('st')] + s.stats_list(96, NM, RS, 'v13', 'v14'))
            CF = (132, 136, 140)
            rc = rd64(0, 'v210')
            if not loads:
                a(f's_and_b32 {sT0}, {sW}, 1'); a(f's_mul_i32 {sT0}, {sT0}, 28672'); a(f'v_add_u32 v210, {sT0}, {vTR64}')
                for i in range(4): a(f'v_mov_b32 v{128+i}, 0x3f803f80')
            rk(0, FRS[0], ('fk', 0)); rv(0, FRS[0]+4, ('fv', 0))
            if not loads: rc(0, CF[0], ('fc', 0))
            rk(1, FRS[1], ('fk', 1)); rv(1, FRS[1]+4, ('fv', 1))
            if not loads: rc(1, CF[1], ('fc', 1))
            for ks in range(28):
                b = FRS[ks % 3]
                if loads: a.wait_vm(('x', ks))
                a.wait_lg(('fk', ks))
                ck = '0' if ks == 0 else f'v[{AK}:{AK+15}]'
                cv = '0' if ks == 0 else f'v[{AV}:{AV+15}]'
                a(f'v_mfma_f32_32x32x16_bf16 v[{AK}:{AK+15}], v[{b}:{b+3}], a[{4*ks}:{4*ks+3}], {ck}')
                if ks+2 < 28: rk(ks+2, FRS[(ks+2) % 3], ('fk', ks+2))
                if loads and ks + XD < 28: xload(ks + XD)
                a.wait_lg(('fv', ks))
                a(f'v_mfma_f32_32x32x16_bf16 v[{AV}:{AV+15}], v[{b+4}:{b+7}], a[{4*ks}:{4*ks+3}], {cv}')
                if ks+2 < 28: rv(ks+2, FRS[(ks+2) % 3]+4, ('fv', ks+2))
                if not loads:
                    a.wait_lg(('fc', ks))
                    cc = '0' if ks == 0 else 'v[112:127]'
                    a(f'v_mfma_f32_32x32x16_bf16 v[112:127], v[{CF[ks % 3]}:{CF[ks % 3]+3}], v[128:131], {cc}')
                    if ks+2 < 28: rc(ks+2, CF[(ks+2) % 3], ('fc', ks+2))
                if ks >= 2: side.emit(a, 2)
            if not loads:
                def csw():
                    a(f's_lshl_b32 {sT1}, {sW}, 7'); a(f's_add_u32 {sT1}, {sT1}, {M_CSQKV}')
                    a(f'v_add_u32 v211, {sT1}, {vCS}')
                    a('s_mov_b32 exec_lo, 1'); a('s_mov_b32 exec_hi, 1')
                    for gq in range(4):
                        a(f'ds_write_b128 v211, v[{112+4*gq}:{115+4*gq}] offset:{32*gq}')
                    a('s_mov_b64 exec, -1')
                    a('s_waitcnt lgkmcnt(0)')
                g.wave_in(0, 2, csw)
            side.flush(a)
        L1p = a.newlabel('Lp1l1'); Lj = a.newlabel('Lp1j')
        a(f's_cmp_lg_u32 {sL}, 0'); a(f's_cbranch_scc1 {L1p}')
        a(f'v_and_b32 v13, 7, {vLANE}'); a('v_lshlrev_b32 v233, 5, v13')
        a(f'buffer_load_dword v232, v233, {DBG}, 0 offen sc1')
        a.lg = []
        kvloop(False)
        a('s_waitcnt vmcnt(0)')
        g.wave_in(0, 2, g.registration_check)
        a('s_barrier')
        a(f's_lshl_b32 {sT0}, {sG}, 1'); a(f's_add_u32 {sT0}, {sT0}, {sHALF}'); a(f's_lshl_b32 {sT1}, {sW}, 4'); a(f's_add_u32 {sT0}, {sT0}, {sT1}')
        a(f's_add_u32 {sT1}, {sT0}, 64')
        a(f's_cmp_lt_u32 {sT1}, 84'); a(f's_cselect_b32 {sT2}, {sT1}, {sT0}')
        a(f's_lshl_b32 {sT0}, {sT0}, 10'); a(f's_lshl_b32 {sT2}, {sT2}, 10')
        a(f'v_add_u32 v13, {sT0}, {vL16}'); a(f'v_add_u32 v14, {sT2}, {vL16}')
        a('ds_read_b128 v[128:131], v13'); a('ds_read_b128 v[132:135], v14')
        a(f's_mul_i32 {sT1}, {sHEAD}, {WQH}'); a(f's_add_u32 {sT1}, {sT1}, {G0 + WQ}')
        a(f's_add_u32 {sT0}, {sT0}, {sT1}'); a(f's_add_u32 {sT2}, {sT2}, {sT1}')
        a('s_waitcnt lgkmcnt(0)')
        a(f'buffer_store_dwordx4 v[128:131], {vL16}, {WS}, {sT0} offen sc1')
        a(f'buffer_store_dwordx4 v[132:135], {vL16}, {WS}, {sT2} offen sc1')
        a('s_barrier')
        a('v_mov_b32 v10, v234'); a('v_mov_b32 v11, v235')
        a(f's_branch {Lj}')
        a.label(L1p)
        a.vm = []; a.lg = []
        kvloop(True)
        a('s_barrier')
        a.label(Lj)
        a.vm = []; a.lg = []
        g.stamp('p1 KV gemm')
        a(f'v_add_u32 v15, {M_CSQKV}, {vCS}')
        run_list(a, s.cs_read_items(112, 0, 'csk', 'v15') + s.cs_read_items(128, 128, 'csv', 'v15'))
        a(f'v_mul_f32 {VC}, {fbits(LOG2E)}, {RS}')
        a.wait_lg('csk')
        a(f's_lshl_b32 s90, {sM}, 7'); a(f's_mul_i32 s91, {sW}, {8*3584}'); a(f's_add_u32 s90, s90, s91')
        a(f's_lshl_b32 s91, {sW}, 10')
        wa = Side([s.dma_item(WG, vD3584, 's90', 4*n*8*3584, 's91', L_WG + 4*n*1024, 'WA') for n in range(10)] if PFA else [])
        L = s.qk_list(AK, 112, 10, VC, 144, 80, 96, 192, 176, 184, 152)
        for T in range(2):
            for gq in range(4):
                R = 176 + 8*T + 2*gq
                L.append(f'v_xor_b32 v{156+(gq&1)}, {(8*T+2*gq) << 3}, {vPHIW}')
                L.append(lambda R=R, gq=gq: a.ds(f'ds_write_b64 v{156+(gq&1)}, v[{R}:{R+1}]', 'pw'))
        L.append(lambda: a.wait_lg('csv'))
        for r in range(0, 16, 2):
            L.append(f'v_pk_fma_f32 v[{AV+r}:{AV+r+1}], v[{128+r}:{129+r}], v[10:11], v[{AV+r}:{AV+r+1}] op_sel_hi:[1,0,1]')
        for r in range(0, 16, 2):
            L.append(f'v_pk_mul_f32 v[{AV+r}:{AV+r+1}], v[{AV+r}:{AV+r+1}], v[10:11] op_sel:[0,1] op_sel_hi:[1,1]')
        L.append(f'v_cndmask_b32 v{AV+12}, v{AV+12}, 1.0, {sUP}')
        for i in range(8):
            L.append(f'v_cvt_pk_bf16_f32 v{144+i}, v{AV+2*i}, v{AV+2*i+1}')
        for gq in range(4):
            L.append(f'v_xor_b32 v{156+(gq&1)}, {(2*gq) << 3}, {vVIW}')
            L.append(lambda gq=gq: a.ds(f'ds_write_b64 v{156+(gq&1)}, v[{144+2*gq}:{145+2*gq}]', 'vw'))
        run_list(a, L, wa, 22)
        a(f's_waitcnt vmcnt({10 if PFA else 0}) lgkmcnt(0)')
        a.lg = []
        a('s_barrier')
        g.stamp('p1 phi/v written')
        s.pretouch('s85', 16)
        def kv():
            def rr(kt, reg, tag):
                a.ds(f'ds_read_b64_tr_b16 v[{reg}:{reg+1}], {vPA0} offset:{kt*2048}', tag)
                a.ds(f'ds_read_b64_tr_b16 v[{reg+2}:{reg+3}], {vPA1} offset:{kt*2048}', tag)
                a.ds(f'ds_read_b64_tr_b16 v[{reg+4}:{reg+5}], {vVB0} offset:{kt*1024}', tag)
                a.ds(f'ds_read_b64_tr_b16 v[{reg+6}:{reg+7}], {vVB1} offset:{kt*1024}', tag)
            KS = (64, 72, 216)
            rr(0, KS[0], ('k', 0)); rr(1, KS[1], ('k', 1))
            for kt in range(8):
                if kt+2 < 8: rr(kt+2, KS[(kt+2) % 3], ('k', kt+2))
                a.wait_lg(('k', kt))
                b = KS[kt % 3]
                c = '0' if kt == 0 else 'v[80:95]'
                a(f'v_mfma_f32_32x32x16_bf16 v[80:95], v[{b+4}:{b+7}], v[{b}:{b+3}], {c}')
            a(f's_lshl_b32 {sT0}, {sW}, 7'); a(f's_add_u32 {sT0}, {sT0}, {sKV}'); a(f's_add_u32 {sT1}, {sT0}, 4096')
            a('s_mov_b32 s78, 0x80808080'); a('s_mov_b32 s79, 0x80808080')
            for r in range(16):
                a(f'v_cndmask_b32 v{80+r}, v{80+r}, 1.0, s[78:79]')
            for gq in range(4):
                for r in range(4):
                    so = sT0 if gq < 2 else sT1
                    a(f'buffer_atomic_add_f32 v{80+4*gq+r}, {vKVO}, {WS}, {so} offen offset:{((8*gq+r)*256) % 4096} sc1')
        g.wave_in(0, 2, kv)
        def csq():
            Lq0 = a.newlabel('Lq0')
            a(f's_cmp_lg_u32 {sL}, 0'); a(f's_cbranch_scc1 {Lq0}')
            a(f'v_add_u32 v209, {2*28672}, {vTR64}')
            a(f's_mov_b32 {sT1}, {M_CSQKV + 256}')
            s.colsum(rd64(0, 'v209'), 28, 112, sT1, va='v152')
            a.label(Lq0)
        g.wave_only(2, csq)
        a.lg = []
        a.vm = []
        a.lg = []
        g.stamp('p1 kv issued')
        a(f'v_add_u32 v208, {L_WQ}, {vTR64}')
        QS = (64, 68, 72)
        rq(0, QS[0], ('f', 0)); rq(1, QS[1], ('f', 1))
        for ks in range(28):
            if ks+2 < 28: rq(ks+2, QS[(ks+2) % 3], ('f', ks+2))
            a.wait_lg(('f', ks))
            b = QS[ks % 3]
            cq = '0' if ks == 0 else f'v[{AQ}:{AQ+15}]'
            a(f'v_mfma_f32_32x32x16_bf16 v[{AQ}:{AQ+15}], v[{b}:{b+3}], a[{4*ks}:{4*ks+3}], {cq}')
        a.wait_lg0()
        a('s_barrier')
        run_list(a, s.cs_read_items(112, 256, 'csq', 'v15'))
        a.wait_lg0()
        g.stamp('p1 q gemm')
        qpost = lambda: s.qk_list(AQ, 112, 10, VC, 144, 80, 96, 192, 160, 168, 152)
        Lq = a.newlabel('Lq23'); Lqe = a.newlabel('Lqe')
        a(f's_cmp_ge_u32 {sW}, 2'); a(f's_cbranch_scc1 {Lq}')
        a.vm = []
        s.resid_loads(224, sXIN, track=False, raw_l0=True)
        s.dest_pretouch(sX1, sST1)
        if G.CPF: g.wave_only(1, lambda: g.code_prefetch('L_code_p2b', 'L_code_p4', v='v14'))
        Lp = a.newlabel('Lkvp'); Ld = a.newlabel('Lkvd'); Lc = a.newlabel('Lkvc')
        a(f's_lshl_b32 {sT0}, {sW}, 7'); a(f's_add_u32 {sT0}, {sT0}, {sKV}'); a(f's_add_u32 {sT1}, {sT0}, 4096')
        a('s_mov_b32 s78, 0xaaaaaaaa'); a('s_mov_b32 s79, 0xaaaaaaaa')
        a(f's_mov_b32 {sT7}, 0')
        def kvloads():
            for q in range(4):
                so = sT0 if q < 2 else sT1
                a(f'buffer_load_dwordx4 v[{64+4*q}:{67+4*q}], {vKVR}, {WS}, {so} offen offset:{(q*2048) % 4096} sc1')
        Lq_ = qpost()
        cut = int(len(Lq_)*float(os.environ.get('ASYNC', '0.8')))
        run_list(a, Lq_[:cut] + [kvloads] + Lq_[cut:])
        g.stamp('p1 kv counted')
        a(f's_branch {Lc}')
        a.label(Lp)
        kvloads()
        a.label(Lc)
        a('s_waitcnt vmcnt(0)')
        for q in range(1, 4):
            a(f'v_sub_f32 v{96+q}, 0x41800000, v{67+4*q}')
        a('v_sub_f32 v96, 0x41800000, v67')
        a('v_or_b32 v96, v96, v97'); a('v_or_b32 v98, v98, v99'); a('v_or_b32 v96, v96, v98')
        a('v_lshlrev_b32 v96, 1, v96')
        a('v_cmp_ne_u32 vcc, 0, v96')
        a(f's_add_u32 {sT7}, {sT7}, 1')
        a('s_and_b64 vcc, vcc, s[78:79]')
        a('s_cmp_eq_u64 vcc, 0'); a(f's_cbranch_scc1 {Ld}')
        a(f's_cmp_lt_u32 {sT7}, {G.TIMEOUT}'); a(f's_cbranch_scc1 {Lp}')
        a(f's_mov_b32 {sTO}, 1')
        a.label(Ld)
        g.stamp('kv hop done')
        for q in range(4):
            a(f'v_cvt_pk_bf16_f32 v{96+2*q}, v{64+4*q}, v{65+4*q}'); a(f'v_cvt_pk_bf16_f32 v{97+2*q}, v{66+4*q}, v{67+4*q}')
        for q in range(4):
            a(f'ds_write_b64 {vKVW}, v[{96+2*q}:{97+2*q}] offset:{q*128}')
        a('s_waitcnt lgkmcnt(0)')
        a(f's_branch {Lqe}')
        a.label(Lq)
        a.vm = []
        a(f's_sub_u32 {sT0}, {sW}, 2')
        a(f's_lshl_b32 s86, {sCT}, 7'); a(f's_mul_i32 {sT1}, {sT0}, {8*896}'); a(f's_add_u32 s86, s86, {sT1}')
        a(f's_lshl_b32 s87, {sT0}, 10')
        a(f's_lshl_b32 s88, {sM}, 7'); a(f's_mul_i32 {sT1}, {sT0}, {8*3584}'); a(f's_add_u32 s88, s88, {sT1}')
        items = [s.dma_item(WO, vD896, 's86', 2*n*8*896, 's87', L_WO + 2*n*1024, 'W1') for n in range(28)]
        if not PFA: items += [s.dma_item(WG, vD3584, 's88', 2*n*8*3584, 's87', L_WG + 2*n*1024, 'W1') for n in range(20)]
        items += [s.dma_item(WU, vD3584, 's88', 2*n*8*3584, 's87', L_WU + 2*n*1024, 'W1', track=False) for n in range(14 if LATEU else 28)]
        s.resid_loads(224, sXIN, track=False, raw_l0=True)
        s.dest_pretouch(sX1, sST1)
        run_list(a, qpost(), Side(items), 2)
        a.label(Lqe)
        a.vm = []; a.lg = []
        a('s_barrier')
        g.stamp('kv frags ready')

    def p2a(s):
        a = s.a; g = s.g
        a.c('==== P2a')
        a(f'v_add_u32 v13, {L_KVF}, {vL16}')
        for k in range(4):
            a.ds(f'ds_read_b128 v[{96+4*k}:{99+4*k}], v13 offset:{k*1024}', ('kf', k))
        for k in range(4):
            a.wait_lg(('kf', k))
            c = '0' if k == 0 else 'v[16:31]'
            a(f'v_mfma_f32_32x32x16_bf16 v[16:31], v[{96+4*k}:{99+4*k}], v[{160+4*k}:{163+4*k}], {c}')
        a('v_mov_b32 v32, v28'); a('v_mov_b32 v33, v28')
        a('v_permlane32_swap_b32 v32, v33')
        a(f'v_add_f32 v33, {fbits(1e-6)}, v33')
        a('v_rcp_f32 v34, v33')
        for r in range(0, 16, 2):
            a(f'v_pk_mul_f32 v[{16+r}:{17+r}], v[{16+r}:{17+r}], v[34:35] op_sel_hi:[1,0]')
        for r in range(12, 16):
            a(f'v_cndmask_b32 v{16+r}, v{16+r}, 0, {sUP}')
        for i in range(8):
            a(f'v_cvt_pk_bf16_f32 v{40+i}, v{16+2*i}, v{16+2*i+1}')
        a(f'buffer_store_dwordx4 v[40:43], {vL16}, {WS}, s85 offen {STSC}')
        a(f'buffer_store_dwordx4 v[44:47], {vL16}, {WS}, s85 offen offset:1024 {STSC}')
        g.set_flag(s.fl(1))
        def svc():
            Lx = a.newlabel('Lx'); a(f's_cmp_lg_u32 {sL}, 0'); a(f's_cbranch_scc1 {Lx}')
            a(f's_lshl_b32 {sT0}, {sHEAD}, 7'); a(f's_add_u32 {sT0}, {sT0}, {KVC}')
            a('v_mov_b32 v10, 1'); a('s_mov_b64 exec, 1')
            a(f'buffer_atomic_add v10, off, {WS}, {sT0} sc1')
            a('s_mov_b64 exec, -1')
            a.label(Lx)
        g.wave_only(3, svc)
        g.stamp('p2a done')

    def tile_coords(s):
        a = s.a
        a(f's_and_b32 {sT1}, {sW}, 1'); a(f's_lshl_b32 {sT2}, {sTQ}, 1'); a(f's_add_u32 {sT1}, {sT1}, {sT2}')
        a(f's_lshr_b32 {sT2}, {sW}, 1'); a(f's_lshl_b32 {sT3}, {sCT}, 1'); a(f's_add_u32 {sT2}, {sT2}, {sT3}')

    def resid_loads(s, dst, sX, track=True, raw_l0=False):
        a = s.a
        s.tile_coords()
        f = a.vmem if track else (lambda t, tag: a(t))
        Lr = Le = None
        if raw_l0:
            Lr = a.newlabel('Lrr'); Le = a.newlabel('Lre')
            a(f's_cmp_eq_u32 {sL}, 0'); a(f's_cbranch_scc1 {Lr}')
        a(f's_mul_i32 {sT4}, {sT1}, 28672'); a(f's_lshl_b32 {sT2}, {sT2}, 11'); a(f's_add_u32 {sT4}, {sT4}, {sT2}')
        a(f's_add_u32 {sT4}, {sT4}, {sX}')
        f(f'buffer_load_dwordx4 v[{dst}:{dst+3}], {vL16}, {WS}, {sT4} offen {LDSC}', 'res')
        f(f'buffer_load_dwordx4 v[{dst+4}:{dst+7}], {vL16}, {WS}, {sT4} offen offset:1024 {LDSC}', 'res')
        if raw_l0:
            a(f's_branch {Le}')
            a.label(Lr)
            a(f's_lshl_b32 {sT4}, {sG}, 8'); a(f's_lshl_b32 {sT5}, {sT1}, 5'); a(f's_add_u32 {sT4}, {sT4}, {sT5}')
            a(f's_mul_i32 {sT4}, {sT4}, 896'); a(f's_lshl_b32 {sT5}, {sT2}, 6'); a(f's_add_u32 {sT4}, {sT4}, {sT5}')
            a(f'v_and_b32 v13, 31, {vLANE}'); a('v_mul_u32_u24 v13, 896, v13')
            a(f'v_lshrrev_b32 v14, 5, {vLANE}'); a('v_lshl_add_u32 v13, v14, 3, v13')
            for gq in range(4):
                a(f'buffer_load_dwordx2 v[{dst+2*gq}:{dst+2*gq+1}], v13, {AX}, {sT4} offen offset:{16*gq}')
            a.label(Le)

    def dest_pretouch(s, sXdst, sSTdst):
        if not PRET: return
        a = s.a
        s.tile_coords()
        a(f's_mul_i32 {sT4}, {sT1}, 28672'); a(f's_lshl_b32 {sT5}, {sT2}, 11'); a(f's_add_u32 {sT4}, {sT4}, {sT5}')
        a(f's_add_u32 {sT4}, {sT4}, {sXdst}')
        s.pretouch(sT4, 16)
        a(f's_mul_i32 {sT4}, {sT1}, 3584'); a(f's_lshl_b32 {sT5}, {sCT}, 9'); a(f's_add_u32 {sT4}, {sT4}, {sT5}')
        a(f's_add_u32 {sT4}, {sT4}, {sSTdst}')
        s.pretouch(sT4, 4)

    def red_write(s, ACC, RED, parts=(1, 2, 3), side=None):
        a = s.a
        n = len(parts)
        for k, (slot, x) in enumerate(parts):
            a(f's_xor_b32 {sT0}, {sW}, {x}'); a(f's_mul_i32 {sT0}, {sT0}, {n}'); a(f's_add_u32 {sT0}, {sT0}, {k}')
            a(f's_lshl_b32 {sT0}, {sT0}, 12'); a(f's_add_u32 {sT0}, {sT0}, {RED}')
            a(f'v_add_u32 v{11+k}, {sT0}, {vL16}')
        for k, (slot, x) in enumerate(parts):
            for q in range(4):
                R = ACC + 16*slot + 4*q
                a.ds(f'ds_write_b128 v{11+k}, v[{R}:{R+3}] offset:{q*1024}', 'rw')
                if side is not None and q % 2 == 1: side.emit(a)
        a(f's_mul_i32 {sT0}, {sW}, {n*4096}'); a(f's_add_u32 {sT0}, {sT0}, {RED}')
        a(f'v_add_u32 v10, {sT0}, {vL16}')
        a.wait_lg0()
        a('s_barrier')

    def red_list(s, ACC, resid, n=3):
        a = s.a
        T = ACC + 16
        L = []
        for k in range(n):
            for q in range(4):
                R = T + 16*k + 4*q
                L.append(lambda R=R, k=k, q=q: a.ds(f'ds_read_b128 v[{R}:{R+3}], v10 offset:{k*4096+q*1024}', ('rr', k)))
        U = ACC + 64
        for i in range(8):
            L += [f'v_lshlrev_b32 v{U+2*i}, 16, v{resid+i}', f'v_and_b32 v{U+2*i+1}, 0xffff0000, v{resid+i}']
        pr = lambda b, r: f'v[{b+r}:{b+r+1}]'
        for r in range(0, 16, 2):
            L.append(f'v_pk_add_f32 {pr(ACC,r)}, {pr(ACC,r)}, {pr(U,r)}')
        for k in range(n):
            L.append(lambda k=k: a.wait_lg(('rr', k)))
            for r in range(0, 16, 2):
                L.append(f'v_pk_add_f32 {pr(ACC,r)}, {pr(ACC,r)}, {pr(T+16*k,r)}')
        PK = ACC + 48 + 0
        for i in range(8):
            L.append(f'v_cvt_pk_bf16_f32 v{PK+i}, v{ACC+2*i}, v{ACC+2*i+1}')
        return L

    def store_x_list(s, ACC, sXdst, sSTdst):
        a = s.a
        PK = ACC + 48
        L = []
        def addr():
            s.tile_coords()
            a(f's_mul_i32 {sT4}, {sT1}, 28672'); a(f's_lshl_b32 {sT5}, {sT2}, 11'); a(f's_add_u32 {sT4}, {sT4}, {sT5}')
            a(f's_add_u32 {sT4}, {sT4}, {sXdst}')
            a.vmem(f'buffer_store_dwordx4 v[{PK}:{PK+3}], {vL16}, {WS}, {sT4} offen {STSC}', 'xs')
            a.vmem(f'buffer_store_dwordx4 v[{PK+4}:{PK+7}], {vL16}, {WS}, {sT4} offen offset:1024 {STSC}', 'xs')
        L.append(addr)
        pr = lambda b, r: f'v[{b+r}:{b+r+1}]'
        L += [f'v_pk_add_f32 v[12:13], {pr(ACC,0)}, {pr(ACC,2)}', f'v_pk_mul_f32 v[14:15], {pr(ACC,0)}, {pr(ACC,0)}']
        L.append(f'v_pk_fma_f32 v[14:15], {pr(ACC,2)}, {pr(ACC,2)}, v[14:15]')
        for r in range(4, 16, 2):
            L += [f'v_pk_add_f32 v[12:13], v[12:13], {pr(ACC,r)}', f'v_pk_fma_f32 v[14:15], {pr(ACC,r)}, {pr(ACC,r)}, v[14:15]']
        L += ['v_add_f32 v12, v12, v13', 'v_add_f32 v14, v14, v15', 'v_mov_b32 v13, v12', 'v_mov_b32 v15, v14',
              'v_permlane32_swap_b32 v12, v13', 'v_permlane32_swap_b32 v14, v15',
              'v_add_f32 v12, v12, v13', 'v_add_f32 v13, v14, v15']
        def st():
            a(f's_mul_i32 {sT4}, {sT1}, 3584'); a(f's_lshl_b32 {sT5}, {sCT}, 9'); a(f's_add_u32 {sT4}, {sT4}, {sT5}')
            a(f's_lshr_b32 {sT5}, {sW}, 1'); a(f's_lshl_b32 {sT5}, {sT5}, 3'); a(f's_add_u32 {sT4}, {sT4}, {sT5}')
            a(f's_add_u32 {sT4}, {sT4}, {sSTdst}')
            a('s_mov_b64 exec, 0xffffffff')
            a.vmem(f'buffer_store_dwordx2 v[12:13], {vL16}, {WS}, {sT4} offen {STSC}', 'xs')
            a('s_mov_b64 exec, -1')
        L.append(st)
        return L

    def store_out_list(s, ACC):
        a = s.a
        PK = ACC + 48
        L = []
        for e in range(2):
            L += [f'v_permlane32_swap_b32 v{PK+4*e}, v{PK+4*e+2}', f'v_permlane32_swap_b32 v{PK+4*e+1}, v{PK+4*e+3}']
        def st():
            s.tile_coords()
            a(f's_lshl_b32 {sT4}, {sG}, 8'); a(f's_lshl_b32 {sT5}, {sT1}, 5'); a(f's_add_u32 {sT4}, {sT4}, {sT5}')
            a(f's_mul_i32 {sT4}, {sT4}, 896'); a(f's_lshl_b32 {sT5}, {sT2}, 6'); a(f's_add_u32 {sT4}, {sT4}, {sT5}')
            a(f'v_and_b32 v12, 31, {vLANE}'); a('v_mul_u32_u24 v12, 896, v12')
            a(f'v_lshrrev_b32 v13, 5, {vLANE}'); a('v_lshl_add_u32 v12, v13, 4, v12')
            a(f'buffer_store_dwordx4 v[{PK}:{PK+3}], v12, {OUT}, {sT4} offen {OUTSC}')
            a(f'buffer_store_dwordx4 v[{PK+4}:{PK+7}], v12, {OUT}, {sT4} offen offset:32 {OUTSC}')
        L.append(st)
        return L

    def tile_addrs(s, sbase):
        a = s.a
        a(f's_lshr_b32 {sT0}, {sW}, 1'); a(f's_lshl_b32 {sT0}, {sT0}, 6')
        a(f'v_xor_b32 v14, {sT0}, {vTR0}')
        a(f'v_add_u32 v14, {sbase}, v14')
        a('v_xor_b32 v15, 64, v14')

    def p2b(s):
        a = s.a; g = s.g
        a.c('==== P2b')
        a.rawlabel('L_code_p2b')
        a(f's_lshr_b32 {sT5}, {sW}, 1'); a(f's_mul_i32 {sT5}, {sT5}, 28672'); a(f's_add_u32 {sT5}, {sT5}, {L_WO}')
        s.tile_addrs(sT5)
        a(f'v_lshrrev_b32 v12, 5, {vLANE}'); a('v_lshlrev_b32 v12, 9, v12')
        a('v_sub_u32 v13, v15, v12'); a('v_sub_u32 v12, v14, v12')
        a(f's_lshr_b32 {sT0}, {sTQ}, 1'); a(f's_lshl_b32 {sT0}, {sT0}, 4'); a(f's_lshl_b32 s81, 0xffff, {sT0}')
        a(f's_and_b32 {sT0}, {sW}, 1'); a(f's_lshl_b32 {sT1}, {sTQ}, 1')
        a(f's_add_u32 {sT0}, {sT0}, {sT1}'); a(f's_lshl_b32 {sT0}, {sT0}, 15'); a(f's_add_u32 {sT0}, {sT0}, {sO}')
        a(f's_lshr_b32 {sT1}, {sW}, 1'); a(f's_lshl_b32 {sT1}, {sT1}, 14'); a(f's_add_u32 s82, {sT0}, {sT1}')
        g.wait_flags(s.fl(1), 's81', vt='v10', va='v11')
        a.vm = []
        g.stamp('p2b hop done')
        def oload(i):
            if i % 4 == 0: a(f's_add_u32 s84, s82, {(i//4)*4096}')
            a.vmem(f'buffer_load_dwordx4 a[{4*i}:{4*i+3}], {vL16}, {WS}, s84 offen offset:{(i%4)*1024} {LDSC}', ('o', i))
        ACC = 16; FS = (80, 88, 104)
        def rd(i, reg, tag):
            off = (28*(i >> 1) + 16*(i & 1))*128
            for sl in range(2):
                va = ('v14', 'v15')[sl]
                vb = ('v12', 'v13')[sl] if (i & 1) else va
                a.ds(f'ds_read_b64_tr_b16 v[{reg+4*sl}:{reg+4*sl+1}], {va} offset:{off}', tag)
                a.ds(f'ds_read_b64_tr_b16 v[{reg+4*sl+2}:{reg+4*sl+3}], {vb} offset:{off+8*128}', tag)
        OD = int(os.environ.get('OD', '6'))
        for i in range(OD): oload(i)
        rd(0, FS[0], ('f', 0)); rd(1, FS[1], ('f', 1))
        for i in range(16):
            if i+2 < 16: rd(i+2, FS[(i+2) % 3], ('f', i+2))
            a.wait_lg(('f', i))
            a.wait_vm(('o', i))
            b0 = FS[i % 3]
            for sa in range(2):
                R = ACC + 16*sa
                c = '0' if i == 0 else f'v[{R}:{R+15}]'
                a(f'v_mfma_f32_32x32x16_bf16 v[{R}:{R+15}], v[{b0+4*sa}:{b0+4*sa+3}], a[{4*i}:{4*i+3}], {c}')
                if sa == 0 and i + OD < 16: oload(i + OD)
        g.stamp('p2b gemm')
        a('s_barrier')
        s.red_write(ACC, RED2, parts=((1, 2),))
        run_list(a, s.red_list(ACC, 224, n=1) + s.store_x_list(ACC, sX1, sST1))
        g.set_flag(s.fl(2))
        if G.CPF: g.wave_only(1, lambda: g.code_prefetch('L_code_p4', 'L_code_end', v='v14'))
        def late():
            a(f's_sub_u32 {sT0}, {sW}, 1')
            a(f's_lshl_b32 s90, {sM}, 7'); a(f's_mul_i32 s91, {sT0}, {8*3584}'); a(f's_add_u32 s90, s90, s91')
            a(f's_lshl_b32 s91, {sT0}, 10')
            def grp(srd, base, blk0, nblk):
                for n in range((nblk + 2)//3):
                    lastpartial = 3*n + 2 >= nblk
                    if lastpartial:
                        Lx = a.newlabel('Lx'); a(f's_cmp_gt_u32 {sW}, {nblk - 3*n}'); a(f's_cbranch_scc1 {Lx}')
                    s.dma_item(srd, vD3584, 's90', (blk0+3*n)*8*3584, 's91', base + (blk0+3*n)*1024, 'late', track=False)()
                    if lastpartial: a.label(Lx)
            if LATEU: grp(WU, L_WU, 28, 28)
            grp(WG, L_WG, 40, 16)
        g.wave_in(1, 4, late)
        a.vm = []
        g.stamp('p2b done')

    def gelu_list(s, G, U, csg, csu, NM, K, T, PK, packed):
        L = []
        pr = lambda b, r: f'v[{b+r}:{b+r+1}]'
        vA, vB, vV = f'v{K}', f'v{K+1}', f'v{K+2}'
        if packed:
            nm = int(NM[1:]); nmp = f'v[{nm & ~1}:{(nm & ~1)+1}]'; ns = nm & 1
            AB = f'v[{K}:{K+1}]'; VV = f'v[{K+2}:{K+3}]'
            for r in range(0, 16, 2): L.append(f'v_pk_fma_f32 {pr(G,r)}, {pr(csg,r)}, {nmp}, {pr(G,r)} op_sel:[0,{ns},0] op_sel_hi:[1,{ns},1]')
            for r in range(0, 16, 2): L.append(f'v_pk_fma_f32 {pr(U,r)}, {pr(csu,r)}, {nmp}, {pr(U,r)} op_sel:[0,{ns},0] op_sel_hi:[1,{ns},1]')
            for r in range(0, 16, 2): L.append(f'v_pk_mul_f32 {pr(T,r)}, {pr(G,r)}, {pr(G,r)}')
            for r in range(0, 16, 2): L.append(f'v_pk_fma_f32 {pr(T,r)}, {pr(T,r)}, {AB}, {AB} op_sel:[0,1,0] op_sel_hi:[1,1,0]')
            for r in range(0, 16, 2): L.append(f'v_pk_mul_f32 {pr(T,r)}, {pr(T,r)}, {pr(G,r)}')
            for r in range(0, 16, 2):
                L += [f'v_exp_f32 v{T+r}, v{T+r}', f'v_exp_f32 v{T+r+1}, v{T+r+1}', f'v_pk_mul_f32 {pr(U,r)}, {pr(U,r)}, {pr(G,r)}']
            for r in range(0, 16, 2): L.append(f'v_pk_fma_f32 {pr(T,r)}, {pr(T,r)}, {VV}, {VV} op_sel:[0,0,0] op_sel_hi:[1,0,0]')
            for r in range(16): L.append(f'v_rcp_f32 v{T+r}, v{T+r}')
            for r in range(0, 16, 2): L.append(f'v_pk_mul_f32 {pr(U,r)}, {pr(U,r)}, {pr(T,r)}')
        else:
            for r in range(16): L.append(f'v_fmac_f32 v{G+r}, {NM}, v{csg+r}')
            for r in range(16): L.append(f'v_fmac_f32 v{U+r}, {NM}, v{csu+r}')
            for r in range(16): L.append(f'v_mul_f32 v{T+r}, v{G+r}, v{G+r}')
            for r in range(16): L.append(f'v_fma_f32 v{T+r}, v{T+r}, {vB}, {vA}')
            for r in range(16): L.append(f'v_mul_f32 v{T+r}, v{T+r}, v{G+r}')
            for r in range(16):
                L += [f'v_exp_f32 v{T+r}, v{T+r}', f'v_mul_f32 v{U+r}, v{U+r}, v{G+r}']
            for r in range(16): L.append(f'v_fma_f32 v{T+r}, v{T+r}, {vV}, {vV}')
            for r in range(16): L.append(f'v_rcp_f32 v{T+r}, v{T+r}')
            for r in range(16): L.append(f'v_mul_f32 v{U+r}, v{U+r}, v{T+r}')
        for i in range(8):
            L.append(f'v_cvt_pk_bf16_f32 v{PK+i}, v{U+2*i}, v{U+2*i+1}')
        return L

    def p3(s):
        a = s.a; g = s.g
        a.c('==== P3')
        a(f'v_add_u32 v12, {L_WU}, {vTR0}'); a(f'v_add_u32 v13, {L_WU}, {vTR1}')
        for b in range(2):
            a(f's_lshl_b32 {sT0}, {sW}, 1'); a(f's_add_u32 {sT0}, {sT0}, {b}')
            a(f's_mul_i32 s{82+b}, {sT0}, 28672'); a(f's_add_u32 s{82+b}, s{82+b}, {sX1}')
            a(f's_mul_i32 s{86+b}, {sT0}, 3584'); a(f's_add_u32 s{86+b}, s{86+b}, {sST1}')
            a(f's_mul_i32 s{88+b}, {sT0}, 114688'); a(f's_add_u32 s{88+b}, s{88+b}, {sH}')
            a(f's_lshl_b32 {sT1}, {sM}, 12'); a(f's_add_u32 s{88+b}, s{88+b}, {sT1}')
        g.wait_flags(s.fl(2), 0x0fffffff, vt='v10', va='v11', keep_vm=True)
        g.stamp('p3 hop done')
        def xload(ks, b):
            a(f's_add_u32 {sT6}, s{82+b}, {(ks//4)*4096}')
            a.vmem(f'buffer_load_dwordx4 a[{8*ks+4*b}:{8*ks+4*b+3}], {vL16}, {WS}, {sT6} offen offset:{(ks%4)*1024} {LDSC}', ('x', ks, b))
        XD = int(os.environ.get('XD3', '3'))
        for ks in range(XD):
            xload(ks, 0); xload(ks, 1)
        GU = (((16, 32), (48, 64)), ((80, 96), (112, 128)))
        FS = (144, 152, 160)
        NM = ('v10', 'v11'); RS = ('v14', 'v15')
        STR = (168, 184); CSG = 168; CSU = 184; T = 200; PK = 216
        mk_misc = lambda: s.stats_load_items(STR[0], 's86', 'st', 'v234') + s.stats_load_items(STR[1], 's87', 'st', 'v235')
        misc = Side(mk_misc())
        def unit(c, side, per_beat, cs=True):
            vg = vTR0 if c == 0 else vTR1
            vu = 'v12' if c == 0 else 'v13'
            def rdg(ks):
                reg = FS[ks % 3]
                a.ds(f'ds_read_b64_tr_b16 v[{reg}:{reg+1}], {vg} offset:{L_WG+(16*ks)*128}', ('fg', ks))
                a.ds(f'ds_read_b64_tr_b16 v[{reg+2}:{reg+3}], {vg} offset:{L_WG+(16*ks+8)*128}', ('fg', ks))
            def rdu(ks):
                reg = FS[ks % 3] + 4
                a.ds(f'ds_read_b64_tr_b16 v[{reg}:{reg+1}], {vu} offset:{(16*ks)*128}', ('fu', ks))
                a.ds(f'ds_read_b64_tr_b16 v[{reg+2}:{reg+3}], {vu} offset:{(16*ks+8)*128}', ('fu', ks))
            (G_, U_) = GU[c]
            CF = (100, 104, 108)
            def rdc(ks):
                reg = CF[ks % 3]
                a.ds(f'ds_read_b64_tr_b16 v[{reg}:{reg+1}], v233 offset:{(16*ks)*128}', ('fc', ks))
                a.ds(f'ds_read_b64_tr_b16 v[{reg+2}:{reg+3}], v233 offset:{(16*ks+8)*128}', ('fc', ks))
            rdg(0); rdu(0); rdg(1); rdu(1)
            if c == 0 and cs: rdc(0); rdc(1)
            for ks in range(28):
                b0 = FS[ks % 3]
                if c == 0 and ks == (12 if LATEU else 18):
                    a('s_barrier')
                for j, (acc, fo, b) in enumerate(((G_[0], 0, 0), (G_[1], 0, 1), (U_[0], 4, 0), (U_[1], 4, 1))):
                    if c == 0 and j < 2: a.wait_vm(('x', ks, b))
                    if j == 0: a.wait_lg(('fg', ks))
                    if j == 2: a.wait_lg(('fu', ks))
                    cc = '0' if ks == 0 else f'v[{acc}:{acc+15}]'
                    a(f'v_mfma_f32_32x32x16_bf16 v[{acc}:{acc+15}], v[{b0+fo}:{b0+fo+3}], a[{8*ks+4*b}:{8*ks+4*b+3}], {cc}')
                    if j == 0 and ks+2 < 28: rdg(ks+2)
                    if j == 2 and ks+2 < 28: rdu(ks+2)
                    if c == 0 and cs and j == 3:
                        a.wait_lg(('fc', ks))
                        reg = CF[ks % 3]
                        cc2 = '0' if ks == 0 else 'v[200:215]'
                        a(f'v_mfma_f32_32x32x16_bf16 v[200:215], v[{reg}:{reg+3}], v[96:99], {cc2}')
                        if ks+2 < 28: rdc(ks+2)
                    if c == 0:
                        if j in (0, 2) and ks + XD < 28: xload(ks+XD, j >> 1)
                        if j == 3 and ks >= 12 and ks % 2 == 0: side.emit(a)
                    else:
                        side.emit_budget(a, per_beat[j])
            side.flush(a)
        a(f's_and_b32 {sT0}, {sW}, 1'); a(f's_lshl_b32 {sT0}, {sT0}, 6'); a(f'v_xor_b32 v233, {sT0}, {vTR0}')
        a(f's_lshr_b32 {sT0}, {sW}, 1'); a(f's_mul_i32 {sT0}, {sT0}, {L_WU}'); a(f'v_add_u32 v233, {sT0}, v233')
        for i in range(4): a(f'v_mov_b32 v{96+i}, 0x3f803f80')
        if CS1:
            unit(0, misc, None)
        else:
            Lu1 = a.newlabel('Lu1'); Lue = a.newlabel('Lue')
            a(f's_cmp_lg_u32 {sL}, 0'); a(f's_cbranch_scc1 {Lu1}')
            vm0, lg0 = list(a.vm), list(a.lg)
            unit(0, misc, None)
            vmA, lgA = list(a.vm), list(a.lg)
            a(f's_branch {Lue}')
            a.label(Lu1)
            a.vm, a.lg = list(vm0), list(lg0)
            unit(0, Side(mk_misc()), None, cs=False)
            assert a.vm == vmA and a.lg == lgA, (a.vm, vmA, a.lg, lgA)
            a.label(Lue)
        vm_st = None
        s.resid_loads(224, sX1)
        if not IDLEP:
            if not HSC:
                s.pretouch('s88', 32); s.pretouch('s89', 32)
        g.stamp('p3 gemm 0')
        prel = []
        def csw():
            a(f's_lshl_b32 {sT1}, {sW}, 7'); a(f's_add_u32 {sT1}, {sT1}, {M_CSFF}')
            a(f'v_add_u32 v232, {sT1}, {vCS}')
            a('s_mov_b32 exec_lo, 1'); a('s_mov_b32 exec_hi, 1')
            for gq in range(4):
                a.ds(f'ds_write_b128 v232, v[{200+4*gq}:{203+4*gq}] offset:{32*gq}', 'csw')
            a('s_mov_b64 exec, -1')
        if not CS1:
            csw_body = csw
            def csw():
                Lx = a.newlabel('Lx'); a(f's_cmp_lg_u32 {sL}, 0'); a(f's_cbranch_scc1 {Lx}')
                lg = list(a.lg)
                csw_body()
                a('s_waitcnt lgkmcnt(0)')
                a.rawlabel(Lx)
                a('s_waitcnt lgkmcnt(0)')
                a.lg = []
        csw.cost = 6
        KC = (250, 236)
        prel.append(lambda: a.wait_vm('st'))
        prel += s.stats_list(STR[0], NM[0], RS[0], 'v234', 'v235')
        prel.append(csw)
        prel += s.stats_list(STR[1], NM[1], RS[1], 'v234', 'v235')
        for b in range(2):
            K = KC[b]
            prel += [f'v_mul_f32 v234, {RS[b]}, {RS[b]}', f'v_mov_b32 v{K+2}, v{STR[b]+1}',
                     f'v_mul_f32 v{K}, {fbits(C0)}, {RS[b]}', f'v_mul_f32 v234, v234, {RS[b]}', f'v_mul_f32 v{K+1}, {fbits(C1)}, v234']
        def csb():
            a.wait_lg('csw'); a('s_barrier')
            a(f'v_add_u32 v232, {M_CSFF}, {vCS}')
        csb.cost = 2
        prel.append(csb)
        def epi(c, packed):
            L = []
            L += s.cs_read_items(CSG, 128*c, 'cs', 'v232') + s.cs_read_items(CSU, 256+128*c, 'cs', 'v232')
            L.append(lambda: a.wait_lg('cs'))
            for b in range(2):
                L += s.gelu_list(GU[c][0][b], GU[c][1][b], CSG, CSU, NM[b], KC[b], T, PK, packed)
                def st(b=b):
                    a.vmem(f'buffer_store_dwordx4 v[{PK}:{PK+3}], {vL16}, {WS}, s{88+b} offen offset:{2*c*1024} {HSC or STSC}', 'hs')
                    a.vmem(f'buffer_store_dwordx4 v[{PK+4}:{PK+7}], {vL16}, {WS}, s{88+b} offen offset:{(2*c+1)*1024} {HSC or STSC}', 'hs')
                L.append(st)
            return L
        e0 = epi(0, False)
        a(f's_mul_i32 s90, {sW}, {448*896}'); a(f's_lshl_b32 {sT1}, {sCT}, 7'); a(f's_add_u32 s90, s90, {sT1}')
        a(f's_mul_i32 s85, {sW}, {NRA*1024}'); a(f's_add_u32 s85, s85, {RA}')
        a(f's_mul_i32 s91, {sW}, 28672'); a(f's_cmp_ge_u32 {sW}, 2'); a(f's_cselect_b32 {sT0}, 47104, 0'); a(f's_add_u32 s91, s91, {sT0}')
        a(f's_sub_u32 s91, s91, {NRA*1024}')
        extra = []
        for i in range(NRA):
            f = s.wd_item(i); f.cost = 3; extra.append(f)
        if MAINW:
            def wdt(i):
                def f():
                    a(f's_add_u32 {sT0}, s67, {16*i*896}')
                    a('s_mov_b64 exec, ' + ('0xffff' if i < 5 else '0x3ff'))
                    a.vmem(f'buffer_load_dword {vDUM}, v233, {WD}, {sT0} offen', 'tw')
                    a('s_mov_b64 exec, -1')
                f.cost = 2
                return f
            a(f'v_mul_u32_u24 v233, 896, {vLANE}')
            a(f's_mul_i32 {sT0}, {sTQ}, 90'); a(f's_add_u32 {sT0}, {sT0}, 88'); a(f's_mul_i32 {sT0}, {sT0}, 896'); a(f's_add_u32 s67, {sT0}, s90')
            extra += [wdt(i) for i in range(6)]
        step = (len(e0) - 20)//len(extra)
        out = []
        for i, f in enumerate(extra):
            out += e0[i*step:(i+1)*step] + [f]
        e0 = out + e0[len(extra)*step:]
        e0 = prel + e0
        unit(1, Side(e0), (BUD_A, BUD_B, BUD_A, BUD_B))
        g.stamp('p3 gemm 1')
        a('s_barrier')
        NA = NRA + int(os.environ.get('NE1', '12'))
        e1 = epi(1, True)
        run_list(a, e1, Side([s.wd_item(i) for i in range(NRA, NA)]), max(1, len(e1)//(NA-NRA+2)))
        g.stamp('p3 epi 1')
        g.set_flag(s.fl(3))
        def ringb():
            for i in range(NA, NSLOT): s.wd_item(i, track=False)()
            nb = NSLOT - NA
            a(f's_sub_u32 {sT0}, {sW}, 1'); a(f's_mul_i32 {sT1}, {sT0}, {8*896}'); a(f's_lshl_b32 {sT3}, {sCT}, 7'); a(f's_add_u32 s86, {sT1}, {sT3}')
            a(f's_lshl_b32 s87, {sT0}, 10')
            for n in range((nb+2)//3):
                partial = 3*n + 2 >= nb
                if partial:
                    Lx = a.newlabel('Lx'); a(f's_cmp_gt_u32 {sW}, {nb - 3*n}'); a(f's_cbranch_scc1 {Lx}')
                s.dma_item(WD, vD896, 's86', (NA+3*n)*8*896, 's87', (NA-NRA+3*n)*1024, 'Wb', track=False)()
                if partial: a.label(Lx)
        g.wave_in(1, 4, ringb)
        a.vm = []
        g.stamp('p3 done')

    def wd_item(s, blk, track=True):
        slot = blk % NSLOT
        return s.dma_item(WD, vD896, 's90', blk*8*896, 's85' if slot < NRA else 's91', slot*1024, ('W', blk), track=track)

    def p4(s):
        a = s.a; g = s.g
        a.c('==== P4')
        a.rawlabel('L_code_p4')
        a(f's_add_u32 {sT5}, s91, {NRA*1024}')
        s.tile_addrs(sT5)
        a(f's_sub_u32 {sT0}, s85, {sT5}'); a(f'v_add_u32 v12, {sT0}, v14'); a('v_xor_b32 v13, 64, v12')
        for b in range(2):
            a(f's_and_b32 {sT0}, {sW}, 1'); a(f's_xor_b32 {sT0}, {sT0}, {b}'); a(f's_lshl_b32 {sT1}, {sTQ}, 1')
            a(f's_add_u32 {sT0}, {sT0}, {sT1}'); a(f's_mul_i32 {sT0}, {sT0}, 114688'); a(f's_add_u32 {sT0}, {sT0}, {sH}')
            a(f's_mul_i32 {sT1}, {sW}, {28*1024}'); a(f's_add_u32 s{82+b}, {sT0}, {sT1}')
        s.wait_saved()
        g.wait_flags(s.fl(3), 0x0fffffff, vt='v10', va='v11', keep_vm=True)
        g.stamp('p4 hop done')
        wd = s.wd_item
        def hload(ks, b):
            a(f's_add_u32 {sT6}, s{82+b}, {(ks//4)*4096}')
            a.vmem(f'buffer_load_dwordx4 a[{8*ks+4*b}:{8*ks+4*b+3}], {vL16}, {WS}, {sT6} offen offset:{(ks%4)*1024} {LDSC}', ('h', ks, b))
        HD = int(os.environ.get('HD', '6'))
        for ks in range(HD):
            hload(ks, 0); hload(ks, 1)
        ACC = 16; FS = (80, 88, 104)
        def rd(ks):
            reg = FS[ks % 3]
            a.wait_vm(('W', 2*ks+1))
            for sl in range(2):
                for b in range(2):
                    slot = (2*ks + b) % NSLOT
                    va = ('v12', 'v13')[sl] if slot < NRA else ('v14', 'v15')[sl]
                    off = (slot if slot < NRA else slot - NRA)*1024
                    a.ds(f'ds_read_b64_tr_b16 v[{reg+4*sl+2*b}:{reg+4*sl+2*b+1}], {va} offset:{off}', ('f', ks, sl))
        rd(0); rd(1)
        for ks in range(28):
            b0 = FS[ks % 3]
            if ks == 7:
                a('s_barrier')
            for j, (sa, sb) in enumerate(((0, 0), (0, 1), (1, 0), (1, 1))):
                if j < 2: a.wait_vm(('h', ks, sb))
                if j in (0, 2): a.wait_lg(('f', ks, sa))
                R = ACC + 16*(2*sa+sb)
                c = '0' if ks == 0 else f'v[{R}:{R+15}]'
                a(f'v_mfma_f32_32x32x16_bf16 v[{R}:{R+15}], v[{b0+4*sa}:{b0+4*sa+3}], a[{8*ks+4*sb}:{8*ks+4*sb+3}], {c}')
                if j == 0 and ks+2 < 28: rd(ks+2)
                if j in (0, 2) and ks + HD < 28: hload(ks+HD, j >> 1)
                if j in (1, 3) and ks >= 1 and 2*(ks-1) + NSLOT < 56: wd(2*(ks-1) + NSLOT + (j >> 1))()
        g.stamp('p4 gemm')
        a('s_barrier')
        P3W = ((1, 1), (2, 2), (3, 3))
        Lf = a.newlabel('Lfin'); Le = a.newlabel('Lp4e')
        a(f's_cmp_lg_u32 {sL}, 0'); a(f's_cbranch_scc1 {Lf}')
        side = Side(s.wq_items())
        s.red_write(ACC, RED4, parts=P3W, side=side)
        Lr = s.red_list(ACC, 224)
        n_in = int(os.environ.get('NIN', '8'))
        part = Side([side.q.popleft() for _ in range(n_in)])
        run_list(a, Lr, part, max(1, len(Lr)//(n_in+1)))
        run_list(a, s.store_x_list(ACC, sXO, sSTO))
        g.set_flag(s.fl(4))
        side.flush(a)
        a(f's_branch {Le}')
        a.label(Lf)
        a.vm = []; a.lg = []
        s.red_write(ACC, RED4, parts=P3W)
        run_list(a, s.red_list(ACC, 224) + s.store_out_list(ACC))
        a('s_branch L_fin')
        a.label(Le)
        g.stamp('p4 epi')

    def run(s):
        a = s.a; g = s.g; stop = s.stop
        a.label('L_layer')
        s.layer_setup()
        s.p1()
        s.p2a()
        a(f's_cmp_ge_u32 {sM}, 28'); a('s_cbranch_scc1 L_idle')
        s.p2b()
        s.p3()
        s.p4()
        a('s_branch L_next')
        a.label('L_idle')
        a.vm = []; a.lg = []
        a(f's_sub_u32 {sT0}, {sM}, 28'); a(f's_lshl_b32 {sT0}, {sT0}, 2'); a(f's_add_u32 s86, {sT0}, {sW}')
        if LATEU:
            a(f's_mul_i32 s87, s86, {392*128}'); a(f's_add_u32 s87, s87, {224*3584}')
            for i in range(7):
                a(f's_add_u32 {sT1}, s87, {i*64*128}')
                if i == 6: a('s_mov_b64 exec, 0xff')
                a(f'buffer_load_dword {vDUM}, {vL128}, {WU}, {sT1} offen')
                if i == 6: a('s_mov_b64 exec, -1')
            a(f's_mul_i32 s87, s86, {224*128}'); a(f's_add_u32 s87, s87, {320*3584}')
            for i in range(4):
                a(f's_add_u32 {sT1}, s87, {i*64*128}')
                if i == 3: a('s_mov_b64 exec, 0xffffffff')
                a(f'buffer_load_dword {vDUM}, {vL128}, {WG}, {sT1} offen')
                if i == 3: a('s_mov_b64 exec, -1')
        if IDLEP and PRET:
            if not HSC:
                a(f's_mul_i32 s87, s86, {448*128}'); a(f's_add_u32 s87, s87, {sH}')
                for i in range(7):
                    a(f's_add_u32 {sT1}, s87, {i*64*128}')
                    a(f'buffer_load_dword {vDUM}, {vL128}, {WS}, {sT1} offen')
        if IDLEW:
            a(f's_mul_i32 s87, s86, {784*128}')
            for i in range(13):
                a(f's_add_u32 {sT1}, s87, {i*64*128}')
                a(f'buffer_load_dword {vDUM}, {vL128}, {WD}, {sT1} offen')
        Li0 = a.newlabel('Lidle0')
        a(f's_cmp_eq_u32 {sL}, 0'); a(f's_cbranch_scc1 {Li0}')
        if WBL:
            g.wait_flags(s.fl(3), 0x0fffffff, vt='v10', va='v11', drain=True)
            def wb():
                Lx = a.newlabel('Lx'); a(f's_cmp_lg_u32 {sM}, 28'); a(f's_cbranch_scc1 {Lx}')
                a('buffer_wbl2 sc1'); a('s_waitcnt vmcnt(0)')
                a.label(Lx)
            g.wave_only(0, wb)
        a('s_branch L_fin')
        a.label(Li0)
        if IDLEP and PRET:
            a(f's_mul_i32 s87, s86, {112*128}'); a(f's_add_u32 s87, s87, {sXO}')
            for i in range(2):
                a(f's_add_u32 {sT1}, s87, {i*64*128}')
                if i == 1: a('s_mov_b32 exec_hi, 0xffff')
                a(f'buffer_load_dword {vDUM}, {vL128}, {WS}, {sT1} offen')
                if i == 1: a('s_mov_b64 exec, -1')
            a(f's_mul_i32 s87, s86, {14*128}'); a(f's_add_u32 s87, s87, {sSTO}')
            a('s_mov_b64 exec, 0x3fff')
            a(f'buffer_load_dword {vDUM}, {vL128}, {WS}, s87 offen')
            a('s_mov_b64 exec, -1')
        s.wait_saved(all_heads=True)
        a('s_waitcnt vmcnt(0)'); a('s_barrier')
        for it in s.wq_items(): it()
        if IDLEQ:
            g.wait_flags(s.fl(3), 0x0fffffff, vt='v10', va='v11', drain=True)
            a(f's_mul_i32 s87, s86, {672*128}'); a(f's_add_u32 s87, s87, {G0 + WQ}')
            for i in range(11):
                a(f's_add_u32 {sT1}, s87, {i*64*128}')
                a(f'buffer_load_dword {vDUM}, {vL128}, {WS}, {sT1} offen')
        a.label('L_next')
        a.vm = []; a.lg = []
        a(f's_mul_i32 {sT0}, {sHALF}, 14'); a(f's_lshl_b32 s81, 0x3fff, {sT0}')
        g.wait_flags(s.fl(4), 's81', vt='v10', va='v11', drain=True)
        g.stamp('p4 hop(x2)')
        a(f's_mov_b32 {sL}, 1')
        a('s_branch L_layer')
```

```python
import sys
from asmlib import Asm
from layout import *

NAME = 'interleave_layers__linear_kernel_hedgehog__geglu_ffn__prompt_kernel'

WS='s[4:7]'; WO='s[8:11]'; WG='s[12:15]'; WU='s[16:19]'; WD='s[20:23]'; OUT='s[24:27]'; DBG='s[28:31]'
AX='s[32:35]'; WQKV='s[36:39]'; WPHI='s[40:43]'
sG='s44'; sM='s45'; sW='s46'; sL='s47'; sHEAVY='s48'; sGB='s49'; sTO='s50'
sXIN='s51'; sSTIN='s52'; sX1='s53'; sST1='s54'; sXO='s55'; sSTO='s56'; sO='s57'; sH='s58'; sKV='s59'; sKVC='s60'; sFL='s61'
sXCC='s62'; sHEAD='s63'; sHALF='s64'; sTQ='s65'; sCT='s66'
sUP='s[96:97]'
sT0='s68'; sT1='s69'; sT2='s70'; sT3='s71'; sT4='s72'; sT5='s73'; sT6='s74'; sT7='s75'
sP0='s[76:77]'; sP1='s[78:79]'
vLANE='v0'; vL16='v1'; vTR64='v2'; vTR0='v3'; vTR1='v4'; vD896='v5'; vD3584='v6'; vSTA='v7'; vCS='v8'; vSTAMP='v9'
LDS_TOTAL = 163840
MISC = LDS_TOTAL - 2048
M_MODE = MISC
M_CSQKV = MISC + 128
M_CSFF  = MISC + 512
L_WK=0; L_WV=28672; L_WQ=57344
L_PHI=86016; L_VI=102400; L_KVF=110592
LOG2E = 1.4426950408889634
import os
STSC = os.environ.get('STSC','')
STSC0 = os.environ.get('STSC0','sc1')
CPF = int(os.environ.get('CPF','1'))
WARM = int(os.environ.get('WARM','1'))
TIMEOUT = 100000
TOUCH0 = int(os.environ.get('TOUCH0','1'))

def fbits(x):
    import struct
    return '0x%08x' % struct.unpack('<I', struct.pack('<f', x))[0]

class Gen:
    def __init__(s, stop_after=None, stamps=False, force_heavy=False):
        s.a = Asm(); s.stop_after = stop_after; s.stamps = stamps; s.force_heavy = force_heavy
        s.nstamp = 0
        s.stamp_names = []

    def stamp(s, name):
        if not s.stamps: return
        if os.environ.get('STAMPMIN') and name != 'start': return
        a = s.a
        i = s.nstamp; s.nstamp += 1; s.stamp_names.append(name)
        a('s_waitcnt lgkmcnt(0)'); a.lg = []
        a('s_memrealtime s[94:95]' if os.environ.get('RT') else 's_memtime s[94:95]')
        a('s_waitcnt lgkmcnt(0)')
        a(f's_lshl_b32 s95, {sL}, 5')
        a(f's_add_u32 s95, s95, {i}')
        a('s_mov_b32 s93, m0')
        a('s_mov_b32 m0, s95')
        a(f'v_writelane_b32 {vSTAMP}, s94, m0')
        a('s_mov_b32 m0, s93')

    def wave_only(s, w, fn):
        a = s.a
        L = a.newlabel('Lw')
        a(f's_cmp_lg_u32 {sW}, {w}')
        a(f's_cbranch_scc1 {L}')
        fn()
        a.label(L)

    def wave_in(s, lo, hi, fn):
        a = s.a
        L = a.newlabel('Lw')
        if lo > 0:
            a(f's_cmp_lt_u32 {sW}, {lo}'); a(f's_cbranch_scc1 {L}')
        if hi < 4:
            a(f's_cmp_ge_u32 {sW}, {hi}'); a(f's_cbranch_scc1 {L}')
        fn()
        a.label(L)

    def poll(s, srd, voff, soff, expect, mask=None, sc='sc1', vt='v10'):
        a = s.a
        Lp = a.newlabel('Lpoll'); Ld = a.newlabel('Ldone'); Lt = a.newlabel('Lto')
        a(f's_cmp_lg_u32 {sTO}, 0'); a(f's_cbranch_scc1 {Ld}')
        a(f's_mov_b32 {sT7}, 0')
        a.label(Lp)
        if voff is None:
            a(f'buffer_load_dword {vt}, off, {srd}, {soff} {sc}')
        else:
            a(f'buffer_load_dword {vt}, {voff}, {srd}, {soff} offen {sc}')
        a('s_waitcnt vmcnt(0)')
        a(f'v_cmp_ne_u32 vcc, {expect}, {vt}')
        a(f's_add_u32 {sT7}, {sT7}, 1')
        if mask is not None:
            a(f's_and_b64 vcc, vcc, {mask}')
        a('s_cmp_eq_u64 vcc, 0')
        a(f's_cbranch_scc1 {Ld}')
        a(f's_cmp_lt_u32 {sT7}, {TIMEOUT}')
        a(f's_cbranch_scc1 {Lp}')
        a(f's_mov_b32 {sTO}, 1')
        a.label(Ld)

    def set_flag(s, phase_off):
        a = s.a
        a.wait_all()
        a('s_barrier')
        def w0():
            Lh = a.newlabel('Lh'); Le = a.newlabel('Le')
            a(f's_lshl_b32 {sT0}, {sM}, 2')
            a(f's_add_u32 {sT0}, {sT0}, {phase_off}')
            a('v_mov_b32 v10, 1')
            a('s_mov_b64 exec, 1')
            a(f's_cmp_lg_u32 {sHEAVY}, 0'); a(f's_cbranch_scc1 {Lh}')
            a(f'buffer_store_dword v10, off, {WS}, {sT0}')
            a(f's_branch {Le}')
            a.label(Lh)
            a('buffer_wbl2 sc1')
            a('s_waitcnt vmcnt(0)')
            a(f'buffer_store_dword v10, off, {WS}, {sT0} sc1')
            a.label(Le)
            a('s_mov_b64 exec, -1')
        s.wave_only(0, w0)

    def wait_flags(s, phase_off, mask_lo, vt='v10', va='v11', keep_vm=False, drain=False):
        a = s.a
        vm = list(a.vm)
        def w0():
            a(f's_mov_b32 s76, {mask_lo}'); a('s_mov_b32 s77, 0')
            a(f'v_and_b32 {va}, 31, {vLANE}'); a(f'v_lshlrev_b32 {va}, 2, {va}')
            s.poll(WS, va, phase_off, 1, mask=sP0, vt=vt)
            Le = a.newlabel('Le')
            a(f's_cmp_eq_u32 {sHEAVY}, 0'); a(f's_cbranch_scc1 {Le}')
            a('buffer_inv sc1'); a('s_waitcnt vmcnt(0)')
            a.label(Le)
        s.wave_only(0, w0)
        if drain:
            a.wait_vm0()
        else:
            a.vm = vm
        a('s_barrier')

    def lane_consts(s):
        a = s.a
        a(f'v_lshlrev_b32 {vL16}, 4, {vLANE}')
        a(f'v_lshrrev_b32 v10, 5, {vLANE}')
        a(f'v_and_b32 v11, 15, {vLANE}')
        a('v_lshrrev_b32 v12, 2, v11')
        a(f'v_bfe_u32 v13, {vLANE}, 4, 1')
        a('v_and_b32 v14, 3, v11')
        a('v_lshl_add_u32 v15, v10, 2, v12')
        a('v_lshlrev_b32 v16, 5, v13'); a('v_lshl_add_u32 v16, v14, 3, v16')
        a(f'v_lshl_add_u32 {vTR64}, v15, 6, v16')
        a('v_lshl_add_u32 v17, v15, 7, v16')
        a('v_lshrrev_b32 v18, 1, v12')
        a(f'v_lshl_add_u32 {vTR0}, v18, 6, v17')
        a('v_xor_b32 v18, 1, v18')
        a(f'v_lshl_add_u32 {vTR1}, v18, 6, v17')
        a(f'v_lshrrev_b32 v19, 3, {vLANE}')
        a(f'v_and_b32 v20, 7, {vLANE}')
        a('v_lshlrev_b32 v21, 2, v13')
        a('v_xor_b32 v20, v20, v21'); a('v_lshlrev_b32 v20, 4, v20')
        a(f'v_mul_u32_u24 {vD896}, 896, v19'); a(f'v_add_u32 {vD896}, {vD896}, v20')
        a(f'v_mul_u32_u24 {vD3584}, 3584, v19'); a(f'v_add_u32 {vD3584}, {vD3584}, v20')
        a(f'v_and_b32 v22, 31, {vLANE}'); a('v_lshlrev_b32 v22, 4, v22')
        a(f'v_lshl_add_u32 {vSTA}, v10, 11, v22')
        a(f'v_lshlrev_b32 {vCS}, 4, v10')

    def prologue(s):
        a = s.a
        a('s_cmp_ge_u32 s2, 256'); a('s_cbranch_scc1 L_end')
        if s.stamps and os.environ.get('T0'): a('s_memrealtime s[90:91]')
        a('s_load_dwordx4 s[32:35], s[0:1], 0')
        a('s_load_dwordx2 s[40:41], s[0:1], 16')
        a('s_load_dwordx2 s[8:9], s[0:1], 24')
        a('s_load_dwordx2 s[12:13], s[0:1], 40')
        a('s_load_dwordx2 s[16:17], s[0:1], 48')
        a('s_load_dwordx2 s[20:21], s[0:1], 56')
        a('s_load_dwordx2 s[24:25], s[0:1], 64')
        a('s_load_dwordx2 s[28:29], s[0:1], 72')
        a('s_load_dwordx2 s[4:5], s[0:1], 80')
        a(f's_getreg_b32 {sXCC}, hwreg(HW_REG_XCC_ID, 0, 4)')
        a(f's_and_b32 {sG}, s2, 7'); a(f's_lshr_b32 {sM}, s2, 3')
        a('v_lshrrev_b32 v10, 6, v0')
        a(f'v_and_b32 {vLANE}, 63, v0')
        a(f'v_readfirstlane_b32 {sW}, v10')
        a(f's_mov_b32 {sL}, 0'); a(f's_mov_b32 {sHEAVY}, 0'); a(f's_mov_b32 {sTO}, 0')
        a(f's_mul_i32 {sGB}, {sG}, {GS}'); a(f's_add_u32 {sGB}, {sGB}, {G0}')
        a(f's_and_b32 {sHEAD}, {sM}, 15'); a(f's_lshr_b32 {sHALF}, {sM}, 4')
        a(f's_mul_i32 {sTQ}, {sM}, 37'); a(f's_lshr_b32 {sTQ}, {sTQ}, 8')
        a(f's_mul_i32 {sT0}, {sTQ}, 7'); a(f's_sub_u32 {sCT}, {sM}, {sT0}')
        a('s_mov_b32 s96, 0'); a('s_mov_b32 s97, -1')
        a('s_getpc_b64 s[98:99]')
        a.rawlabel('L_pc')
        a(f's_sub_u32 s98, s98, L_pc-{NAME}'); a('s_subb_u32 s99, s99, 0')
        if s.stamps: a(f'v_mov_b32 {vSTAMP}, 0')
        for (b, n) in ((6, WS_BYTES), (10, D*D*2), (14, D*F*2), (18, D*F*2), (22, F*D*2), (26, S*D*2), (30, 256), (42, NH*DH*DH*2)):
            a(f's_mov_b32 s{b}, {n}'); a(f's_mov_b32 s{b+1}, 0x20000')
        a('s_waitcnt lgkmcnt(0)')
        a('s_mov_b32 s36, s34'); a('s_mov_b32 s37, s35')
        a(f's_mov_b32 s34, {S*D*2}'); a('s_mov_b32 s35, 0x20000')
        a(f's_mov_b32 s38, {D*3*D*2}'); a('s_mov_b32 s39, 0x20000')
        s.stamp('start')
        if s.stamps:
            a('s_memrealtime s[100:101]'); a('s_waitcnt lgkmcnt(0)')
            if os.environ.get('T0'):
                a('s_sub_u32 s90, s100, s90'); a(f'v_writelane_b32 {vSTAMP}, s90, 59')

    def p0(s):
        a = s.a
        a.c('==== P0')
        XS = 47104; XSW = 28672
        from phases import Phases
        s.P = Phases(s)
        def w0():
            a(f's_lshl_b32 {sFL}, {sG}, 11')
            if FLAGS: a(f's_add_u32 {sFL}, {sFL}, {FLAGS}')
            a(f'v_lshlrev_b32 v11, 7, {vLANE}')
            a('v_mov_b32 v12, 0'); a('v_mov_b32 v13, 0'); a('v_mov_b32 v14, 0'); a('v_mov_b32 v15, 0')
            a('s_mov_b64 exec, 0xffff')
            a(f'buffer_load_dword v254, v11, {WS}, {sFL} offen')
            a(f's_lshl_b32 {sT0}, {sM}, 2'); a(f's_add_u32 {sT0}, {sT0}, {sFL}')
            a(f'buffer_store_dword v12, v11, {WS}, {sT0} offen')
            a('s_mov_b64 exec, -1')
            a(f'v_lshlrev_b32 v16, 4, {vLANE}')
            a(f's_lshl_b32 {sT0}, s2, 10'); a(f's_add_u32 {sT0}, {sT0}, {KV}')
            a(f'buffer_store_dwordx4 v[12:15], v16, {WS}, {sT0} offen sc1')
            L = a.newlabel('Lz')
            a('s_cmp_ge_u32 s2, 32'); a(f's_cbranch_scc1 {L}')
            a(f's_lshl_b32 {sT0}, s2, 7'); a(f's_add_u32 {sT0}, {sT0}, {KVC}')
            a('s_mov_b64 exec, 1')
            a(f'buffer_store_dword v12, off, {WS}, {sT0} sc1')
            a('s_mov_b64 exec, -1')
            a.label(L)
        s.wave_only(0, w0)
        if TOUCH0:
            def xt():
                a(f'v_lshlrev_b32 v30, 7, {vLANE}')
                a(f's_lshl_b32 {sT0}, {sG}, 8'); a(f's_lshl_b32 {sT1}, {sM}, 3'); a(f's_add_u32 {sT0}, {sT0}, {sT1}'); a(f's_mul_i32 {sT0}, {sT0}, 896')
                a('s_mov_b32 exec_hi, 0xffffff')
                a(f'buffer_load_dword v254, v30, {AX}, {sT0} offen')
                a('s_mov_b64 exec, -1')
            s.wave_only(2, xt)
        a(f'v_lshrrev_b32 v10, 3, {vLANE}'); a('v_mul_u32_u24 v10, 896, v10')
        a(f'v_and_b32 v11, 7, {vLANE}'); a(f'v_lshrrev_b32 v12, 4, {vLANE}'); a('v_xor_b32 v11, v11, v12')
        a('v_lshl_add_u32 v40, v11, 4, v10'); a('v_xor_b32 v41, 64, v40')
        a(f's_lshl_b32 {sT0}, {sG}, 8'); a(f's_lshl_b32 {sT1}, {sHALF}, 7'); a(f's_add_u32 {sT0}, {sT0}, {sT1}')
        a(f's_lshl_b32 {sT1}, {sW}, 5'); a(f's_add_u32 {sT0}, {sT0}, {sT1}'); a(f's_mul_i32 s82, {sT0}, 896')
        a(f's_mul_i32 s83, {sW}, {XSW}'); a(f's_add_u32 s83, s83, {XS}')
        for L in range(7):
            for rb in range(4):
                a(f's_add_u32 m0, s83, {L*4096 + rb*1024}')
                a(f's_add_u32 {sT2}, s82, {rb*8*896 + L*128}')
                a.vmem(f'buffer_load_dwordx4 v{40 + (rb & 1)}, {AX}, {sT2} offen lds', 'x')
        s.stamp('p0 x issued')
        def reg():
            a(f's_mul_i32 {sT1}, {sXCC}, {sXCC}'); a(f's_lshl_b32 {sT1}, {sT1}, 10'); a(f's_add_u32 {sT1}, {sT1}, {sXCC}')
            a(f's_add_u32 {sT1}, {sT1}, {1<<26}')
            a(f'v_mov_b32 v10, {sT1}')
            a(f's_lshl_b32 {sT2}, {sG}, 5')
            a('s_waitcnt vmcnt(28)')
            a('s_mov_b64 exec, 1')
            a(f'buffer_atomic_add v10, off, {DBG}, {sT2} sc1')
            a('s_mov_b64 exec, -1')
        s.wave_only(0, reg)
        if CPF: s.wave_only(3, lambda: s.code_prefetch(NAME, 'L_code_p2b'))
        a(f'v_lshrrev_b32 v10, 2, {vLANE}'); a('v_mul_u32_u24 v10, 2688, v10')
        a(f'v_and_b32 v11, 3, {vLANE}'); a('v_lshl_add_u32 v42, v11, 4, v10')
        a(f's_mul_i32 s84, {sHEAD}, 56'); a(f's_mul_i32 {sT0}, {sW}, {16*2688}'); a(f's_add_u32 s84, s84, {sT0}')
        a(f's_lshl_b32 s85, {sW}, 10')
        def wdma(slot, i, tag):
            col = (896, 1792, 0)[slot]
            a(f's_add_u32 m0, s85, {slot*28672 + i*4096}')
            a(f's_add_u32 {sT2}, s84, {col + i*4*16*2688}')
            a.vmem(f'buffer_load_dwordx4 v42, {WQKV}, {sT2} offen lds', tag)
        from phases import Side
        wearly = Side([(lambda i=i: wdma(0, i, 'Wkv')) for i in range(7)] + [(lambda i=i: wdma(1, i, 'Wkv')) for i in range(4)])
        wearly.emit(a, 2)
        s.lane_consts()
        s.P.persistent_addrs()
        a(f'v_and_b32 v10, 31, {vLANE}'); a('v_bfe_u32 v11, v10, 1, 3'); a('v_lshlrev_b32 v11, 4, v11')
        a('v_lshl_add_u32 v11, v10, 7, v11'); a(f'v_lshrrev_b32 v12, 5, {vLANE}'); a('v_lshl_add_u32 v11, v12, 3, v11')
        a('v_add_u32 v11, s83, v11')
        for c in range(8): a(f'v_xor_b32 v{44+c}, {c << 4}, v11')
        a('v_mov_b32 v54, 0'); a('v_mov_b32 v55, 0')
        for r in range(60, 64): a(f'v_mov_b32 v{r}, 0x3f803f80')
        a.wait_vm('x')
        s.stamp('p0 x landed')
        def reads(L):
            for q in range(4):
                ks = 4*L + q
                for b in range(2):
                    a.ds(f'ds_read_b64 a[{4*ks+2*b}:{4*ks+2*b+1}], v{44+2*q+b} offset:{L*4096}', ('xa', L))
            for q in range(4):
                for b in range(2):
                    R = 128 + 16*(L % 3) + 4*q + 2*b
                    a.ds(f'ds_read_b64 v[{R}:{R+1}], v{44+2*q+b} offset:{L*4096}', ('xv', L))
        reads(0)
        for L in range(7):
            if L+1 < 7: reads(L+1)
            a.wait_lg(('xv', L))
            for q in range(4):
                ks = 4*L + q
                c = '0' if ks == 0 else 'v[64:79]'
                a(f'v_mfma_f32_32x32x16_bf16 v[64:79], v[60:63], a[{4*ks}:{4*ks+3}], {c}')
                for i in range(4):
                    R = 128 + 16*(L % 3) + 4*q + i
                    a(f'v_dot2c_f32_bf16 v{54 + (i & 1)}, v{R}, v{R}')
                if q & 1: wearly.emit(a)
        wearly.flush(a)
        a.wait_lg0()
        a('s_barrier')
        s.stamp('p0 x read')
        for i in range(4, 7): wdma(1, i, 'Wkv')
        def wp():
            a(f's_mul_i32 {sT0}, {sHEAD}, 1568'); a(f's_mov_b32 m0, {L_PHI}')
            a(f'buffer_load_dwordx4 {vL16}, {WPHI}, {sT0} offen lds')
            a(f's_add_u32 {sT0}, {sT0}, 1024'); a(f's_mov_b32 m0, {L_PHI + 1024}')
            a(f'buffer_load_dwordx4 {vL16}, {WPHI}, {sT0} offen lds')
        s.wave_only(0, wp)
        for i in range(7): wdma(2, i, 'Wq')
        a('v_add_f32 v54, v54, v55')
        a('v_mov_b32 v55, v54')
        a('v_permlane32_swap_b32 v54, v55')
        a('v_add_f32 v54, v54, v55')
        a(f'v_mul_f32 v234, {fbits(-1.0/448)}, v64'); a(f'v_mul_f32 v54, {fbits(1.0/448)}, v54')
        a('v_fma_f32 v54, -v234, v234, v54'); a('v_max_f32 v54, 0, v54'); a(f'v_add_f32 v54, {fbits(1e-5)}, v54')
        a('v_rsq_f32 v235, v54')
        a.wait_vm('Wkv')
        def wpw(): a('s_waitcnt vmcnt(7)')
        s.wave_only(0, wpw)
        a('s_barrier')
        s.stamp('p1 W landed')
        a(f'v_and_b32 v10, 31, {vLANE}'); a(f'v_lshrrev_b32 v11, 5, {vLANE}')
        a('v_lshrrev_b32 v12, 3, v10'); a('v_sub_u32 v12, v10, v12')
        a('v_lshlrev_b32 v12, 1, v12'); a('v_mul_u32_u24 v13, 224, v11'); a('v_add_u32 v12, v12, v13'); a(f'v_add_u32 v12, {L_PHI}, v12')
        a('v_and_b32 v10, 7, v10')
        for e in range(2):
            for b in range(2):
                for r in range(4):
                    a.ds(f'ds_read_u16 v{96 + 8*e + 4*b + r}, v12 offset:{(16*e+8*b+r)*56}', 'wp')
        def warm():
            a(f'v_lshlrev_b32 v15, 7, {vLANE}')
            a(f's_mul_i32 {sT1}, s2, {49*128}')
            a('s_mov_b32 exec_lo, -1'); a('s_mov_b32 exec_hi, 0x1ffff')
            for srd in (WG, WU, WD):
                a(f'buffer_load_dword v254, v15, {srd}, {sT1} offen')
            a(f's_mul_i32 {sT1}, s2, {13*128}')
            a('s_mov_b64 exec, 0x1fff')
            a(f'buffer_load_dword v254, v15, {WO}, {sT1} offen')
            a('s_mov_b64 exec, -1')
        if WARM: s.wave_only(3, warm)
        a('v_cmp_gt_u32 vcc, 7, v10')
        a.wait_lg0()
        for i in range(8):
            a(f'v_lshl_or_b32 v{96+2*i}, v{97+2*i}, 16, v{96+2*i}')
        for i in range(8):
            a(f'v_cndmask_b32 v{96+2*i}, 0, v{96+2*i}, vcc')
        for i in (6, 7):
            a(f'v_cndmask_b32 v{96+2*i}, v{96+2*i}, 0, {sUP}')
        for i in range(8):
            a(f'v_accvgpr_write_b32 a{248+i}, v{96+2*i}')
        a.vm = []; a.lg = []
        s.stamp('p0 done')

    def code_prefetch(s, l0, l1, v='v10', vd='v255'):
        a = s.a
        a(f's_mul_i32 {sT0}, {sM}, ((({l1}-{l0})+4095)/4096)*128')
        a(f's_add_u32 {sT0}, {sT0}, {l0}-{NAME}')
        a(f'v_lshlrev_b32 {v}, 7, {vLANE}'); a(f'v_add_u32 {v}, {sT0}, {v}')
        a(f'v_min_u32 {v}, CODE_BYTES-4, {v}')
        a(f's_mov_b32 exec_lo, (1<<((({l1}-{l0})+4095)/4096))-1'); a('s_mov_b32 exec_hi, 0')
        a(f'global_load_dword {vd}, {v}, s[98:99]')
        a('s_mov_b64 exec, -1')

    def registration_check(s):
        a = s.a
        Lp = a.newlabel('Lreg'); Ld = a.newlabel('Lregd'); Lc = a.newlabel('Lregc')
        a(f's_mov_b32 {sT7}, 0')
        a(f's_branch {Lc}')
        a.label(Lp)
        a(f'buffer_load_dword v232, v233, {DBG}, 0 offen sc1')
        a.label(Lc)
        a('s_waitcnt vmcnt(0)')
        a('v_lshrrev_b32 v13, 26, v232')
        a('v_cmp_ne_u32 vcc, 32, v13')
        a(f's_add_u32 {sT7}, {sT7}, 1')
        a('s_cmp_eq_u64 vcc, 0'); a(f's_cbranch_scc1 {Ld}')
        a(f's_cmp_lt_u32 {sT7}, {TIMEOUT}'); a(f's_cbranch_scc1 {Lp}')
        a(f's_mov_b32 {sTO}, 1')
        a.label(Ld)
        def w0():
            a(f'v_readlane_b32 {sT3}, v232, {sG}')
            a(f's_mul_i32 {sT1}, {sXCC}, {sXCC}'); a(f's_lshl_b32 {sT1}, {sT1}, 10'); a(f's_add_u32 {sT1}, {sT1}, {sXCC}')
            a(f's_lshl_b32 {sT1}, {sT1}, 5')
            a(f's_and_b32 {sT3}, {sT3}, {(1<<26)-1}')
            a(f's_cmp_lg_u32 {sT3}, {sT1}'); a(f's_cselect_b32 {sHEAVY}, 1, 0')
            if s.force_heavy: a(f's_mov_b32 {sHEAVY}, 1')
            Le = a.newlabel('Le')
            a(f's_cmp_eq_u32 {sHEAVY}, 0'); a(f's_cbranch_scc1 {Le}')
            a(f's_lshl_b32 {sT0}, {sG}, 11')
            if FLAGS: a(f's_add_u32 {sT0}, {sT0}, {FLAGS}')
            a(f's_lshl_b32 {sT1}, {sM}, 2'); a(f's_add_u32 {sT0}, {sT0}, {sT1}')
            a('v_mov_b32 v14, 0'); a(f'v_lshlrev_b32 v13, 7, {vLANE}')
            a('s_mov_b64 exec, 0xffff')
            a(f'buffer_store_dword v14, v13, {WS}, {sT0} offen sc1')
            a('s_waitcnt vmcnt(0)')
            a('s_mov_b64 exec, 1')
            a('v_mov_b32 v14, 1')
            a(f's_lshl_b32 {sT1}, {sG}, 5'); a(f's_add_u32 {sT1}, {sT1}, 8')
            a(f'buffer_atomic_add v14, off, {DBG}, {sT1} sc1')
            a('s_mov_b64 exec, -1')
            s.poll(DBG, None, sT1, 32, vt='v14')
            a.label(Le)
        s.wave_only(0, w0)

    def wphi_loads(s, track=False):
        a = s.a
        a(f'v_and_b32 v10, 31, {vLANE}'); a(f'v_lshrrev_b32 v11, 5, {vLANE}')
        a('v_lshlrev_b32 v12, 1, v10'); a('v_mul_u32_u24 v13, 224, v11'); a('v_add_u32 v12, v12, v13')
        a(f's_mul_i32 {sT5}, {sHEAD}, 1568')
        a('v_mov_b32 v14, 0x40000000')
        a('v_cmp_gt_u32 vcc, 28, v10')
        a('v_cndmask_b32 v12, v14, v12, vcc')
        a(f'v_cndmask_b32 v13, v12, v14, {sUP}')
        for e in range(2):
            for b in range(2):
                for r in range(4):
                    reg = 96 + 8*e + 4*b + r
                    va = 'v13' if (e == 1 and b == 1) else 'v12'
                    t = f'buffer_load_ushort v{reg}, {va}, {WPHI}, {sT5} offen offset:{(16*e+8*b+r)*56}'
                    if track: a.vmem(t, 'wphi')
                    else: a(t)

    def finish(s):
        a = s.a
        a.label('L_fin')
        if s.stamps:
            a('s_memrealtime s[94:95]'); a('s_waitcnt lgkmcnt(0)')
            a(f'v_writelane_b32 {vSTAMP}, s100, 61')
            a(f'v_writelane_b32 {vSTAMP}, s94, 60')
            a('s_sub_u32 s100, s94, s100')
            a(f'v_writelane_b32 {vSTAMP}, s100, 63')
            a('s_memtime s[94:95]'); a('s_waitcnt lgkmcnt(0)')
            a(f'v_writelane_b32 {vSTAMP}, s94, 62')
            def w0():
                a(f's_lshl_b32 {sT0}, s2, 8'); a(f's_add_u32 {sT0}, {sT0}, {STAMP}')
                a(f'v_lshlrev_b32 v10, 2, {vLANE}')
                a(f'buffer_store_dword {vSTAMP}, v10, {WS}, {sT0} offen')
            s.wave_only(int(os.environ.get('STAMPW','0')), w0)
            if os.environ.get('DBGOUT'):
                def wd():
                    L = a.newlabel('Ld'); a('s_cmp_lg_u32 s2, 0'); a(f's_cbranch_scc1 {L}')
                    idx = [int(x) for x in os.environ['DBGOUT'].split(',')]
                    a(f'v_readlane_b32 s93, {vSTAMP}, 0')
                    slots = [3,4,5,6,7,9,10,11,12,13,14,15]
                    for sl, i in zip(slots, idx):
                        a(f'v_readlane_b32 s94, {vSTAMP}, {i}')
                        if i != 63: a('s_sub_u32 s94, s94, s93')
                        a('v_mov_b32 v10, s94'); a('s_mov_b64 exec, 1'); a(f's_mov_b32 s95, {sl*4}')
                        a(f'buffer_store_dword v10, off, {DBG}, s95'); a('s_mov_b64 exec, -1'); a('s_nop 1')
                    a.label(L)
                s.wave_only(0, wd)
        a('s_waitcnt vmcnt(0) lgkmcnt(0)')
        a.label('L_end')
        a('s_endpgm')
        a.label('L_code_end')

    def build(s):
        s.prologue()
        s.p0()
        if s.stop_after != 'p0':
            s.P.run()
        s.finish()
        body = s.a.finalize(True)
        hdr = open('interleave_layers__linear_kernel_hedgehog__geglu_ffn__prompt.s.ref').read().split('\n') if False else None
        head = HEADER
        return head + body + '\n' + f'.set CODE_BYTES, L_code_end-{NAME}\n' + FOOTER

HEADER = f'''; Persistent single-launch kernel: 256 workgroups (one per CU), 8 groups of 32 that share an L2.
; @launch grid=(256,1,1) block=(256,1,1) lds={LDS_TOTAL}
.amdgcn_target "amdgcn-amd-amdhsa--gfx950"
.text
.globl {NAME}
.p2align 8
.type {NAME},@function
{NAME}:
'''
FOOTER = f'''.section .rodata,"a"
.p2align 6
.amdhsa_kernel {NAME}
  .amdhsa_next_free_vgpr 512
  .amdhsa_next_free_sgpr 102
  .amdhsa_accum_offset 256
  .amdhsa_group_segment_fixed_size 0
  .amdhsa_kernarg_size 88
  .amdhsa_user_sgpr_count 2
  .amdhsa_user_sgpr_kernarg_segment_ptr 1
  .amdhsa_system_sgpr_workgroup_id_x 1
.end_amdhsa_kernel
'''

if __name__ == '__main__':
    import argparse
    ap = argparse.ArgumentParser()
    ap.add_argument('-o', default='k.s')
    ap.add_argument('--stop', default=None)
    ap.add_argument('--stamps', action='store_true')
    ap.add_argument('--heavy', action='store_true')
    args = ap.parse_args()
    g = Gen(stop_after=args.stop, stamps=args.stamps, force_heavy=args.heavy)
    txt = g.build()
    open(args.o, 'w').write(txt)
    open(args.o+'.stamps','w').write(','.join(g.stamp_names))
    print('written', args.o, len(txt), 'bytes;', 'stamps:', g.stamp_names)
```

```python
from gen import *
import gen as G
import math, os
from collections import deque

C0 = -2.0*LOG2E*math.sqrt(2.0/math.pi)
C1 = C0*0.044715
PRET = int(os.environ.get('PRET', '0'))
IDLEW = int(os.environ.get('IDLEW', '0'))
CS1 = int(os.environ.get('CS1', '0'))
BUD_A = int(os.environ.get('BUD_A', '4')); BUD_B = int(os.environ.get('BUD_B', '5'))
MAINW = int(os.environ.get('MAINW', '1'))
IDLEQ = int(os.environ.get('IDLEQ', '1'))
LATEU = int(os.environ.get('LATEU', '1'))
WBL = int(os.environ.get('WBL', '0'))
OUTSC = os.environ.get('OUTSC', '')
SAVE_LATE = int(os.environ.get('SAVE_LATE', '1'))
IDLEP = int(os.environ.get('IDLEP', '1'))
PFA = int(os.environ.get('PFA', '1'))
HSC = os.environ.get('HSC', '')
LDSC = os.environ.get('LDSC', 'sc1')

L_WG = 0; L_WU = 104448; L_WO = 45056; WOW = 14336; L_KVF = 40960
RED2 = 133120
RED4 = 86016
RA = 57344; NRA = 11; NSLOT = 39
vPHIW='v240'; vVIW='v241'; vPA0='v242'; vPA1='v243'; vVB0='v244'; vVB1='v245'; vKVO='v246'; vL128='v247'; vKVR='v248'; vKVW='v249'
vDUM='v255'

class Side:
    def __init__(s, items=()): s.q = deque(items)
    def emit(s, a, n=1):
        for _ in range(n):
            if not s.q: return
            it = s.q.popleft()
            if callable(it): it()
            else: a(it)
    def flush(s, a): s.emit(a, len(s.q))
    @staticmethod
    def cost(it):
        if callable(it): return getattr(it, 'cost', 1)
        op = it.split()[0]
        return 2 if op in ('v_exp_f32', 'v_rcp_f32', 'v_rsq_f32', 'v_log_f32') else 1
    def emit_budget(s, a, budget):
        b = budget + getattr(s, 'carry', 0)
        while s.q and (Side.cost(s.q[0]) <= b or (Side.cost(s.q[0]) > budget and b > 0)):
            b -= Side.cost(s.q[0]); s.emit(a)
        s.carry = min(b, 2)
    def __len__(s): return len(s.q)

def run_list(a, L, side=None, every=0):
    cnt = 0
    for it in L:
        if callable(it): it()
        else: a(it)
        cnt += 1
        if side is not None and every and cnt % every == 0: side.emit(a)
    if side is not None: side.flush(a)

class Phases:
    def __init__(s, g):
        s.g = g; s.a = g.a
        s.stop = g.stop_after

    def persistent_addrs(s):
        a = s.a
        a(f'v_and_b32 v13, 31, {vLANE}'); a(f's_lshl_b32 {sT0}, {sW}, 5'); a(f'v_add_u32 v14, {sT0}, v13')
        a(f'v_lshrrev_b32 v20, 5, {vLANE}')
        a('v_bfe_u32 v21, v13, 1, 1'); a('v_lshlrev_b32 v21, 3, v21')
        a('v_bfe_u32 v22, v13, 3, 1'); a('v_lshl_or_b32 v21, v22, 2, v21')
        a('v_bfe_u32 v22, v13, 2, 1'); a('v_lshl_or_b32 v21, v22, 1, v21')
        a('v_and_b32 v22, 1, v13'); a('v_or_b32 v21, v21, v22')
        a('v_xor_b32 v21, v21, v20')
        a('v_lshlrev_b32 v21, 3, v21'); a('v_lshl_add_u32 v21, v14, 7, v21')
        a(f'v_add_u32 {vPHIW}, {L_PHI}, v21')
        a('v_bfe_u32 v21, v14, 1, 3'); a('v_xor_b32 v21, v21, v20'); a('v_lshlrev_b32 v21, 3, v21')
        a('v_lshl_add_u32 v21, v14, 6, v21'); a(f'v_add_u32 {vVIW}, {L_VI}, v21')
        a(f'v_and_b32 v13, 15, {vLANE}'); a('v_lshrrev_b32 v14, 2, v13')
        a('v_and_b32 v22, 3, v13'); a(f'v_bfe_u32 v23, {vLANE}, 4, 1')
        a('v_lshl_add_u32 v24, v23, 2, v22')
        a('v_lshl_add_u32 v25, v20, 2, v14')
        a('v_lshrrev_b32 v26, 1, v14'); a('v_lshlrev_b32 v26, 3, v26')
        a('v_lshl_or_b32 v26, v20, 1, v26'); a('v_and_b32 v27, 1, v14'); a('v_or_b32 v26, v26, v27')
        a(f's_and_b32 {sT0}, {sW}, 1'); a(f's_lshl_b32 {sT0}, {sT0}, 3'); a(f'v_add_u32 v27, {sT0}, v24')
        a('v_xor_b32 v27, v27, v26')
        a('v_lshlrev_b32 v27, 3, v27'); a('v_lshl_add_u32 v27, v25, 7, v27')
        a(f'v_add_u32 {vPA0}, {L_PHI}, v27')
        a(f'v_xor_b32 v27, 32, {vPA0}'); a(f'v_add_u32 {vPA1}, {8*128}, v27')
        a('v_lshrrev_b32 v26, 1, v14'); a('v_lshl_or_b32 v26, v20, 1, v26')
        a('v_xor_b32 v26, v26, v24'); a('v_lshlrev_b32 v26, 3, v26')
        a('v_lshl_add_u32 v26, v25, 6, v26'); a(f'v_add_u32 {vVB0}, {L_VI}, v26')
        a(f'v_xor_b32 v27, 32, {vVB0}'); a(f'v_add_u32 {vVB1}, {8*64}, v27')
        a(f'v_and_b32 v13, 31, {vLANE}'); a('v_lshlrev_b32 v13, 2, v13'); a(f'v_lshl_add_u32 {vKVO}, v20, 10, v13')
        a(f'v_lshrrev_b32 v13, 3, {vLANE}'); a(f'v_and_b32 v14, 7, {vLANE}')
        a('v_lshlrev_b32 v21, 8, v13'); a(f'v_lshl_add_u32 {vKVR}, v14, 4, v21')
        a('v_and_b32 v21, 1, v14'); a('v_lshl_add_u32 v21, v21, 5, v13'); a('v_lshlrev_b32 v21, 4, v21')
        a('v_bfe_u32 v22, v14, 1, 1'); a('v_lshl_add_u32 v21, v22, 3, v21')
        a('v_lshrrev_b32 v22, 2, v14'); a('v_lshl_add_u32 v21, v22, 10, v21')
        a(f's_and_b32 {sT0}, {sW}, 1'); a(f's_lshl_b32 {sT0}, {sT0}, 11'); a(f's_add_u32 {sT0}, {sT0}, {L_KVF}')
        a(f'v_add_u32 {vKVW}, {sT0}, v21')
        a(f'v_lshlrev_b32 {vL128}, 7, {vLANE}')

    def pretouch(s, soff, nlines, tag='pt'):
        if not PRET: return
        a = s.a
        if nlines < 64: a(f's_mov_b64 exec, {hex((1 << nlines)-1)}')
        a.vmem(f'buffer_load_dword {vDUM}, {vL128}, {WS}, {soff} offen', tag)
        if nlines < 64: a('s_mov_b64 exec, -1')

    def stats_load_items(s, dst, sbase, tag, vtmp):
        a = s.a
        def last():
            a(f'v_mov_b32 {vtmp}, 0x40000000')
            a(f'v_cndmask_b32 {vtmp}, {vSTA}, {vtmp}, {sUP}')
            a.vmem(f'buffer_load_dwordx4 v[{dst+12}:{dst+15}], {vtmp}, {WS}, {sbase} offen offset:{3*512} {LDSC}', tag)
        return [(lambda i=i: a.vmem(f'buffer_load_dwordx4 v[{dst+4*i}:{dst+4*i+3}], {vSTA}, {WS}, {sbase} offen offset:{i*512} {LDSC}', tag)) for i in range(3)] + [last]

    def stats_list(s, src, vnmean, vrstd, t0, t1):
        S_, Q_ = f'v{src}', f'v{src+1}'
        L = []
        L += [f'v_add_f32 v{src+2}, v{src+2}, v{src+6}', f'v_add_f32 v{src+3}, v{src+3}, v{src+7}']
        L += [f'v_add_f32 {S_}, {S_}, v{src+4}', f'v_add_f32 {Q_}, {Q_}, v{src+5}']
        L += [f'v_add_f32 v{src+2}, v{src+2}, v{src+10}', f'v_add_f32 v{src+3}, v{src+3}, v{src+11}']
        L += [f'v_add_f32 {S_}, {S_}, v{src+8}', f'v_add_f32 {Q_}, {Q_}, v{src+9}']
        L += [f'v_add_f32 v{src+2}, v{src+2}, v{src+14}', f'v_add_f32 v{src+3}, v{src+3}, v{src+15}']
        L += [f'v_add_f32 {S_}, {S_}, v{src+12}', f'v_add_f32 {Q_}, {Q_}, v{src+13}']
        L += [f'v_add_f32 {S_}, {S_}, v{src+2}', f'v_add_f32 {Q_}, {Q_}, v{src+3}']
        L += [f'v_mov_b32 {t0}, {S_}', f'v_mov_b32 {t1}, {Q_}', 's_nop 0',
              f'v_permlane32_swap_b32 {S_}, {t0}', f'v_permlane32_swap_b32 {Q_}, {t1}',
              f'v_add_f32 {S_}, {S_}, {t0}', f'v_add_f32 {Q_}, {Q_}, {t1}',
              f'v_mul_f32 {vnmean}, {fbits(-1.0/448)}, {S_}', f'v_mul_f32 {Q_}, {fbits(1.0/448)}, {Q_}',
              f'v_fma_f32 {Q_}, -{vnmean}, {vnmean}, {Q_}', f'v_max_f32 {Q_}, 0, {Q_}',
              f'v_add_f32 {Q_}, {fbits(1e-5)}, {Q_}', f'v_rsq_f32 {vrstd}, {Q_}']
        L.remove('s_nop 0')
        return L

    def cs_read_items(s, dst, lds_off, tag, vaddr):
        a = s.a
        return [(lambda g=g: a.ds(f'ds_read_b128 v[{dst+4*g}:{dst+4*g+3}], {vaddr} offset:{lds_off+32*g}', tag)) for g in range(4)]

    def colsum(s, reads_fn, nks, dst, lds_out, va='v10'):
        a = s.a
        for i in range(4): a(f'v_mov_b32 v{dst+16+i}, 0x3f803f80')
        F = dst + 20
        reads_fn(0, F, ('cs', 0)); reads_fn(1, F+4, ('cs', 1))
        for ks in range(nks):
            if ks+2 < nks: reads_fn(ks+2, F + 4*((ks+2) % 3), ('cs', ks+2))
            a.wait_lg(('cs', ks))
            R = F + 4*(ks % 3)
            c = '0' if ks == 0 else f'v[{dst}:{dst+15}]'
            a(f'v_mfma_f32_32x32x16_bf16 v[{dst}:{dst+15}], v[{R}:{R+3}], v[{dst+16}:{dst+19}], {c}')
        a(f'v_add_u32 {va}, {lds_out}, {vCS}')
        a('s_mov_b32 exec_lo, 1'); a('s_mov_b32 exec_hi, 1')
        for g in range(4):
            a.ds(f'ds_write_b128 {va}, v[{dst+4*g}:{dst+4*g+3}] offset:{32*g}', 'csw')
        a('s_mov_b64 exec, -1')
        a.wait_lg0()

    def colsum_kv(s):
        a = s.a; g = s.g
        def cs_wave():
            a(f's_mul_i32 {sT0}, {sW}, 28672'); a(f'v_add_u32 v31, {sT0}, {vTR64}')
            a(f's_lshl_b32 {sT1}, {sW}, 7'); a(f's_add_u32 {sT1}, {sT1}, {M_CSQKV}')
            def f(ks, reg, tag):
                a.ds(f'ds_read_b64_tr_b16 v[{reg}:{reg+1}], v31 offset:{(16*ks)*64}', tag)
                a.ds(f'ds_read_b64_tr_b16 v[{reg+2}:{reg+3}], v31 offset:{(16*ks+8)*64}', tag)
            s.colsum(f, 28, 192, sT1, va='v30')
        g.wave_in(0, 2, cs_wave)
        a.lg = []

    def softmax_list(s, P, vC, E1, E2, dP, dM, t):
        L = []
        for r in (3, 7, 11, 15):
            L.append(f'v_cndmask_b32 v{P+r}, v{P+r}, v{P}, {sUP}')
        mx, mn, t2, t3 = f'v{t}', f'v{t+1}', f'v{t+2}', f'v{t+3}'
        L += [f'v_max3_f32 {mx}, v{P}, v{P+1}, v{P+2}', f'v_min3_f32 {mn}, v{P}, v{P+1}, v{P+2}',
              f'v_max3_f32 {t2}, v{P+3}, v{P+4}, v{P+5}', f'v_min3_f32 {t3}, v{P+3}, v{P+4}, v{P+5}']
        for r in (6, 10):
            L += [f'v_max3_f32 {mx}, {mx}, v{P+r}, v{P+r+1}', f'v_min3_f32 {mn}, {mn}, v{P+r}, v{P+r+1}',
                  f'v_max3_f32 {t2}, {t2}, v{P+r+2}, v{P+r+3}', f'v_min3_f32 {t3}, {t3}, v{P+r+2}, v{P+r+3}']
        L += [f'v_max3_f32 {mx}, {mx}, v{P+14}, v{P+15}', f'v_min3_f32 {mn}, {mn}, v{P+14}, v{P+15}',
              f'v_max_f32 {mx}, {mx}, {t2}', f'v_min_f32 {mn}, {mn}, {t3}',
              f'v_mov_b32 {t2}, {mx}', f'v_mov_b32 {t3}, {mn}',
              f'v_permlane32_swap_b32 {mx}, {t2}', f'v_permlane32_swap_b32 {mn}, {t3}',
              f'v_max_f32 {mx}, {mx}, {t2}', f'v_min_f32 {mn}, {mn}, {t3}',
              f'v_mul_f32 {mx}, {mx}, {vC}', f'v_mul_f32 {mn}, {mn}, {vC}']
        c = int(vC[1:]); assert c % 2 == 0 and t % 2 == 0
        cp = f'v[{c}:{c+1}]'; tp = f'v[{t}:{t+1}]'
        for r in range(0, 16, 2):
            L.append(f'v_pk_fma_f32 v[{E1+r}:{E1+r+1}], v[{P+r}:{P+r+1}], {cp}, {tp} op_sel:[0,0,0] op_sel_hi:[1,0,0] neg_lo:[0,0,1] neg_hi:[0,0,1]')
            L.append(f'v_pk_fma_f32 v[{E2+r}:{E2+r+1}], v[{P+r}:{P+r+1}], {cp}, {tp} op_sel:[0,0,1] op_sel_hi:[1,0,1] neg_lo:[1,0,0] neg_hi:[1,0,0]')
        for r in range(16):
            L += [f'v_exp_f32 v{E1+r}, v{E1+r}', f'v_exp_f32 v{E2+r}, v{E2+r}']
        for r in (3, 7, 11, 15):
            L += [f'v_cndmask_b32 v{E1+r}, v{E1+r}, 0, {sUP}', f'v_cndmask_b32 v{E2+r}, v{E2+r}, 0, {sUP}']
        A1 = f'v[{t}:{t+1}]'; A2 = f'v[{t+2}:{t+3}]'; B1 = f'v[{t+4}:{t+5}]'; B2 = f'v[{t+6}:{t+7}]'
        pr = lambda b, r: f'v[{b+r}:{b+r+1}]'
        L += [f'v_pk_add_f32 {A1}, {pr(E1,0)}, {pr(E1,2)}', f'v_pk_add_f32 {A2}, {pr(E2,0)}, {pr(E2,2)}',
              f'v_pk_add_f32 {B1}, {pr(E1,4)}, {pr(E1,6)}', f'v_pk_add_f32 {B2}, {pr(E2,4)}, {pr(E2,6)}']
        L += [f'v_pk_add_f32 {A1}, {A1}, {pr(E1,8)}', f'v_pk_add_f32 {A2}, {A2}, {pr(E2,8)}',
              f'v_pk_add_f32 {B1}, {B1}, {pr(E1,10)}', f'v_pk_add_f32 {B2}, {B2}, {pr(E2,10)}',
              f'v_pk_add_f32 {A1}, {A1}, {pr(E1,12)}', f'v_pk_add_f32 {A2}, {A2}, {pr(E2,12)}',
              f'v_pk_add_f32 {B1}, {B1}, {pr(E1,14)}', f'v_pk_add_f32 {B2}, {B2}, {pr(E2,14)}',
              f'v_pk_add_f32 {A1}, {A1}, {B1}', f'v_pk_add_f32 {A2}, {A2}, {B2}',
              f'v_add_f32 v{t}, v{t}, v{t+1}', f'v_add_f32 v{t+2}, v{t+2}, v{t+3}',
              f'v_mov_b32 v{t+1}, v{t}', f'v_mov_b32 v{t+3}, v{t+2}',
              f'v_permlane32_swap_b32 v{t}, v{t+1}', f'v_permlane32_swap_b32 v{t+2}, v{t+3}',
              f'v_add_f32 v{t}, v{t}, v{t+1}', f'v_add_f32 v{t+2}, v{t+2}, v{t+3}',
              f'v_rcp_f32 v{t}, v{t}', f'v_rcp_f32 v{t+2}, v{t+2}']
        for r in range(0, 16, 2):
            L.append(f'v_pk_mul_f32 {pr(E1,r)}, {pr(E1,r)}, {A1} op_sel_hi:[1,0]')
            L.append(f'v_pk_mul_f32 {pr(E2,r)}, {pr(E2,r)}, {A2} op_sel_hi:[1,0]')
        for i in range(8):
            L += [f'v_cvt_pk_bf16_f32 v{dP+i}, v{E1+2*i}, v{E1+2*i+1}', f'v_cvt_pk_bf16_f32 v{dM+i}, v{E2+2*i}, v{E2+2*i+1}']
        return L

    def qk_list(s, acc, cs, NMp, vC, frag, P, E1, E2, dP, dM, t):
        L = []
        for r in range(0, 16, 2):
            L.append(f'v_pk_fma_f32 v[{acc+r}:{acc+r+1}], v[{cs+r}:{cs+r+1}], v[{NMp}:{NMp+1}], v[{acc+r}:{acc+r+1}] op_sel_hi:[1,0,1]')
        for i in range(8):
            L.append(f'v_cvt_pk_bf16_f32 v{frag+i}, v{acc+2*i}, v{acc+2*i+1}')
        L.append(f'v_mfma_f32_32x32x16_bf16 v[{P}:{P+15}], a[248:251], v[{frag}:{frag+3}], 0')
        L.append(f'v_mfma_f32_32x32x16_bf16 v[{P}:{P+15}], a[252:255], v[{frag+4}:{frag+7}], v[{P}:{P+15}]')
        L += s.softmax_list(P, vC, E1, E2, dP, dM, t)
        return L

    def dma_item(s, srd, voff, ssrc, srcoff, sdst, dstoff, tag, track=True):
        a = s.a
        def f():
            if sdst is None: a(f's_mov_b32 m0, {dstoff}')
            else: a(f's_add_u32 m0, {sdst}, {dstoff}')
            a(f's_add_u32 s92, {ssrc}, {srcoff}')
            if track: a.vmem(f'buffer_load_dwordx4 {voff}, {srd}, s92 offen lds', tag)
            else: a(f'buffer_load_dwordx4 {voff}, {srd}, s92 offen lds')
        return f

    def wq_items(s):
        a = s.a
        a(f's_mul_i32 s90, {sHEAD}, {WQH}'); a(f's_add_u32 s90, s90, {G0 + WQ}')
        a(f's_lshl_b32 s91, {sW}, 10'); a(f's_add_u32 s90, s90, s91')
        return [s.dma_item(WS, vL16, 's90', n*4096, 's91', n*4096, 'W') for n in range(21)]

    def layer_setup(s):
        a = s.a
        L0 = a.newlabel('Ll0'); Le = a.newlabel('Lle')
        a(f's_cmp_lg_u32 {sL}, 0'); a(f's_cbranch_scc1 {L0}')
        for r, o in ((sXIN, X0), (sSTIN, ST0), (sX1, X1A), (sST1, ST1A), (sXO, X2A), (sSTO, ST2A), (sO, OA), (sH, HA)):
            a(f's_add_u32 {r}, {sGB}, {o}')
        a(f's_branch {Le}')
        a.label(L0)
        for r, o in ((sXIN, X2A), (sSTIN, ST2A), (sX1, X1A), (sST1, ST1A), (sXO, X2A), (sSTO, ST2A), (sO, OA), (sH, HA)):
            a(f's_add_u32 {r}, {sGB}, {o}')
        a.label(Le)
        a(f's_lshl_b32 {sT0}, {sL}, 4'); a(f's_add_u32 {sT0}, {sT0}, {sHEAD}')
        a(f's_lshl_b32 {sKV}, {sT0}, 13'); a(f's_add_u32 {sKV}, {sKV}, {KV}')
        a(f's_lshl_b32 {sKVC}, {sT0}, 7'); a(f's_add_u32 {sKVC}, {sKVC}, {KVC}')
        a(f's_lshl_b32 {sFL}, {sG}, 11'); a(f's_lshl_b32 {sT0}, {sL}, 9'); a(f's_add_u32 {sFL}, {sFL}, {sT0}')
        if FLAGS: a(f's_add_u32 {sFL}, {sFL}, {FLAGS}')

    def wait_saved(s, all_heads=False):
        a = s.a; g = s.g
        def w0():
            Lx = a.newlabel('Lx'); a(f's_cmp_lg_u32 {sL}, 0'); a(f's_cbranch_scc1 {Lx}')
            if all_heads:
                a(f'v_and_b32 v11, 15, {vLANE}'); a('v_lshlrev_b32 v11, 7, v11')
                a(f's_mov_b32 {sT0}, {KVC}')
                g.poll(WS, 'v11', sT0, 16, vt='v10')
            else:
                a(f's_lshl_b32 {sT0}, {sHEAD}, 7'); a(f's_add_u32 {sT0}, {sT0}, {KVC}')
                g.poll(WS, None, sT0, 16, vt='v10')
            a.label(Lx)
        g.wave_only(0, w0)

    def fl(s, p):
        s.a(f's_add_u32 s80, {sFL}, {p*128}')
        return 's80'

    def p1(s):
        a = s.a; g = s.g
        a.c('==== P1')
        XD = int(os.environ.get('XD1', '8'))
        a(f's_lshl_b32 {sT3}, {sHALF}, 2'); a(f's_add_u32 {sT3}, {sT3}, {sW}')
        a(f's_mul_i32 s82, {sT3}, 3584'); a(f's_add_u32 s82, s82, {sSTIN}')
        a(f's_mul_i32 s83, {sT3}, 28672'); a(f's_add_u32 s83, s83, {sXIN}')
        def xload(ks):
            if ks % 4 == 0: a(f's_add_u32 s84, s83, {(ks//4)*4096}')
            a.vmem(f'buffer_load_dwordx4 a[{4*ks}:{4*ks+3}], {vL16}, {WS}, s84 offen offset:{(ks%4)*1024} {LDSC}', ('x', ks))
        a(f's_lshl_b32 {sT4}, {sT3}, 15'); a(f's_add_u32 {sT4}, {sT4}, {sO}'); a(f's_lshl_b32 {sT5}, {sHEAD}, 11'); a(f's_add_u32 s85, {sT4}, {sT5}')
        def rd64(base, va=vTR64):
            def f(ks, reg, tag):
                a.ds(f'ds_read_b64_tr_b16 v[{reg}:{reg+1}], {va} offset:{base+(16*ks)*64}', tag)
                a.ds(f'ds_read_b64_tr_b16 v[{reg+2}:{reg+3}], {va} offset:{base+(16*ks+8)*64}', tag)
            return f
        AK, AV, AQ, FR = 16, 32, 48, 64
        rk, rv, rq = rd64(L_WK), rd64(L_WV), rd64(0, 'v208')
        FRS = (64, 72, 216)
        NM, RS, VC = 'v10', 'v11', 'v12'
        def kvloop(loads):
            side = Side()
            if loads:
                run_list(a, s.stats_load_items(96, 's82', 'st', 'v14'))
                for ks in range(XD): xload(ks)
                side = Side([lambda: a.wait_vm('st')] + s.stats_list(96, NM, RS, 'v13', 'v14'))
            CF = (132, 136, 140)
            rc = rd64(0, 'v210')
            if not loads:
                a(f's_and_b32 {sT0}, {sW}, 1'); a(f's_mul_i32 {sT0}, {sT0}, 28672'); a(f'v_add_u32 v210, {sT0}, {vTR64}')
                for i in range(4): a(f'v_mov_b32 v{128+i}, 0x3f803f80')
            rk(0, FRS[0], ('fk', 0)); rv(0, FRS[0]+4, ('fv', 0))
            if not loads: rc(0, CF[0], ('fc', 0))
            rk(1, FRS[1], ('fk', 1)); rv(1, FRS[1]+4, ('fv', 1))
            if not loads: rc(1, CF[1], ('fc', 1))
            for ks in range(28):
                b = FRS[ks % 3]
                if loads: a.wait_vm(('x', ks))
                a.wait_lg(('fk', ks))
                ck = '0' if ks == 0 else f'v[{AK}:{AK+15}]'
                cv = '0' if ks == 0 else f'v[{AV}:{AV+15}]'
                a(f'v_mfma_f32_32x32x16_bf16 v[{AK}:{AK+15}], v[{b}:{b+3}], a[{4*ks}:{4*ks+3}], {ck}')
                if ks+2 < 28: rk(ks+2, FRS[(ks+2) % 3], ('fk', ks+2))
                if loads and ks + XD < 28: xload(ks + XD)
                a.wait_lg(('fv', ks))
                a(f'v_mfma_f32_32x32x16_bf16 v[{AV}:{AV+15}], v[{b+4}:{b+7}], a[{4*ks}:{4*ks+3}], {cv}')
                if ks+2 < 28: rv(ks+2, FRS[(ks+2) % 3]+4, ('fv', ks+2))
                if not loads:
                    a.wait_lg(('fc', ks))
                    cc = '0' if ks == 0 else 'v[112:127]'
                    a(f'v_mfma_f32_32x32x16_bf16 v[112:127], v[{CF[ks % 3]}:{CF[ks % 3]+3}], v[128:131], {cc}')
                    if ks+2 < 28: rc(ks+2, CF[(ks+2) % 3], ('fc', ks+2))
                if ks >= 2: side.emit(a, 2)
            if not loads:
                def csw():
                    a(f's_lshl_b32 {sT1}, {sW}, 7'); a(f's_add_u32 {sT1}, {sT1}, {M_CSQKV}')
                    a(f'v_add_u32 v211, {sT1}, {vCS}')
                    a('s_mov_b32 exec_lo, 1'); a('s_mov_b32 exec_hi, 1')
                    for gq in range(4):
                        a(f'ds_write_b128 v211, v[{112+4*gq}:{115+4*gq}] offset:{32*gq}')
                    a('s_mov_b64 exec, -1')
                    a('s_waitcnt lgkmcnt(0)')
                g.wave_in(0, 2, csw)
            side.flush(a)
        L1p = a.newlabel('Lp1l1'); Lj = a.newlabel('Lp1j')
        a(f's_cmp_lg_u32 {sL}, 0'); a(f's_cbranch_scc1 {L1p}')
        a(f'v_and_b32 v13, 7, {vLANE}'); a('v_lshlrev_b32 v233, 5, v13')
        a(f'buffer_load_dword v232, v233, {DBG}, 0 offen sc1')
        a.lg = []
        kvloop(False)
        a('s_waitcnt vmcnt(0)')
        g.wave_in(0, 2, g.registration_check)
        a('s_barrier')
        a(f's_lshl_b32 {sT0}, {sG}, 1'); a(f's_add_u32 {sT0}, {sT0}, {sHALF}'); a(f's_lshl_b32 {sT1}, {sW}, 4'); a(f's_add_u32 {sT0}, {sT0}, {sT1}')
        a(f's_add_u32 {sT1}, {sT0}, 64')
        a(f's_cmp_lt_u32 {sT1}, 84'); a(f's_cselect_b32 {sT2}, {sT1}, {sT0}')
        a(f's_lshl_b32 {sT0}, {sT0}, 10'); a(f's_lshl_b32 {sT2}, {sT2}, 10')
        a(f'v_add_u32 v13, {sT0}, {vL16}'); a(f'v_add_u32 v14, {sT2}, {vL16}')
        a('ds_read_b128 v[128:131], v13'); a('ds_read_b128 v[132:135], v14')
        a(f's_mul_i32 {sT1}, {sHEAD}, {WQH}'); a(f's_add_u32 {sT1}, {sT1}, {G0 + WQ}')
        a(f's_add_u32 {sT0}, {sT0}, {sT1}'); a(f's_add_u32 {sT2}, {sT2}, {sT1}')
        a('s_waitcnt lgkmcnt(0)')
        a(f'buffer_store_dwordx4 v[128:131], {vL16}, {WS}, {sT0} offen sc1')
        a(f'buffer_store_dwordx4 v[132:135], {vL16}, {WS}, {sT2} offen sc1')
        a('s_barrier')
        a('v_mov_b32 v10, v234'); a('v_mov_b32 v11, v235')
        a(f's_branch {Lj}')
        a.label(L1p)
        a.vm = []; a.lg = []
        kvloop(True)
        a('s_barrier')
        a.label(Lj)
        a.vm = []; a.lg = []
        g.stamp('p1 KV gemm')
        a(f'v_add_u32 v15, {M_CSQKV}, {vCS}')
        run_list(a, s.cs_read_items(112, 0, 'csk', 'v15') + s.cs_read_items(128, 128, 'csv', 'v15'))
        a(f'v_mul_f32 {VC}, {fbits(LOG2E)}, {RS}')
        a.wait_lg('csk')
        a(f's_lshl_b32 s90, {sM}, 7'); a(f's_mul_i32 s91, {sW}, {8*3584}'); a(f's_add_u32 s90, s90, s91')
        a(f's_lshl_b32 s91, {sW}, 10')
        wa = Side([s.dma_item(WG, vD3584, 's90', 4*n*8*3584, 's91', L_WG + 4*n*1024, 'WA') for n in range(10)] if PFA else [])
        L = s.qk_list(AK, 112, 10, VC, 144, 80, 96, 192, 176, 184, 152)
        LV = [lambda: a.wait_lg('csv')]
        for r in range(0, 16, 2):
            LV.append(f'v_pk_fma_f32 v[{AV+r}:{AV+r+1}], v[{128+r}:{129+r}], v[10:11], v[{AV+r}:{AV+r+1}] op_sel_hi:[1,0,1]')
        for r in range(0, 16, 2):
            LV.append(f'v_pk_mul_f32 v[{AV+r}:{AV+r+1}], v[{AV+r}:{AV+r+1}], v[10:11] op_sel:[0,1] op_sel_hi:[1,1]')
        LV.append(f'v_cndmask_b32 v{AV+12}, v{AV+12}, 1.0, {sUP}')
        for i in range(8):
            LV.append(f'v_cvt_pk_bf16_f32 v{128+i}, v{AV+2*i}, v{AV+2*i+1}')
        for gq in range(4):
            LV.append(f'v_xor_b32 v{136+(gq&1)}, {(2*gq) << 3}, {vVIW}')
            LV.append(lambda gq=gq: a.ds(f'ds_write_b64 v{136+(gq&1)}, v[{128+2*gq}:{129+2*gq}]', 'vw'))
        im = max(i for i, it in enumerate(L) if isinstance(it, str) and it.startswith('v_mfma'))
        L = L[:im+1] + LV + L[im+1:]
        for T in range(2):
            for gq in range(4):
                R = 176 + 8*T + 2*gq
                L.append(f'v_xor_b32 v{156+(gq&1)}, {(8*T+2*gq) << 3}, {vPHIW}')
                L.append(lambda R=R, gq=gq: a.ds(f'ds_write_b64 v{156+(gq&1)}, v[{R}:{R+1}]', 'pw'))
        run_list(a, L, wa, 22)
        a(f's_waitcnt vmcnt({10 if PFA else 0}) lgkmcnt(0)')
        a.lg = []
        a('s_barrier')
        g.stamp('p1 phi/v written')
        s.pretouch('s85', 16)
        def kv():
            def rr(kt, reg, tag):
                a.ds(f'ds_read_b64_tr_b16 v[{reg}:{reg+1}], {vPA0} offset:{kt*2048}', tag)
                a.ds(f'ds_read_b64_tr_b16 v[{reg+2}:{reg+3}], {vPA1} offset:{kt*2048}', tag)
                a.ds(f'ds_read_b64_tr_b16 v[{reg+4}:{reg+5}], {vVB0} offset:{kt*1024}', tag)
                a.ds(f'ds_read_b64_tr_b16 v[{reg+6}:{reg+7}], {vVB1} offset:{kt*1024}', tag)
            KS = (64, 72, 216)
            rr(0, KS[0], ('k', 0)); rr(1, KS[1], ('k', 1))
            for kt in range(8):
                if kt+2 < 8: rr(kt+2, KS[(kt+2) % 3], ('k', kt+2))
                a.wait_lg(('k', kt))
                b = KS[kt % 3]
                c = '0' if kt == 0 else 'v[80:95]'
                a(f'v_mfma_f32_32x32x16_bf16 v[80:95], v[{b+4}:{b+7}], v[{b}:{b+3}], {c}')
            a(f's_lshl_b32 {sT0}, {sW}, 7'); a(f's_add_u32 {sT0}, {sT0}, {sKV}'); a(f's_add_u32 {sT1}, {sT0}, 4096')
            a('s_mov_b32 s78, 0x80808080'); a('s_mov_b32 s79, 0x80808080')
            for r in range(16):
                a(f'v_cndmask_b32 v{80+r}, v{80+r}, 1.0, s[78:79]')
            for gq in range(4):
                for r in range(4):
                    so = sT0 if gq < 2 else sT1
                    a(f'buffer_atomic_add_f32 v{80+4*gq+r}, {vKVO}, {WS}, {so} offen offset:{((8*gq+r)*256) % 4096} sc1')
        g.wave_in(0, 2, kv)
        def csq():
            Lq0 = a.newlabel('Lq0')
            a(f's_cmp_lg_u32 {sL}, 0'); a(f's_cbranch_scc1 {Lq0}')
            a(f'v_add_u32 v209, {2*28672}, {vTR64}')
            a(f's_mov_b32 {sT1}, {M_CSQKV + 256}')
            s.colsum(rd64(0, 'v209'), 28, 112, sT1, va='v152')
            a.label(Lq0)
        g.wave_only(2, csq)
        a.lg = []
        a.vm = []
        a.lg = []
        g.stamp('p1 kv issued')
        a(f'v_add_u32 v208, {L_WQ}, {vTR64}')
        QS = (64, 68, 72)
        rq(0, QS[0], ('f', 0)); rq(1, QS[1], ('f', 1))
        for ks in range(28):
            if ks+2 < 28: rq(ks+2, QS[(ks+2) % 3], ('f', ks+2))
            a.wait_lg(('f', ks))
            b = QS[ks % 3]
            cq = '0' if ks == 0 else f'v[{AQ}:{AQ+15}]'
            a(f'v_mfma_f32_32x32x16_bf16 v[{AQ}:{AQ+15}], v[{b}:{b+3}], a[{4*ks}:{4*ks+3}], {cq}')
        a.wait_lg0()
        a('s_barrier')
        run_list(a, s.cs_read_items(112, 256, 'csq', 'v15'))
        a.wait_lg0()
        g.stamp('p1 q gemm')
        qpost = lambda: s.qk_list(AQ, 112, 10, VC, 144, 80, 96, 192, 160, 168, 152)
        Lq = a.newlabel('Lq23'); Lqe = a.newlabel('Lqe')
        a(f's_cmp_ge_u32 {sW}, 2'); a(f's_cbranch_scc1 {Lq}')
        a.vm = []
        s.resid_loads(224, sXIN, track=False, raw_l0=True)
        s.dest_pretouch(sX1, sST1)
        if G.CPF: g.wave_only(1, lambda: g.code_prefetch('L_code_p2b', 'L_code_p4', v='v14'))
        Lp = a.newlabel('Lkvp'); Ld = a.newlabel('Lkvd'); Lc = a.newlabel('Lkvc')
        a(f's_lshl_b32 {sT0}, {sW}, 7'); a(f's_add_u32 {sT0}, {sT0}, {sKV}'); a(f's_add_u32 {sT1}, {sT0}, 4096')
        a('s_mov_b32 s78, 0xaaaaaaaa'); a('s_mov_b32 s79, 0xaaaaaaaa')
        a(f's_mov_b32 {sT7}, 0')
        def kvloads():
            for q in range(4):
                so = sT0 if q < 2 else sT1
                a(f'buffer_load_dwordx4 v[{64+4*q}:{67+4*q}], {vKVR}, {WS}, {so} offen offset:{(q*2048) % 4096} sc1')
        Lq_ = qpost()
        cut = int(len(Lq_)*float(os.environ.get('ASYNC', '0.8')))
        run_list(a, Lq_[:cut] + [kvloads] + Lq_[cut:])
        g.stamp('p1 kv counted')
        a(f's_branch {Lc}')
        a.label(Lp)
        kvloads()
        a.label(Lc)
        a('s_waitcnt vmcnt(0)')
        for q in range(1, 4):
            a(f'v_sub_f32 v{96+q}, 0x41800000, v{67+4*q}')
        a('v_sub_f32 v96, 0x41800000, v67')
        a('v_or_b32 v96, v96, v97'); a('v_or_b32 v98, v98, v99'); a('v_or_b32 v96, v96, v98')
        a('v_lshlrev_b32 v96, 1, v96')
        a('v_cmp_ne_u32 vcc, 0, v96')
        a(f's_add_u32 {sT7}, {sT7}, 1')
        a('s_and_b64 vcc, vcc, s[78:79]')
        a('s_cmp_eq_u64 vcc, 0'); a(f's_cbranch_scc1 {Ld}')
        a(f's_cmp_lt_u32 {sT7}, {G.TIMEOUT}'); a(f's_cbranch_scc1 {Lp}')
        a(f's_mov_b32 {sTO}, 1')
        a.label(Ld)
        g.stamp('kv hop done')
        for q in range(4):
            a(f'v_cvt_pk_bf16_f32 v{96+2*q}, v{64+4*q}, v{65+4*q}'); a(f'v_cvt_pk_bf16_f32 v{97+2*q}, v{66+4*q}, v{67+4*q}')
        for q in range(4):
            a(f'ds_write_b64 {vKVW}, v[{96+2*q}:{97+2*q}] offset:{q*128}')
        a('s_waitcnt lgkmcnt(0)')
        a(f's_branch {Lqe}')
        a.label(Lq)
        a.vm = []
        a(f's_sub_u32 {sT0}, {sW}, 2')
        a(f's_lshl_b32 s86, {sCT}, 7'); a(f's_mul_i32 {sT1}, {sT0}, {8*896}'); a(f's_add_u32 s86, s86, {sT1}')
        a(f's_lshl_b32 s87, {sT0}, 10')
        a(f's_lshl_b32 s88, {sM}, 7'); a(f's_mul_i32 {sT1}, {sT0}, {8*3584}'); a(f's_add_u32 s88, s88, {sT1}')
        items = [s.dma_item(WO, vD896, 's86', 2*n*8*896, 's87', L_WO + 2*n*1024, 'W1') for n in range(28)]
        if not PFA: items += [s.dma_item(WG, vD3584, 's88', 2*n*8*3584, 's87', L_WG + 2*n*1024, 'W1') for n in range(20)]
        items += [s.dma_item(WU, vD3584, 's88', 2*n*8*3584, 's87', L_WU + 2*n*1024, 'W1', track=False) for n in range(14 if LATEU else 28)]
        s.resid_loads(224, sXIN, track=False, raw_l0=True)
        s.dest_pretouch(sX1, sST1)
        run_list(a, qpost(), Side(items), 2)
        a.label(Lqe)
        a.vm = []; a.lg = []
        a('s_barrier')
        g.stamp('kv frags ready')

    def p2a(s):
        a = s.a; g = s.g
        a.c('==== P2a')
        a(f'v_add_u32 v13, {L_KVF}, {vL16}')
        for k in range(4):
            a.ds(f'ds_read_b128 v[{96+4*k}:{99+4*k}], v13 offset:{k*1024}', ('kf', k))
        for k in range(4):
            a.wait_lg(('kf', k))
            c = '0' if k == 0 else 'v[16:31]'
            a(f'v_mfma_f32_32x32x16_bf16 v[16:31], v[{96+4*k}:{99+4*k}], v[{160+4*k}:{163+4*k}], {c}')
        a('v_mov_b32 v32, v28'); a('v_mov_b32 v33, v28')
        a('v_permlane32_swap_b32 v32, v33')
        a(f'v_add_f32 v33, {fbits(1e-6)}, v33')
        a('v_rcp_f32 v34, v33')
        for r in range(0, 16, 2):
            a(f'v_pk_mul_f32 v[{16+r}:{17+r}], v[{16+r}:{17+r}], v[34:35] op_sel_hi:[1,0]')
        for r in range(12, 16):
            a(f'v_cndmask_b32 v{16+r}, v{16+r}, 0, {sUP}')
        for i in range(8):
            a(f'v_cvt_pk_bf16_f32 v{40+i}, v{16+2*i}, v{16+2*i+1}')
        a(f'buffer_store_dwordx4 v[40:43], {vL16}, {WS}, s85 offen {STSC}')
        a(f'buffer_store_dwordx4 v[44:47], {vL16}, {WS}, s85 offen offset:1024 {STSC}')
        g.set_flag(s.fl(1))
        def svc():
            Lx = a.newlabel('Lx'); a(f's_cmp_lg_u32 {sL}, 0'); a(f's_cbranch_scc1 {Lx}')
            a(f's_lshl_b32 {sT0}, {sHEAD}, 7'); a(f's_add_u32 {sT0}, {sT0}, {KVC}')
            a('v_mov_b32 v10, 1'); a('s_mov_b64 exec, 1')
            a(f'buffer_atomic_add v10, off, {WS}, {sT0} sc1')
            a('s_mov_b64 exec, -1')
            a.label(Lx)
        g.wave_only(3, svc)
        g.stamp('p2a done')

    def tile_coords(s):
        a = s.a
        a(f's_and_b32 {sT1}, {sW}, 1'); a(f's_lshl_b32 {sT2}, {sTQ}, 1'); a(f's_add_u32 {sT1}, {sT1}, {sT2}')
        a(f's_lshr_b32 {sT2}, {sW}, 1'); a(f's_lshl_b32 {sT3}, {sCT}, 1'); a(f's_add_u32 {sT2}, {sT2}, {sT3}')

    def resid_loads(s, dst, sX, track=True, raw_l0=False):
        a = s.a
        s.tile_coords()
        f = a.vmem if track else (lambda t, tag: a(t))
        Lr = Le = None
        if raw_l0:
            Lr = a.newlabel('Lrr'); Le = a.newlabel('Lre')
            a(f's_cmp_eq_u32 {sL}, 0'); a(f's_cbranch_scc1 {Lr}')
        a(f's_mul_i32 {sT4}, {sT1}, 28672'); a(f's_lshl_b32 {sT2}, {sT2}, 11'); a(f's_add_u32 {sT4}, {sT4}, {sT2}')
        a(f's_add_u32 {sT4}, {sT4}, {sX}')
        f(f'buffer_load_dwordx4 v[{dst}:{dst+3}], {vL16}, {WS}, {sT4} offen {LDSC}', 'res')
        f(f'buffer_load_dwordx4 v[{dst+4}:{dst+7}], {vL16}, {WS}, {sT4} offen offset:1024 {LDSC}', 'res')
        if raw_l0:
            a(f's_branch {Le}')
            a.label(Lr)
            a(f's_lshl_b32 {sT4}, {sG}, 8'); a(f's_lshl_b32 {sT5}, {sT1}, 5'); a(f's_add_u32 {sT4}, {sT4}, {sT5}')
            a(f's_mul_i32 {sT4}, {sT4}, 896'); a(f's_lshl_b32 {sT5}, {sT2}, 6'); a(f's_add_u32 {sT4}, {sT4}, {sT5}')
            a(f'v_and_b32 v13, 31, {vLANE}'); a('v_mul_u32_u24 v13, 896, v13')
            a(f'v_lshrrev_b32 v14, 5, {vLANE}'); a('v_lshl_add_u32 v13, v14, 3, v13')
            for gq in range(4):
                a(f'buffer_load_dwordx2 v[{dst+2*gq}:{dst+2*gq+1}], v13, {AX}, {sT4} offen offset:{16*gq}')
            a.label(Le)

    def dest_pretouch(s, sXdst, sSTdst):
        if not PRET: return
        a = s.a
        s.tile_coords()
        a(f's_mul_i32 {sT4}, {sT1}, 28672'); a(f's_lshl_b32 {sT5}, {sT2}, 11'); a(f's_add_u32 {sT4}, {sT4}, {sT5}')
        a(f's_add_u32 {sT4}, {sT4}, {sXdst}')
        s.pretouch(sT4, 16)
        a(f's_mul_i32 {sT4}, {sT1}, 3584'); a(f's_lshl_b32 {sT5}, {sCT}, 9'); a(f's_add_u32 {sT4}, {sT4}, {sT5}')
        a(f's_add_u32 {sT4}, {sT4}, {sSTdst}')
        s.pretouch(sT4, 4)

    def red_write(s, ACC, RED, parts=(1, 2, 3), side=None):
        a = s.a
        n = len(parts)
        for k, (slot, x) in enumerate(parts):
            a(f's_xor_b32 {sT0}, {sW}, {x}'); a(f's_mul_i32 {sT0}, {sT0}, {n}'); a(f's_add_u32 {sT0}, {sT0}, {k}')
            a(f's_lshl_b32 {sT0}, {sT0}, 12'); a(f's_add_u32 {sT0}, {sT0}, {RED}')
            a(f'v_add_u32 v{11+k}, {sT0}, {vL16}')
        for k, (slot, x) in enumerate(parts):
            for q in range(4):
                R = ACC + 16*slot + 4*q
                a.ds(f'ds_write_b128 v{11+k}, v[{R}:{R+3}] offset:{q*1024}', 'rw')
                if side is not None and q % 2 == 1: side.emit(a)
        a(f's_mul_i32 {sT0}, {sW}, {n*4096}'); a(f's_add_u32 {sT0}, {sT0}, {RED}')
        a(f'v_add_u32 v10, {sT0}, {vL16}')
        a.wait_lg0()
        a('s_barrier')

    def red_list(s, ACC, resid, n=3):
        a = s.a
        T = ACC + 16
        L = []
        for k in range(n):
            for q in range(4):
                R = T + 16*k + 4*q
                L.append(lambda R=R, k=k, q=q: a.ds(f'ds_read_b128 v[{R}:{R+3}], v10 offset:{k*4096+q*1024}', ('rr', k)))
        U = ACC + 64
        for i in range(8):
            L += [f'v_lshlrev_b32 v{U+2*i}, 16, v{resid+i}', f'v_and_b32 v{U+2*i+1}, 0xffff0000, v{resid+i}']
        pr = lambda b, r: f'v[{b+r}:{b+r+1}]'
        for r in range(0, 16, 2):
            L.append(f'v_pk_add_f32 {pr(ACC,r)}, {pr(ACC,r)}, {pr(U,r)}')
        for k in range(n):
            L.append(lambda k=k: a.wait_lg(('rr', k)))
            for r in range(0, 16, 2):
                L.append(f'v_pk_add_f32 {pr(ACC,r)}, {pr(ACC,r)}, {pr(T+16*k,r)}')
        PK = ACC + 48 + 0
        for i in range(8):
            L.append(f'v_cvt_pk_bf16_f32 v{PK+i}, v{ACC+2*i}, v{ACC+2*i+1}')
        return L

    def store_x_list(s, ACC, sXdst, sSTdst):
        a = s.a
        PK = ACC + 48
        L = []
        def addr():
            s.tile_coords()
            a(f's_mul_i32 {sT4}, {sT1}, 28672'); a(f's_lshl_b32 {sT5}, {sT2}, 11'); a(f's_add_u32 {sT4}, {sT4}, {sT5}')
            a(f's_add_u32 {sT4}, {sT4}, {sXdst}')
            a.vmem(f'buffer_store_dwordx4 v[{PK}:{PK+3}], {vL16}, {WS}, {sT4} offen {STSC}', 'xs')
            a.vmem(f'buffer_store_dwordx4 v[{PK+4}:{PK+7}], {vL16}, {WS}, {sT4} offen offset:1024 {STSC}', 'xs')
        L.append(addr)
        pr = lambda b, r: f'v[{b+r}:{b+r+1}]'
        L += [f'v_pk_add_f32 v[12:13], {pr(ACC,0)}, {pr(ACC,2)}', f'v_pk_mul_f32 v[14:15], {pr(ACC,0)}, {pr(ACC,0)}']
        L.append(f'v_pk_fma_f32 v[14:15], {pr(ACC,2)}, {pr(ACC,2)}, v[14:15]')
        for r in range(4, 16, 2):
            L += [f'v_pk_add_f32 v[12:13], v[12:13], {pr(ACC,r)}', f'v_pk_fma_f32 v[14:15], {pr(ACC,r)}, {pr(ACC,r)}, v[14:15]']
        L += ['v_add_f32 v12, v12, v13', 'v_add_f32 v14, v14, v15', 'v_mov_b32 v13, v12', 'v_mov_b32 v15, v14',
              'v_permlane32_swap_b32 v12, v13', 'v_permlane32_swap_b32 v14, v15',
              'v_add_f32 v12, v12, v13', 'v_add_f32 v13, v14, v15']
        def st():
            a(f's_mul_i32 {sT4}, {sT1}, 3584'); a(f's_lshl_b32 {sT5}, {sCT}, 9'); a(f's_add_u32 {sT4}, {sT4}, {sT5}')
            a(f's_lshr_b32 {sT5}, {sW}, 1'); a(f's_lshl_b32 {sT5}, {sT5}, 3'); a(f's_add_u32 {sT4}, {sT4}, {sT5}')
            a(f's_add_u32 {sT4}, {sT4}, {sSTdst}')
            a('s_mov_b64 exec, 0xffffffff')
            a.vmem(f'buffer_store_dwordx2 v[12:13], {vL16}, {WS}, {sT4} offen {STSC}', 'xs')
            a('s_mov_b64 exec, -1')
        L.append(st)
        return L

    def store_out_list(s, ACC):
        a = s.a
        PK = ACC + 48
        L = []
        for e in range(2):
            L += [f'v_permlane32_swap_b32 v{PK+4*e}, v{PK+4*e+2}', f'v_permlane32_swap_b32 v{PK+4*e+1}, v{PK+4*e+3}']
        def st():
            s.tile_coords()
            a(f's_lshl_b32 {sT4}, {sG}, 8'); a(f's_lshl_b32 {sT5}, {sT1}, 5'); a(f's_add_u32 {sT4}, {sT4}, {sT5}')
            a(f's_mul_i32 {sT4}, {sT4}, 896'); a(f's_lshl_b32 {sT5}, {sT2}, 6'); a(f's_add_u32 {sT4}, {sT4}, {sT5}')
            a(f'v_and_b32 v12, 31, {vLANE}'); a('v_mul_u32_u24 v12, 896, v12')
            a(f'v_lshrrev_b32 v13, 5, {vLANE}'); a('v_lshl_add_u32 v12, v13, 4, v12')
            a(f'buffer_store_dwordx4 v[{PK}:{PK+3}], v12, {OUT}, {sT4} offen {OUTSC}')
            a(f'buffer_store_dwordx4 v[{PK+4}:{PK+7}], v12, {OUT}, {sT4} offen offset:32 {OUTSC}')
        L.append(st)
        return L

    def tile_addrs(s, sbase):
        a = s.a
        a(f's_lshr_b32 {sT0}, {sW}, 1'); a(f's_lshl_b32 {sT0}, {sT0}, 6')
        a(f'v_xor_b32 v14, {sT0}, {vTR0}')
        a(f'v_add_u32 v14, {sbase}, v14')
        a('v_xor_b32 v15, 64, v14')

    def p2b(s):
        a = s.a; g = s.g
        a.c('==== P2b')
        a.rawlabel('L_code_p2b')
        a(f's_lshr_b32 {sT5}, {sW}, 1'); a(f's_mul_i32 {sT5}, {sT5}, 28672'); a(f's_add_u32 {sT5}, {sT5}, {L_WO}')
        s.tile_addrs(sT5)
        a(f'v_lshrrev_b32 v12, 5, {vLANE}'); a('v_lshlrev_b32 v12, 9, v12')
        a('v_sub_u32 v13, v15, v12'); a('v_sub_u32 v12, v14, v12')
        a(f's_lshr_b32 {sT0}, {sTQ}, 1'); a(f's_lshl_b32 {sT0}, {sT0}, 4'); a(f's_lshl_b32 s81, 0xffff, {sT0}')
        a(f's_and_b32 {sT0}, {sW}, 1'); a(f's_lshl_b32 {sT1}, {sTQ}, 1')
        a(f's_add_u32 {sT0}, {sT0}, {sT1}'); a(f's_lshl_b32 {sT0}, {sT0}, 15'); a(f's_add_u32 {sT0}, {sT0}, {sO}')
        a(f's_lshr_b32 {sT1}, {sW}, 1'); a(f's_lshl_b32 {sT1}, {sT1}, 14'); a(f's_add_u32 s82, {sT0}, {sT1}')
        g.wait_flags(s.fl(1), 's81', vt='v10', va='v11')
        a.vm = []
        g.stamp('p2b hop done')
        def oload(i):
            if i % 4 == 0: a(f's_add_u32 s84, s82, {(i//4)*4096}')
            a.vmem(f'buffer_load_dwordx4 a[{4*i}:{4*i+3}], {vL16}, {WS}, s84 offen offset:{(i%4)*1024} {LDSC}', ('o', i))
        ACC = 16; FS = (80, 88, 104)
        def rd(i, reg, tag):
            off = (28*(i >> 1) + 16*(i & 1))*128
            for sl in range(2):
                va = ('v14', 'v15')[sl]
                vb = ('v12', 'v13')[sl] if (i & 1) else va
                a.ds(f'ds_read_b64_tr_b16 v[{reg+4*sl}:{reg+4*sl+1}], {va} offset:{off}', tag)
                a.ds(f'ds_read_b64_tr_b16 v[{reg+4*sl+2}:{reg+4*sl+3}], {vb} offset:{off+8*128}', tag)
        OD = int(os.environ.get('OD', '6'))
        for i in range(OD): oload(i)
        rd(0, FS[0], ('f', 0)); rd(1, FS[1], ('f', 1))
        for i in range(16):
            if i+2 < 16: rd(i+2, FS[(i+2) % 3], ('f', i+2))
            a.wait_lg(('f', i))
            a.wait_vm(('o', i))
            b0 = FS[i % 3]
            for sa in range(2):
                R = ACC + 16*sa
                c = '0' if i == 0 else f'v[{R}:{R+15}]'
                a(f'v_mfma_f32_32x32x16_bf16 v[{R}:{R+15}], v[{b0+4*sa}:{b0+4*sa+3}], a[{4*i}:{4*i+3}], {c}')
                if sa == 0 and i + OD < 16: oload(i + OD)
        g.stamp('p2b gemm')
        s.red_write(ACC, RED2, parts=((1, 2),))
        run_list(a, s.red_list(ACC, 224, n=1) + s.store_x_list(ACC, sX1, sST1))
        g.set_flag(s.fl(2))
        if G.CPF: g.wave_only(1, lambda: g.code_prefetch('L_code_p4', 'L_code_end', v='v14'))
        def late():
            a(f's_sub_u32 {sT0}, {sW}, 1')
            a(f's_lshl_b32 s90, {sM}, 7'); a(f's_mul_i32 s91, {sT0}, {8*3584}'); a(f's_add_u32 s90, s90, s91')
            a(f's_lshl_b32 s91, {sT0}, 10')
            def grp(srd, base, blk0, nblk):
                for n in range((nblk + 2)//3):
                    lastpartial = 3*n + 2 >= nblk
                    if lastpartial:
                        Lx = a.newlabel('Lx'); a(f's_cmp_gt_u32 {sW}, {nblk - 3*n}'); a(f's_cbranch_scc1 {Lx}')
                    s.dma_item(srd, vD3584, 's90', (blk0+3*n)*8*3584, 's91', base + (blk0+3*n)*1024, 'late', track=False)()
                    if lastpartial: a.label(Lx)
            if LATEU: grp(WU, L_WU, 28, 28)
            grp(WG, L_WG, 40, 16)
        g.wave_in(1, 4, late)
        a.vm = []
        g.stamp('p2b done')

    def gelu_list(s, G, U, csg, csu, NM, K, T, PK, packed):
        L = []
        pr = lambda b, r: f'v[{b+r}:{b+r+1}]'
        vA, vB, vV = f'v{K}', f'v{K+1}', f'v{K+2}'
        if packed:
            nm = int(NM[1:]); nmp = f'v[{nm & ~1}:{(nm & ~1)+1}]'; ns = nm & 1
            AB = f'v[{K}:{K+1}]'; VV = f'v[{K+2}:{K+3}]'
            for r in range(0, 16, 2): L.append(f'v_pk_fma_f32 {pr(G,r)}, {pr(csg,r)}, {nmp}, {pr(G,r)} op_sel:[0,{ns},0] op_sel_hi:[1,{ns},1]')
            for r in range(0, 16, 2): L.append(f'v_pk_fma_f32 {pr(U,r)}, {pr(csu,r)}, {nmp}, {pr(U,r)} op_sel:[0,{ns},0] op_sel_hi:[1,{ns},1]')
            for r in range(0, 16, 2): L.append(f'v_pk_mul_f32 {pr(T,r)}, {pr(G,r)}, {pr(G,r)}')
            for r in range(0, 16, 2): L.append(f'v_pk_fma_f32 {pr(T,r)}, {pr(T,r)}, {AB}, {AB} op_sel:[0,1,0] op_sel_hi:[1,1,0]')
            for r in range(0, 16, 2): L.append(f'v_pk_mul_f32 {pr(T,r)}, {pr(T,r)}, {pr(G,r)}')
            for r in range(0, 16, 2):
                L += [f'v_exp_f32 v{T+r}, v{T+r}', f'v_exp_f32 v{T+r+1}, v{T+r+1}', f'v_pk_mul_f32 {pr(U,r)}, {pr(U,r)}, {pr(G,r)}']
            for r in range(0, 16, 2): L.append(f'v_pk_fma_f32 {pr(T,r)}, {pr(T,r)}, {VV}, {VV} op_sel:[0,0,0] op_sel_hi:[1,0,0]')
            for r in range(16): L.append(f'v_rcp_f32 v{T+r}, v{T+r}')
            for r in range(0, 16, 2): L.append(f'v_pk_mul_f32 {pr(U,r)}, {pr(U,r)}, {pr(T,r)}')
        else:
            for r in range(16): L.append(f'v_fmac_f32 v{G+r}, {NM}, v{csg+r}')
            for r in range(16): L.append(f'v_fmac_f32 v{U+r}, {NM}, v{csu+r}')
            for r in range(16): L.append(f'v_mul_f32 v{T+r}, v{G+r}, v{G+r}')
            for r in range(16): L.append(f'v_fma_f32 v{T+r}, v{T+r}, {vB}, {vA}')
            for r in range(16): L.append(f'v_mul_f32 v{T+r}, v{T+r}, v{G+r}')
            for r in range(16):
                L += [f'v_exp_f32 v{T+r}, v{T+r}', f'v_mul_f32 v{U+r}, v{U+r}, v{G+r}']
            for r in range(16): L.append(f'v_fma_f32 v{T+r}, v{T+r}, {vV}, {vV}')
            for r in range(16): L.append(f'v_rcp_f32 v{T+r}, v{T+r}')
            for r in range(16): L.append(f'v_mul_f32 v{U+r}, v{U+r}, v{T+r}')
        for i in range(8):
            L.append(f'v_cvt_pk_bf16_f32 v{PK+i}, v{U+2*i}, v{U+2*i+1}')
        return L

    def p3(s):
        a = s.a; g = s.g
        a.c('==== P3')
        a(f'v_add_u32 v12, {L_WU}, {vTR0}'); a(f'v_add_u32 v13, {L_WU}, {vTR1}')
        for b in range(2):
            a(f's_lshl_b32 {sT0}, {sW}, 1'); a(f's_add_u32 {sT0}, {sT0}, {b}')
            a(f's_mul_i32 s{82+b}, {sT0}, 28672'); a(f's_add_u32 s{82+b}, s{82+b}, {sX1}')
            a(f's_mul_i32 s{86+b}, {sT0}, 3584'); a(f's_add_u32 s{86+b}, s{86+b}, {sST1}')
            a(f's_mul_i32 s{88+b}, {sT0}, 114688'); a(f's_add_u32 s{88+b}, s{88+b}, {sH}')
            a(f's_lshl_b32 {sT1}, {sM}, 12'); a(f's_add_u32 s{88+b}, s{88+b}, {sT1}')
        g.wait_flags(s.fl(2), 0x0fffffff, vt='v10', va='v11', keep_vm=True)
        g.stamp('p3 hop done')
        def xload(ks, b):
            a(f's_add_u32 {sT6}, s{82+b}, {(ks//4)*4096}')
            a.vmem(f'buffer_load_dwordx4 a[{8*ks+4*b}:{8*ks+4*b+3}], {vL16}, {WS}, {sT6} offen offset:{(ks%4)*1024} {LDSC}', ('x', ks, b))
        XD = int(os.environ.get('XD3', '3'))
        for ks in range(XD):
            xload(ks, 0); xload(ks, 1)
        GU = (((16, 32), (48, 64)), ((80, 96), (112, 128)))
        FS = (144, 152, 160)
        NM = ('v10', 'v11'); RS = ('v14', 'v15')
        STR = (168, 184); CSG = 168; CSU = 184; T = 200; PK = 216
        mk_misc = lambda: s.stats_load_items(STR[0], 's86', 'st', 'v234') + s.stats_load_items(STR[1], 's87', 'st', 'v235')
        misc = Side(mk_misc())
        def unit(c, side, per_beat, cs=True):
            vg = vTR0 if c == 0 else vTR1
            vu = 'v12' if c == 0 else 'v13'
            def rdg(ks):
                reg = FS[ks % 3]
                a.ds(f'ds_read_b64_tr_b16 v[{reg}:{reg+1}], {vg} offset:{L_WG+(16*ks)*128}', ('fg', ks))
                a.ds(f'ds_read_b64_tr_b16 v[{reg+2}:{reg+3}], {vg} offset:{L_WG+(16*ks+8)*128}', ('fg', ks))
            def rdu(ks):
                reg = FS[ks % 3] + 4
                a.ds(f'ds_read_b64_tr_b16 v[{reg}:{reg+1}], {vu} offset:{(16*ks)*128}', ('fu', ks))
                a.ds(f'ds_read_b64_tr_b16 v[{reg+2}:{reg+3}], {vu} offset:{(16*ks+8)*128}', ('fu', ks))
            (G_, U_) = GU[c]
            CF = (100, 104, 108)
            def rdc(ks):
                reg = CF[ks % 3]
                a.ds(f'ds_read_b64_tr_b16 v[{reg}:{reg+1}], v233 offset:{(16*ks)*128}', ('fc', ks))
                a.ds(f'ds_read_b64_tr_b16 v[{reg+2}:{reg+3}], v233 offset:{(16*ks+8)*128}', ('fc', ks))
            rdg(0); rdu(0); rdg(1); rdu(1)
            if c == 0 and cs: rdc(0); rdc(1)
            for ks in range(28):
                b0 = FS[ks % 3]
                if c == 0 and ks == (12 if LATEU else 18):
                    a('s_barrier')
                for j, (acc, fo, b) in enumerate(((G_[0], 0, 0), (G_[1], 0, 1), (U_[0], 4, 0), (U_[1], 4, 1))):
                    if c == 0 and j < 2: a.wait_vm(('x', ks, b))
                    if j == 0: a.wait_lg(('fg', ks))
                    if j == 2: a.wait_lg(('fu', ks))
                    cc = '0' if ks == 0 else f'v[{acc}:{acc+15}]'
                    a(f'v_mfma_f32_32x32x16_bf16 v[{acc}:{acc+15}], v[{b0+fo}:{b0+fo+3}], a[{8*ks+4*b}:{8*ks+4*b+3}], {cc}')
                    if j == 0 and ks+2 < 28: rdg(ks+2)
                    if j == 2 and ks+2 < 28: rdu(ks+2)
                    if c == 0 and cs and j == 3:
                        a.wait_lg(('fc', ks))
                        reg = CF[ks % 3]
                        cc2 = '0' if ks == 0 else 'v[200:215]'
                        a(f'v_mfma_f32_32x32x16_bf16 v[200:215], v[{reg}:{reg+3}], v[96:99], {cc2}')
                        if ks+2 < 28: rdc(ks+2)
                    if c == 0:
                        if j in (0, 2) and ks + XD < 28: xload(ks+XD, j >> 1)
                        if j == 3 and ks >= 12 and ks % 2 == 0: side.emit(a)
                    else:
                        side.emit_budget(a, per_beat[j])
            side.flush(a)
        a(f's_and_b32 {sT0}, {sW}, 1'); a(f's_lshl_b32 {sT0}, {sT0}, 6'); a(f'v_xor_b32 v233, {sT0}, {vTR0}')
        a(f's_lshr_b32 {sT0}, {sW}, 1'); a(f's_mul_i32 {sT0}, {sT0}, {L_WU}'); a(f'v_add_u32 v233, {sT0}, v233')
        for i in range(4): a(f'v_mov_b32 v{96+i}, 0x3f803f80')
        if CS1:
            unit(0, misc, None)
        else:
            Lu1 = a.newlabel('Lu1'); Lue = a.newlabel('Lue')
            a(f's_cmp_lg_u32 {sL}, 0'); a(f's_cbranch_scc1 {Lu1}')
            vm0, lg0 = list(a.vm), list(a.lg)
            unit(0, misc, None)
            vmA, lgA = list(a.vm), list(a.lg)
            a(f's_branch {Lue}')
            a.label(Lu1)
            a.vm, a.lg = list(vm0), list(lg0)
            unit(0, Side(mk_misc()), None, cs=False)
            assert a.vm == vmA and a.lg == lgA, (a.vm, vmA, a.lg, lgA)
            a.label(Lue)
        vm_st = None
        s.resid_loads(224, sX1)
        if not IDLEP:
            if not HSC:
                s.pretouch('s88', 32); s.pretouch('s89', 32)
        g.stamp('p3 gemm 0')
        prel = []
        def csw():
            a(f's_lshl_b32 {sT1}, {sW}, 7'); a(f's_add_u32 {sT1}, {sT1}, {M_CSFF}')
            a(f'v_add_u32 v232, {sT1}, {vCS}')
            a('s_mov_b32 exec_lo, 1'); a('s_mov_b32 exec_hi, 1')
            for gq in range(4):
                a.ds(f'ds_write_b128 v232, v[{200+4*gq}:{203+4*gq}] offset:{32*gq}', 'csw')
            a('s_mov_b64 exec, -1')
        if not CS1:
            csw_body = csw
            def csw():
                Lx = a.newlabel('Lx'); a(f's_cmp_lg_u32 {sL}, 0'); a(f's_cbranch_scc1 {Lx}')
                lg = list(a.lg)
                csw_body()
                a('s_waitcnt lgkmcnt(0)')
                a.rawlabel(Lx)
                a('s_waitcnt lgkmcnt(0)')
                a.lg = []
        csw.cost = 6
        KC = (250, 236)
        prel.append(lambda: a.wait_vm('st'))
        prel += s.stats_list(STR[0], NM[0], RS[0], 'v234', 'v235')
        prel.append(csw)
        prel += s.stats_list(STR[1], NM[1], RS[1], 'v234', 'v235')
        for b in range(2):
            K = KC[b]
            prel += [f'v_mul_f32 v234, {RS[b]}, {RS[b]}', f'v_mov_b32 v{K+2}, v{STR[b]+1}',
                     f'v_mul_f32 v{K}, {fbits(C0)}, {RS[b]}', f'v_mul_f32 v234, v234, {RS[b]}', f'v_mul_f32 v{K+1}, {fbits(C1)}, v234']
        def csb():
            a.wait_lg('csw'); a('s_barrier')
            a(f'v_add_u32 v232, {M_CSFF}, {vCS}')
        csb.cost = 2
        prel.append(csb)
        def epi(c, packed):
            L = []
            if c == 0: L += s.cs_read_items(CSG, 128*c, 'cs', 'v232') + s.cs_read_items(CSU, 256+128*c, 'cs', 'v232')
            L.append(lambda: a.wait_lg('cs'))
            for b in range(2):
                L += s.gelu_list(GU[c][0][b], GU[c][1][b], CSG, CSU, NM[b], KC[b], T, PK, packed)
                def st(b=b):
                    a.vmem(f'buffer_store_dwordx4 v[{PK}:{PK+3}], {vL16}, {WS}, s{88+b} offen offset:{2*c*1024} {HSC or STSC}', 'hs')
                    a.vmem(f'buffer_store_dwordx4 v[{PK+4}:{PK+7}], {vL16}, {WS}, s{88+b} offen offset:{(2*c+1)*1024} {HSC or STSC}', 'hs')
                L.append(st)
            return L
        e0 = epi(0, False)
        a(f's_mul_i32 s90, {sW}, {448*896}'); a(f's_lshl_b32 {sT1}, {sCT}, 7'); a(f's_add_u32 s90, s90, {sT1}')
        a(f's_mul_i32 s85, {sW}, {NRA*1024}'); a(f's_add_u32 s85, s85, {RA}')
        a(f's_mul_i32 s91, {sW}, 28672'); a(f's_cmp_ge_u32 {sW}, 2'); a(f's_cselect_b32 {sT0}, 47104, 0'); a(f's_add_u32 s91, s91, {sT0}')
        a(f's_sub_u32 s91, s91, {NRA*1024}')
        extra = []
        for i in range(NRA):
            f = s.wd_item(i); f.cost = 3; extra.append(f)
        if MAINW:
            def wdt(i):
                def f():
                    a(f's_add_u32 {sT0}, s67, {16*i*896}')
                    a('s_mov_b64 exec, ' + ('0xffff' if i < 5 else '0x3ff'))
                    a.vmem(f'buffer_load_dword {vDUM}, v233, {WD}, {sT0} offen', 'tw')
                    a('s_mov_b64 exec, -1')
                f.cost = 2
                return f
            a(f'v_mul_u32_u24 v233, 896, {vLANE}')
            a(f's_mul_i32 {sT0}, {sTQ}, 90'); a(f's_add_u32 {sT0}, {sT0}, 88'); a(f's_mul_i32 {sT0}, {sT0}, 896'); a(f's_add_u32 s67, {sT0}, s90')
            extra += [wdt(i) for i in range(6)]
        step = (len(e0) - 20)//len(extra)
        out = []
        for i, f in enumerate(extra):
            out += e0[i*step:(i+1)*step] + [f]
        e0 = out + e0[len(extra)*step:]
        e0 = prel + e0 + s.cs_read_items(CSG, 128, 'cs', 'v232') + s.cs_read_items(CSU, 256+128, 'cs', 'v232')
        unit(1, Side(e0), (BUD_A, BUD_B, BUD_A, BUD_B))
        g.stamp('p3 gemm 1')
        a('s_barrier')
        NA = NRA + int(os.environ.get('NE1', '12'))
        e1 = epi(1, True)
        run_list(a, e1, Side([s.wd_item(i) for i in range(NRA, NA)]), max(1, len(e1)//(NA-NRA+2)))
        g.stamp('p3 epi 1')
        g.set_flag(s.fl(3))
        def ringb():
            for i in range(NA, NSLOT): s.wd_item(i, track=False)()
            nb = NSLOT - NA
            a(f's_sub_u32 {sT0}, {sW}, 1'); a(f's_mul_i32 {sT1}, {sT0}, {8*896}'); a(f's_lshl_b32 {sT3}, {sCT}, 7'); a(f's_add_u32 s86, {sT1}, {sT3}')
            a(f's_lshl_b32 s87, {sT0}, 10')
            for n in range((nb+2)//3):
                partial = 3*n + 2 >= nb
                if partial:
                    Lx = a.newlabel('Lx'); a(f's_cmp_gt_u32 {sW}, {nb - 3*n}'); a(f's_cbranch_scc1 {Lx}')
                s.dma_item(WD, vD896, 's86', (NA+3*n)*8*896, 's87', (NA-NRA+3*n)*1024, 'Wb', track=False)()
                if partial: a.label(Lx)
        g.wave_in(1, 4, ringb)
        a.vm = []
        g.stamp('p3 done')

    def wd_item(s, blk, track=True):
        slot = blk % NSLOT
        return s.dma_item(WD, vD896, 's90', blk*8*896, 's85' if slot < NRA else 's91', slot*1024, ('W', blk), track=track)

    def p4(s):
        a = s.a; g = s.g
        a.c('==== P4')
        a.rawlabel('L_code_p4')
        a(f's_add_u32 {sT5}, s91, {NRA*1024}')
        s.tile_addrs(sT5)
        a(f's_sub_u32 {sT0}, s85, {sT5}'); a(f'v_add_u32 v12, {sT0}, v14'); a('v_xor_b32 v13, 64, v12')
        for b in range(2):
            a(f's_and_b32 {sT0}, {sW}, 1'); a(f's_xor_b32 {sT0}, {sT0}, {b}'); a(f's_lshl_b32 {sT1}, {sTQ}, 1')
            a(f's_add_u32 {sT0}, {sT0}, {sT1}'); a(f's_mul_i32 {sT0}, {sT0}, 114688'); a(f's_add_u32 {sT0}, {sT0}, {sH}')
            a(f's_mul_i32 {sT1}, {sW}, {28*1024}'); a(f's_add_u32 s{82+b}, {sT0}, {sT1}')
        s.wait_saved()
        g.wait_flags(s.fl(3), 0x0fffffff, vt='v10', va='v11', keep_vm=True)
        g.stamp('p4 hop done')
        wd = s.wd_item
        def hload(ks, b):
            a(f's_add_u32 {sT6}, s{82+b}, {(ks//4)*4096}')
            a.vmem(f'buffer_load_dwordx4 a[{8*ks+4*b}:{8*ks+4*b+3}], {vL16}, {WS}, {sT6} offen offset:{(ks%4)*1024} {LDSC}', ('h', ks, b))
        HD = int(os.environ.get('HD', '6'))
        for ks in range(HD):
            hload(ks, 0); hload(ks, 1)
        ACC = 16; FS = (80, 88, 104)
        def rd(ks):
            reg = FS[ks % 3]
            a.wait_vm(('W', 2*ks+1))
            for sl in range(2):
                for b in range(2):
                    slot = (2*ks + b) % NSLOT
                    va = ('v12', 'v13')[sl] if slot < NRA else ('v14', 'v15')[sl]
                    off = (slot if slot < NRA else slot - NRA)*1024
                    a.ds(f'ds_read_b64_tr_b16 v[{reg+4*sl+2*b}:{reg+4*sl+2*b+1}], {va} offset:{off}', ('f', ks, sl))
        rd(0); rd(1)
        for ks in range(28):
            b0 = FS[ks % 3]
            if ks == 7:
                a('s_barrier')
            for j, (sa, sb) in enumerate(((0, 0), (0, 1), (1, 0), (1, 1))):
                if j < 2: a.wait_vm(('h', ks, sb))
                if j in (0, 2): a.wait_lg(('f', ks, sa))
                R = ACC + 16*(2*sa+sb)
                c = '0' if ks == 0 else f'v[{R}:{R+15}]'
                a(f'v_mfma_f32_32x32x16_bf16 v[{R}:{R+15}], v[{b0+4*sa}:{b0+4*sa+3}], a[{8*ks+4*sb}:{8*ks+4*sb+3}], {c}')
                if j == 0 and ks+2 < 28: rd(ks+2)
                if j in (0, 2) and ks + HD < 28: hload(ks+HD, j >> 1)
                if j in (1, 3) and ks >= 1 and 2*(ks-1) + NSLOT < 56: wd(2*(ks-1) + NSLOT + (j >> 1))()
        g.stamp('p4 gemm')
        a('s_barrier')
        P3W = ((1, 1), (2, 2), (3, 3))
        Lf = a.newlabel('Lfin'); Le = a.newlabel('Lp4e')
        a(f's_cmp_lg_u32 {sL}, 0'); a(f's_cbranch_scc1 {Lf}')
        side = Side(s.wq_items())
        s.red_write(ACC, RED4, parts=P3W, side=side)
        Lr = s.red_list(ACC, 224)
        n_in = int(os.environ.get('NIN', '8'))
        part = Side([side.q.popleft() for _ in range(n_in)])
        run_list(a, Lr, part, max(1, len(Lr)//(n_in+1)))
        run_list(a, s.store_x_list(ACC, sXO, sSTO))
        g.set_flag(s.fl(4))
        side.flush(a)
        a(f's_branch {Le}')
        a.label(Lf)
        a.vm = []; a.lg = []
        s.red_write(ACC, RED4, parts=P3W)
        run_list(a, s.red_list(ACC, 224) + s.store_out_list(ACC))
        a('s_branch L_fin')
        a.label(Le)
        g.stamp('p4 epi')

    def run(s):
        a = s.a; g = s.g; stop = s.stop
        a.label('L_layer')
        s.layer_setup()
        s.p1()
        s.p2a()
        a(f's_cmp_ge_u32 {sM}, 28'); a('s_cbranch_scc1 L_idle')
        s.p2b()
        s.p3()
        s.p4()
        a('s_branch L_next')
        a.label('L_idle')
        a.vm = []; a.lg = []
        a(f's_sub_u32 {sT0}, {sM}, 28'); a(f's_lshl_b32 {sT0}, {sT0}, 2'); a(f's_add_u32 s86, {sT0}, {sW}')
        if LATEU:
            a(f's_mul_i32 s87, s86, {392*128}'); a(f's_add_u32 s87, s87, {224*3584}')
            for i in range(7):
                a(f's_add_u32 {sT1}, s87, {i*64*128}')
                if i == 6: a('s_mov_b64 exec, 0xff')
                a(f'buffer_load_dword {vDUM}, {vL128}, {WU}, {sT1} offen')
                if i == 6: a('s_mov_b64 exec, -1')
            a(f's_mul_i32 s87, s86, {224*128}'); a(f's_add_u32 s87, s87, {320*3584}')
            for i in range(4):
                a(f's_add_u32 {sT1}, s87, {i*64*128}')
                if i == 3: a('s_mov_b64 exec, 0xffffffff')
                a(f'buffer_load_dword {vDUM}, {vL128}, {WG}, {sT1} offen')
                if i == 3: a('s_mov_b64 exec, -1')
        if IDLEP and PRET:
            if not HSC:
                a(f's_mul_i32 s87, s86, {448*128}'); a(f's_add_u32 s87, s87, {sH}')
                for i in range(7):
                    a(f's_add_u32 {sT1}, s87, {i*64*128}')
                    a(f'buffer_load_dword {vDUM}, {vL128}, {WS}, {sT1} offen')
        if IDLEW:
            a(f's_mul_i32 s87, s86, {784*128}')
            for i in range(13):
                a(f's_add_u32 {sT1}, s87, {i*64*128}')
                a(f'buffer_load_dword {vDUM}, {vL128}, {WD}, {sT1} offen')
        Li0 = a.newlabel('Lidle0')
        a(f's_cmp_eq_u32 {sL}, 0'); a(f's_cbranch_scc1 {Li0}')
        if WBL:
            g.wait_flags(s.fl(3), 0x0fffffff, vt='v10', va='v11', drain=True)
            def wb():
                Lx = a.newlabel('Lx'); a(f's_cmp_lg_u32 {sM}, 28'); a(f's_cbranch_scc1 {Lx}')
                a('buffer_wbl2 sc1'); a('s_waitcnt vmcnt(0)')
                a.label(Lx)
            g.wave_only(0, wb)
        a('s_branch L_fin')
        a.label(Li0)
        if IDLEP and PRET:
            a(f's_mul_i32 s87, s86, {112*128}'); a(f's_add_u32 s87, s87, {sXO}')
            for i in range(2):
                a(f's_add_u32 {sT1}, s87, {i*64*128}')
                if i == 1: a('s_mov_b32 exec_hi, 0xffff')
                a(f'buffer_load_dword {vDUM}, {vL128}, {WS}, {sT1} offen')
                if i == 1: a('s_mov_b64 exec, -1')
            a(f's_mul_i32 s87, s86, {14*128}'); a(f's_add_u32 s87, s87, {sSTO}')
            a('s_mov_b64 exec, 0x3fff')
            a(f'buffer_load_dword {vDUM}, {vL128}, {WS}, s87 offen')
            a('s_mov_b64 exec, -1')
        s.wait_saved(all_heads=True)
        a('s_waitcnt vmcnt(0)'); a('s_barrier')
        for it in s.wq_items(): it()
        if IDLEQ:
            g.wait_flags(s.fl(3), 0x0fffffff, vt='v10', va='v11', drain=True)
            a(f's_mul_i32 s87, s86, {672*128}'); a(f's_add_u32 s87, s87, {G0 + WQ}')
            for i in range(11):
                a(f's_add_u32 {sT1}, s87, {i*64*128}')
                a(f'buffer_load_dword {vDUM}, {vL128}, {WS}, {sT1} offen')
        a.label('L_next')
        a.vm = []; a.lg = []
        a(f's_mul_i32 {sT0}, {sHALF}, 14'); a(f's_lshl_b32 s81, 0x3fff, {sT0}')
        g.wait_flags(s.fl(4), 's81', vt='v10', va='v11', drain=True)
        g.stamp('p4 hop(x2)')
        a(f's_mov_b32 {sL}, 1')
        a('s_branch L_layer')
```

```python
from gen import *
import gen as G
import math, os
from collections import deque

C0 = -2.0*LOG2E*math.sqrt(2.0/math.pi)
C1 = C0*0.044715
PRET = int(os.environ.get('PRET', '0'))
IDLEW = int(os.environ.get('IDLEW', '0'))
CS1 = int(os.environ.get('CS1', '0'))
BUD_A = int(os.environ.get('BUD_A', '4')); BUD_B = int(os.environ.get('BUD_B', '5'))
MAINW = int(os.environ.get('MAINW', '1'))
IDLEQ = int(os.environ.get('IDLEQ', '1'))
LATEU = int(os.environ.get('LATEU', '1'))
WBL = int(os.environ.get('WBL', '0'))
OUTSC = os.environ.get('OUTSC', '')
SAVE_LATE = int(os.environ.get('SAVE_LATE', '1'))
IDLEP = int(os.environ.get('IDLEP', '1'))
PFA = int(os.environ.get('PFA', '1'))
HSC = os.environ.get('HSC', '')
LDSC = os.environ.get('LDSC', 'sc1')

L_WG = 0; L_WU = 104448; L_WO = 45056; WOW = 14336; L_KVF = 40960
RED2 = 133120
RED4 = 86016
RA = 57344; NRA = 11; NSLOT = 39
vPHIW='v240'; vVIW='v241'; vPA0='v242'; vPA1='v243'; vVB0='v244'; vVB1='v245'; vKVO='v246'; vL128='v247'; vKVR='v248'; vKVW='v249'
vDUM='v255'

class Side:
    def __init__(s, items=()): s.q = deque(items)
    def emit(s, a, n=1):
        for _ in range(n):
            if not s.q: return
            it = s.q.popleft()
            if callable(it): it()
            else: a(it)
    def flush(s, a): s.emit(a, len(s.q))
    @staticmethod
    def cost(it):
        if callable(it): return getattr(it, 'cost', 1)
        op = it.split()[0]
        return 2 if op in ('v_exp_f32', 'v_rcp_f32', 'v_rsq_f32', 'v_log_f32') else 1
    def emit_budget(s, a, budget):
        b = budget + getattr(s, 'carry', 0)
        while s.q and (Side.cost(s.q[0]) <= b or (Side.cost(s.q[0]) > budget and b > 0)):
            b -= Side.cost(s.q[0]); s.emit(a)
        s.carry = min(b, 2)
    def __len__(s): return len(s.q)

def run_list(a, L, side=None, every=0):
    cnt = 0
    for it in L:
        if callable(it): it()
        else: a(it)
        cnt += 1
        if side is not None and every and cnt % every == 0: side.emit(a)
    if side is not None: side.flush(a)

class Phases:
    def __init__(s, g):
        s.g = g; s.a = g.a
        s.stop = g.stop_after

    def persistent_addrs(s):
        a = s.a
        a(f'v_and_b32 v13, 31, {vLANE}'); a(f's_lshl_b32 {sT0}, {sW}, 5'); a(f'v_add_u32 v14, {sT0}, v13')
        a(f'v_lshrrev_b32 v20, 5, {vLANE}')
        a('v_bfe_u32 v21, v13, 1, 1'); a('v_lshlrev_b32 v21, 3, v21')
        a('v_bfe_u32 v22, v13, 3, 1'); a('v_lshl_or_b32 v21, v22, 2, v21')
        a('v_bfe_u32 v22, v13, 2, 1'); a('v_lshl_or_b32 v21, v22, 1, v21')
        a('v_and_b32 v22, 1, v13'); a('v_or_b32 v21, v21, v22')
        a('v_xor_b32 v21, v21, v20')
        a('v_lshlrev_b32 v21, 3, v21'); a('v_lshl_add_u32 v21, v14, 7, v21')
        a(f'v_add_u32 {vPHIW}, {L_PHI}, v21')
        a('v_bfe_u32 v21, v14, 1, 3'); a('v_xor_b32 v21, v21, v20'); a('v_lshlrev_b32 v21, 3, v21')
        a('v_lshl_add_u32 v21, v14, 6, v21'); a(f'v_add_u32 {vVIW}, {L_VI}, v21')
        a(f'v_and_b32 v13, 15, {vLANE}'); a('v_lshrrev_b32 v14, 2, v13')
        a('v_and_b32 v22, 3, v13'); a(f'v_bfe_u32 v23, {vLANE}, 4, 1')
        a('v_lshl_add_u32 v24, v23, 2, v22')
        a('v_lshl_add_u32 v25, v20, 2, v14')
        a('v_lshrrev_b32 v26, 1, v14'); a('v_lshlrev_b32 v26, 3, v26')
        a('v_lshl_or_b32 v26, v20, 1, v26'); a('v_and_b32 v27, 1, v14'); a('v_or_b32 v26, v26, v27')
        a(f's_and_b32 {sT0}, {sW}, 1'); a(f's_lshl_b32 {sT0}, {sT0}, 3'); a(f'v_add_u32 v27, {sT0}, v24')
        a('v_xor_b32 v27, v27, v26')
        a('v_lshlrev_b32 v27, 3, v27'); a('v_lshl_add_u32 v27, v25, 7, v27')
        a(f'v_add_u32 {vPA0}, {L_PHI}, v27')
        a(f'v_xor_b32 v27, 32, {vPA0}'); a(f'v_add_u32 {vPA1}, {8*128}, v27')
        a('v_lshrrev_b32 v26, 1, v14'); a('v_lshl_or_b32 v26, v20, 1, v26')
        a('v_xor_b32 v26, v26, v24'); a('v_lshlrev_b32 v26, 3, v26')
        a('v_lshl_add_u32 v26, v25, 6, v26'); a(f'v_add_u32 {vVB0}, {L_VI}, v26')
        a(f'v_xor_b32 v27, 32, {vVB0}'); a(f'v_add_u32 {vVB1}, {8*64}, v27')
        a(f'v_and_b32 v13, 31, {vLANE}'); a('v_lshlrev_b32 v13, 2, v13'); a(f'v_lshl_add_u32 {vKVO}, v20, 10, v13')
        a(f'v_lshrrev_b32 v13, 3, {vLANE}'); a(f'v_and_b32 v14, 7, {vLANE}')
        a('v_lshlrev_b32 v21, 8, v13'); a(f'v_lshl_add_u32 {vKVR}, v14, 4, v21')
        a('v_and_b32 v21, 1, v14'); a('v_lshl_add_u32 v21, v21, 5, v13'); a('v_lshlrev_b32 v21, 4, v21')
        a('v_bfe_u32 v22, v14, 1, 1'); a('v_lshl_add_u32 v21, v22, 3, v21')
        a('v_lshrrev_b32 v22, 2, v14'); a('v_lshl_add_u32 v21, v22, 10, v21')
        a(f's_and_b32 {sT0}, {sW}, 1'); a(f's_lshl_b32 {sT0}, {sT0}, 11'); a(f's_add_u32 {sT0}, {sT0}, {L_KVF}')
        a(f'v_add_u32 {vKVW}, {sT0}, v21')
        a(f'v_lshlrev_b32 {vL128}, 7, {vLANE}')

    def pretouch(s, soff, nlines, tag='pt'):
        if not PRET: return
        a = s.a
        if nlines < 64: a(f's_mov_b64 exec, {hex((1 << nlines)-1)}')
        a.vmem(f'buffer_load_dword {vDUM}, {vL128}, {WS}, {soff} offen', tag)
        if nlines < 64: a('s_mov_b64 exec, -1')

    def stats_load_items(s, dst, sbase, tag, vtmp):
        a = s.a
        def last():
            a(f'v_mov_b32 {vtmp}, 0x40000000')
            a(f'v_cndmask_b32 {vtmp}, {vSTA}, {vtmp}, {sUP}')
            a.vmem(f'buffer_load_dwordx4 v[{dst+12}:{dst+15}], {vtmp}, {WS}, {sbase} offen offset:{3*512} {LDSC}', tag)
        return [(lambda i=i: a.vmem(f'buffer_load_dwordx4 v[{dst+4*i}:{dst+4*i+3}], {vSTA}, {WS}, {sbase} offen offset:{i*512} {LDSC}', tag)) for i in range(3)] + [last]

    def stats_list(s, src, vnmean, vrstd, t0, t1):
        S_, Q_ = f'v{src}', f'v{src+1}'
        L = []
        L += [f'v_add_f32 v{src+2}, v{src+2}, v{src+6}', f'v_add_f32 v{src+3}, v{src+3}, v{src+7}']
        L += [f'v_add_f32 {S_}, {S_}, v{src+4}', f'v_add_f32 {Q_}, {Q_}, v{src+5}']
        L += [f'v_add_f32 v{src+2}, v{src+2}, v{src+10}', f'v_add_f32 v{src+3}, v{src+3}, v{src+11}']
        L += [f'v_add_f32 {S_}, {S_}, v{src+8}', f'v_add_f32 {Q_}, {Q_}, v{src+9}']
        L += [f'v_add_f32 v{src+2}, v{src+2}, v{src+14}', f'v_add_f32 v{src+3}, v{src+3}, v{src+15}']
        L += [f'v_add_f32 {S_}, {S_}, v{src+12}', f'v_add_f32 {Q_}, {Q_}, v{src+13}']
        L += [f'v_add_f32 {S_}, {S_}, v{src+2}', f'v_add_f32 {Q_}, {Q_}, v{src+3}']
        L += [f'v_mov_b32 {t0}, {S_}', f'v_mov_b32 {t1}, {Q_}', 's_nop 0',
              f'v_permlane32_swap_b32 {S_}, {t0}', f'v_permlane32_swap_b32 {Q_}, {t1}',
              f'v_add_f32 {S_}, {S_}, {t0}', f'v_add_f32 {Q_}, {Q_}, {t1}',
              f'v_mul_f32 {vnmean}, {fbits(-1.0/448)}, {S_}', f'v_mul_f32 {Q_}, {fbits(1.0/448)}, {Q_}',
              f'v_fma_f32 {Q_}, -{vnmean}, {vnmean}, {Q_}', f'v_max_f32 {Q_}, 0, {Q_}',
              f'v_add_f32 {Q_}, {fbits(1e-5)}, {Q_}', f'v_rsq_f32 {vrstd}, {Q_}']
        L.remove('s_nop 0')
        return L

    def cs_read_items(s, dst, lds_off, tag, vaddr):
        a = s.a
        return [(lambda g=g: a.ds(f'ds_read_b128 v[{dst+4*g}:{dst+4*g+3}], {vaddr} offset:{lds_off+32*g}', tag)) for g in range(4)]

    def colsum(s, reads_fn, nks, dst, lds_out, va='v10'):
        a = s.a
        for i in range(4): a(f'v_mov_b32 v{dst+16+i}, 0x3f803f80')
        F = dst + 20
        reads_fn(0, F, ('cs', 0)); reads_fn(1, F+4, ('cs', 1))
        for ks in range(nks):
            if ks+2 < nks: reads_fn(ks+2, F + 4*((ks+2) % 3), ('cs', ks+2))
            a.wait_lg(('cs', ks))
            R = F + 4*(ks % 3)
            c = '0' if ks == 0 else f'v[{dst}:{dst+15}]'
            a(f'v_mfma_f32_32x32x16_bf16 v[{dst}:{dst+15}], v[{R}:{R+3}], v[{dst+16}:{dst+19}], {c}')
        a(f'v_add_u32 {va}, {lds_out}, {vCS}')
        a('s_mov_b32 exec_lo, 1'); a('s_mov_b32 exec_hi, 1')
        for g in range(4):
            a.ds(f'ds_write_b128 {va}, v[{dst+4*g}:{dst+4*g+3}] offset:{32*g}', 'csw')
        a('s_mov_b64 exec, -1')
        a.wait_lg0()

    def colsum_kv(s):
        a = s.a; g = s.g
        def cs_wave():
            a(f's_mul_i32 {sT0}, {sW}, 28672'); a(f'v_add_u32 v31, {sT0}, {vTR64}')
            a(f's_lshl_b32 {sT1}, {sW}, 7'); a(f's_add_u32 {sT1}, {sT1}, {M_CSQKV}')
            def f(ks, reg, tag):
                a.ds(f'ds_read_b64_tr_b16 v[{reg}:{reg+1}], v31 offset:{(16*ks)*64}', tag)
                a.ds(f'ds_read_b64_tr_b16 v[{reg+2}:{reg+3}], v31 offset:{(16*ks+8)*64}', tag)
            s.colsum(f, 28, 192, sT1, va='v30')
        g.wave_in(0, 2, cs_wave)
        a.lg = []

    def softmax_list(s, P, vC, E1, E2, dP, dM, t):
        L = []
        for r in (3, 7, 11, 15):
            L.append(f'v_cndmask_b32 v{P+r}, v{P+r}, v{P}, {sUP}')
        mx, mn, t2, t3 = f'v{t}', f'v{t+1}', f'v{t+2}', f'v{t+3}'
        L += [f'v_max3_f32 {mx}, v{P}, v{P+1}, v{P+2}', f'v_min3_f32 {mn}, v{P}, v{P+1}, v{P+2}',
              f'v_max3_f32 {t2}, v{P+3}, v{P+4}, v{P+5}', f'v_min3_f32 {t3}, v{P+3}, v{P+4}, v{P+5}']
        for r in (6, 10):
            L += [f'v_max3_f32 {mx}, {mx}, v{P+r}, v{P+r+1}', f'v_min3_f32 {mn}, {mn}, v{P+r}, v{P+r+1}',
                  f'v_max3_f32 {t2}, {t2}, v{P+r+2}, v{P+r+3}', f'v_min3_f32 {t3}, {t3}, v{P+r+2}, v{P+r+3}']
        L += [f'v_max3_f32 {mx}, {mx}, v{P+14}, v{P+15}', f'v_min3_f32 {mn}, {mn}, v{P+14}, v{P+15}',
              f'v_max_f32 {mx}, {mx}, {t2}', f'v_min_f32 {mn}, {mn}, {t3}',
              f'v_mov_b32 {t2}, {mx}', f'v_mov_b32 {t3}, {mn}',
              f'v_permlane32_swap_b32 {mx}, {t2}', f'v_permlane32_swap_b32 {mn}, {t3}',
              f'v_max_f32 {mx}, {mx}, {t2}', f'v_min_f32 {mn}, {mn}, {t3}',
              f'v_mul_f32 {mx}, {mx}, {vC}', f'v_mul_f32 {mn}, {mn}, {vC}']
        c = int(vC[1:]); assert c % 2 == 0 and t % 2 == 0
        cp = f'v[{c}:{c+1}]'; tp = f'v[{t}:{t+1}]'
        for r in range(0, 16, 2):
            L.append(f'v_pk_fma_f32 v[{E1+r}:{E1+r+1}], v[{P+r}:{P+r+1}], {cp}, {tp} op_sel:[0,0,0] op_sel_hi:[1,0,0] neg_lo:[0,0,1] neg_hi:[0,0,1]')
            L.append(f'v_pk_fma_f32 v[{E2+r}:{E2+r+1}], v[{P+r}:{P+r+1}], {cp}, {tp} op_sel:[0,0,1] op_sel_hi:[1,0,1] neg_lo:[1,0,0] neg_hi:[1,0,0]')
        for r in range(16):
            L += [f'v_exp_f32 v{E1+r}, v{E1+r}', f'v_exp_f32 v{E2+r}, v{E2+r}']
        for r in (3, 7, 11, 15):
            L += [f'v_cndmask_b32 v{E1+r}, v{E1+r}, 0, {sUP}', f'v_cndmask_b32 v{E2+r}, v{E2+r}, 0, {sUP}']
        A1 = f'v[{t}:{t+1}]'; A2 = f'v[{t+2}:{t+3}]'; B1 = f'v[{t+4}:{t+5}]'; B2 = f'v[{t+6}:{t+7}]'
        pr = lambda b, r: f'v[{b+r}:{b+r+1}]'
        L += [f'v_pk_add_f32 {A1}, {pr(E1,0)}, {pr(E1,2)}', f'v_pk_add_f32 {A2}, {pr(E2,0)}, {pr(E2,2)}',
              f'v_pk_add_f32 {B1}, {pr(E1,4)}, {pr(E1,6)}', f'v_pk_add_f32 {B2}, {pr(E2,4)}, {pr(E2,6)}']
        L += [f'v_pk_add_f32 {A1}, {A1}, {pr(E1,8)}', f'v_pk_add_f32 {A2}, {A2}, {pr(E2,8)}',
              f'v_pk_add_f32 {B1}, {B1}, {pr(E1,10)}', f'v_pk_add_f32 {B2}, {B2}, {pr(E2,10)}',
              f'v_pk_add_f32 {A1}, {A1}, {pr(E1,12)}', f'v_pk_add_f32 {A2}, {A2}, {pr(E2,12)}',
              f'v_pk_add_f32 {B1}, {B1}, {pr(E1,14)}', f'v_pk_add_f32 {B2}, {B2}, {pr(E2,14)}',
              f'v_pk_add_f32 {A1}, {A1}, {B1}', f'v_pk_add_f32 {A2}, {A2}, {B2}',
              f'v_add_f32 v{t}, v{t}, v{t+1}', f'v_add_f32 v{t+2}, v{t+2}, v{t+3}',
              f'v_mov_b32 v{t+1}, v{t}', f'v_mov_b32 v{t+3}, v{t+2}',
              f'v_permlane32_swap_b32 v{t}, v{t+1}', f'v_permlane32_swap_b32 v{t+2}, v{t+3}',
              f'v_add_f32 v{t}, v{t}, v{t+1}', f'v_add_f32 v{t+2}, v{t+2}, v{t+3}',
              f'v_rcp_f32 v{t}, v{t}', f'v_rcp_f32 v{t+2}, v{t+2}']
        for r in range(0, 16, 2):
            L.append(f'v_pk_mul_f32 {pr(E1,r)}, {pr(E1,r)}, {A1} op_sel_hi:[1,0]')
            L.append(f'v_pk_mul_f32 {pr(E2,r)}, {pr(E2,r)}, {A2} op_sel_hi:[1,0]')
        for i in range(8):
            L += [f'v_cvt_pk_bf16_f32 v{dP+i}, v{E1+2*i}, v{E1+2*i+1}', f'v_cvt_pk_bf16_f32 v{dM+i}, v{E2+2*i}, v{E2+2*i+1}']
        return L

    def qk_list(s, acc, cs, NMp, vC, frag, P, E1, E2, dP, dM, t):
        L = []
        for r in range(0, 16, 2):
            L.append(f'v_pk_fma_f32 v[{acc+r}:{acc+r+1}], v[{cs+r}:{cs+r+1}], v[{NMp}:{NMp+1}], v[{acc+r}:{acc+r+1}] op_sel_hi:[1,0,1]')
        for i in range(8):
            L.append(f'v_cvt_pk_bf16_f32 v{frag+i}, v{acc+2*i}, v{acc+2*i+1}')
        L.append(f'v_mfma_f32_32x32x16_bf16 v[{P}:{P+15}], a[248:251], v[{frag}:{frag+3}], 0')
        L.append(f'v_mfma_f32_32x32x16_bf16 v[{P}:{P+15}], a[252:255], v[{frag+4}:{frag+7}], v[{P}:{P+15}]')
        L += s.softmax_list(P, vC, E1, E2, dP, dM, t)
        return L

    def dma_item(s, srd, voff, ssrc, srcoff, sdst, dstoff, tag, track=True):
        a = s.a
        def f():
            if sdst is None: a(f's_mov_b32 m0, {dstoff}')
            else: a(f's_add_u32 m0, {sdst}, {dstoff}')
            a(f's_add_u32 s92, {ssrc}, {srcoff}')
            if track: a.vmem(f'buffer_load_dwordx4 {voff}, {srd}, s92 offen lds', tag)
            else: a(f'buffer_load_dwordx4 {voff}, {srd}, s92 offen lds')
        return f

    def wq_items(s):
        a = s.a
        a(f's_mul_i32 s90, {sHEAD}, {WQH}'); a(f's_add_u32 s90, s90, {G0 + WQ}')
        a(f's_lshl_b32 s91, {sW}, 10'); a(f's_add_u32 s90, s90, s91')
        return [s.dma_item(WS, vL16, 's90', n*4096, 's91', n*4096, 'W') for n in range(21)]

    def layer_setup(s):
        a = s.a
        L0 = a.newlabel('Ll0'); Le = a.newlabel('Lle')
        a(f's_cmp_lg_u32 {sL}, 0'); a(f's_cbranch_scc1 {L0}')
        for r, o in ((sXIN, X0), (sSTIN, ST0), (sX1, X1A), (sST1, ST1A), (sXO, X2A), (sSTO, ST2A), (sO, OA), (sH, HA)):
            a(f's_add_u32 {r}, {sGB}, {o}')
        a(f's_branch {Le}')
        a.label(L0)
        for r, o in ((sXIN, X2A), (sSTIN, ST2A), (sX1, X1A), (sST1, ST1A), (sXO, X2A), (sSTO, ST2A), (sO, OA), (sH, HA)):
            a(f's_add_u32 {r}, {sGB}, {o}')
        a.label(Le)
        a(f's_lshl_b32 {sT0}, {sL}, 4'); a(f's_add_u32 {sT0}, {sT0}, {sHEAD}')
        a(f's_lshl_b32 {sKV}, {sT0}, 13'); a(f's_add_u32 {sKV}, {sKV}, {KV}')
        a(f's_lshl_b32 {sKVC}, {sT0}, 7'); a(f's_add_u32 {sKVC}, {sKVC}, {KVC}')
        a(f's_lshl_b32 {sFL}, {sG}, 11'); a(f's_lshl_b32 {sT0}, {sL}, 9'); a(f's_add_u32 {sFL}, {sFL}, {sT0}')
        if FLAGS: a(f's_add_u32 {sFL}, {sFL}, {FLAGS}')

    def wait_saved(s, all_heads=False):
        a = s.a; g = s.g
        def w0():
            Lx = a.newlabel('Lx'); a(f's_cmp_lg_u32 {sL}, 0'); a(f's_cbranch_scc1 {Lx}')
            if all_heads:
                a(f'v_and_b32 v11, 15, {vLANE}'); a('v_lshlrev_b32 v11, 7, v11')
                a(f's_mov_b32 {sT0}, {KVC}')
                g.poll(WS, 'v11', sT0, 16, vt='v10')
            else:
                a(f's_lshl_b32 {sT0}, {sHEAD}, 7'); a(f's_add_u32 {sT0}, {sT0}, {KVC}')
                g.poll(WS, None, sT0, 16, vt='v10')
            a.label(Lx)
        g.wave_only(0, w0)

    def fl(s, p):
        s.a(f's_add_u32 s80, {sFL}, {p*128}')
        return 's80'

    def p1(s):
        a = s.a; g = s.g
        a.c('==== P1')
        XD = int(os.environ.get('XD1', '8'))
        a(f's_lshl_b32 {sT3}, {sHALF}, 2'); a(f's_add_u32 {sT3}, {sT3}, {sW}')
        a(f's_mul_i32 s82, {sT3}, 3584'); a(f's_add_u32 s82, s82, {sSTIN}')
        a(f's_mul_i32 s83, {sT3}, 28672'); a(f's_add_u32 s83, s83, {sXIN}')
        def xload(ks):
            if ks % 4 == 0: a(f's_add_u32 s84, s83, {(ks//4)*4096}')
            a.vmem(f'buffer_load_dwordx4 a[{4*ks}:{4*ks+3}], {vL16}, {WS}, s84 offen offset:{(ks%4)*1024} {LDSC}', ('x', ks))
        a(f's_lshl_b32 {sT4}, {sT3}, 15'); a(f's_add_u32 {sT4}, {sT4}, {sO}'); a(f's_lshl_b32 {sT5}, {sHEAD}, 11'); a(f's_add_u32 s85, {sT4}, {sT5}')
        def rd64(base, va=vTR64):
            def f(ks, reg, tag):
                a.ds(f'ds_read_b64_tr_b16 v[{reg}:{reg+1}], {va} offset:{base+(16*ks)*64}', tag)
                a.ds(f'ds_read_b64_tr_b16 v[{reg+2}:{reg+3}], {va} offset:{base+(16*ks+8)*64}', tag)
            return f
        AK, AV, AQ, FR = 16, 32, 48, 64
        rk, rv, rq = rd64(L_WK), rd64(L_WV), rd64(0, 'v208')
        FRS = (64, 72, 216)
        NM, RS, VC = 'v10', 'v11', 'v12'
        def kvloop(loads):
            side = Side()
            if loads:
                run_list(a, s.stats_load_items(96, 's82', 'st', 'v14'))
                for ks in range(XD): xload(ks)
                side = Side([lambda: a.wait_vm('st')] + s.stats_list(96, NM, RS, 'v13', 'v14'))
            CF = (132, 136, 140)
            rc = rd64(0, 'v210')
            if not loads:
                a(f's_and_b32 {sT0}, {sW}, 1'); a(f's_mul_i32 {sT0}, {sT0}, 28672'); a(f'v_add_u32 v210, {sT0}, {vTR64}')
                for i in range(4): a(f'v_mov_b32 v{128+i}, 0x3f803f80')
            rk(0, FRS[0], ('fk', 0)); rv(0, FRS[0]+4, ('fv', 0))
            if not loads: rc(0, CF[0], ('fc', 0))
            rk(1, FRS[1], ('fk', 1)); rv(1, FRS[1]+4, ('fv', 1))
            if not loads: rc(1, CF[1], ('fc', 1))
            for ks in range(28):
                b = FRS[ks % 3]
                if loads: a.wait_vm(('x', ks))
                a.wait_lg(('fk', ks))
                ck = '0' if ks == 0 else f'v[{AK}:{AK+15}]'
                cv = '0' if ks == 0 else f'v[{AV}:{AV+15}]'
                a(f'v_mfma_f32_32x32x16_bf16 v[{AK}:{AK+15}], v[{b}:{b+3}], a[{4*ks}:{4*ks+3}], {ck}')
                if ks+2 < 28: rk(ks+2, FRS[(ks+2) % 3], ('fk', ks+2))
                if loads and ks + XD < 28: xload(ks + XD)
                a.wait_lg(('fv', ks))
                a(f'v_mfma_f32_32x32x16_bf16 v[{AV}:{AV+15}], v[{b+4}:{b+7}], a[{4*ks}:{4*ks+3}], {cv}')
                if ks+2 < 28: rv(ks+2, FRS[(ks+2) % 3]+4, ('fv', ks+2))
                if not loads:
                    a.wait_lg(('fc', ks))
                    cc = '0' if ks == 0 else 'v[112:127]'
                    a(f'v_mfma_f32_32x32x16_bf16 v[112:127], v[{CF[ks % 3]}:{CF[ks % 3]+3}], v[128:131], {cc}')
                    if ks+2 < 28: rc(ks+2, CF[(ks+2) % 3], ('fc', ks+2))
                if ks >= 2: side.emit(a, 2)
            if not loads:
                def csw():
                    a(f's_lshl_b32 {sT1}, {sW}, 7'); a(f's_add_u32 {sT1}, {sT1}, {M_CSQKV}')
                    a(f'v_add_u32 v211, {sT1}, {vCS}')
                    a('s_mov_b32 exec_lo, 1'); a('s_mov_b32 exec_hi, 1')
                    for gq in range(4):
                        a(f'ds_write_b128 v211, v[{112+4*gq}:{115+4*gq}] offset:{32*gq}')
                    a('s_mov_b64 exec, -1')
                    a('s_waitcnt lgkmcnt(0)')
                g.wave_in(0, 2, csw)
            side.flush(a)
        L1p = a.newlabel('Lp1l1'); Lj = a.newlabel('Lp1j')
        a(f's_cmp_lg_u32 {sL}, 0'); a(f's_cbranch_scc1 {L1p}')
        a(f'v_and_b32 v13, 7, {vLANE}'); a('v_lshlrev_b32 v233, 5, v13')
        a(f'buffer_load_dword v232, v233, {DBG}, 0 offen sc1')
        a.lg = []
        kvloop(False)
        a('s_waitcnt vmcnt(0)')
        g.wave_in(0, 2, g.registration_check)
        a('s_barrier')
        a(f's_lshl_b32 {sT0}, {sG}, 1'); a(f's_add_u32 {sT0}, {sT0}, {sHALF}'); a(f's_lshl_b32 {sT1}, {sW}, 4'); a(f's_add_u32 {sT0}, {sT0}, {sT1}')
        a(f's_add_u32 {sT1}, {sT0}, 64')
        a(f's_cmp_lt_u32 {sT1}, 84'); a(f's_cselect_b32 {sT2}, {sT1}, {sT0}')
        a(f's_lshl_b32 {sT0}, {sT0}, 10'); a(f's_lshl_b32 {sT2}, {sT2}, 10')
        a(f'v_add_u32 v13, {sT0}, {vL16}'); a(f'v_add_u32 v14, {sT2}, {vL16}')
        a('ds_read_b128 v[128:131], v13'); a('ds_read_b128 v[132:135], v14')
        a(f's_mul_i32 {sT1}, {sHEAD}, {WQH}'); a(f's_add_u32 {sT1}, {sT1}, {G0 + WQ}')
        a(f's_add_u32 {sT0}, {sT0}, {sT1}'); a(f's_add_u32 {sT2}, {sT2}, {sT1}')
        a('s_waitcnt lgkmcnt(0)')
        a(f'buffer_store_dwordx4 v[128:131], {vL16}, {WS}, {sT0} offen sc1')
        a(f'buffer_store_dwordx4 v[132:135], {vL16}, {WS}, {sT2} offen sc1')
        a('s_barrier')
        a('v_mov_b32 v10, v234'); a('v_mov_b32 v11, v235')
        a(f's_branch {Lj}')
        a.label(L1p)
        a.vm = []; a.lg = []
        kvloop(True)
        a('s_barrier')
        a.label(Lj)
        a.vm = []; a.lg = []
        g.stamp('p1 KV gemm')
        a(f'v_add_u32 v15, {M_CSQKV}, {vCS}')
        run_list(a, s.cs_read_items(112, 0, 'csk', 'v15') + s.cs_read_items(128, 128, 'csv', 'v15'))
        a(f'v_mul_f32 {VC}, {fbits(LOG2E)}, {RS}')
        a.wait_lg('csk')
        a(f's_lshl_b32 s90, {sM}, 7'); a(f's_mul_i32 s91, {sW}, {8*3584}'); a(f's_add_u32 s90, s90, s91')
        a(f's_lshl_b32 s91, {sW}, 10')
        wa = Side([s.dma_item(WG, vD3584, 's90', 4*n*8*3584, 's91', L_WG + 4*n*1024, 'WA') for n in range(10)] if PFA else [])
        L = s.qk_list(AK, 112, 10, VC, 144, 80, 96, 192, 176, 184, 152)
        LV = [lambda: a.wait_lg('csv')]
        for r in range(0, 16, 2):
            LV.append(f'v_pk_fma_f32 v[{AV+r}:{AV+r+1}], v[{128+r}:{129+r}], v[10:11], v[{AV+r}:{AV+r+1}] op_sel_hi:[1,0,1]')
        for r in range(0, 16, 2):
            LV.append(f'v_pk_mul_f32 v[{AV+r}:{AV+r+1}], v[{AV+r}:{AV+r+1}], v[10:11] op_sel:[0,1] op_sel_hi:[1,1]')
        LV.append(f'v_cndmask_b32 v{AV+12}, v{AV+12}, 1.0, {sUP}')
        for i in range(8):
            LV.append(f'v_cvt_pk_bf16_f32 v{128+i}, v{AV+2*i}, v{AV+2*i+1}')
        for gq in range(4):
            LV.append(f'v_xor_b32 v{136+(gq&1)}, {(2*gq) << 3}, {vVIW}')
            LV.append(lambda gq=gq: a.ds(f'ds_write_b64 v{136+(gq&1)}, v[{128+2*gq}:{129+2*gq}]', 'vw'))
        im = max(i for i, it in enumerate(L) if isinstance(it, str) and it.startswith('v_mfma'))
        L = L[:im+1] + LV + L[im+1:]
        for T in range(2):
            for gq in range(4):
                R = 176 + 8*T + 2*gq
                L.append(f'v_xor_b32 v{156+(gq&1)}, {(8*T+2*gq) << 3}, {vPHIW}')
                L.append(lambda R=R, gq=gq: a.ds(f'ds_write_b64 v{156+(gq&1)}, v[{R}:{R+1}]', 'pw'))
        run_list(a, L, wa, 22)
        a(f's_waitcnt vmcnt({10 if PFA else 0}) lgkmcnt(0)')
        a.lg = []
        a('s_barrier')
        g.stamp('p1 phi/v written')
        s.pretouch('s85', 16)
        def kv():
            def rr(kt, reg, tag):
                a.ds(f'ds_read_b64_tr_b16 v[{reg}:{reg+1}], {vPA0} offset:{kt*2048}', tag)
                a.ds(f'ds_read_b64_tr_b16 v[{reg+2}:{reg+3}], {vPA1} offset:{kt*2048}', tag)
                a.ds(f'ds_read_b64_tr_b16 v[{reg+4}:{reg+5}], {vVB0} offset:{kt*1024}', tag)
                a.ds(f'ds_read_b64_tr_b16 v[{reg+6}:{reg+7}], {vVB1} offset:{kt*1024}', tag)
            KS = (64, 72, 216)
            rr(0, KS[0], ('k', 0)); rr(1, KS[1], ('k', 1))
            for kt in range(8):
                if kt+2 < 8: rr(kt+2, KS[(kt+2) % 3], ('k', kt+2))
                a.wait_lg(('k', kt))
                b = KS[kt % 3]
                c = '0' if kt == 0 else 'v[80:95]'
                a(f'v_mfma_f32_32x32x16_bf16 v[80:95], v[{b+4}:{b+7}], v[{b}:{b+3}], {c}')
            a(f's_lshl_b32 {sT0}, {sW}, 7'); a(f's_add_u32 {sT0}, {sT0}, {sKV}'); a(f's_add_u32 {sT1}, {sT0}, 4096')
            a('s_mov_b32 s78, 0x80808080'); a('s_mov_b32 s79, 0x80808080')
            for r in range(16):
                a(f'v_cndmask_b32 v{80+r}, v{80+r}, 1.0, s[78:79]')
            for gq in range(4):
                for r in range(4):
                    so = sT0 if gq < 2 else sT1
                    a(f'buffer_atomic_add_f32 v{80+4*gq+r}, {vKVO}, {WS}, {so} offen offset:{((8*gq+r)*256) % 4096} sc1')
        g.wave_in(0, 2, kv)
        def csq():
            Lq0 = a.newlabel('Lq0')
            a(f's_cmp_lg_u32 {sL}, 0'); a(f's_cbranch_scc1 {Lq0}')
            a(f'v_add_u32 v209, {2*28672}, {vTR64}')
            a(f's_mov_b32 {sT1}, {M_CSQKV + 256}')
            s.colsum(rd64(0, 'v209'), 28, 112, sT1, va='v152')
            a.label(Lq0)
        g.wave_only(2, csq)
        a.lg = []
        a.vm = []
        a.lg = []
        g.stamp('p1 kv issued')
        a(f'v_add_u32 v208, {L_WQ}, {vTR64}')
        QS = (64, 68, 72)
        rq(0, QS[0], ('f', 0)); rq(1, QS[1], ('f', 1))
        for ks in range(28):
            if ks+2 < 28: rq(ks+2, QS[(ks+2) % 3], ('f', ks+2))
            a.wait_lg(('f', ks))
            b = QS[ks % 3]
            cq = '0' if ks == 0 else f'v[{AQ}:{AQ+15}]'
            a(f'v_mfma_f32_32x32x16_bf16 v[{AQ}:{AQ+15}], v[{b}:{b+3}], a[{4*ks}:{4*ks+3}], {cq}')
        a.wait_lg0()
        a('s_barrier')
        run_list(a, s.cs_read_items(112, 256, 'csq', 'v15'))
        a.wait_lg0()
        g.stamp('p1 q gemm')
        qpost = lambda: s.qk_list(AQ, 112, 10, VC, 144, 80, 96, 192, 160, 168, 152)
        Lq = a.newlabel('Lq23'); Lqe = a.newlabel('Lqe')
        a(f's_cmp_ge_u32 {sW}, 2'); a(f's_cbranch_scc1 {Lq}')
        a.vm = []
        s.resid_loads(224, sXIN, track=False, raw_l0=True)
        s.dest_pretouch(sX1, sST1)
        if G.CPF: g.wave_only(1, lambda: g.code_prefetch('L_code_p2b', 'L_code_p4', v='v14'))
        Lp = a.newlabel('Lkvp'); Ld = a.newlabel('Lkvd'); Lc = a.newlabel('Lkvc')
        a(f's_lshl_b32 {sT0}, {sW}, 7'); a(f's_add_u32 {sT0}, {sT0}, {sKV}'); a(f's_add_u32 {sT1}, {sT0}, 4096')
        a('s_mov_b32 s78, 0xaaaaaaaa'); a('s_mov_b32 s79, 0xaaaaaaaa')
        a(f's_mov_b32 {sT7}, 0')
        def kvloads():
            for q in range(4):
                so = sT0 if q < 2 else sT1
                a(f'buffer_load_dwordx4 v[{64+4*q}:{67+4*q}], {vKVR}, {WS}, {so} offen offset:{(q*2048) % 4096} sc1')
        Lq_ = qpost()
        cut = int(len(Lq_)*float(os.environ.get('ASYNC', '0.8')))
        run_list(a, Lq_[:cut] + [kvloads] + Lq_[cut:])
        g.stamp('p1 kv counted')
        a(f's_branch {Lc}')
        a.label(Lp)
        kvloads()
        a.label(Lc)
        a('s_waitcnt vmcnt(0)')
        for q in range(1, 4):
            a(f'v_sub_f32 v{96+q}, 0x41800000, v{67+4*q}')
        a('v_sub_f32 v96, 0x41800000, v67')
        a('v_or_b32 v96, v96, v97'); a('v_or_b32 v98, v98, v99'); a('v_or_b32 v96, v96, v98')
        a('v_lshlrev_b32 v96, 1, v96')
        a('v_cmp_ne_u32 vcc, 0, v96')
        a(f's_add_u32 {sT7}, {sT7}, 1')
        a('s_and_b64 vcc, vcc, s[78:79]')
        a('s_cmp_eq_u64 vcc, 0'); a(f's_cbranch_scc1 {Ld}')
        a(f's_cmp_lt_u32 {sT7}, {G.TIMEOUT}'); a(f's_cbranch_scc1 {Lp}')
        a(f's_mov_b32 {sTO}, 1')
        a.label(Ld)
        g.stamp('kv hop done')
        for q in range(4):
            a(f'v_cvt_pk_bf16_f32 v{96+2*q}, v{64+4*q}, v{65+4*q}'); a(f'v_cvt_pk_bf16_f32 v{97+2*q}, v{66+4*q}, v{67+4*q}')
        for q in range(4):
            a(f'ds_write_b64 {vKVW}, v[{96+2*q}:{97+2*q}] offset:{q*128}')
        a('s_waitcnt lgkmcnt(0)')
        a(f's_branch {Lqe}')
        a.label(Lq)
        a.vm = []
        a(f's_sub_u32 {sT0}, {sW}, 2')
        a(f's_lshl_b32 s86, {sCT}, 7'); a(f's_mul_i32 {sT1}, {sT0}, {8*896}'); a(f's_add_u32 s86, s86, {sT1}')
        a(f's_lshl_b32 s87, {sT0}, 10')
        a(f's_lshl_b32 s88, {sM}, 7'); a(f's_mul_i32 {sT1}, {sT0}, {8*3584}'); a(f's_add_u32 s88, s88, {sT1}')
        items = [s.dma_item(WO, vD896, 's86', 2*n*8*896, 's87', L_WO + 2*n*1024, 'W1') for n in range(28)]
        if not PFA: items += [s.dma_item(WG, vD3584, 's88', 2*n*8*3584, 's87', L_WG + 2*n*1024, 'W1') for n in range(20)]
        items += [s.dma_item(WU, vD3584, 's88', 2*n*8*3584, 's87', L_WU + 2*n*1024, 'W1', track=False) for n in range(14 if LATEU else 28)]
        s.resid_loads(224, sXIN, track=False, raw_l0=True)
        s.dest_pretouch(sX1, sST1)
        run_list(a, qpost(), Side(items), 2)
        a.label(Lqe)
        a.vm = []; a.lg = []
        a('s_barrier')
        g.stamp('kv frags ready')

    def p2a(s):
        a = s.a; g = s.g
        a.c('==== P2a')
        a(f'v_add_u32 v13, {L_KVF}, {vL16}')
        for k in range(4):
            a.ds(f'ds_read_b128 v[{96+4*k}:{99+4*k}], v13 offset:{k*1024}', ('kf', k))
        for k in range(4):
            a.wait_lg(('kf', k))
            c = '0' if k == 0 else 'v[16:31]'
            a(f'v_mfma_f32_32x32x16_bf16 v[16:31], v[{96+4*k}:{99+4*k}], v[{160+4*k}:{163+4*k}], {c}')
        a('v_mov_b32 v32, v28'); a('v_mov_b32 v33, v28')
        a('v_permlane32_swap_b32 v32, v33')
        a(f'v_add_f32 v33, {fbits(1e-6)}, v33')
        a('v_rcp_f32 v34, v33')
        for r in range(0, 16, 2):
            a(f'v_pk_mul_f32 v[{16+r}:{17+r}], v[{16+r}:{17+r}], v[34:35] op_sel_hi:[1,0]')
        for r in range(12, 16):
            a(f'v_cndmask_b32 v{16+r}, v{16+r}, 0, {sUP}')
        for i in range(8):
            a(f'v_cvt_pk_bf16_f32 v{40+i}, v{16+2*i}, v{16+2*i+1}')
        a(f'buffer_store_dwordx4 v[40:43], {vL16}, {WS}, s85 offen {STSC}')
        a(f'buffer_store_dwordx4 v[44:47], {vL16}, {WS}, s85 offen offset:1024 {STSC}')
        g.set_flag(s.fl(1))
        def svc():
            Lx = a.newlabel('Lx'); a(f's_cmp_lg_u32 {sL}, 0'); a(f's_cbranch_scc1 {Lx}')
            a(f's_lshl_b32 {sT0}, {sHEAD}, 7'); a(f's_add_u32 {sT0}, {sT0}, {KVC}')
            a('v_mov_b32 v10, 1'); a('s_mov_b64 exec, 1')
            a(f'buffer_atomic_add v10, off, {WS}, {sT0} sc1')
            a('s_mov_b64 exec, -1')
            a.label(Lx)
        g.wave_only(3, svc)
        g.stamp('p2a done')

    def tile_coords(s):
        a = s.a
        a(f's_and_b32 {sT1}, {sW}, 1'); a(f's_lshl_b32 {sT2}, {sTQ}, 1'); a(f's_add_u32 {sT1}, {sT1}, {sT2}')
        a(f's_lshr_b32 {sT2}, {sW}, 1'); a(f's_lshl_b32 {sT3}, {sCT}, 1'); a(f's_add_u32 {sT2}, {sT2}, {sT3}')

    def resid_loads(s, dst, sX, track=True, raw_l0=False):
        a = s.a
        s.tile_coords()
        f = a.vmem if track else (lambda t, tag: a(t))
        Lr = Le = None
        if raw_l0:
            Lr = a.newlabel('Lrr'); Le = a.newlabel('Lre')
            a(f's_cmp_eq_u32 {sL}, 0'); a(f's_cbranch_scc1 {Lr}')
        a(f's_mul_i32 {sT4}, {sT1}, 28672'); a(f's_lshl_b32 {sT2}, {sT2}, 11'); a(f's_add_u32 {sT4}, {sT4}, {sT2}')
        a(f's_add_u32 {sT4}, {sT4}, {sX}')
        f(f'buffer_load_dwordx4 v[{dst}:{dst+3}], {vL16}, {WS}, {sT4} offen {LDSC}', 'res')
        f(f'buffer_load_dwordx4 v[{dst+4}:{dst+7}], {vL16}, {WS}, {sT4} offen offset:1024 {LDSC}', 'res')
        if raw_l0:
            a(f's_branch {Le}')
            a.label(Lr)
            a(f's_lshl_b32 {sT4}, {sG}, 8'); a(f's_lshl_b32 {sT5}, {sT1}, 5'); a(f's_add_u32 {sT4}, {sT4}, {sT5}')
            a(f's_mul_i32 {sT4}, {sT4}, 896'); a(f's_lshl_b32 {sT5}, {sT2}, 6'); a(f's_add_u32 {sT4}, {sT4}, {sT5}')
            a(f'v_and_b32 v13, 31, {vLANE}'); a('v_mul_u32_u24 v13, 896, v13')
            a(f'v_lshrrev_b32 v14, 5, {vLANE}'); a('v_lshl_add_u32 v13, v14, 3, v13')
            for gq in range(4):
                a(f'buffer_load_dwordx2 v[{dst+2*gq}:{dst+2*gq+1}], v13, {AX}, {sT4} offen offset:{16*gq}')
            a.label(Le)

    def dest_pretouch(s, sXdst, sSTdst):
        if not PRET: return
        a = s.a
        s.tile_coords()
        a(f's_mul_i32 {sT4}, {sT1}, 28672'); a(f's_lshl_b32 {sT5}, {sT2}, 11'); a(f's_add_u32 {sT4}, {sT4}, {sT5}')
        a(f's_add_u32 {sT4}, {sT4}, {sXdst}')
        s.pretouch(sT4, 16)
        a(f's_mul_i32 {sT4}, {sT1}, 3584'); a(f's_lshl_b32 {sT5}, {sCT}, 9'); a(f's_add_u32 {sT4}, {sT4}, {sT5}')
        a(f's_add_u32 {sT4}, {sT4}, {sSTdst}')
        s.pretouch(sT4, 4)

    def red_write(s, ACC, RED, parts=(1, 2, 3), side=None):
        a = s.a
        n = len(parts)
        for k, (slot, x) in enumerate(parts):
            a(f's_xor_b32 {sT0}, {sW}, {x}'); a(f's_mul_i32 {sT0}, {sT0}, {n}'); a(f's_add_u32 {sT0}, {sT0}, {k}')
            a(f's_lshl_b32 {sT0}, {sT0}, 12'); a(f's_add_u32 {sT0}, {sT0}, {RED}')
            a(f'v_add_u32 v{11+k}, {sT0}, {vL16}')
        for k, (slot, x) in enumerate(parts):
            for q in range(4):
                R = ACC + 16*slot + 4*q
                a.ds(f'ds_write_b128 v{11+k}, v[{R}:{R+3}] offset:{q*1024}', 'rw')
                if side is not None and q % 2 == 1: side.emit(a)
        a(f's_mul_i32 {sT0}, {sW}, {n*4096}'); a(f's_add_u32 {sT0}, {sT0}, {RED}')
        a(f'v_add_u32 v10, {sT0}, {vL16}')
        a.wait_lg0()
        a('s_barrier')

    def red_list(s, ACC, resid, n=3):
        a = s.a
        T = ACC + 16
        L = []
        for k in range(n):
            for q in range(4):
                R = T + 16*k + 4*q
                L.append(lambda R=R, k=k, q=q: a.ds(f'ds_read_b128 v[{R}:{R+3}], v10 offset:{k*4096+q*1024}', ('rr', k)))
        U = ACC + 64
        for i in range(8):
            L += [f'v_lshlrev_b32 v{U+2*i}, 16, v{resid+i}', f'v_and_b32 v{U+2*i+1}, 0xffff0000, v{resid+i}']
        pr = lambda b, r: f'v[{b+r}:{b+r+1}]'
        for r in range(0, 16, 2):
            L.append(f'v_pk_add_f32 {pr(ACC,r)}, {pr(ACC,r)}, {pr(U,r)}')
        for k in range(n):
            L.append(lambda k=k: a.wait_lg(('rr', k)))
            for r in range(0, 16, 2):
                L.append(f'v_pk_add_f32 {pr(ACC,r)}, {pr(ACC,r)}, {pr(T+16*k,r)}')
        PK = ACC + 48 + 0
        for i in range(8):
            L.append(f'v_cvt_pk_bf16_f32 v{PK+i}, v{ACC+2*i}, v{ACC+2*i+1}')
        return L

    def store_x_list(s, ACC, sXdst, sSTdst):
        a = s.a
        PK = ACC + 48
        L = []
        def addr():
            s.tile_coords()
            a(f's_mul_i32 {sT4}, {sT1}, 28672'); a(f's_lshl_b32 {sT5}, {sT2}, 11'); a(f's_add_u32 {sT4}, {sT4}, {sT5}')
            a(f's_add_u32 {sT4}, {sT4}, {sXdst}')
            a.vmem(f'buffer_store_dwordx4 v[{PK}:{PK+3}], {vL16}, {WS}, {sT4} offen {STSC}', 'xs')
            a.vmem(f'buffer_store_dwordx4 v[{PK+4}:{PK+7}], {vL16}, {WS}, {sT4} offen offset:1024 {STSC}', 'xs')
        L.append(addr)
        pr = lambda b, r: f'v[{b+r}:{b+r+1}]'
        L += [f'v_pk_add_f32 v[12:13], {pr(ACC,0)}, {pr(ACC,2)}', f'v_pk_mul_f32 v[14:15], {pr(ACC,0)}, {pr(ACC,0)}']
        L.append(f'v_pk_fma_f32 v[14:15], {pr(ACC,2)}, {pr(ACC,2)}, v[14:15]')
        for r in range(4, 16, 2):
            L += [f'v_pk_add_f32 v[12:13], v[12:13], {pr(ACC,r)}', f'v_pk_fma_f32 v[14:15], {pr(ACC,r)}, {pr(ACC,r)}, v[14:15]']
        L += ['v_add_f32 v12, v12, v13', 'v_add_f32 v14, v14, v15', 'v_mov_b32 v13, v12', 'v_mov_b32 v15, v14',
              'v_permlane32_swap_b32 v12, v13', 'v_permlane32_swap_b32 v14, v15',
              'v_add_f32 v12, v12, v13', 'v_add_f32 v13, v14, v15']
        def st():
            a(f's_mul_i32 {sT4}, {sT1}, 3584'); a(f's_lshl_b32 {sT5}, {sCT}, 9'); a(f's_add_u32 {sT4}, {sT4}, {sT5}')
            a(f's_lshr_b32 {sT5}, {sW}, 1'); a(f's_lshl_b32 {sT5}, {sT5}, 3'); a(f's_add_u32 {sT4}, {sT4}, {sT5}')
            a(f's_add_u32 {sT4}, {sT4}, {sSTdst}')
            a('s_mov_b64 exec, 0xffffffff')
            a.vmem(f'buffer_store_dwordx2 v[12:13], {vL16}, {WS}, {sT4} offen {STSC}', 'xs')
            a('s_mov_b64 exec, -1')
        L.append(st)
        return L

    def store_out_list(s, ACC):
        a = s.a
        PK = ACC + 48
        L = []
        for e in range(2):
            L += [f'v_permlane32_swap_b32 v{PK+4*e}, v{PK+4*e+2}', f'v_permlane32_swap_b32 v{PK+4*e+1}, v{PK+4*e+3}']
        def st():
            s.tile_coords()
            a(f's_lshl_b32 {sT4}, {sG}, 8'); a(f's_lshl_b32 {sT5}, {sT1}, 5'); a(f's_add_u32 {sT4}, {sT4}, {sT5}')
            a(f's_mul_i32 {sT4}, {sT4}, 896'); a(f's_lshl_b32 {sT5}, {sT2}, 6'); a(f's_add_u32 {sT4}, {sT4}, {sT5}')
            a(f'v_and_b32 v12, 31, {vLANE}'); a('v_mul_u32_u24 v12, 896, v12')
            a(f'v_lshrrev_b32 v13, 5, {vLANE}'); a('v_lshl_add_u32 v12, v13, 4, v12')
            a(f'buffer_store_dwordx4 v[{PK}:{PK+3}], v12, {OUT}, {sT4} offen {OUTSC}')
            a(f'buffer_store_dwordx4 v[{PK+4}:{PK+7}], v12, {OUT}, {sT4} offen offset:32 {OUTSC}')
        L.append(st)
        return L

    def tile_addrs(s, sbase):
        a = s.a
        a(f's_lshr_b32 {sT0}, {sW}, 1'); a(f's_lshl_b32 {sT0}, {sT0}, 6')
        a(f'v_xor_b32 v14, {sT0}, {vTR0}')
        a(f'v_add_u32 v14, {sbase}, v14')
        a('v_xor_b32 v15, 64, v14')

    def p2b(s):
        a = s.a; g = s.g
        a.c('==== P2b')
        a.rawlabel('L_code_p2b')
        a(f's_lshr_b32 {sT5}, {sW}, 1'); a(f's_mul_i32 {sT5}, {sT5}, 28672'); a(f's_add_u32 {sT5}, {sT5}, {L_WO}')
        s.tile_addrs(sT5)
        a(f'v_lshrrev_b32 v12, 5, {vLANE}'); a('v_lshlrev_b32 v12, 9, v12')
        a('v_sub_u32 v13, v15, v12'); a('v_sub_u32 v12, v14, v12')
        a(f's_lshr_b32 {sT0}, {sTQ}, 1'); a(f's_lshl_b32 {sT0}, {sT0}, 4'); a(f's_lshl_b32 s81, 0xffff, {sT0}')
        a(f's_and_b32 {sT0}, {sW}, 1'); a(f's_lshl_b32 {sT1}, {sTQ}, 1')
        a(f's_add_u32 {sT0}, {sT0}, {sT1}'); a(f's_lshl_b32 {sT0}, {sT0}, 15'); a(f's_add_u32 {sT0}, {sT0}, {sO}')
        a(f's_lshr_b32 {sT1}, {sW}, 1'); a(f's_lshl_b32 {sT1}, {sT1}, 14'); a(f's_add_u32 s82, {sT0}, {sT1}')
        g.wait_flags(s.fl(1), 's81', vt='v10', va='v11')
        a.vm = []
        g.stamp('p2b hop done')
        def oload(i):
            if i % 4 == 0: a(f's_add_u32 s84, s82, {(i//4)*4096}')
            a.vmem(f'buffer_load_dwordx4 a[{4*i}:{4*i+3}], {vL16}, {WS}, s84 offen offset:{(i%4)*1024} {LDSC}', ('o', i))
        ACC = 16; FS = (80, 88, 104)
        def rd(i, reg, tag):
            off = (28*(i >> 1) + 16*(i & 1))*128
            for sl in range(2):
                va = ('v14', 'v15')[sl]
                vb = ('v12', 'v13')[sl] if (i & 1) else va
                a.ds(f'ds_read_b64_tr_b16 v[{reg+4*sl}:{reg+4*sl+1}], {va} offset:{off}', tag)
                a.ds(f'ds_read_b64_tr_b16 v[{reg+4*sl+2}:{reg+4*sl+3}], {vb} offset:{off+8*128}', tag)
        OD = int(os.environ.get('OD', '6'))
        for i in range(OD): oload(i)
        rd(0, FS[0], ('f', 0)); rd(1, FS[1], ('f', 1))
        for i in range(16):
            if i+2 < 16: rd(i+2, FS[(i+2) % 3], ('f', i+2))
            a.wait_lg(('f', i))
            a.wait_vm(('o', i))
            b0 = FS[i % 3]
            for sa in range(2):
                R = ACC + 16*sa
                c = '0' if i == 0 else f'v[{R}:{R+15}]'
                a(f'v_mfma_f32_32x32x16_bf16 v[{R}:{R+15}], v[{b0+4*sa}:{b0+4*sa+3}], a[{4*i}:{4*i+3}], {c}')
                if sa == 0 and i + OD < 16: oload(i + OD)
        g.stamp('p2b gemm')
        s.red_write(ACC, RED2, parts=((1, 2),))
        run_list(a, s.red_list(ACC, 224, n=1) + s.store_x_list(ACC, sX1, sST1))
        g.set_flag(s.fl(2))
        if G.CPF: g.wave_only(1, lambda: g.code_prefetch('L_code_p4', 'L_code_end', v='v14'))
        def late():
            a(f's_sub_u32 {sT0}, {sW}, 1')
            a(f's_lshl_b32 s90, {sM}, 7'); a(f's_mul_i32 s91, {sT0}, {8*3584}'); a(f's_add_u32 s90, s90, s91')
            a(f's_lshl_b32 s91, {sT0}, 10')
            def grp(srd, base, blk0, nblk):
                for n in range((nblk + 2)//3):
                    lastpartial = 3*n + 2 >= nblk
                    if lastpartial:
                        Lx = a.newlabel('Lx'); a(f's_cmp_gt_u32 {sW}, {nblk - 3*n}'); a(f's_cbranch_scc1 {Lx}')
                    s.dma_item(srd, vD3584, 's90', (blk0+3*n)*8*3584, 's91', base + (blk0+3*n)*1024, 'late', track=False)()
                    if lastpartial: a.label(Lx)
            if LATEU: grp(WU, L_WU, 28, 28)
            grp(WG, L_WG, 40, 16)
        g.wave_in(1, 4, late)
        a.vm = []
        g.stamp('p2b done')

    def gelu_list(s, G, U, csg, csu, NM, K, T, PK, packed):
        L = []
        pr = lambda b, r: f'v[{b+r}:{b+r+1}]'
        vA, vB, vV = f'v{K}', f'v{K+1}', f'v{K+2}'
        if packed:
            nm = int(NM[1:]); nmp = f'v[{nm & ~1}:{(nm & ~1)+1}]'; ns = nm & 1
            AB = f'v[{K}:{K+1}]'; VV = f'v[{K+2}:{K+3}]'
            for r in range(0, 16, 2): L.append(f'v_pk_fma_f32 {pr(G,r)}, {pr(csg,r)}, {nmp}, {pr(G,r)} op_sel:[0,{ns},0] op_sel_hi:[1,{ns},1]')
            for r in range(0, 16, 2): L.append(f'v_pk_fma_f32 {pr(U,r)}, {pr(csu,r)}, {nmp}, {pr(U,r)} op_sel:[0,{ns},0] op_sel_hi:[1,{ns},1]')
            for r in range(0, 16, 2): L.append(f'v_pk_mul_f32 {pr(T,r)}, {pr(G,r)}, {pr(G,r)}')
            for r in range(0, 16, 2): L.append(f'v_pk_fma_f32 {pr(T,r)}, {pr(T,r)}, {AB}, {AB} op_sel:[0,1,0] op_sel_hi:[1,1,0]')
            for r in range(0, 16, 2): L.append(f'v_pk_mul_f32 {pr(T,r)}, {pr(T,r)}, {pr(G,r)}')
            for r in range(0, 16, 2):
                L += [f'v_exp_f32 v{T+r}, v{T+r}', f'v_exp_f32 v{T+r+1}, v{T+r+1}', f'v_pk_mul_f32 {pr(U,r)}, {pr(U,r)}, {pr(G,r)}']
            for r in range(0, 16, 2): L.append(f'v_pk_fma_f32 {pr(T,r)}, {pr(T,r)}, {VV}, {VV} op_sel:[0,0,0] op_sel_hi:[1,0,0]')
            for r in range(16): L.append(f'v_rcp_f32 v{T+r}, v{T+r}')
            for r in range(0, 16, 2): L.append(f'v_pk_mul_f32 {pr(U,r)}, {pr(U,r)}, {pr(T,r)}')
        else:
            for r in range(16): L.append(f'v_fmac_f32 v{G+r}, {NM}, v{csg+r}')
            for r in range(16): L.append(f'v_fmac_f32 v{U+r}, {NM}, v{csu+r}')
            for r in range(16): L.append(f'v_mul_f32 v{T+r}, v{G+r}, v{G+r}')
            for r in range(16): L.append(f'v_fma_f32 v{T+r}, v{T+r}, {vB}, {vA}')
            for r in range(16): L.append(f'v_mul_f32 v{T+r}, v{T+r}, v{G+r}')
            for r in range(16):
                L += [f'v_exp_f32 v{T+r}, v{T+r}', f'v_mul_f32 v{U+r}, v{U+r}, v{G+r}']
            for r in range(16): L.append(f'v_fma_f32 v{T+r}, v{T+r}, {vV}, {vV}')
            for r in range(16): L.append(f'v_rcp_f32 v{T+r}, v{T+r}')
            for r in range(16): L.append(f'v_mul_f32 v{U+r}, v{U+r}, v{T+r}')
        for i in range(8):
            L.append(f'v_cvt_pk_bf16_f32 v{PK+i}, v{U+2*i}, v{U+2*i+1}')
        return L

    def p3(s):
        a = s.a; g = s.g
        a.c('==== P3')
        a(f'v_add_u32 v12, {L_WU}, {vTR0}'); a(f'v_add_u32 v13, {L_WU}, {vTR1}')
        for b in range(2):
            a(f's_lshl_b32 {sT0}, {sW}, 1'); a(f's_add_u32 {sT0}, {sT0}, {b}')
            a(f's_mul_i32 s{82+b}, {sT0}, 28672'); a(f's_add_u32 s{82+b}, s{82+b}, {sX1}')
            a(f's_mul_i32 s{86+b}, {sT0}, 3584'); a(f's_add_u32 s{86+b}, s{86+b}, {sST1}')
            a(f's_mul_i32 s{88+b}, {sT0}, 114688'); a(f's_add_u32 s{88+b}, s{88+b}, {sH}')
            a(f's_lshl_b32 {sT1}, {sM}, 12'); a(f's_add_u32 s{88+b}, s{88+b}, {sT1}')
        g.wait_flags(s.fl(2), 0x0fffffff, vt='v10', va='v11', keep_vm=True)
        g.stamp('p3 hop done')
        def xload(ks, b):
            a(f's_add_u32 {sT6}, s{82+b}, {(ks//4)*4096}')
            a.vmem(f'buffer_load_dwordx4 a[{8*ks+4*b}:{8*ks+4*b+3}], {vL16}, {WS}, {sT6} offen offset:{(ks%4)*1024} {LDSC}', ('x', ks, b))
        XD = int(os.environ.get('XD3', '3'))
        for ks in range(XD):
            xload(ks, 0); xload(ks, 1)
        GU = (((16, 32), (48, 64)), ((80, 96), (112, 128)))
        FS = (144, 152, 160)
        NM = ('v10', 'v11'); RS = ('v14', 'v15')
        STR = (168, 184); CSG = 168; CSU = 184; T = 200; PK = 216
        mk_misc = lambda: s.stats_load_items(STR[0], 's86', 'st', 'v234') + s.stats_load_items(STR[1], 's87', 'st', 'v235')
        misc = Side(mk_misc())
        def unit(c, side, per_beat, cs=True):
            vg = vTR0 if c == 0 else vTR1
            vu = 'v12' if c == 0 else 'v13'
            def rdg(ks):
                reg = FS[ks % 3]
                a.ds(f'ds_read_b64_tr_b16 v[{reg}:{reg+1}], {vg} offset:{L_WG+(16*ks)*128}', ('fg', ks))
                a.ds(f'ds_read_b64_tr_b16 v[{reg+2}:{reg+3}], {vg} offset:{L_WG+(16*ks+8)*128}', ('fg', ks))
            def rdu(ks):
                reg = FS[ks % 3] + 4
                a.ds(f'ds_read_b64_tr_b16 v[{reg}:{reg+1}], {vu} offset:{(16*ks)*128}', ('fu', ks))
                a.ds(f'ds_read_b64_tr_b16 v[{reg+2}:{reg+3}], {vu} offset:{(16*ks+8)*128}', ('fu', ks))
            (G_, U_) = GU[c]
            CF = (100, 104, 108)
            def rdc(ks):
                reg = CF[ks % 3]
                a.ds(f'ds_read_b64_tr_b16 v[{reg}:{reg+1}], v233 offset:{(16*ks)*128}', ('fc', ks))
                a.ds(f'ds_read_b64_tr_b16 v[{reg+2}:{reg+3}], v233 offset:{(16*ks+8)*128}', ('fc', ks))
            rdg(0); rdu(0); rdg(1); rdu(1)
            if c == 0 and cs: rdc(0); rdc(1)
            for ks in range(28):
                b0 = FS[ks % 3]
                if c == 0 and ks == (12 if LATEU else 18):
                    a('s_barrier')
                for j, (acc, fo, b) in enumerate(((G_[0], 0, 0), (G_[1], 0, 1), (U_[0], 4, 0), (U_[1], 4, 1))):
                    if c == 0 and j < 2: a.wait_vm(('x', ks, b))
                    if j == 0: a.wait_lg(('fg', ks))
                    if j == 2: a.wait_lg(('fu', ks))
                    cc = '0' if ks == 0 else f'v[{acc}:{acc+15}]'
                    a(f'v_mfma_f32_32x32x16_bf16 v[{acc}:{acc+15}], v[{b0+fo}:{b0+fo+3}], a[{8*ks+4*b}:{8*ks+4*b+3}], {cc}')
                    if j == 0 and ks+2 < 28: rdg(ks+2)
                    if j == 2 and ks+2 < 28: rdu(ks+2)
                    if c == 0 and cs and j == 3:
                        a.wait_lg(('fc', ks))
                        reg = CF[ks % 3]
                        cc2 = '0' if ks == 0 else 'v[200:215]'
                        a(f'v_mfma_f32_32x32x16_bf16 v[200:215], v[{reg}:{reg+3}], v[96:99], {cc2}')
                        if ks+2 < 28: rdc(ks+2)
                    if c == 0:
                        if j in (0, 2) and ks + XD < 28: xload(ks+XD, j >> 1)
                        if j == 3 and ks >= 12 and ks % 2 == 0: side.emit(a)
                    else:
                        side.emit_budget(a, per_beat[j])
            side.flush(a)
        a(f's_and_b32 {sT0}, {sW}, 1'); a(f's_lshl_b32 {sT0}, {sT0}, 6'); a(f'v_xor_b32 v233, {sT0}, {vTR0}')
        a(f's_lshr_b32 {sT0}, {sW}, 1'); a(f's_mul_i32 {sT0}, {sT0}, {L_WU}'); a(f'v_add_u32 v233, {sT0}, v233')
        for i in range(4): a(f'v_mov_b32 v{96+i}, 0x3f803f80')
        if CS1:
            unit(0, misc, None)
        else:
            Lu1 = a.newlabel('Lu1'); Lue = a.newlabel('Lue')
            a(f's_cmp_lg_u32 {sL}, 0'); a(f's_cbranch_scc1 {Lu1}')
            vm0, lg0 = list(a.vm), list(a.lg)
            unit(0, misc, None)
            vmA, lgA = list(a.vm), list(a.lg)
            a(f's_branch {Lue}')
            a.label(Lu1)
            a.vm, a.lg = list(vm0), list(lg0)
            unit(0, Side(mk_misc()), None, cs=False)
            assert a.vm == vmA and a.lg == lgA, (a.vm, vmA, a.lg, lgA)
            a.label(Lue)
        vm_st = None
        s.resid_loads(224, sX1)
        if not IDLEP:
            if not HSC:
                s.pretouch('s88', 32); s.pretouch('s89', 32)
        g.stamp('p3 gemm 0')
        prel = []
        def csw():
            a(f's_lshl_b32 {sT1}, {sW}, 7'); a(f's_add_u32 {sT1}, {sT1}, {M_CSFF}')
            a(f'v_add_u32 v232, {sT1}, {vCS}')
            a('s_mov_b32 exec_lo, 1'); a('s_mov_b32 exec_hi, 1')
            for gq in range(4):
                a.ds(f'ds_write_b128 v232, v[{200+4*gq}:{203+4*gq}] offset:{32*gq}', 'csw')
            a('s_mov_b64 exec, -1')
        if not CS1:
            csw_body = csw
            def csw():
                Lx = a.newlabel('Lx'); a(f's_cmp_lg_u32 {sL}, 0'); a(f's_cbranch_scc1 {Lx}')
                lg = list(a.lg)
                csw_body()
                a('s_waitcnt lgkmcnt(0)')
                a.rawlabel(Lx)
                a('s_waitcnt lgkmcnt(0)')
                a.lg = []
        csw.cost = 6
        KC = (250, 236)
        prel.append(lambda: a.wait_vm('st'))
        prel += s.stats_list(STR[0], NM[0], RS[0], 'v234', 'v235')
        prel.append(csw)
        prel += s.stats_list(STR[1], NM[1], RS[1], 'v234', 'v235')
        for b in range(2):
            K = KC[b]
            prel += [f'v_mul_f32 v234, {RS[b]}, {RS[b]}', f'v_mov_b32 v{K+2}, v{STR[b]+1}',
                     f'v_mul_f32 v{K}, {fbits(C0)}, {RS[b]}', f'v_mul_f32 v234, v234, {RS[b]}', f'v_mul_f32 v{K+1}, {fbits(C1)}, v234']
        def csb():
            a.wait_lg('csw'); a('s_barrier')
            a(f'v_add_u32 v232, {M_CSFF}, {vCS}')
        csb.cost = 2
        prel.append(csb)
        def epi(c, packed):
            L = []
            if c == 0: L += s.cs_read_items(CSG, 128*c, 'cs', 'v232') + s.cs_read_items(CSU, 256+128*c, 'cs', 'v232')
            L.append(lambda: a.wait_lg('cs'))
            for b in range(2):
                L += s.gelu_list(GU[c][0][b], GU[c][1][b], CSG, CSU, NM[b], KC[b], T, PK, packed)
                def st(b=b):
                    a.vmem(f'buffer_store_dwordx4 v[{PK}:{PK+3}], {vL16}, {WS}, s{88+b} offen offset:{2*c*1024} {HSC or STSC}', 'hs')
                    a.vmem(f'buffer_store_dwordx4 v[{PK+4}:{PK+7}], {vL16}, {WS}, s{88+b} offen offset:{(2*c+1)*1024} {HSC or STSC}', 'hs')
                L.append(st)
            return L
        e0 = epi(0, False)
        a(f's_mul_i32 s90, {sW}, {448*896}'); a(f's_lshl_b32 {sT1}, {sCT}, 7'); a(f's_add_u32 s90, s90, {sT1}')
        a(f's_mul_i32 s85, {sW}, {NRA*1024}'); a(f's_add_u32 s85, s85, {RA}')
        a(f's_mul_i32 s91, {sW}, 28672'); a(f's_cmp_ge_u32 {sW}, 2'); a(f's_cselect_b32 {sT0}, 47104, 0'); a(f's_add_u32 s91, s91, {sT0}')
        a(f's_sub_u32 s91, s91, {NRA*1024}')
        extra = []
        for i in range(NRA):
            f = s.wd_item(i); f.cost = 3; extra.append(f)
        if MAINW:
            def wdt(i):
                def f():
                    a(f's_add_u32 {sT0}, s67, {16*i*896}')
                    a('s_mov_b64 exec, ' + ('0xffff' if i < 5 else '0x3ff'))
                    a.vmem(f'buffer_load_dword {vDUM}, v233, {WD}, {sT0} offen', 'tw')
                    a('s_mov_b64 exec, -1')
                f.cost = 2
                return f
            a(f'v_mul_u32_u24 v233, 896, {vLANE}')
            a(f's_mul_i32 {sT0}, {sTQ}, 90'); a(f's_add_u32 {sT0}, {sT0}, 88'); a(f's_mul_i32 {sT0}, {sT0}, 896'); a(f's_add_u32 s67, {sT0}, s90')
            extra += [wdt(i) for i in range(6)]
        step = (len(e0) - 20)//len(extra)
        out = []
        for i, f in enumerate(extra):
            out += e0[i*step:(i+1)*step] + [f]
        e0 = out + e0[len(extra)*step:]
        e0 = prel + e0 + s.cs_read_items(CSG, 128, 'cs', 'v232') + s.cs_read_items(CSU, 256+128, 'cs', 'v232')
        unit(1, Side(e0), (BUD_A, BUD_B, BUD_A, BUD_B))
        g.stamp('p3 gemm 1')
        a('s_barrier')
        NA = NRA + int(os.environ.get('NE1', '12'))
        e1 = epi(1, True)
        run_list(a, e1, Side([s.wd_item(i) for i in range(NRA, NA)]), max(1, len(e1)//(NA-NRA+2)))
        g.stamp('p3 epi 1')
        g.set_flag(s.fl(3))
        def ringb():
            for i in range(NA, NSLOT): s.wd_item(i, track=False)()
            nb = NSLOT - NA
            a(f's_sub_u32 {sT0}, {sW}, 1'); a(f's_mul_i32 {sT1}, {sT0}, {8*896}'); a(f's_lshl_b32 {sT3}, {sCT}, 7'); a(f's_add_u32 s86, {sT1}, {sT3}')
            a(f's_lshl_b32 s87, {sT0}, 10')
            for n in range((nb+2)//3):
                partial = 3*n + 2 >= nb
                if partial:
                    Lx = a.newlabel('Lx'); a(f's_cmp_gt_u32 {sW}, {nb - 3*n}'); a(f's_cbranch_scc1 {Lx}')
                s.dma_item(WD, vD896, 's86', (NA+3*n)*8*896, 's87', (NA-NRA+3*n)*1024, 'Wb', track=False)()
                if partial: a.label(Lx)
        g.wave_in(1, 4, ringb)
        a.vm = []
        g.stamp('p3 done')

    def wd_item(s, blk, track=True):
        slot = blk % NSLOT
        return s.dma_item(WD, vD896, 's90', blk*8*896, 's85' if slot < NRA else 's91', slot*1024, ('W', blk), track=track)

    def p4(s):
        a = s.a; g = s.g
        a.c('==== P4')
        a.rawlabel('L_code_p4')
        a(f's_add_u32 {sT5}, s91, {NRA*1024}')
        s.tile_addrs(sT5)
        a(f's_sub_u32 {sT0}, s85, {sT5}'); a(f'v_add_u32 v12, {sT0}, v14'); a('v_xor_b32 v13, 64, v12')
        for b in range(2):
            a(f's_and_b32 {sT0}, {sW}, 1'); a(f's_xor_b32 {sT0}, {sT0}, {b}'); a(f's_lshl_b32 {sT1}, {sTQ}, 1')
            a(f's_add_u32 {sT0}, {sT0}, {sT1}'); a(f's_mul_i32 {sT0}, {sT0}, 114688'); a(f's_add_u32 {sT0}, {sT0}, {sH}')
            a(f's_mul_i32 {sT1}, {sW}, {28*1024}'); a(f's_add_u32 s{82+b}, {sT0}, {sT1}')
        s.wait_saved()
        g.wait_flags(s.fl(3), 0x0fffffff, vt='v10', va='v11', keep_vm=True)
        g.stamp('p4 hop done')
        wd = s.wd_item
        def hload(ks, b):
            a(f's_add_u32 {sT6}, s{82+b}, {(ks//4)*4096}')
            a.vmem(f'buffer_load_dwordx4 a[{8*ks+4*b}:{8*ks+4*b+3}], {vL16}, {WS}, {sT6} offen offset:{(ks%4)*1024} {LDSC}', ('h', ks, b))
        HD = int(os.environ.get('HD', '6'))
        for ks in range(HD):
            hload(ks, 0); hload(ks, 1)
        ACC = 16; FS = (80, 88, 104)
        def rd(ks):
            reg = FS[ks % 3]
            a.wait_vm(('W', 2*ks+1))
            for sl in range(2):
                for b in range(2):
                    slot = (2*ks + b) % NSLOT
                    va = ('v12', 'v13')[sl] if slot < NRA else ('v14', 'v15')[sl]
                    off = (slot if slot < NRA else slot - NRA)*1024
                    a.ds(f'ds_read_b64_tr_b16 v[{reg+4*sl+2*b}:{reg+4*sl+2*b+1}], {va} offset:{off}', ('f', ks, sl))
        rd(0); rd(1)
        for ks in range(28):
            b0 = FS[ks % 3]
            if ks == 7:
                a('s_barrier')
            for j, (sa, sb) in enumerate(((0, 0), (0, 1), (1, 0), (1, 1))):
                if j < 2: a.wait_vm(('h', ks, sb))
                if j in (0, 2): a.wait_lg(('f', ks, sa))
                R = ACC + 16*(2*sa+sb)
                c = '0' if ks == 0 else f'v[{R}:{R+15}]'
                a(f'v_mfma_f32_32x32x16_bf16 v[{R}:{R+15}], v[{b0+4*sa}:{b0+4*sa+3}], a[{8*ks+4*sb}:{8*ks+4*sb+3}], {c}')
                if j == 0 and ks+2 < 28: rd(ks+2)
                if j in (0, 2) and ks + HD < 28: hload(ks+HD, j >> 1)
                if j in (1, 3) and ks >= 1 and 2*(ks-1) + NSLOT < 56: wd(2*(ks-1) + NSLOT + (j >> 1))()
        g.stamp('p4 gemm')
        a('s_barrier')
        P3W = ((1, 1), (2, 2), (3, 3))
        Lf = a.newlabel('Lfin'); Le = a.newlabel('Lp4e')
        a(f's_cmp_lg_u32 {sL}, 0'); a(f's_cbranch_scc1 {Lf}')
        side = Side(s.wq_items())
        s.red_write(ACC, RED4, parts=P3W, side=side)
        Lr = s.red_list(ACC, 224)
        n_in = int(os.environ.get('NIN', '8'))
        part = Side([side.q.popleft() for _ in range(n_in)])
        run_list(a, Lr, part, max(1, len(Lr)//(n_in+1)))
        run_list(a, s.store_x_list(ACC, sXO, sSTO))
        g.set_flag(s.fl(4))
        side.flush(a)
        a(f's_branch {Le}')
        a.label(Lf)
        a.vm = []; a.lg = []
        s.red_write(ACC, RED4, parts=P3W)
        Lr_ = s.red_list(ACC, 224)
        if os.environ.get('BIAS'):
            i0 = min(i for i, it in enumerate(Lr_) if isinstance(it, str) and it.startswith('v_cvt_pk'))
            Lr_ = Lr_[:i0] + [f'v_add_f32 v{ACC+r}, {fbits(float(os.environ["BIAS"]))}, v{ACC+r}' for r in range(16)] + Lr_[i0:]
        run_list(a, Lr_ + s.store_out_list(ACC))
        a('s_branch L_fin')
        a.label(Le)
        g.stamp('p4 epi')

    def run(s):
        a = s.a; g = s.g; stop = s.stop
        a.label('L_layer')
        s.layer_setup()
        s.p1()
        s.p2a()
        a(f's_cmp_ge_u32 {sM}, 28'); a('s_cbranch_scc1 L_idle')
        s.p2b()
        s.p3()
        s.p4()
        a('s_branch L_next')
        a.label('L_idle')
        a.vm = []; a.lg = []
        a(f's_sub_u32 {sT0}, {sM}, 28'); a(f's_lshl_b32 {sT0}, {sT0}, 2'); a(f's_add_u32 s86, {sT0}, {sW}')
        if LATEU:
            a(f's_mul_i32 s87, s86, {392*128}'); a(f's_add_u32 s87, s87, {224*3584}')
            for i in range(7):
                a(f's_add_u32 {sT1}, s87, {i*64*128}')
                if i == 6: a('s_mov_b64 exec, 0xff')
                a(f'buffer_load_dword {vDUM}, {vL128}, {WU}, {sT1} offen')
                if i == 6: a('s_mov_b64 exec, -1')
            a(f's_mul_i32 s87, s86, {224*128}'); a(f's_add_u32 s87, s87, {320*3584}')
            for i in range(4):
                a(f's_add_u32 {sT1}, s87, {i*64*128}')
                if i == 3: a('s_mov_b64 exec, 0xffffffff')
                a(f'buffer_load_dword {vDUM}, {vL128}, {WG}, {sT1} offen')
                if i == 3: a('s_mov_b64 exec, -1')
        if IDLEP and PRET:
            if not HSC:
                a(f's_mul_i32 s87, s86, {448*128}'); a(f's_add_u32 s87, s87, {sH}')
                for i in range(7):
                    a(f's_add_u32 {sT1}, s87, {i*64*128}')
                    a(f'buffer_load_dword {vDUM}, {vL128}, {WS}, {sT1} offen')
        if IDLEW:
            a(f's_mul_i32 s87, s86, {784*128}')
            for i in range(13):
                a(f's_add_u32 {sT1}, s87, {i*64*128}')
                a(f'buffer_load_dword {vDUM}, {vL128}, {WD}, {sT1} offen')
        Li0 = a.newlabel('Lidle0')
        a(f's_cmp_eq_u32 {sL}, 0'); a(f's_cbranch_scc1 {Li0}')
        if WBL:
            g.wait_flags(s.fl(3), 0x0fffffff, vt='v10', va='v11', drain=True)
            def wb():
                Lx = a.newlabel('Lx'); a(f's_cmp_lg_u32 {sM}, 28'); a(f's_cbranch_scc1 {Lx}')
                a('buffer_wbl2 sc1'); a('s_waitcnt vmcnt(0)')
                a.label(Lx)
            g.wave_only(0, wb)
        a('s_branch L_fin')
        a.label(Li0)
        if IDLEP and PRET:
            a(f's_mul_i32 s87, s86, {112*128}'); a(f's_add_u32 s87, s87, {sXO}')
            for i in range(2):
                a(f's_add_u32 {sT1}, s87, {i*64*128}')
                if i == 1: a('s_mov_b32 exec_hi, 0xffff')
                a(f'buffer_load_dword {vDUM}, {vL128}, {WS}, {sT1} offen')
                if i == 1: a('s_mov_b64 exec, -1')
            a(f's_mul_i32 s87, s86, {14*128}'); a(f's_add_u32 s87, s87, {sSTO}')
            a('s_mov_b64 exec, 0x3fff')
            a(f'buffer_load_dword {vDUM}, {vL128}, {WS}, s87 offen')
            a('s_mov_b64 exec, -1')
        s.wait_saved(all_heads=True)
        a('s_waitcnt vmcnt(0)'); a('s_barrier')
        for it in s.wq_items(): it()
        if IDLEQ:
            g.wait_flags(s.fl(3), 0x0fffffff, vt='v10', va='v11', drain=True)
            a(f's_mul_i32 s87, s86, {672*128}'); a(f's_add_u32 s87, s87, {G0 + WQ}')
            for i in range(11):
                a(f's_add_u32 {sT1}, s87, {i*64*128}')
                a(f'buffer_load_dword {vDUM}, {vL128}, {WS}, {sT1} offen')
        a.label('L_next')
        a.vm = []; a.lg = []
        a(f's_mul_i32 {sT0}, {sHALF}, 14'); a(f's_lshl_b32 s81, 0x3fff, {sT0}')
        g.wait_flags(s.fl(4), 's81', vt='v10', va='v11', drain=True)
        g.stamp('p4 hop(x2)')
        a(f's_mov_b32 {sL}, 1')
        a('s_branch L_layer')
```

```python
from gen import *
import gen as G
import math, os
from collections import deque

C0 = -2.0*LOG2E*math.sqrt(2.0/math.pi)
C1 = C0*0.044715
PRET = int(os.environ.get('PRET', '0'))
IDLEW = int(os.environ.get('IDLEW', '0'))
CS1 = int(os.environ.get('CS1', '0'))
BYTB = int(os.environ.get('BYTB', '0'))
STU0 = int(os.environ.get('STU0', '1'))
BUD_A = int(os.environ.get('BUD_A', '4')); BUD_B = int(os.environ.get('BUD_B', '5'))
MAINW = int(os.environ.get('MAINW', '1'))
IDLEQ = int(os.environ.get('IDLEQ', '1'))
LATEU = int(os.environ.get('LATEU', '1'))
WBL = int(os.environ.get('WBL', '0'))
OUTSC = os.environ.get('OUTSC', '')
SAVE_LATE = int(os.environ.get('SAVE_LATE', '1'))
IDLEP = int(os.environ.get('IDLEP', '1'))
PFA = int(os.environ.get('PFA', '1'))
HSC = os.environ.get('HSC', '')
LDSC = os.environ.get('LDSC', 'sc1')

L_WG = 0; L_WU = 104448; L_WO = 45056; WOW = 14336; L_KVF = 40960
RED2 = 133120
RED4 = 86016
RA = 57344; NRA = 11; NSLOT = 39
vPHIW='v240'; vVIW='v241'; vPA0='v242'; vPA1='v243'; vVB0='v244'; vVB1='v245'; vKVO='v246'; vL128='v247'; vKVR='v248'; vKVW='v249'
vDUM='v255'

class Side:
    def __init__(s, items=()): s.q = deque(items)
    def emit(s, a, n=1):
        for _ in range(n):
            if not s.q: return
            it = s.q.popleft()
            if callable(it): it()
            else: a(it)
    def flush(s, a): s.emit(a, len(s.q))
    @staticmethod
    def cost(it):
        if callable(it): return getattr(it, 'cost', 1)
        op = it.split()[0]
        return 2 if op in ('v_exp_f32', 'v_rcp_f32', 'v_rsq_f32', 'v_log_f32') else 1
    def emit_budget(s, a, budget):
        b = budget + getattr(s, 'carry', 0)
        while s.q and (Side.cost(s.q[0]) <= b or (Side.cost(s.q[0]) > budget and b > 0)):
            b -= Side.cost(s.q[0]); s.emit(a)
        s.carry = min(b, 2)
    def __len__(s): return len(s.q)

def run_list(a, L, side=None, every=0):
    cnt = 0
    for it in L:
        if callable(it): it()
        else: a(it)
        cnt += 1
        if side is not None and every and cnt % every == 0: side.emit(a)
    if side is not None: side.flush(a)

class Phases:
    def __init__(s, g):
        s.g = g; s.a = g.a
        s.stop = g.stop_after

    def persistent_addrs(s):
        a = s.a
        a(f'v_and_b32 v13, 31, {vLANE}'); a(f's_lshl_b32 {sT0}, {sW}, 5'); a(f'v_add_u32 v14, {sT0}, v13')
        a(f'v_lshrrev_b32 v20, 5, {vLANE}')
        a('v_bfe_u32 v21, v13, 1, 1'); a('v_lshlrev_b32 v21, 3, v21')
        a('v_bfe_u32 v22, v13, 3, 1'); a('v_lshl_or_b32 v21, v22, 2, v21')
        a('v_bfe_u32 v22, v13, 2, 1'); a('v_lshl_or_b32 v21, v22, 1, v21')
        a('v_and_b32 v22, 1, v13'); a('v_or_b32 v21, v21, v22')
        a('v_xor_b32 v21, v21, v20')
        a('v_lshlrev_b32 v21, 3, v21'); a('v_lshl_add_u32 v21, v14, 7, v21')
        a(f'v_add_u32 {vPHIW}, {L_PHI}, v21')
        a('v_bfe_u32 v21, v14, 1, 3'); a('v_xor_b32 v21, v21, v20'); a('v_lshlrev_b32 v21, 3, v21')
        a('v_lshl_add_u32 v21, v14, 6, v21'); a(f'v_add_u32 {vVIW}, {L_VI}, v21')
        a(f'v_and_b32 v13, 15, {vLANE}'); a('v_lshrrev_b32 v14, 2, v13')
        a('v_and_b32 v22, 3, v13'); a(f'v_bfe_u32 v23, {vLANE}, 4, 1')
        a('v_lshl_add_u32 v24, v23, 2, v22')
        a('v_lshl_add_u32 v25, v20, 2, v14')
        a('v_lshrrev_b32 v26, 1, v14'); a('v_lshlrev_b32 v26, 3, v26')
        a('v_lshl_or_b32 v26, v20, 1, v26'); a('v_and_b32 v27, 1, v14'); a('v_or_b32 v26, v26, v27')
        a(f's_and_b32 {sT0}, {sW}, 1'); a(f's_lshl_b32 {sT0}, {sT0}, 3'); a(f'v_add_u32 v27, {sT0}, v24')
        a('v_xor_b32 v27, v27, v26')
        a('v_lshlrev_b32 v27, 3, v27'); a('v_lshl_add_u32 v27, v25, 7, v27')
        a(f'v_add_u32 {vPA0}, {L_PHI}, v27')
        a(f'v_xor_b32 v27, 32, {vPA0}'); a(f'v_add_u32 {vPA1}, {8*128}, v27')
        a('v_lshrrev_b32 v26, 1, v14'); a('v_lshl_or_b32 v26, v20, 1, v26')
        a('v_xor_b32 v26, v26, v24'); a('v_lshlrev_b32 v26, 3, v26')
        a('v_lshl_add_u32 v26, v25, 6, v26'); a(f'v_add_u32 {vVB0}, {L_VI}, v26')
        a(f'v_xor_b32 v27, 32, {vVB0}'); a(f'v_add_u32 {vVB1}, {8*64}, v27')
        a(f'v_and_b32 v13, 31, {vLANE}'); a('v_lshlrev_b32 v13, 2, v13'); a(f'v_lshl_add_u32 {vKVO}, v20, 10, v13')
        a(f'v_lshrrev_b32 v13, 3, {vLANE}'); a(f'v_and_b32 v14, 7, {vLANE}')
        a('v_lshlrev_b32 v21, 8, v13'); a(f'v_lshl_add_u32 {vKVR}, v14, 4, v21')
        a('v_and_b32 v21, 1, v14'); a('v_lshl_add_u32 v21, v21, 5, v13'); a('v_lshlrev_b32 v21, 4, v21')
        a('v_bfe_u32 v22, v14, 1, 1'); a('v_lshl_add_u32 v21, v22, 3, v21')
        a('v_lshrrev_b32 v22, 2, v14'); a('v_lshl_add_u32 v21, v22, 10, v21')
        a(f's_and_b32 {sT0}, {sW}, 1'); a(f's_lshl_b32 {sT0}, {sT0}, 11'); a(f's_add_u32 {sT0}, {sT0}, {L_KVF}')
        a(f'v_add_u32 {vKVW}, {sT0}, v21')
        a(f'v_lshlrev_b32 {vL128}, 7, {vLANE}')

    def pretouch(s, soff, nlines, tag='pt'):
        if not PRET: return
        a = s.a
        if nlines < 64: a(f's_mov_b64 exec, {hex((1 << nlines)-1)}')
        a.vmem(f'buffer_load_dword {vDUM}, {vL128}, {WS}, {soff} offen', tag)
        if nlines < 64: a('s_mov_b64 exec, -1')

    def stats_load_items(s, dst, sbase, tag, vtmp):
        a = s.a
        def last():
            a(f'v_mov_b32 {vtmp}, 0x40000000')
            a(f'v_cndmask_b32 {vtmp}, {vSTA}, {vtmp}, {sUP}')
            a.vmem(f'buffer_load_dwordx4 v[{dst+12}:{dst+15}], {vtmp}, {WS}, {sbase} offen offset:{3*512} {LDSC}', tag)
        return [(lambda i=i: a.vmem(f'buffer_load_dwordx4 v[{dst+4*i}:{dst+4*i+3}], {vSTA}, {WS}, {sbase} offen offset:{i*512} {LDSC}', tag)) for i in range(3)] + [last]

    def stats_list(s, src, vnmean, vrstd, t0, t1):
        S_, Q_ = f'v{src}', f'v{src+1}'
        L = []
        L += [f'v_add_f32 v{src+2}, v{src+2}, v{src+6}', f'v_add_f32 v{src+3}, v{src+3}, v{src+7}']
        L += [f'v_add_f32 {S_}, {S_}, v{src+4}', f'v_add_f32 {Q_}, {Q_}, v{src+5}']
        L += [f'v_add_f32 v{src+2}, v{src+2}, v{src+10}', f'v_add_f32 v{src+3}, v{src+3}, v{src+11}']
        L += [f'v_add_f32 {S_}, {S_}, v{src+8}', f'v_add_f32 {Q_}, {Q_}, v{src+9}']
        L += [f'v_add_f32 v{src+2}, v{src+2}, v{src+14}', f'v_add_f32 v{src+3}, v{src+3}, v{src+15}']
        L += [f'v_add_f32 {S_}, {S_}, v{src+12}', f'v_add_f32 {Q_}, {Q_}, v{src+13}']
        L += [f'v_add_f32 {S_}, {S_}, v{src+2}', f'v_add_f32 {Q_}, {Q_}, v{src+3}']
        L += [f'v_mov_b32 {t0}, {S_}', f'v_mov_b32 {t1}, {Q_}', 's_nop 0',
              f'v_permlane32_swap_b32 {S_}, {t0}', f'v_permlane32_swap_b32 {Q_}, {t1}',
              f'v_add_f32 {S_}, {S_}, {t0}', f'v_add_f32 {Q_}, {Q_}, {t1}',
              f'v_mul_f32 {vnmean}, {fbits(-1.0/448)}, {S_}', f'v_mul_f32 {Q_}, {fbits(1.0/448)}, {Q_}',
              f'v_fma_f32 {Q_}, -{vnmean}, {vnmean}, {Q_}', f'v_max_f32 {Q_}, 0, {Q_}',
              f'v_add_f32 {Q_}, {fbits(1e-5)}, {Q_}', f'v_rsq_f32 {vrstd}, {Q_}']
        L.remove('s_nop 0')
        return L

    def cs_read_items(s, dst, lds_off, tag, vaddr):
        a = s.a
        return [(lambda g=g: a.ds(f'ds_read_b128 v[{dst+4*g}:{dst+4*g+3}], {vaddr} offset:{lds_off+32*g}', tag)) for g in range(4)]

    def colsum(s, reads_fn, nks, dst, lds_out, va='v10'):
        a = s.a
        for i in range(4): a(f'v_mov_b32 v{dst+16+i}, 0x3f803f80')
        F = dst + 20
        reads_fn(0, F, ('cs', 0)); reads_fn(1, F+4, ('cs', 1))
        for ks in range(nks):
            if ks+2 < nks: reads_fn(ks+2, F + 4*((ks+2) % 3), ('cs', ks+2))
            a.wait_lg(('cs', ks))
            R = F + 4*(ks % 3)
            c = '0' if ks == 0 else f'v[{dst}:{dst+15}]'
            a(f'v_mfma_f32_32x32x16_bf16 v[{dst}:{dst+15}], v[{R}:{R+3}], v[{dst+16}:{dst+19}], {c}')
        a(f'v_add_u32 {va}, {lds_out}, {vCS}')
        a('s_mov_b32 exec_lo, 1'); a('s_mov_b32 exec_hi, 1')
        for g in range(4):
            a.ds(f'ds_write_b128 {va}, v[{dst+4*g}:{dst+4*g+3}] offset:{32*g}', 'csw')
        a('s_mov_b64 exec, -1')
        a.wait_lg0()

    def colsum_kv(s):
        a = s.a; g = s.g
        def cs_wave():
            a(f's_mul_i32 {sT0}, {sW}, 28672'); a(f'v_add_u32 v31, {sT0}, {vTR64}')
            a(f's_lshl_b32 {sT1}, {sW}, 7'); a(f's_add_u32 {sT1}, {sT1}, {M_CSQKV}')
            def f(ks, reg, tag):
                a.ds(f'ds_read_b64_tr_b16 v[{reg}:{reg+1}], v31 offset:{(16*ks)*64}', tag)
                a.ds(f'ds_read_b64_tr_b16 v[{reg+2}:{reg+3}], v31 offset:{(16*ks+8)*64}', tag)
            s.colsum(f, 28, 192, sT1, va='v30')
        g.wave_in(0, 2, cs_wave)
        a.lg = []

    def softmax_list(s, P, vC, E1, E2, dP, dM, t):
        L = []
        for r in (3, 7, 11, 15):
            L.append(f'v_cndmask_b32 v{P+r}, v{P+r}, v{P}, {sUP}')
        mx, mn, t2, t3 = f'v{t}', f'v{t+1}', f'v{t+2}', f'v{t+3}'
        L += [f'v_max3_f32 {mx}, v{P}, v{P+1}, v{P+2}', f'v_min3_f32 {mn}, v{P}, v{P+1}, v{P+2}',
              f'v_max3_f32 {t2}, v{P+3}, v{P+4}, v{P+5}', f'v_min3_f32 {t3}, v{P+3}, v{P+4}, v{P+5}']
        for r in (6, 10):
            L += [f'v_max3_f32 {mx}, {mx}, v{P+r}, v{P+r+1}', f'v_min3_f32 {mn}, {mn}, v{P+r}, v{P+r+1}',
                  f'v_max3_f32 {t2}, {t2}, v{P+r+2}, v{P+r+3}', f'v_min3_f32 {t3}, {t3}, v{P+r+2}, v{P+r+3}']
        L += [f'v_max3_f32 {mx}, {mx}, v{P+14}, v{P+15}', f'v_min3_f32 {mn}, {mn}, v{P+14}, v{P+15}',
              f'v_max_f32 {mx}, {mx}, {t2}', f'v_min_f32 {mn}, {mn}, {t3}',
              f'v_mov_b32 {t2}, {mx}', f'v_mov_b32 {t3}, {mn}',
              f'v_permlane32_swap_b32 {mx}, {t2}', f'v_permlane32_swap_b32 {mn}, {t3}',
              f'v_max_f32 {mx}, {mx}, {t2}', f'v_min_f32 {mn}, {mn}, {t3}',
              f'v_mul_f32 {mx}, {mx}, {vC}', f'v_mul_f32 {mn}, {mn}, {vC}']
        c = int(vC[1:]); assert c % 2 == 0 and t % 2 == 0
        cp = f'v[{c}:{c+1}]'; tp = f'v[{t}:{t+1}]'
        for r in range(0, 16, 2):
            L.append(f'v_pk_fma_f32 v[{E1+r}:{E1+r+1}], v[{P+r}:{P+r+1}], {cp}, {tp} op_sel:[0,0,0] op_sel_hi:[1,0,0] neg_lo:[0,0,1] neg_hi:[0,0,1]')
            L.append(f'v_pk_fma_f32 v[{E2+r}:{E2+r+1}], v[{P+r}:{P+r+1}], {cp}, {tp} op_sel:[0,0,1] op_sel_hi:[1,0,1] neg_lo:[1,0,0] neg_hi:[1,0,0]')
        for r in range(16):
            L += [f'v_exp_f32 v{E1+r}, v{E1+r}', f'v_exp_f32 v{E2+r}, v{E2+r}']
        for r in (3, 7, 11, 15):
            L += [f'v_cndmask_b32 v{E1+r}, v{E1+r}, 0, {sUP}', f'v_cndmask_b32 v{E2+r}, v{E2+r}, 0, {sUP}']
        A1 = f'v[{t}:{t+1}]'; A2 = f'v[{t+2}:{t+3}]'; B1 = f'v[{t+4}:{t+5}]'; B2 = f'v[{t+6}:{t+7}]'
        pr = lambda b, r: f'v[{b+r}:{b+r+1}]'
        L += [f'v_pk_add_f32 {A1}, {pr(E1,0)}, {pr(E1,2)}', f'v_pk_add_f32 {A2}, {pr(E2,0)}, {pr(E2,2)}',
              f'v_pk_add_f32 {B1}, {pr(E1,4)}, {pr(E1,6)}', f'v_pk_add_f32 {B2}, {pr(E2,4)}, {pr(E2,6)}']
        L += [f'v_pk_add_f32 {A1}, {A1}, {pr(E1,8)}', f'v_pk_add_f32 {A2}, {A2}, {pr(E2,8)}',
              f'v_pk_add_f32 {B1}, {B1}, {pr(E1,10)}', f'v_pk_add_f32 {B2}, {B2}, {pr(E2,10)}',
              f'v_pk_add_f32 {A1}, {A1}, {pr(E1,12)}', f'v_pk_add_f32 {A2}, {A2}, {pr(E2,12)}',
              f'v_pk_add_f32 {B1}, {B1}, {pr(E1,14)}', f'v_pk_add_f32 {B2}, {B2}, {pr(E2,14)}',
              f'v_pk_add_f32 {A1}, {A1}, {B1}', f'v_pk_add_f32 {A2}, {A2}, {B2}',
              f'v_add_f32 v{t}, v{t}, v{t+1}', f'v_add_f32 v{t+2}, v{t+2}, v{t+3}',
              f'v_mov_b32 v{t+1}, v{t}', f'v_mov_b32 v{t+3}, v{t+2}',
              f'v_permlane32_swap_b32 v{t}, v{t+1}', f'v_permlane32_swap_b32 v{t+2}, v{t+3}',
              f'v_add_f32 v{t}, v{t}, v{t+1}', f'v_add_f32 v{t+2}, v{t+2}, v{t+3}',
              f'v_rcp_f32 v{t}, v{t}', f'v_rcp_f32 v{t+2}, v{t+2}']
        for r in range(0, 16, 2):
            L.append(f'v_pk_mul_f32 {pr(E1,r)}, {pr(E1,r)}, {A1} op_sel_hi:[1,0]')
            L.append(f'v_pk_mul_f32 {pr(E2,r)}, {pr(E2,r)}, {A2} op_sel_hi:[1,0]')
        for i in range(8):
            L += [f'v_cvt_pk_bf16_f32 v{dP+i}, v{E1+2*i}, v{E1+2*i+1}', f'v_cvt_pk_bf16_f32 v{dM+i}, v{E2+2*i}, v{E2+2*i+1}']
        return L

    def qk_list(s, acc, cs, NMp, vC, frag, P, E1, E2, dP, dM, t):
        L = []
        for r in range(0, 16, 2):
            L.append(f'v_pk_fma_f32 v[{acc+r}:{acc+r+1}], v[{cs+r}:{cs+r+1}], v[{NMp}:{NMp+1}], v[{acc+r}:{acc+r+1}] op_sel_hi:[1,0,1]')
        for i in range(8):
            L.append(f'v_cvt_pk_bf16_f32 v{frag+i}, v{acc+2*i}, v{acc+2*i+1}')
        L.append(f'v_mfma_f32_32x32x16_bf16 v[{P}:{P+15}], a[248:251], v[{frag}:{frag+3}], 0')
        L.append(f'v_mfma_f32_32x32x16_bf16 v[{P}:{P+15}], a[252:255], v[{frag+4}:{frag+7}], v[{P}:{P+15}]')
        L += s.softmax_list(P, vC, E1, E2, dP, dM, t)
        return L

    def dma_item(s, srd, voff, ssrc, srcoff, sdst, dstoff, tag, track=True):
        a = s.a
        def f():
            if sdst is None: a(f's_mov_b32 m0, {dstoff}')
            else: a(f's_add_u32 m0, {sdst}, {dstoff}')
            a(f's_add_u32 s92, {ssrc}, {srcoff}')
            if track: a.vmem(f'buffer_load_dwordx4 {voff}, {srd}, s92 offen lds', tag)
            else: a(f'buffer_load_dwordx4 {voff}, {srd}, s92 offen lds')
        return f

    def wq_items(s):
        a = s.a
        a(f's_mul_i32 s90, {sHEAD}, {WQH}'); a(f's_add_u32 s90, s90, {G0 + WQ}')
        a(f's_lshl_b32 s91, {sW}, 10'); a(f's_add_u32 s90, s90, s91')
        return [s.dma_item(WS, vL16, 's90', n*4096, 's91', n*4096, 'W') for n in range(21)]

    def layer_setup(s):
        a = s.a
        L0 = a.newlabel('Ll0'); Le = a.newlabel('Lle')
        a(f's_cmp_lg_u32 {sL}, 0'); a(f's_cbranch_scc1 {L0}')
        for r, o in ((sXIN, X0), (sSTIN, ST0), (sX1, X1A), (sST1, ST1A), (sXO, X2A), (sSTO, ST2A), (sO, OA), (sH, HA)):
            a(f's_add_u32 {r}, {sGB}, {o}')
        a(f's_branch {Le}')
        a.label(L0)
        for r, o in ((sXIN, X2A), (sSTIN, ST2A), (sX1, X1A), (sST1, ST1A), (sXO, X2A), (sSTO, ST2A), (sO, OA), (sH, HA)):
            a(f's_add_u32 {r}, {sGB}, {o}')
        a.label(Le)
        a(f's_lshl_b32 {sT0}, {sL}, 4'); a(f's_add_u32 {sT0}, {sT0}, {sHEAD}')
        a(f's_lshl_b32 {sKV}, {sT0}, 13'); a(f's_add_u32 {sKV}, {sKV}, {KV}')
        a(f's_lshl_b32 {sKVC}, {sT0}, 7'); a(f's_add_u32 {sKVC}, {sKVC}, {KVC}')
        a(f's_lshl_b32 {sFL}, {sG}, 11'); a(f's_lshl_b32 {sT0}, {sL}, 9'); a(f's_add_u32 {sFL}, {sFL}, {sT0}')
        if FLAGS: a(f's_add_u32 {sFL}, {sFL}, {FLAGS}')

    def wait_saved(s, all_heads=False):
        a = s.a; g = s.g
        def w0():
            Lx = a.newlabel('Lx'); a(f's_cmp_lg_u32 {sL}, 0'); a(f's_cbranch_scc1 {Lx}')
            if all_heads:
                a(f'v_and_b32 v11, 15, {vLANE}'); a('v_lshlrev_b32 v11, 7, v11')
                a(f's_mov_b32 {sT0}, {KVC}')
                g.poll(WS, 'v11', sT0, 16, vt='v10')
            else:
                a(f's_lshl_b32 {sT0}, {sHEAD}, 7'); a(f's_add_u32 {sT0}, {sT0}, {KVC}')
                g.poll(WS, None, sT0, 16, vt='v10')
            a.label(Lx)
        g.wave_only(0, w0)

    def fl(s, p):
        s.a(f's_add_u32 s80, {sFL}, {p*128}')
        return 's80'

    def p1(s):
        a = s.a; g = s.g
        a.c('==== P1')
        XD = int(os.environ.get('XD1', '8'))
        a(f's_lshl_b32 {sT3}, {sHALF}, 2'); a(f's_add_u32 {sT3}, {sT3}, {sW}')
        a(f's_mul_i32 s82, {sT3}, 3584'); a(f's_add_u32 s82, s82, {sSTIN}')
        a(f's_mul_i32 s83, {sT3}, 28672'); a(f's_add_u32 s83, s83, {sXIN}')
        def xload(ks):
            if ks % 4 == 0: a(f's_add_u32 s84, s83, {(ks//4)*4096}')
            a.vmem(f'buffer_load_dwordx4 a[{4*ks}:{4*ks+3}], {vL16}, {WS}, s84 offen offset:{(ks%4)*1024} {LDSC}', ('x', ks))
        a(f's_lshl_b32 {sT4}, {sT3}, 15'); a(f's_add_u32 {sT4}, {sT4}, {sO}'); a(f's_lshl_b32 {sT5}, {sHEAD}, 11'); a(f's_add_u32 s85, {sT4}, {sT5}')
        def rd64(base, va=vTR64):
            def f(ks, reg, tag):
                a.ds(f'ds_read_b64_tr_b16 v[{reg}:{reg+1}], {va} offset:{base+(16*ks)*64}', tag)
                a.ds(f'ds_read_b64_tr_b16 v[{reg+2}:{reg+3}], {va} offset:{base+(16*ks+8)*64}', tag)
            return f
        AK, AV, AQ, FR = 16, 32, 48, 64
        rk, rv, rq = rd64(L_WK), rd64(L_WV), rd64(0, 'v208')
        FRS = (64, 72, 216)
        NM, RS, VC = 'v10', 'v11', 'v12'
        def kvloop(loads):
            side = Side()
            if loads:
                run_list(a, s.stats_load_items(96, 's82', 'st', 'v14'))
                for ks in range(XD): xload(ks)
                a(f'v_add_u32 v15, {M_CSQKV}, {vCS}')
                side = Side(s.cs_read_items(112, 0, 'csk', 'v15') + s.cs_read_items(128, 128, 'csv', 'v15')
                            + [lambda: a.wait_vm('st')] + s.stats_list(96, NM, RS, 'v13', 'v14'))
            CF = (132, 136, 140)
            rc = rd64(0, 'v210')
            if not loads:
                a(f's_and_b32 {sT0}, {sW}, 1'); a(f's_mul_i32 {sT0}, {sT0}, 28672'); a(f'v_add_u32 v210, {sT0}, {vTR64}')
                for i in range(4): a(f'v_mov_b32 v{128+i}, 0x3f803f80')
            rk(0, FRS[0], ('fk', 0)); rv(0, FRS[0]+4, ('fv', 0))
            if not loads: rc(0, CF[0], ('fc', 0))
            rk(1, FRS[1], ('fk', 1)); rv(1, FRS[1]+4, ('fv', 1))
            if not loads: rc(1, CF[1], ('fc', 1))
            for ks in range(28):
                b = FRS[ks % 3]
                if loads: a.wait_vm(('x', ks))
                a.wait_lg(('fk', ks))
                ck = '0' if ks == 0 else f'v[{AK}:{AK+15}]'
                cv = '0' if ks == 0 else f'v[{AV}:{AV+15}]'
                a(f'v_mfma_f32_32x32x16_bf16 v[{AK}:{AK+15}], v[{b}:{b+3}], a[{4*ks}:{4*ks+3}], {ck}')
                if ks+2 < 28: rk(ks+2, FRS[(ks+2) % 3], ('fk', ks+2))
                if loads and ks + XD < 28: xload(ks + XD)
                a.wait_lg(('fv', ks))
                a(f'v_mfma_f32_32x32x16_bf16 v[{AV}:{AV+15}], v[{b+4}:{b+7}], a[{4*ks}:{4*ks+3}], {cv}')
                if ks+2 < 28: rv(ks+2, FRS[(ks+2) % 3]+4, ('fv', ks+2))
                if not loads:
                    a.wait_lg(('fc', ks))
                    cc = '0' if ks == 0 else 'v[112:127]'
                    a(f'v_mfma_f32_32x32x16_bf16 v[112:127], v[{CF[ks % 3]}:{CF[ks % 3]+3}], v[128:131], {cc}')
                    if ks+2 < 28: rc(ks+2, CF[(ks+2) % 3], ('fc', ks+2))
                if ks >= 2: side.emit(a, 2)
            if not loads:
                def csw():
                    a(f's_lshl_b32 {sT1}, {sW}, 7'); a(f's_add_u32 {sT1}, {sT1}, {M_CSQKV}')
                    a(f'v_add_u32 v211, {sT1}, {vCS}')
                    a('s_mov_b32 exec_lo, 1'); a('s_mov_b32 exec_hi, 1')
                    for gq in range(4):
                        a(f'ds_write_b128 v211, v[{112+4*gq}:{115+4*gq}] offset:{32*gq}')
                    a('s_mov_b64 exec, -1')
                    a('s_waitcnt lgkmcnt(0)')
                g.wave_in(0, 2, csw)
            side.flush(a)
        L1p = a.newlabel('Lp1l1'); Lj = a.newlabel('Lp1j')
        a(f's_cmp_lg_u32 {sL}, 0'); a(f's_cbranch_scc1 {L1p}')
        a(f'v_and_b32 v13, 7, {vLANE}'); a('v_lshlrev_b32 v233, 5, v13')
        a(f'buffer_load_dword v232, v233, {DBG}, 0 offen sc1')
        a.lg = []
        kvloop(False)
        a('s_waitcnt vmcnt(0)')
        g.wave_in(0, 2, g.registration_check)
        a('s_barrier')
        a(f's_lshl_b32 {sT0}, {sG}, 1'); a(f's_add_u32 {sT0}, {sT0}, {sHALF}'); a(f's_lshl_b32 {sT1}, {sW}, 4'); a(f's_add_u32 {sT0}, {sT0}, {sT1}')
        a(f's_add_u32 {sT1}, {sT0}, 64')
        a(f's_cmp_lt_u32 {sT1}, 84'); a(f's_cselect_b32 {sT2}, {sT1}, {sT0}')
        a(f's_lshl_b32 {sT0}, {sT0}, 10'); a(f's_lshl_b32 {sT2}, {sT2}, 10')
        a(f'v_add_u32 v13, {sT0}, {vL16}'); a(f'v_add_u32 v14, {sT2}, {vL16}')
        a('ds_read_b128 v[128:131], v13'); a('ds_read_b128 v[132:135], v14')
        a(f's_mul_i32 {sT1}, {sHEAD}, {WQH}'); a(f's_add_u32 {sT1}, {sT1}, {G0 + WQ}')
        a(f's_add_u32 {sT0}, {sT0}, {sT1}'); a(f's_add_u32 {sT2}, {sT2}, {sT1}')
        a('s_waitcnt lgkmcnt(0)')
        a(f'buffer_store_dwordx4 v[128:131], {vL16}, {WS}, {sT0} offen sc1')
        a(f'buffer_store_dwordx4 v[132:135], {vL16}, {WS}, {sT2} offen sc1')
        a('s_barrier')
        a(f'v_add_u32 v15, {M_CSQKV}, {vCS}')
        run_list(a, s.cs_read_items(112, 0, 'csk', 'v15') + s.cs_read_items(128, 128, 'csv', 'v15'))
        a('v_mov_b32 v10, v234'); a('v_mov_b32 v11, v235')
        a(f's_branch {Lj}')
        a.label(L1p)
        a.vm = []; a.lg = []
        kvloop(True)
        a('s_barrier')
        a.label(Lj)
        a.vm = []; a.lg = []
        g.stamp('p1 KV gemm')
        a(f'v_mul_f32 {VC}, {fbits(LOG2E)}, {RS}')
        a.wait_lg0()
        a(f's_lshl_b32 s90, {sM}, 7'); a(f's_mul_i32 s91, {sW}, {8*3584}'); a(f's_add_u32 s90, s90, s91')
        a(f's_lshl_b32 s91, {sW}, 10')
        wa = Side([s.dma_item(WG, vD3584, 's90', 4*n*8*3584, 's91', L_WG + 4*n*1024, 'WA') for n in range(10)] if PFA else [])
        L = s.qk_list(AK, 112, 10, VC, 144, 80, 96, 192, 176, 184, 152)
        LV = []
        for r in range(0, 16, 2):
            LV.append(f'v_pk_fma_f32 v[{AV+r}:{AV+r+1}], v[{128+r}:{129+r}], v[10:11], v[{AV+r}:{AV+r+1}] op_sel_hi:[1,0,1]')
        for r in range(0, 16, 2):
            LV.append(f'v_pk_mul_f32 v[{AV+r}:{AV+r+1}], v[{AV+r}:{AV+r+1}], v[10:11] op_sel:[0,1] op_sel_hi:[1,1]')
        LV.append(f'v_cndmask_b32 v{AV+12}, v{AV+12}, 1.0, {sUP}')
        for i in range(8):
            LV.append(f'v_cvt_pk_bf16_f32 v{128+i}, v{AV+2*i}, v{AV+2*i+1}')
        for gq in range(4):
            LV.append(f'v_xor_b32 v{136+(gq&1)}, {(2*gq) << 3}, {vVIW}')
            LV.append(lambda gq=gq: a.ds(f'ds_write_b64 v{136+(gq&1)}, v[{128+2*gq}:{129+2*gq}]', 'vw'))
        im = max(i for i, it in enumerate(L) if isinstance(it, str) and it.startswith('v_mfma'))
        L = L[:im+1] + LV + L[im+1:]
        for T in range(2):
            for gq in range(4):
                R = 176 + 8*T + 2*gq
                L.append(f'v_xor_b32 v{156+(gq&1)}, {(8*T+2*gq) << 3}, {vPHIW}')
                L.append(lambda R=R, gq=gq: a.ds(f'ds_write_b64 v{156+(gq&1)}, v[{R}:{R+1}]', 'pw'))
        run_list(a, L, wa, 22)
        a(f's_waitcnt vmcnt({10 if PFA else 0}) lgkmcnt(0)')
        a.lg = []
        a('s_barrier')
        g.stamp('p1 phi/v written')
        s.pretouch('s85', 16)
        def kv():
            def rr(kt, reg, tag):
                a.ds(f'ds_read_b64_tr_b16 v[{reg}:{reg+1}], {vPA0} offset:{kt*2048}', tag)
                a.ds(f'ds_read_b64_tr_b16 v[{reg+2}:{reg+3}], {vPA1} offset:{kt*2048}', tag)
                a.ds(f'ds_read_b64_tr_b16 v[{reg+4}:{reg+5}], {vVB0} offset:{kt*1024}', tag)
                a.ds(f'ds_read_b64_tr_b16 v[{reg+6}:{reg+7}], {vVB1} offset:{kt*1024}', tag)
            KS = (64, 72, 216)
            rr(0, KS[0], ('k', 0)); rr(1, KS[1], ('k', 1))
            for kt in range(8):
                if kt+2 < 8: rr(kt+2, KS[(kt+2) % 3], ('k', kt+2))
                a.wait_lg(('k', kt))
                b = KS[kt % 3]
                c = '0' if kt == 0 else 'v[80:95]'
                a(f'v_mfma_f32_32x32x16_bf16 v[80:95], v[{b+4}:{b+7}], v[{b}:{b+3}], {c}')
            a(f's_lshl_b32 {sT0}, {sW}, 7'); a(f's_add_u32 {sT0}, {sT0}, {sKV}'); a(f's_add_u32 {sT1}, {sT0}, 4096')
            a('s_mov_b32 s78, 0x80808080'); a('s_mov_b32 s79, 0x80808080')
            for r in range(16):
                a(f'v_cndmask_b32 v{80+r}, v{80+r}, 1.0, s[78:79]')
            for gq in range(4):
                for r in range(4):
                    so = sT0 if gq < 2 else sT1
                    a(f'buffer_atomic_add_f32 v{80+4*gq+r}, {vKVO}, {WS}, {so} offen offset:{((8*gq+r)*256) % 4096} sc1')
        g.wave_in(0, 2, kv)
        def csq():
            Lq0 = a.newlabel('Lq0')
            a(f's_cmp_lg_u32 {sL}, 0'); a(f's_cbranch_scc1 {Lq0}')
            a(f'v_add_u32 v209, {2*28672}, {vTR64}')
            a(f's_mov_b32 {sT1}, {M_CSQKV + 256}')
            s.colsum(rd64(0, 'v209'), 28, 112, sT1, va='v152')
            a.label(Lq0)
        g.wave_only(2, csq)
        a.lg = []
        a.vm = []
        a.lg = []
        g.stamp('p1 kv issued')
        Lcq = a.newlabel('Lcq')
        a(f's_cmp_eq_u32 {sL}, 0'); a(f's_cbranch_scc1 {Lcq}')
        for it in s.cs_read_items(112, 256, 'csq0', 'v15'): it()
        a.label(Lcq)
        a.lg = []
        a(f'v_add_u32 v208, {L_WQ}, {vTR64}')
        QS = (64, 68, 72)
        rq(0, QS[0], ('f', 0)); rq(1, QS[1], ('f', 1))
        for ks in range(28):
            if ks+2 < 28: rq(ks+2, QS[(ks+2) % 3], ('f', ks+2))
            a.wait_lg(('f', ks))
            b = QS[ks % 3]
            cq = '0' if ks == 0 else f'v[{AQ}:{AQ+15}]'
            a(f'v_mfma_f32_32x32x16_bf16 v[{AQ}:{AQ+15}], v[{b}:{b+3}], a[{4*ks}:{4*ks+3}], {cq}')
        a.wait_lg0()
        a('s_barrier')
        Lcr = a.newlabel('Lcr')
        a(f's_cmp_lg_u32 {sL}, 0'); a(f's_cbranch_scc1 {Lcr}')
        run_list(a, s.cs_read_items(112, 256, 'csq', 'v15'))
        a.wait_lg0()
        a.label(Lcr)
        g.stamp('p1 q gemm')
        qpost = lambda: s.qk_list(AQ, 112, 10, VC, 144, 80, 96, 192, 160, 168, 152)
        Lq = a.newlabel('Lq23'); Lqe = a.newlabel('Lqe')
        a(f's_cmp_ge_u32 {sW}, 2'); a(f's_cbranch_scc1 {Lq}')
        a.vm = []
        s.resid_loads(224, sXIN, track=False, raw_l0=True)
        s.dest_pretouch(sX1, sST1)
        if G.CPF: g.wave_only(1, lambda: g.code_prefetch('L_code_p2b', 'L_code_p4', v='v14'))
        Lp = a.newlabel('Lkvp'); Ld = a.newlabel('Lkvd'); Lc = a.newlabel('Lkvc')
        a(f's_lshl_b32 {sT0}, {sW}, 7'); a(f's_add_u32 {sT0}, {sT0}, {sKV}'); a(f's_add_u32 {sT1}, {sT0}, 4096')
        a('s_mov_b32 s78, 0xaaaaaaaa'); a('s_mov_b32 s79, 0xaaaaaaaa')
        a(f's_mov_b32 {sT7}, 0')
        def kvloads():
            for q in range(4):
                so = sT0 if q < 2 else sT1
                a(f'buffer_load_dwordx4 v[{64+4*q}:{67+4*q}], {vKVR}, {WS}, {so} offen offset:{(q*2048) % 4096} sc1')
        Lq_ = qpost()
        cut = int(len(Lq_)*float(os.environ.get('ASYNC', '0.8')))
        run_list(a, Lq_[:cut] + [kvloads] + Lq_[cut:])
        g.stamp('p1 kv counted')
        a(f's_branch {Lc}')
        a.label(Lp)
        kvloads()
        a.label(Lc)
        a('s_waitcnt vmcnt(0)')
        for q in range(1, 4):
            a(f'v_sub_f32 v{96+q}, 0x41800000, v{67+4*q}')
        a('v_sub_f32 v96, 0x41800000, v67')
        a('v_or_b32 v96, v96, v97'); a('v_or_b32 v98, v98, v99'); a('v_or_b32 v96, v96, v98')
        a('v_lshlrev_b32 v96, 1, v96')
        a('v_cmp_ne_u32 vcc, 0, v96')
        a(f's_add_u32 {sT7}, {sT7}, 1')
        a('s_and_b64 vcc, vcc, s[78:79]')
        a('s_cmp_eq_u64 vcc, 0'); a(f's_cbranch_scc1 {Ld}')
        a(f's_cmp_lt_u32 {sT7}, {G.TIMEOUT}'); a(f's_cbranch_scc1 {Lp}')
        a(f's_mov_b32 {sTO}, 1')
        a.label(Ld)
        g.stamp('kv hop done')
        for q in range(4):
            a(f'v_cvt_pk_bf16_f32 v{96+2*q}, v{64+4*q}, v{65+4*q}'); a(f'v_cvt_pk_bf16_f32 v{97+2*q}, v{66+4*q}, v{67+4*q}')
        for q in range(4):
            a(f'ds_write_b64 {vKVW}, v[{96+2*q}:{97+2*q}] offset:{q*128}')
        a('s_waitcnt lgkmcnt(0)')
        a(f's_branch {Lqe}')
        a.label(Lq)
        a.vm = []
        a(f's_sub_u32 {sT0}, {sW}, 2')
        a(f's_lshl_b32 s86, {sCT}, 7'); a(f's_mul_i32 {sT1}, {sT0}, {8*896}'); a(f's_add_u32 s86, s86, {sT1}')
        a(f's_lshl_b32 s87, {sT0}, 10')
        a(f's_lshl_b32 s88, {sM}, 7'); a(f's_mul_i32 {sT1}, {sT0}, {8*3584}'); a(f's_add_u32 s88, s88, {sT1}')
        items = [s.dma_item(WO, vD896, 's86', 2*n*8*896, 's87', L_WO + 2*n*1024, 'W1') for n in range(28)]
        if not PFA: items += [s.dma_item(WG, vD3584, 's88', 2*n*8*3584, 's87', L_WG + 2*n*1024, 'W1') for n in range(20)]
        items += [s.dma_item(WU, vD3584, 's88', 2*n*8*3584, 's87', L_WU + 2*n*1024, 'W1', track=False) for n in range(14 if LATEU else 28)]
        s.resid_loads(224, sXIN, track=False, raw_l0=True)
        s.dest_pretouch(sX1, sST1)
        run_list(a, qpost(), Side(items), 2)
        a.label(Lqe)
        a.vm = []; a.lg = []
        a('s_barrier')
        g.stamp('kv frags ready')

    def p2a(s):
        a = s.a; g = s.g
        a.c('==== P2a')
        a(f'v_add_u32 v13, {L_KVF}, {vL16}')
        for k in range(4):
            a.ds(f'ds_read_b128 v[{96+4*k}:{99+4*k}], v13 offset:{k*1024}', ('kf', k))
        for k in range(4):
            a.wait_lg(('kf', k))
            c = '0' if k == 0 else 'v[16:31]'
            a(f'v_mfma_f32_32x32x16_bf16 v[16:31], v[{96+4*k}:{99+4*k}], v[{160+4*k}:{163+4*k}], {c}')
        a('v_mov_b32 v32, v28'); a('v_mov_b32 v33, v28')
        a('v_permlane32_swap_b32 v32, v33')
        a(f'v_add_f32 v33, {fbits(1e-6)}, v33')
        a('v_rcp_f32 v34, v33')
        for r in range(0, 16, 2):
            a(f'v_pk_mul_f32 v[{16+r}:{17+r}], v[{16+r}:{17+r}], v[34:35] op_sel_hi:[1,0]')
        for r in range(12, 16):
            a(f'v_cndmask_b32 v{16+r}, v{16+r}, 0, {sUP}')
        for i in range(8):
            a(f'v_cvt_pk_bf16_f32 v{40+i}, v{16+2*i}, v{16+2*i+1}')
        a(f'buffer_store_dwordx4 v[40:43], {vL16}, {WS}, s85 offen {STSC}')
        a(f'buffer_store_dwordx4 v[44:47], {vL16}, {WS}, s85 offen offset:1024 {STSC}')
        g.set_flag(s.fl(1))
        def svc():
            Lx = a.newlabel('Lx'); a(f's_cmp_lg_u32 {sL}, 0'); a(f's_cbranch_scc1 {Lx}')
            a(f's_lshl_b32 {sT0}, {sHEAD}, 7'); a(f's_add_u32 {sT0}, {sT0}, {KVC}')
            a('v_mov_b32 v10, 1'); a('s_mov_b64 exec, 1')
            a(f'buffer_atomic_add v10, off, {WS}, {sT0} sc1')
            a('s_mov_b64 exec, -1')
            a.label(Lx)
        g.wave_only(3, svc)
        g.stamp('p2a done')

    def tile_coords(s):
        a = s.a
        a(f's_and_b32 {sT1}, {sW}, 1'); a(f's_lshl_b32 {sT2}, {sTQ}, 1'); a(f's_add_u32 {sT1}, {sT1}, {sT2}')
        a(f's_lshr_b32 {sT2}, {sW}, 1'); a(f's_lshl_b32 {sT3}, {sCT}, 1'); a(f's_add_u32 {sT2}, {sT2}, {sT3}')

    def resid_loads(s, dst, sX, track=True, raw_l0=False):
        a = s.a
        s.tile_coords()
        f = a.vmem if track else (lambda t, tag: a(t))
        Lr = Le = None
        if raw_l0:
            Lr = a.newlabel('Lrr'); Le = a.newlabel('Lre')
            a(f's_cmp_eq_u32 {sL}, 0'); a(f's_cbranch_scc1 {Lr}')
        a(f's_mul_i32 {sT4}, {sT1}, 28672'); a(f's_lshl_b32 {sT2}, {sT2}, 11'); a(f's_add_u32 {sT4}, {sT4}, {sT2}')
        a(f's_add_u32 {sT4}, {sT4}, {sX}')
        f(f'buffer_load_dwordx4 v[{dst}:{dst+3}], {vL16}, {WS}, {sT4} offen {LDSC}', 'res')
        f(f'buffer_load_dwordx4 v[{dst+4}:{dst+7}], {vL16}, {WS}, {sT4} offen offset:1024 {LDSC}', 'res')
        if raw_l0:
            a(f's_branch {Le}')
            a.label(Lr)
            a(f's_lshl_b32 {sT4}, {sG}, 8'); a(f's_lshl_b32 {sT5}, {sT1}, 5'); a(f's_add_u32 {sT4}, {sT4}, {sT5}')
            a(f's_mul_i32 {sT4}, {sT4}, 896'); a(f's_lshl_b32 {sT5}, {sT2}, 6'); a(f's_add_u32 {sT4}, {sT4}, {sT5}')
            a(f'v_and_b32 v13, 31, {vLANE}'); a('v_mul_u32_u24 v13, 896, v13')
            a(f'v_lshrrev_b32 v14, 5, {vLANE}'); a('v_lshl_add_u32 v13, v14, 3, v13')
            for gq in range(4):
                a(f'buffer_load_dwordx2 v[{dst+2*gq}:{dst+2*gq+1}], v13, {AX}, {sT4} offen offset:{16*gq}')
            a.label(Le)

    def dest_pretouch(s, sXdst, sSTdst):
        if not PRET: return
        a = s.a
        s.tile_coords()
        a(f's_mul_i32 {sT4}, {sT1}, 28672'); a(f's_lshl_b32 {sT5}, {sT2}, 11'); a(f's_add_u32 {sT4}, {sT4}, {sT5}')
        a(f's_add_u32 {sT4}, {sT4}, {sXdst}')
        s.pretouch(sT4, 16)
        a(f's_mul_i32 {sT4}, {sT1}, 3584'); a(f's_lshl_b32 {sT5}, {sCT}, 9'); a(f's_add_u32 {sT4}, {sT4}, {sT5}')
        a(f's_add_u32 {sT4}, {sT4}, {sSTdst}')
        s.pretouch(sT4, 4)

    def red_addrs(s, RED, parts):
        a = s.a
        n = len(parts)
        for k, (slot, x) in enumerate(parts):
            a(f's_xor_b32 {sT0}, {sW}, {x}'); a(f's_mul_i32 {sT0}, {sT0}, {n}'); a(f's_add_u32 {sT0}, {sT0}, {k}')
            a(f's_lshl_b32 {sT0}, {sT0}, 12'); a(f's_add_u32 {sT0}, {sT0}, {RED}')
            a(f'v_add_u32 v{112+k}, {sT0}, {vL16}')
        a(f's_mul_i32 {sT0}, {sW}, {n*4096}'); a(f's_add_u32 {sT0}, {sT0}, {RED}')
        a(f'v_add_u32 v116, {sT0}, {vL16}')

    def red_write(s, ACC, RED, parts=(1, 2, 3), side=None):
        a = s.a
        for k, (slot, x) in enumerate(parts):
            for q in range(4):
                R = ACC + 16*slot + 4*q
                a.ds(f'ds_write_b128 v{112+k}, v[{R}:{R+3}] offset:{q*1024}', 'rw')
                if side is not None and q % 2 == 1: side.emit(a)
        a.wait_lg0()
        a('s_barrier')

    def red_list(s, ACC, resid, n=3):
        a = s.a
        T = ACC + 16
        L = []
        for k in range(n):
            for q in range(4):
                R = T + 16*k + 4*q
                L.append(lambda R=R, k=k, q=q: a.ds(f'ds_read_b128 v[{R}:{R+3}], v116 offset:{k*4096+q*1024}', ('rr', k)))
        U = ACC + 64
        for i in range(8):
            L += [f'v_lshlrev_b32 v{U+2*i}, 16, v{resid+i}', f'v_and_b32 v{U+2*i+1}, 0xffff0000, v{resid+i}']
        pr = lambda b, r: f'v[{b+r}:{b+r+1}]'
        for r in range(0, 16, 2):
            L.append(f'v_pk_add_f32 {pr(ACC,r)}, {pr(ACC,r)}, {pr(U,r)}')
        for k in range(n):
            L.append(lambda k=k: a.wait_lg(('rr', k)))
            for r in range(0, 16, 2):
                L.append(f'v_pk_add_f32 {pr(ACC,r)}, {pr(ACC,r)}, {pr(T+16*k,r)}')
        PK = ACC + 48 + 0
        for i in range(8):
            L.append(f'v_cvt_pk_bf16_f32 v{PK+i}, v{ACC+2*i}, v{ACC+2*i+1}')
        return L

    def store_x_list(s, ACC, sXdst, sSTdst):
        a = s.a
        PK = ACC + 48
        L = []
        def addr():
            s.tile_coords()
            a(f's_mul_i32 {sT4}, {sT1}, 28672'); a(f's_lshl_b32 {sT5}, {sT2}, 11'); a(f's_add_u32 {sT4}, {sT4}, {sT5}')
            a(f's_add_u32 {sT4}, {sT4}, {sXdst}')
            a.vmem(f'buffer_store_dwordx4 v[{PK}:{PK+3}], {vL16}, {WS}, {sT4} offen {STSC}', 'xs')
            a.vmem(f'buffer_store_dwordx4 v[{PK+4}:{PK+7}], {vL16}, {WS}, {sT4} offen offset:1024 {STSC}', 'xs')
        L.append(addr)
        pr = lambda b, r: f'v[{b+r}:{b+r+1}]'
        L += [f'v_pk_add_f32 v[12:13], {pr(ACC,0)}, {pr(ACC,2)}', f'v_pk_mul_f32 v[14:15], {pr(ACC,0)}, {pr(ACC,0)}']
        L.append(f'v_pk_fma_f32 v[14:15], {pr(ACC,2)}, {pr(ACC,2)}, v[14:15]')
        for r in range(4, 16, 2):
            L += [f'v_pk_add_f32 v[12:13], v[12:13], {pr(ACC,r)}', f'v_pk_fma_f32 v[14:15], {pr(ACC,r)}, {pr(ACC,r)}, v[14:15]']
        L += ['v_add_f32 v12, v12, v13', 'v_add_f32 v14, v14, v15', 'v_mov_b32 v13, v12', 'v_mov_b32 v15, v14',
              'v_permlane32_swap_b32 v12, v13', 'v_permlane32_swap_b32 v14, v15',
              'v_add_f32 v12, v12, v13', 'v_add_f32 v13, v14, v15']
        def st():
            a(f's_mul_i32 {sT4}, {sT1}, 3584'); a(f's_lshl_b32 {sT5}, {sCT}, 9'); a(f's_add_u32 {sT4}, {sT4}, {sT5}')
            a(f's_lshr_b32 {sT5}, {sW}, 1'); a(f's_lshl_b32 {sT5}, {sT5}, 3'); a(f's_add_u32 {sT4}, {sT4}, {sT5}')
            a(f's_add_u32 {sT4}, {sT4}, {sSTdst}')
            a('s_mov_b64 exec, 0xffffffff')
            a.vmem(f'buffer_store_dwordx2 v[12:13], {vL16}, {WS}, {sT4} offen {STSC}', 'xs')
            a('s_mov_b64 exec, -1')
        L.append(st)
        return L

    def store_out_list(s, ACC):
        a = s.a
        PK = ACC + 48
        L = []
        for e in range(2):
            L += [f'v_permlane32_swap_b32 v{PK+4*e}, v{PK+4*e+2}', f'v_permlane32_swap_b32 v{PK+4*e+1}, v{PK+4*e+3}']
        def st():
            s.tile_coords()
            a(f's_lshl_b32 {sT4}, {sG}, 8'); a(f's_lshl_b32 {sT5}, {sT1}, 5'); a(f's_add_u32 {sT4}, {sT4}, {sT5}')
            a(f's_mul_i32 {sT4}, {sT4}, 896'); a(f's_lshl_b32 {sT5}, {sT2}, 6'); a(f's_add_u32 {sT4}, {sT4}, {sT5}')
            a(f'v_and_b32 v12, 31, {vLANE}'); a('v_mul_u32_u24 v12, 896, v12')
            a(f'v_lshrrev_b32 v13, 5, {vLANE}'); a('v_lshl_add_u32 v12, v13, 4, v12')
            a(f'buffer_store_dwordx4 v[{PK}:{PK+3}], v12, {OUT}, {sT4} offen {OUTSC}')
            a(f'buffer_store_dwordx4 v[{PK+4}:{PK+7}], v12, {OUT}, {sT4} offen offset:32 {OUTSC}')
        L.append(st)
        return L

    def tile_addrs(s, sbase):
        a = s.a
        a(f's_lshr_b32 {sT0}, {sW}, 1'); a(f's_lshl_b32 {sT0}, {sT0}, 6')
        a(f'v_xor_b32 v14, {sT0}, {vTR0}')
        a(f'v_add_u32 v14, {sbase}, v14')
        a('v_xor_b32 v15, 64, v14')

    def p2b(s):
        a = s.a; g = s.g
        a.c('==== P2b')
        a.rawlabel('L_code_p2b')
        a(f's_lshr_b32 {sT5}, {sW}, 1'); a(f's_mul_i32 {sT5}, {sT5}, 28672'); a(f's_add_u32 {sT5}, {sT5}, {L_WO}')
        s.tile_addrs(sT5)
        a(f'v_lshrrev_b32 v12, 5, {vLANE}'); a('v_lshlrev_b32 v12, 9, v12')
        a('v_sub_u32 v13, v15, v12'); a('v_sub_u32 v12, v14, v12')
        a(f's_lshr_b32 {sT0}, {sTQ}, 1'); a(f's_lshl_b32 {sT0}, {sT0}, 4'); a(f's_lshl_b32 s81, 0xffff, {sT0}')
        a(f's_and_b32 {sT0}, {sW}, 1'); a(f's_lshl_b32 {sT1}, {sTQ}, 1')
        a(f's_add_u32 {sT0}, {sT0}, {sT1}'); a(f's_lshl_b32 {sT0}, {sT0}, 15'); a(f's_add_u32 {sT0}, {sT0}, {sO}')
        a(f's_lshr_b32 {sT1}, {sW}, 1'); a(f's_lshl_b32 {sT1}, {sT1}, 14'); a(f's_add_u32 s82, {sT0}, {sT1}')
        s.red_addrs(RED2, ((1, 2),))
        g.wait_flags(s.fl(1), 's81', vt='v10', va='v11')
        a.vm = []
        g.stamp('p2b hop done')
        def oload(i):
            if i % 4 == 0: a(f's_add_u32 s84, s82, {(i//4)*4096}')
            a.vmem(f'buffer_load_dwordx4 a[{4*i}:{4*i+3}], {vL16}, {WS}, s84 offen offset:{(i%4)*1024} {LDSC}', ('o', i))
        ACC = 16; FS = (80, 88, 104)
        def rd(i, reg, tag):
            off = (28*(i >> 1) + 16*(i & 1))*128
            for sl in range(2):
                va = ('v14', 'v15')[sl]
                vb = ('v12', 'v13')[sl] if (i & 1) else va
                a.ds(f'ds_read_b64_tr_b16 v[{reg+4*sl}:{reg+4*sl+1}], {va} offset:{off}', tag)
                a.ds(f'ds_read_b64_tr_b16 v[{reg+4*sl+2}:{reg+4*sl+3}], {vb} offset:{off+8*128}', tag)
        OD = int(os.environ.get('OD', '6'))
        for i in range(OD): oload(i)
        rd(0, FS[0], ('f', 0)); rd(1, FS[1], ('f', 1))
        for i in range(16):
            if i+2 < 16: rd(i+2, FS[(i+2) % 3], ('f', i+2))
            a.wait_lg(('f', i))
            a.wait_vm(('o', i))
            b0 = FS[i % 3]
            for sa in range(2):
                R = ACC + 16*sa
                c = '0' if i == 0 else f'v[{R}:{R+15}]'
                a(f'v_mfma_f32_32x32x16_bf16 v[{R}:{R+15}], v[{b0+4*sa}:{b0+4*sa+3}], a[{4*i}:{4*i+3}], {c}')
                if sa == 0 and i + OD < 16: oload(i + OD)
        g.stamp('p2b gemm')
        s.red_write(ACC, RED2, parts=((1, 2),))
        run_list(a, s.red_list(ACC, 224, n=1) + s.store_x_list(ACC, sX1, sST1))
        g.set_flag(s.fl(2))
        if G.CPF: g.wave_only(1, lambda: g.code_prefetch('L_code_p4', 'L_code_end', v='v14'))
        def late():
            a(f's_sub_u32 {sT0}, {sW}, 1')
            a(f's_lshl_b32 s90, {sM}, 7'); a(f's_mul_i32 s91, {sT0}, {8*3584}'); a(f's_add_u32 s90, s90, s91')
            a(f's_lshl_b32 s91, {sT0}, 10')
            def grp(srd, base, blk0, nblk):
                for n in range((nblk + 2)//3):
                    lastpartial = 3*n + 2 >= nblk
                    if lastpartial:
                        Lx = a.newlabel('Lx'); a(f's_cmp_gt_u32 {sW}, {nblk - 3*n}'); a(f's_cbranch_scc1 {Lx}')
                    s.dma_item(srd, vD3584, 's90', (blk0+3*n)*8*3584, 's91', base + (blk0+3*n)*1024, 'late', track=False)()
                    if lastpartial: a.label(Lx)
            if LATEU: grp(WU, L_WU, 28, 28)
            grp(WG, L_WG, 40, 16)
        g.wave_in(1, 4, late)
        a.vm = []
        g.stamp('p2b done')

    def gelu_list(s, G, U, csg, csu, NM, K, T, PK, packed):
        L = []
        pr = lambda b, r: f'v[{b+r}:{b+r+1}]'
        vA, vB, vV = f'v{K}', f'v{K+1}', f'v{K+2}'
        if packed:
            nm = int(NM[1:]); nmp = f'v[{nm & ~1}:{(nm & ~1)+1}]'; ns = nm & 1
            AB = f'v[{K}:{K+1}]'; VV = f'v[{K+2}:{K+3}]'
            for r in range(0, 16, 2): L.append(f'v_pk_fma_f32 {pr(G,r)}, {pr(csg,r)}, {nmp}, {pr(G,r)} op_sel:[0,{ns},0] op_sel_hi:[1,{ns},1]')
            for r in range(0, 16, 2): L.append(f'v_pk_fma_f32 {pr(U,r)}, {pr(csu,r)}, {nmp}, {pr(U,r)} op_sel:[0,{ns},0] op_sel_hi:[1,{ns},1]')
            for r in range(0, 16, 2): L.append(f'v_pk_mul_f32 {pr(T,r)}, {pr(G,r)}, {pr(G,r)}')
            for r in range(0, 16, 2): L.append(f'v_pk_fma_f32 {pr(T,r)}, {pr(T,r)}, {AB}, {AB} op_sel:[0,1,0] op_sel_hi:[1,1,0]')
            for r in range(0, 16, 2): L.append(f'v_pk_mul_f32 {pr(T,r)}, {pr(T,r)}, {pr(G,r)}')
            for r in range(0, 16, 2):
                L += [f'v_exp_f32 v{T+r}, v{T+r}', f'v_exp_f32 v{T+r+1}, v{T+r+1}', f'v_pk_mul_f32 {pr(U,r)}, {pr(U,r)}, {pr(G,r)}']
            for r in range(0, 16, 2): L.append(f'v_pk_fma_f32 {pr(T,r)}, {pr(T,r)}, {VV}, {VV} op_sel:[0,0,0] op_sel_hi:[1,0,0]')
            for r in range(16): L.append(f'v_rcp_f32 v{T+r}, v{T+r}')
            for r in range(0, 16, 2): L.append(f'v_pk_mul_f32 {pr(U,r)}, {pr(U,r)}, {pr(T,r)}')
        else:
            for r in range(16): L.append(f'v_fmac_f32 v{G+r}, {NM}, v{csg+r}')
            for r in range(16): L.append(f'v_fmac_f32 v{U+r}, {NM}, v{csu+r}')
            for r in range(16): L.append(f'v_mul_f32 v{T+r}, v{G+r}, v{G+r}')
            for r in range(16): L.append(f'v_fma_f32 v{T+r}, v{T+r}, {vB}, {vA}')
            for r in range(16): L.append(f'v_mul_f32 v{T+r}, v{T+r}, v{G+r}')
            for r in range(16):
                L += [f'v_exp_f32 v{T+r}, v{T+r}', f'v_mul_f32 v{U+r}, v{U+r}, v{G+r}']
            for r in range(16): L.append(f'v_fma_f32 v{T+r}, v{T+r}, {vV}, {vV}')
            for r in range(16): L.append(f'v_rcp_f32 v{T+r}, v{T+r}')
            for r in range(16): L.append(f'v_mul_f32 v{U+r}, v{U+r}, v{T+r}')
        for i in range(8):
            L.append(f'v_cvt_pk_bf16_f32 v{PK+i}, v{U+2*i}, v{U+2*i+1}')
        return L

    def p3(s):
        a = s.a; g = s.g
        a.c('==== P3')
        a(f'v_add_u32 v12, {L_WU}, {vTR0}'); a(f'v_add_u32 v13, {L_WU}, {vTR1}')
        for b in range(2):
            a(f's_lshl_b32 {sT0}, {sW}, 1'); a(f's_add_u32 {sT0}, {sT0}, {b}')
            a(f's_mul_i32 s{82+b}, {sT0}, 28672'); a(f's_add_u32 s{82+b}, s{82+b}, {sX1}')
            a(f's_mul_i32 s{86+b}, {sT0}, 3584'); a(f's_add_u32 s{86+b}, s{86+b}, {sST1}')
            a(f's_mul_i32 s{88+b}, {sT0}, 114688'); a(f's_add_u32 s{88+b}, s{88+b}, {sH}')
            a(f's_lshl_b32 {sT1}, {sM}, 12'); a(f's_add_u32 s{88+b}, s{88+b}, {sT1}')
        g.wait_flags(s.fl(2), 0x0fffffff, vt='v10', va='v11', keep_vm=True)
        g.stamp('p3 hop done')
        def xload(ks, b):
            a(f's_add_u32 {sT6}, s{82+b}, {(ks//4)*4096}')
            a.vmem(f'buffer_load_dwordx4 a[{8*ks+4*b}:{8*ks+4*b+3}], {vL16}, {WS}, {sT6} offen offset:{(ks%4)*1024} {LDSC}', ('x', ks, b))
        XD = int(os.environ.get('XD3', '3'))
        for ks in range(XD):
            xload(ks, 0); xload(ks, 1)
        GU = (((16, 32), (48, 64)), ((80, 96), (112, 128)))
        FS = (144, 152, 160)
        NM = ('v10', 'v11'); RS = ('v14', 'v15')
        STR = (168, 184); CSG = 168; CSU = 184; T = 200; PK = 216
        mk_misc = lambda: s.stats_load_items(STR[0], 's86', 'st', 'v234') + s.stats_load_items(STR[1], 's87', 'st', 'v235')
        misc = Side(mk_misc())
        NMs = ('v10', 'v11'); RSs = ('v14', 'v15')
        def stats_side():
            L = [lambda: a.wait_vm('st')]
            L += s.stats_list(STR[0], NMs[0], RSs[0], 'v234', 'v235') + s.stats_list(STR[1], NMs[1], RSs[1], 'v234', 'v235')
            for b in range(2):
                K = (250, 236)[b]
                L += [f'v_mul_f32 v234, {RSs[b]}, {RSs[b]}', f'v_mov_b32 v{K+2}, v{STR[b]+1}',
                      f'v_mul_f32 v{K}, {fbits(C0)}, {RSs[b]}', f'v_mul_f32 v234, v234, {RSs[b]}', f'v_mul_f32 v{K+1}, {fbits(C1)}, v234']
            return Side(L)
        def unit(c, side, per_beat, cs=True):
            vside = stats_side() if (c == 0 and STU0) else None
            vg = vTR0 if c == 0 else vTR1
            vu = 'v12' if c == 0 else 'v13'
            def rdg(ks):
                reg = FS[ks % 3]
                a.ds(f'ds_read_b64_tr_b16 v[{reg}:{reg+1}], {vg} offset:{L_WG+(16*ks)*128}', ('fg', ks))
                a.ds(f'ds_read_b64_tr_b16 v[{reg+2}:{reg+3}], {vg} offset:{L_WG+(16*ks+8)*128}', ('fg', ks))
            def rdu(ks):
                reg = FS[ks % 3] + 4
                a.ds(f'ds_read_b64_tr_b16 v[{reg}:{reg+1}], {vu} offset:{(16*ks)*128}', ('fu', ks))
                a.ds(f'ds_read_b64_tr_b16 v[{reg+2}:{reg+3}], {vu} offset:{(16*ks+8)*128}', ('fu', ks))
            (G_, U_) = GU[c]
            CF = (100, 104, 108)
            def rdc(ks):
                reg = CF[ks % 3]
                a.ds(f'ds_read_b64_tr_b16 v[{reg}:{reg+1}], v233 offset:{(16*ks)*128}', ('fc', ks))
                a.ds(f'ds_read_b64_tr_b16 v[{reg+2}:{reg+3}], v233 offset:{(16*ks+8)*128}', ('fc', ks))
            rdg(0); rdu(0); rdg(1); rdu(1)
            if c == 0 and cs: rdc(0); rdc(1)
            for ks in range(28):
                b0 = FS[ks % 3]
                if c == 0 and ks == (12 if LATEU else 18):
                    a('s_barrier')
                for j, (acc, fo, b) in enumerate(((G_[0], 0, 0), (G_[1], 0, 1), (U_[0], 4, 0), (U_[1], 4, 1))):
                    if c == 0 and j < 2: a.wait_vm(('x', ks, b))
                    if j == 0: a.wait_lg(('fg', ks))
                    if j == 2: a.wait_lg(('fu', ks))
                    cc = '0' if ks == 0 else f'v[{acc}:{acc+15}]'
                    a(f'v_mfma_f32_32x32x16_bf16 v[{acc}:{acc+15}], v[{b0+fo}:{b0+fo+3}], a[{8*ks+4*b}:{8*ks+4*b+3}], {cc}')
                    if j == 0 and ks+2 < 28: rdg(ks+2)
                    if j == 2 and ks+2 < 28: rdu(ks+2)
                    if c == 0 and cs and j == 3:
                        a.wait_lg(('fc', ks))
                        reg = CF[ks % 3]
                        cc2 = '0' if ks == 0 else 'v[200:215]'
                        a(f'v_mfma_f32_32x32x16_bf16 v[200:215], v[{reg}:{reg+3}], v[96:99], {cc2}')
                        if ks+2 < 28: rdc(ks+2)
                    if c == 0:
                        if j in (0, 2) and ks + XD < 28: xload(ks+XD, j >> 1)
                        if STU0:
                            if j == 3 and 6 <= ks <= 20 and ks % 2 == 0: side.emit(a)
                            if ks >= 24: vside.emit_budget(a, 5)
                        elif j == 3 and ks >= 12 and ks % 2 == 0: side.emit(a)
                    else:
                        side.emit_budget(a, per_beat[j])
            side.flush(a)
            if vside is not None: vside.flush(a)
        a(f's_and_b32 {sT0}, {sW}, 1'); a(f's_lshl_b32 {sT0}, {sT0}, 6'); a(f'v_xor_b32 v233, {sT0}, {vTR0}')
        a(f's_lshr_b32 {sT0}, {sW}, 1'); a(f's_mul_i32 {sT0}, {sT0}, {L_WU}'); a(f'v_add_u32 v233, {sT0}, v233')
        for i in range(4): a(f'v_mov_b32 v{96+i}, 0x3f803f80')
        if CS1:
            unit(0, misc, None)
        else:
            Lu1 = a.newlabel('Lu1'); Lue = a.newlabel('Lue')
            a(f's_cmp_lg_u32 {sL}, 0'); a(f's_cbranch_scc1 {Lu1}')
            vm0, lg0 = list(a.vm), list(a.lg)
            unit(0, misc, None)
            vmA, lgA = list(a.vm), list(a.lg)
            a(f's_branch {Lue}')
            a.label(Lu1)
            a.vm, a.lg = list(vm0), list(lg0)
            unit(0, Side(mk_misc()), None, cs=False)
            assert a.vm == vmA and a.lg == lgA, (a.vm, vmA, a.lg, lgA)
            a.label(Lue)
        vm_st = None
        s.resid_loads(224, sX1)
        if not IDLEP:
            if not HSC:
                s.pretouch('s88', 32); s.pretouch('s89', 32)
        g.stamp('p3 gemm 0')
        prel = []
        def csw():
            a(f's_lshl_b32 {sT1}, {sW}, 7'); a(f's_add_u32 {sT1}, {sT1}, {M_CSFF}')
            a(f'v_add_u32 v232, {sT1}, {vCS}')
            a('s_mov_b32 exec_lo, 1'); a('s_mov_b32 exec_hi, 1')
            for gq in range(4):
                a.ds(f'ds_write_b128 v232, v[{200+4*gq}:{203+4*gq}] offset:{32*gq}', 'csw')
            a('s_mov_b64 exec, -1')
        if not CS1:
            csw_body = csw
            def csw():
                Lx = a.newlabel('Lx'); a(f's_cmp_lg_u32 {sL}, 0'); a(f's_cbranch_scc1 {Lx}')
                lg = list(a.lg)
                csw_body()
                a('s_waitcnt lgkmcnt(0)')
                a.rawlabel(Lx)
                a('s_waitcnt lgkmcnt(0)')
                a.lg = []
        csw.cost = 6
        KC = (250, 236)
        if STU0:
            prel.append(csw)
        else:
            prel.append(lambda: a.wait_vm('st'))
            prel += s.stats_list(STR[0], NM[0], RS[0], 'v234', 'v235')
            prel.append(csw)
            prel += s.stats_list(STR[1], NM[1], RS[1], 'v234', 'v235')
            for b in range(2):
                K = KC[b]
                prel += [f'v_mul_f32 v234, {RS[b]}, {RS[b]}', f'v_mov_b32 v{K+2}, v{STR[b]+1}',
                         f'v_mul_f32 v{K}, {fbits(C0)}, {RS[b]}', f'v_mul_f32 v234, v234, {RS[b]}', f'v_mul_f32 v{K+1}, {fbits(C1)}, v234']
        def csb():
            a.wait_lg('csw'); a('s_barrier')
            a(f'v_add_u32 v232, {M_CSFF}, {vCS}')
        csb.cost = 2
        prel.append(csb)
        def epi(c, packed):
            L = []
            if c == 0: L += s.cs_read_items(CSG, 128*c, 'cs', 'v232') + s.cs_read_items(CSU, 256+128*c, 'cs', 'v232')
            L.append(lambda: a.wait_lg('cs'))
            for b in range(2):
                L += s.gelu_list(GU[c][0][b], GU[c][1][b], CSG, CSU, NM[b], KC[b], T, PK, packed)
                def st(b=b):
                    a.vmem(f'buffer_store_dwordx4 v[{PK}:{PK+3}], {vL16}, {WS}, s{88+b} offen offset:{2*c*1024} {HSC or STSC}', 'hs')
                    a.vmem(f'buffer_store_dwordx4 v[{PK+4}:{PK+7}], {vL16}, {WS}, s{88+b} offen offset:{(2*c+1)*1024} {HSC or STSC}', 'hs')
                L.append(st)
            return L
        e0 = epi(0, False)
        a(f's_mul_i32 s90, {sW}, {448*896}'); a(f's_lshl_b32 {sT1}, {sCT}, 7'); a(f's_add_u32 s90, s90, {sT1}')
        a(f's_mul_i32 s85, {sW}, {NRA*1024}'); a(f's_add_u32 s85, s85, {RA}')
        a(f's_mul_i32 s91, {sW}, 28672'); a(f's_cmp_ge_u32 {sW}, 2'); a(f's_cselect_b32 {sT0}, 47104, 0'); a(f's_add_u32 s91, s91, {sT0}')
        a(f's_sub_u32 s91, s91, {NRA*1024}')
        extra = []
        for i in range(NRA):
            f = s.wd_item(i); f.cost = 3; extra.append(f)
        if MAINW:
            def wdt(i):
                def f():
                    a(f's_add_u32 {sT0}, s67, {16*i*896}')
                    a('s_mov_b64 exec, ' + ('0xffff' if i < 5 else '0x3ff'))
                    a.vmem(f'buffer_load_dword {vDUM}, v233, {WD}, {sT0} offen', 'tw')
                    a('s_mov_b64 exec, -1')
                f.cost = 2
                return f
            a(f'v_mul_u32_u24 v233, 896, {vLANE}')
            a(f's_mul_i32 {sT0}, {sTQ}, 90'); a(f's_add_u32 {sT0}, {sT0}, 88'); a(f's_mul_i32 {sT0}, {sT0}, 896'); a(f's_add_u32 s67, {sT0}, s90')
            extra += [wdt(i) for i in range(6)]
        step = (len(e0) - 20)//len(extra)
        out = []
        for i, f in enumerate(extra):
            out += e0[i*step:(i+1)*step] + [f]
        e0 = out + e0[len(extra)*step:]
        e0 = prel + e0 + s.cs_read_items(CSG, 128, 'cs', 'v232') + s.cs_read_items(CSU, 256+128, 'cs', 'v232')
        unit(1, Side(e0), (BUD_A, BUD_B, BUD_A, BUD_B))
        g.stamp('p3 gemm 1')
        a('s_barrier')
        NA = NRA + int(os.environ.get('NE1', '12'))
        e1 = epi(1, True)
        run_list(a, e1, Side([s.wd_item(i) for i in range(NRA, NA)]), max(1, len(e1)//(NA-NRA+2)))
        g.stamp('p3 epi 1')
        s.p3_tail(NA)

    def p3t(s):
        a = s.a; g = s.g
        a.c('==== P3')
        a(f'v_add_u32 v12, {L_WU}, {vTR0}'); a(f'v_add_u32 v13, {L_WU}, {vTR1}')
        for b in range(2):
            a(f's_lshl_b32 {sT0}, {sW}, 1'); a(f's_add_u32 {sT0}, {sT0}, {b}')
            a(f's_mul_i32 s{82+b}, {sT0}, 28672'); a(f's_add_u32 s{82+b}, s{82+b}, {sX1}')
            a(f's_mul_i32 s{86+b}, {sT0}, 3584'); a(f's_add_u32 s{86+b}, s{86+b}, {sST1}')
            a(f's_mul_i32 s{88+b}, {sT0}, 114688'); a(f's_add_u32 s{88+b}, s{88+b}, {sH}')
            a(f's_lshl_b32 {sT1}, {sM}, 12'); a(f's_add_u32 s{88+b}, s{88+b}, {sT1}')
        a(f's_and_b32 {sT0}, {sW}, 1'); a(f's_lshl_b32 {sT0}, {sT0}, 6'); a(f'v_xor_b32 v233, {sT0}, {vTR0}')
        a(f's_lshr_b32 {sT0}, {sW}, 1'); a(f's_mul_i32 {sT0}, {sT0}, {L_WU}'); a(f'v_add_u32 v233, {sT0}, v233')
        for i in range(4): a(f'v_mov_b32 v{96+i}, 0x3f803f80')
        g.wait_flags(s.fl(2), 0x0fffffff, vt='v10', va='v11', keep_vm=True)
        g.stamp('p3 hop done')
        def xload(ks, b):
            a(f's_add_u32 {sT6}, s{82+b}, {(ks//4)*4096}')
            a.vmem(f'buffer_load_dwordx4 a[{8*ks+4*b}:{8*ks+4*b+3}], {vL16}, {WS}, {sT6} offen offset:{(ks%4)*1024} {LDSC}', ('x', ks, b))
        XD = int(os.environ.get('XD3', '3'))
        for ks in range(XD): xload(ks, 0)
        GU = (((16, 32), (48, 64)), ((80, 96), (112, 128)))
        FRG = (('v', 144), ('v', 148), ('v', 152), ('v', 156), ('a', 224), ('a', 228), ('a', 232), ('a', 236), ('v', 160), ('v', 164), ('a', 240), ('a', 244))
        NM = ('v10', 'v11'); RS = ('v14', 'v15'); KC = (250, 236)
        CSG = 168; CSU = 184; T = 200; PK = 216
        def kconst(b, src):
            K = KC[b]
            return [f'v_mul_f32 v234, {RS[b]}, {RS[b]}', f'v_mov_b32 v{K+2}, v{src+1}',
                    f'v_mul_f32 v{K}, {fbits(C0)}, {RS[b]}', f'v_mul_f32 v234, v234, {RS[b]}', f'v_mul_f32 v{K+1}, {fbits(C1)}, v234']
        def rd(ks, t):
            c, mat = t >> 1, t & 1
            kind, reg = FRG[4*(ks % 3) + t]
            va = ((vTR0, vTR1), ('v12', 'v13'))[mat][c]
            base = L_WG if mat == 0 else 0
            a.ds(f'ds_read_b64_tr_b16 {kind}[{reg}:{reg+1}], {va} offset:{base+(16*ks)*128}', ('f', ks, t))
            a.ds(f'ds_read_b64_tr_b16 {kind}[{reg+2}:{reg+3}], {va} offset:{base+(16*ks+8)*128}', ('f', ks, t))
        CF = (100, 104, 108)
        def rdc(ks):
            reg = CF[ks % 3]
            a.ds(f'ds_read_b64_tr_b16 v[{reg}:{reg+1}], v233 offset:{(16*ks)*128}', ('fc', ks))
            a.ds(f'ds_read_b64_tr_b16 v[{reg+2}:{reg+3}], v233 offset:{(16*ks+8)*128}', ('fc', ks))
        B_IN_A = [ks for ks in range(28) if ks % 7 not in (3, 6)]
        def pass_(b, side, budget, cs, side_from=0, vm_items=None):
            nb = [0]
            for ks in range(2):
                for t in range(4): rd(ks, t)
                if cs: rdc(ks)
            for ks in range(28):
                if b == 0 and ks == (12 if LATEU else 18):
                    a('s_barrier')
                for j in range(4):
                    if j == 0: a.wait_vm(('x', ks, b))
                    if j in (0, 2): a.wait_lg(('f', ks, j+1))
                    c, mat = j >> 1, j & 1
                    acc = GU[c][mat][b]
                    kind, reg = FRG[4*(ks % 3) + j]
                    cc = '0' if ks == 0 else f'v[{acc}:{acc+15}]'
                    a(f'v_mfma_f32_32x32x16_bf16 v[{acc}:{acc+15}], {kind}[{reg}:{reg+3}], a[{8*ks+4*b}:{8*ks+4*b+3}], {cc}')
                    if ks+2 < 28: rd(ks+2, j)
                    if b == 0:
                        if j == 0 and ks + XD < 28: xload(ks + XD, 0)
                        if j == 2 and ks in B_IN_A: xload(nb[0], 1); nb[0] += 1
                        if j == 3 and vm_items is not None and ks >= 12 and ks % 2 == 0: vm_items.emit(a)
                        if cs and j == 3:
                            a.wait_lg(('fc', ks))
                            r = CF[ks % 3]
                            cc2 = '0' if ks == 0 else 'v[200:215]'
                            a(f'v_mfma_f32_32x32x16_bf16 v[200:215], v[{r}:{r+3}], v[96:99], {cc2}')
                            if ks+2 < 28: rdc(ks+2)
                    else:
                        if j == 2 and ks < 8: xload(20 + ks, 1)
                    if ks >= side_from: side.emit_budget(a, budget[j])
            side.flush(a)
        def sideA():
            return Side([lambda: a.wait_vm('st')] + s.stats_list(168, NM[0], RS[0], 'v234', 'v235') + kconst(0, 168))
        mkst = lambda: Side(s.stats_load_items(168, 's86', 'st', 'v234'))
        Lu1 = a.newlabel('Lu1'); Lue = a.newlabel('Lue')
        a(f's_cmp_lg_u32 {sL}, 0'); a(f's_cbranch_scc1 {Lu1}')
        vm0, lg0 = list(a.vm), list(a.lg)
        pass_(0, sideA(), (4, 4, 4, 4), True, side_from=24, vm_items=mkst())
        vmA, lgA = list(a.vm), list(a.lg)
        a(f's_branch {Lue}')
        a.label(Lu1)
        a.vm, a.lg = list(vm0), list(lg0)
        pass_(0, sideA(), (4, 4, 4, 4), False, side_from=24, vm_items=mkst())
        assert a.vm == vmA and a.lg == lgA, (a.vm, vmA, a.lg, lgA)
        a.label(Lue)
        s.resid_loads(224, sX1)
        g.stamp('p3 gemm 0')
        def csw():
            Lx = a.newlabel('Lx'); a(f's_cmp_lg_u32 {sL}, 0'); a(f's_cbranch_scc1 {Lx}')
            a(f's_lshl_b32 {sT1}, {sW}, 7'); a(f's_add_u32 {sT1}, {sT1}, {M_CSFF}')
            a(f'v_add_u32 v232, {sT1}, {vCS}')
            a('s_mov_b32 exec_lo, 1'); a('s_mov_b32 exec_hi, 1')
            for gq in range(4):
                a(f'ds_write_b128 v232, v[{200+4*gq}:{203+4*gq}] offset:{32*gq}')
            a('s_mov_b64 exec, -1')
            a.rawlabel(Lx)
            a('s_waitcnt lgkmcnt(0)')
            a.lg = []
            a('s_barrier')
            a(f'v_add_u32 v232, {M_CSFF}, {vCS}')
        csw.cost = 6
        csr = lambda c: s.cs_read_items(CSG, 128*c, 'cs', 'v232') + s.cs_read_items(CSU, 256+128*c, 'cs', 'v232')
        def hstore(b, c):
            def st():
                a.vmem(f'buffer_store_dwordx4 v[{PK}:{PK+3}], {vL16}, {WS}, s{88+b} offen offset:{2*c*1024} {HSC or STSC}', 'hs')
                a.vmem(f'buffer_store_dwordx4 v[{PK+4}:{PK+7}], {vL16}, {WS}, s{88+b} offen offset:{(2*c+1)*1024} {HSC or STSC}', 'hs')
            st.cost = 2
            return st
        def epi(b, packed, tail_reads):
            n0 = 16 if packed else 32
            L = [lambda: a.wait_lg('cs')]
            g0 = s.gelu_list(GU[0][0][b], GU[0][1][b], CSG, CSU, NM[b], KC[b], T, PK, packed)
            L += g0[:n0] + csr(1) + g0[n0:] + [hstore(b, 0)]
            mid = []
            if b == 0:
                mid = s.stats_load_items(16, 's87', 'st1', 'v234')
            L += mid + [lambda: a.wait_lg('cs')]
            g1 = s.gelu_list(GU[1][0][b], GU[1][1][b], CSG, CSU, NM[b], KC[b], T, PK, packed)
            L += g1[:n0] + (csr(0) if tail_reads else []) + g1[n0:] + [hstore(b, 1)]
            if b == 0:
                L += [lambda: a.wait_vm('st1')] + s.stats_list(16, NM[1], RS[1], 'v234', 'v235') + kconst(1, 16)
            return L
        e0 = epi(0, False, True)
        a(f's_mul_i32 s90, {sW}, {448*896}'); a(f's_lshl_b32 {sT1}, {sCT}, 7'); a(f's_add_u32 s90, s90, {sT1}')
        a(f's_mul_i32 s85, {sW}, {NRA*1024}'); a(f's_add_u32 s85, s85, {RA}')
        a(f's_mul_i32 s91, {sW}, 28672'); a(f's_cmp_ge_u32 {sW}, 2'); a(f's_cselect_b32 {sT0}, 47104, 0'); a(f's_add_u32 s91, s91, {sT0}')
        a(f's_sub_u32 s91, s91, {NRA*1024}')
        extra = []
        for i in range(NRA):
            f = s.wd_item(i); f.cost = 3; extra.append(f)
        if MAINW:
            def wdt(i):
                def f():
                    a(f's_add_u32 {sT0}, s67, {16*i*896}')
                    a('s_mov_b64 exec, ' + ('0xffff' if i < 5 else '0x3ff'))
                    a.vmem(f'buffer_load_dword {vDUM}, v233, {WD}, {sT0} offen', 'tw')
                    a('s_mov_b64 exec, -1')
                f.cost = 2
                return f
            a(f'v_mul_u32_u24 v233, 896, {vLANE}')
            a(f's_mul_i32 {sT0}, {sTQ}, 90'); a(f's_add_u32 {sT0}, {sT0}, 88'); a(f's_mul_i32 {sT0}, {sT0}, 896'); a(f's_add_u32 s67, {sT0}, s90')
            extra += [wdt(i) for i in range(6)]
        lo = 60
        step = (len(e0) - lo - 50)//len(extra)
        out = e0[:lo]
        for i, f in enumerate(extra):
            out += e0[lo+i*step:lo+(i+1)*step] + [f]
        e0 = out + e0[lo+len(extra)*step:]
        pass_(1, Side([csw] + csr(0) + e0), (int(os.environ.get('BT_A', '4')), int(os.environ.get('BT_B', '5')))*2, False)
        g.stamp('p3 gemm 1')
        a('s_barrier')
        NA = NRA + int(os.environ.get('NE1', '12'))
        e1 = epi(1, True, False)
        run_list(a, e1, Side([s.wd_item(i) for i in range(NRA, NA)]), max(1, len(e1)//(NA-NRA+2)))
        g.stamp('p3 epi 1')
        s.p3_tail(NA)

    def p3_tail(s, NA):
        a = s.a; g = s.g
        g.set_flag(s.fl(3))
        def ringb():
            for i in range(NA, NSLOT): s.wd_item(i, track=False)()
            nb = NSLOT - NA
            a(f's_sub_u32 {sT0}, {sW}, 1'); a(f's_mul_i32 {sT1}, {sT0}, {8*896}'); a(f's_lshl_b32 {sT3}, {sCT}, 7'); a(f's_add_u32 s86, {sT1}, {sT3}')
            a(f's_lshl_b32 s87, {sT0}, 10')
            for n in range((nb+2)//3):
                partial = 3*n + 2 >= nb
                if partial:
                    Lx = a.newlabel('Lx'); a(f's_cmp_gt_u32 {sW}, {nb - 3*n}'); a(f's_cbranch_scc1 {Lx}')
                s.dma_item(WD, vD896, 's86', (NA+3*n)*8*896, 's87', (NA-NRA+3*n)*1024, 'Wb', track=False)()
                if partial: a.label(Lx)
        g.wave_in(1, 4, ringb)
        a.vm = []
        g.stamp('p3 done')

    def wd_item(s, blk, track=True):
        slot = blk % NSLOT
        return s.dma_item(WD, vD896, 's90', blk*8*896, 's85' if slot < NRA else 's91', slot*1024, ('W', blk), track=track)

    def p4(s):
        a = s.a; g = s.g
        a.c('==== P4')
        a.rawlabel('L_code_p4')
        a(f's_add_u32 {sT5}, s91, {NRA*1024}')
        s.tile_addrs(sT5)
        a(f's_sub_u32 {sT0}, s85, {sT5}'); a(f'v_add_u32 v12, {sT0}, v14'); a('v_xor_b32 v13, 64, v12')
        for b in range(2):
            a(f's_and_b32 {sT0}, {sW}, 1'); a(f's_xor_b32 {sT0}, {sT0}, {b}'); a(f's_lshl_b32 {sT1}, {sTQ}, 1')
            a(f's_add_u32 {sT0}, {sT0}, {sT1}'); a(f's_mul_i32 {sT0}, {sT0}, 114688'); a(f's_add_u32 {sT0}, {sT0}, {sH}')
            a(f's_mul_i32 {sT1}, {sW}, {28*1024}'); a(f's_add_u32 s{82+b}, {sT0}, {sT1}')
        s.red_addrs(RED4, ((1, 1), (2, 2), (3, 3)))
        s.wait_saved()
        g.wait_flags(s.fl(3), 0x0fffffff, vt='v10', va='v11', keep_vm=True)
        g.stamp('p4 hop done')
        wd = s.wd_item
        def hload(ks, b):
            a(f's_add_u32 {sT6}, s{82+b}, {(ks//4)*4096}')
            a.vmem(f'buffer_load_dwordx4 a[{8*ks+4*b}:{8*ks+4*b+3}], {vL16}, {WS}, {sT6} offen offset:{(ks%4)*1024} {LDSC}', ('h', ks, b))
        HD = int(os.environ.get('HD', '6'))
        for ks in range(HD):
            hload(ks, 0); hload(ks, 1)
        ACC = 16; FS = (80, 88, 104)
        def rd(ks):
            reg = FS[ks % 3]
            a.wait_vm(('W', 2*ks+1))
            for sl in range(2):
                for b in range(2):
                    slot = (2*ks + b) % NSLOT
                    va = ('v12', 'v13')[sl] if slot < NRA else ('v14', 'v15')[sl]
                    off = (slot if slot < NRA else slot - NRA)*1024
                    a.ds(f'ds_read_b64_tr_b16 v[{reg+4*sl+2*b}:{reg+4*sl+2*b+1}], {va} offset:{off}', ('f', ks, sl))
        rd(0); rd(1)
        for ks in range(28):
            b0 = FS[ks % 3]
            if ks == 7:
                a('s_barrier')
            for j, (sa, sb) in enumerate(((0, 0), (0, 1), (1, 0), (1, 1))):
                if j < 2: a.wait_vm(('h', ks, sb))
                if j in (0, 2): a.wait_lg(('f', ks, sa))
                R = ACC + 16*(2*sa+sb)
                c = '0' if ks == 0 else f'v[{R}:{R+15}]'
                a(f'v_mfma_f32_32x32x16_bf16 v[{R}:{R+15}], v[{b0+4*sa}:{b0+4*sa+3}], a[{8*ks+4*sb}:{8*ks+4*sb+3}], {c}')
                if j == 0 and ks+2 < 28: rd(ks+2)
                if j in (0, 2) and ks + HD < 28: hload(ks+HD, j >> 1)
                if j in (1, 3) and ks >= 1 and 2*(ks-1) + NSLOT < 56: wd(2*(ks-1) + NSLOT + (j >> 1))()
        g.stamp('p4 gemm')
        a('s_barrier')
        P3W = ((1, 1), (2, 2), (3, 3))
        Lf = a.newlabel('Lfin'); Le = a.newlabel('Lp4e')
        a(f's_cmp_lg_u32 {sL}, 0'); a(f's_cbranch_scc1 {Lf}')
        side = Side(s.wq_items())
        s.red_write(ACC, RED4, parts=P3W, side=side)
        Lr = s.red_list(ACC, 224)
        n_in = int(os.environ.get('NIN', '8'))
        part = Side([side.q.popleft() for _ in range(n_in)])
        run_list(a, Lr, part, max(1, len(Lr)//(n_in+1)))
        run_list(a, s.store_x_list(ACC, sXO, sSTO))
        g.set_flag(s.fl(4))
        side.flush(a)
        a(f's_branch {Le}')
        a.label(Lf)
        a.vm = []; a.lg = []
        s.red_write(ACC, RED4, parts=P3W)
        Lr_ = s.red_list(ACC, 224)
        if os.environ.get('BIAS'):
            i0 = min(i for i, it in enumerate(Lr_) if isinstance(it, str) and it.startswith('v_cvt_pk'))
            Lr_ = Lr_[:i0] + [f'v_add_f32 v{ACC+r}, {fbits(float(os.environ["BIAS"]))}, v{ACC+r}' for r in range(16)] + Lr_[i0:]
        run_list(a, Lr_ + s.store_out_list(ACC))
        a('s_branch L_fin')
        a.label(Le)
        g.stamp('p4 epi')

    def run(s):
        a = s.a; g = s.g; stop = s.stop
        a.label('L_layer')
        s.layer_setup()
        s.p1()
        s.p2a()
        a(f's_cmp_ge_u32 {sM}, 28'); a('s_cbranch_scc1 L_idle')
        s.p2b()
        (s.p3t if BYTB else s.p3)()
        s.p4()
        a('s_branch L_next')
        a.label('L_idle')
        a.vm = []; a.lg = []
        a(f's_sub_u32 {sT0}, {sM}, 28'); a(f's_lshl_b32 {sT0}, {sT0}, 2'); a(f's_add_u32 s86, {sT0}, {sW}')
        if LATEU:
            a(f's_mul_i32 s87, s86, {392*128}'); a(f's_add_u32 s87, s87, {224*3584}')
            for i in range(7):
                a(f's_add_u32 {sT1}, s87, {i*64*128}')
                if i == 6: a('s_mov_b64 exec, 0xff')
                a(f'buffer_load_dword {vDUM}, {vL128}, {WU}, {sT1} offen')
                if i == 6: a('s_mov_b64 exec, -1')
            a(f's_mul_i32 s87, s86, {224*128}'); a(f's_add_u32 s87, s87, {320*3584}')
            for i in range(4):
                a(f's_add_u32 {sT1}, s87, {i*64*128}')
                if i == 3: a('s_mov_b64 exec, 0xffffffff')
                a(f'buffer_load_dword {vDUM}, {vL128}, {WG}, {sT1} offen')
                if i == 3: a('s_mov_b64 exec, -1')
        if IDLEP and PRET:
            if not HSC:
                a(f's_mul_i32 s87, s86, {448*128}'); a(f's_add_u32 s87, s87, {sH}')
                for i in range(7):
                    a(f's_add_u32 {sT1}, s87, {i*64*128}')
                    a(f'buffer_load_dword {vDUM}, {vL128}, {WS}, {sT1} offen')
        if IDLEW:
            a(f's_mul_i32 s87, s86, {784*128}')
            for i in range(13):
                a(f's_add_u32 {sT1}, s87, {i*64*128}')
                a(f'buffer_load_dword {vDUM}, {vL128}, {WD}, {sT1} offen')
        Li0 = a.newlabel('Lidle0')
        a(f's_cmp_eq_u32 {sL}, 0'); a(f's_cbranch_scc1 {Li0}')
        if WBL:
            g.wait_flags(s.fl(3), 0x0fffffff, vt='v10', va='v11', drain=True)
            def wb():
                Lx = a.newlabel('Lx'); a(f's_cmp_lg_u32 {sM}, 28'); a(f's_cbranch_scc1 {Lx}')
                a('buffer_wbl2 sc1'); a('s_waitcnt vmcnt(0)')
                a.label(Lx)
            g.wave_only(0, wb)
        a('s_branch L_fin')
        a.label(Li0)
        if IDLEP and PRET:
            a(f's_mul_i32 s87, s86, {112*128}'); a(f's_add_u32 s87, s87, {sXO}')
            for i in range(2):
                a(f's_add_u32 {sT1}, s87, {i*64*128}')
                if i == 1: a('s_mov_b32 exec_hi, 0xffff')
                a(f'buffer_load_dword {vDUM}, {vL128}, {WS}, {sT1} offen')
                if i == 1: a('s_mov_b64 exec, -1')
            a(f's_mul_i32 s87, s86, {14*128}'); a(f's_add_u32 s87, s87, {sSTO}')
            a('s_mov_b64 exec, 0x3fff')
            a(f'buffer_load_dword {vDUM}, {vL128}, {WS}, s87 offen')
            a('s_mov_b64 exec, -1')
        s.wait_saved(all_heads=True)
        a('s_waitcnt vmcnt(0)'); a('s_barrier')
        for it in s.wq_items(): it()
        if IDLEQ:
            g.wait_flags(s.fl(3), 0x0fffffff, vt='v10', va='v11', drain=True)
            a(f's_mul_i32 s87, s86, {672*128}'); a(f's_add_u32 s87, s87, {G0 + WQ}')
            for i in range(11):
                a(f's_add_u32 {sT1}, s87, {i*64*128}')
                a(f'buffer_load_dword {vDUM}, {vL128}, {WS}, {sT1} offen')
        a.label('L_next')
        a.vm = []; a.lg = []
        a(f's_mul_i32 {sT0}, {sHALF}, 14'); a(f's_lshl_b32 s81, 0x3fff, {sT0}')
        g.wait_flags(s.fl(4), 's81', vt='v10', va='v11', drain=True)
        g.stamp('p4 hop(x2)')
        a(f's_mov_b32 {sL}, 1')
        a('s_branch L_layer')
```

```python
from gen import *
import gen as G
import math, os
from collections import deque

C0 = -2.0*LOG2E*math.sqrt(2.0/math.pi)
C1 = C0*0.044715
PRET = int(os.environ.get('PRET', '0'))
IDLEW = int(os.environ.get('IDLEW', '0'))
CS1 = int(os.environ.get('CS1', '1'))
BYTB = int(os.environ.get('BYTB', '0'))
STU0 = int(os.environ.get('STU0', '1'))
BUD_A = int(os.environ.get('BUD_A', '4')); BUD_B = int(os.environ.get('BUD_B', '5'))
MAINW = int(os.environ.get('MAINW', '1'))
IDLEQ = int(os.environ.get('IDLEQ', '0'))
LATEU = int(os.environ.get('LATEU', '1'))
WBL = int(os.environ.get('WBL', '0'))
OUTSC = os.environ.get('OUTSC', '')
SAVE_LATE = int(os.environ.get('SAVE_LATE', '1'))
IDLEP = int(os.environ.get('IDLEP', '1'))
PFA = int(os.environ.get('PFA', '1'))
HSC = os.environ.get('HSC', '')
LDSC = os.environ.get('LDSC', 'sc1')

L_WG = 0; L_WU = 104448; L_WO = 45056; WOW = 14336; L_KVF = 40960
RED2 = 133120
RED4 = 86016
RA = 57344; NRA = 11; NSLOT = 39
vPHIW='v240'; vVIW='v241'; vPA0='v242'; vPA1='v243'; vVB0='v244'; vVB1='v245'; vKVO='v246'; vL128='v247'; vKVR='v248'; vKVW='v249'
vDUM='v255'

class Side:
    def __init__(s, items=()): s.q = deque(items)
    def emit(s, a, n=1):
        for _ in range(n):
            if not s.q: return
            it = s.q.popleft()
            if callable(it): it()
            else: a(it)
    def flush(s, a): s.emit(a, len(s.q))
    @staticmethod
    def cost(it):
        if callable(it): return getattr(it, 'cost', 1)
        op = it.split()[0]
        return 2 if op in ('v_exp_f32', 'v_rcp_f32', 'v_rsq_f32', 'v_log_f32') else 1
    def emit_budget(s, a, budget):
        b = budget + getattr(s, 'carry', 0)
        while s.q and (Side.cost(s.q[0]) <= b or (Side.cost(s.q[0]) > budget and b > 0)):
            b -= Side.cost(s.q[0]); s.emit(a)
        s.carry = min(b, 2)
    def __len__(s): return len(s.q)

def run_list(a, L, side=None, every=0):
    cnt = 0
    for it in L:
        if callable(it): it()
        else: a(it)
        cnt += 1
        if side is not None and every and cnt % every == 0: side.emit(a)
    if side is not None: side.flush(a)

class Phases:
    def __init__(s, g):
        s.g = g; s.a = g.a
        s.stop = g.stop_after

    def persistent_addrs(s):
        a = s.a
        a(f'v_and_b32 v13, 31, {vLANE}'); a(f's_lshl_b32 {sT0}, {sW}, 5'); a(f'v_add_u32 v14, {sT0}, v13')
        a(f'v_lshrrev_b32 v20, 5, {vLANE}')
        a('v_bfe_u32 v21, v13, 1, 1'); a('v_lshlrev_b32 v21, 3, v21')
        a('v_bfe_u32 v22, v13, 3, 1'); a('v_lshl_or_b32 v21, v22, 2, v21')
        a('v_bfe_u32 v22, v13, 2, 1'); a('v_lshl_or_b32 v21, v22, 1, v21')
        a('v_and_b32 v22, 1, v13'); a('v_or_b32 v21, v21, v22')
        a('v_xor_b32 v21, v21, v20')
        a('v_lshlrev_b32 v21, 3, v21'); a('v_lshl_add_u32 v21, v14, 7, v21')
        a(f'v_add_u32 {vPHIW}, {L_PHI}, v21')
        a('v_bfe_u32 v21, v14, 1, 3'); a('v_xor_b32 v21, v21, v20'); a('v_lshlrev_b32 v21, 3, v21')
        a('v_lshl_add_u32 v21, v14, 6, v21'); a(f'v_add_u32 {vVIW}, {L_VI}, v21')
        a(f'v_and_b32 v13, 15, {vLANE}'); a('v_lshrrev_b32 v14, 2, v13')
        a('v_and_b32 v22, 3, v13'); a(f'v_bfe_u32 v23, {vLANE}, 4, 1')
        a('v_lshl_add_u32 v24, v23, 2, v22')
        a('v_lshl_add_u32 v25, v20, 2, v14')
        a('v_lshrrev_b32 v26, 1, v14'); a('v_lshlrev_b32 v26, 3, v26')
        a('v_lshl_or_b32 v26, v20, 1, v26'); a('v_and_b32 v27, 1, v14'); a('v_or_b32 v26, v26, v27')
        a(f's_and_b32 {sT0}, {sW}, 1'); a(f's_lshl_b32 {sT0}, {sT0}, 3'); a(f'v_add_u32 v27, {sT0}, v24')
        a('v_xor_b32 v27, v27, v26')
        a('v_lshlrev_b32 v27, 3, v27'); a('v_lshl_add_u32 v27, v25, 7, v27')
        a(f'v_add_u32 {vPA0}, {L_PHI}, v27')
        a(f'v_xor_b32 v27, 32, {vPA0}'); a(f'v_add_u32 {vPA1}, {8*128}, v27')
        a('v_lshrrev_b32 v26, 1, v14'); a('v_lshl_or_b32 v26, v20, 1, v26')
        a('v_xor_b32 v26, v26, v24'); a('v_lshlrev_b32 v26, 3, v26')
        a('v_lshl_add_u32 v26, v25, 6, v26'); a(f'v_add_u32 {vVB0}, {L_VI}, v26')
        a(f'v_xor_b32 v27, 32, {vVB0}'); a(f'v_add_u32 {vVB1}, {8*64}, v27')
        a(f'v_and_b32 v13, 31, {vLANE}'); a('v_lshlrev_b32 v13, 2, v13'); a(f'v_lshl_add_u32 {vKVO}, v20, 10, v13')
        a(f'v_lshrrev_b32 v13, 3, {vLANE}'); a(f'v_and_b32 v14, 7, {vLANE}')
        a('v_lshlrev_b32 v21, 8, v13'); a(f'v_lshl_add_u32 {vKVR}, v14, 4, v21')
        a('v_and_b32 v21, 1, v14'); a('v_lshl_add_u32 v21, v21, 5, v13'); a('v_lshlrev_b32 v21, 4, v21')
        a('v_bfe_u32 v22, v14, 1, 1'); a('v_lshl_add_u32 v21, v22, 3, v21')
        a('v_lshrrev_b32 v22, 2, v14'); a('v_lshl_add_u32 v21, v22, 10, v21')
        a(f's_and_b32 {sT0}, {sW}, 1'); a(f's_lshl_b32 {sT0}, {sT0}, 11'); a(f's_add_u32 {sT0}, {sT0}, {L_KVF}')
        a(f'v_add_u32 {vKVW}, {sT0}, v21')
        a(f'v_lshlrev_b32 {vL128}, 7, {vLANE}')

    def pretouch(s, soff, nlines, tag='pt'):
        if not PRET: return
        a = s.a
        if nlines < 64: a(f's_mov_b64 exec, {hex((1 << nlines)-1)}')
        a.vmem(f'buffer_load_dword {vDUM}, {vL128}, {WS}, {soff} offen', tag)
        if nlines < 64: a('s_mov_b64 exec, -1')

    def stats_load_items(s, dst, sbase, tag, vtmp):
        a = s.a
        def last():
            a(f'v_mov_b32 {vtmp}, 0x40000000')
            a(f'v_cndmask_b32 {vtmp}, {vSTA}, {vtmp}, {sUP}')
            a.vmem(f'buffer_load_dwordx4 v[{dst+12}:{dst+15}], {vtmp}, {WS}, {sbase} offen offset:{3*512} {LDSC}', tag)
        return [(lambda i=i: a.vmem(f'buffer_load_dwordx4 v[{dst+4*i}:{dst+4*i+3}], {vSTA}, {WS}, {sbase} offen offset:{i*512} {LDSC}', tag)) for i in range(3)] + [last]

    def stats_list(s, src, vnmean, vrstd, t0, t1):
        S_, Q_ = f'v{src}', f'v{src+1}'
        L = []
        L += [f'v_add_f32 v{src+2}, v{src+2}, v{src+6}', f'v_add_f32 v{src+3}, v{src+3}, v{src+7}']
        L += [f'v_add_f32 {S_}, {S_}, v{src+4}', f'v_add_f32 {Q_}, {Q_}, v{src+5}']
        L += [f'v_add_f32 v{src+2}, v{src+2}, v{src+10}', f'v_add_f32 v{src+3}, v{src+3}, v{src+11}']
        L += [f'v_add_f32 {S_}, {S_}, v{src+8}', f'v_add_f32 {Q_}, {Q_}, v{src+9}']
        L += [f'v_add_f32 v{src+2}, v{src+2}, v{src+14}', f'v_add_f32 v{src+3}, v{src+3}, v{src+15}']
        L += [f'v_add_f32 {S_}, {S_}, v{src+12}', f'v_add_f32 {Q_}, {Q_}, v{src+13}']
        L += [f'v_add_f32 {S_}, {S_}, v{src+2}', f'v_add_f32 {Q_}, {Q_}, v{src+3}']
        L += [f'v_mov_b32 {t0}, {S_}', f'v_mov_b32 {t1}, {Q_}', 's_nop 0',
              f'v_permlane32_swap_b32 {S_}, {t0}', f'v_permlane32_swap_b32 {Q_}, {t1}',
              f'v_add_f32 {S_}, {S_}, {t0}', f'v_add_f32 {Q_}, {Q_}, {t1}',
              f'v_mul_f32 {vnmean}, {fbits(-1.0/448)}, {S_}', f'v_mul_f32 {Q_}, {fbits(1.0/448)}, {Q_}',
              f'v_fma_f32 {Q_}, -{vnmean}, {vnmean}, {Q_}', f'v_max_f32 {Q_}, 0, {Q_}',
              f'v_add_f32 {Q_}, {fbits(1e-5)}, {Q_}', f'v_rsq_f32 {vrstd}, {Q_}']
        L.remove('s_nop 0')
        return L

    def cs_read_items(s, dst, lds_off, tag, vaddr):
        a = s.a
        return [(lambda g=g: a.ds(f'ds_read_b128 v[{dst+4*g}:{dst+4*g+3}], {vaddr} offset:{lds_off+32*g}', tag)) for g in range(4)]

    def colsum(s, reads_fn, nks, dst, lds_out, va='v10'):
        a = s.a
        for i in range(4): a(f'v_mov_b32 v{dst+16+i}, 0x3f803f80')
        F = dst + 20
        reads_fn(0, F, ('cs', 0)); reads_fn(1, F+4, ('cs', 1))
        for ks in range(nks):
            if ks+2 < nks: reads_fn(ks+2, F + 4*((ks+2) % 3), ('cs', ks+2))
            a.wait_lg(('cs', ks))
            R = F + 4*(ks % 3)
            c = '0' if ks == 0 else f'v[{dst}:{dst+15}]'
            a(f'v_mfma_f32_32x32x16_bf16 v[{dst}:{dst+15}], v[{R}:{R+3}], v[{dst+16}:{dst+19}], {c}')
        a(f'v_add_u32 {va}, {lds_out}, {vCS}')
        a('s_mov_b32 exec_lo, 1'); a('s_mov_b32 exec_hi, 1')
        for g in range(4):
            a.ds(f'ds_write_b128 {va}, v[{dst+4*g}:{dst+4*g+3}] offset:{32*g}', 'csw')
        a('s_mov_b64 exec, -1')
        a.wait_lg0()

    def colsum_kv(s):
        a = s.a; g = s.g
        def cs_wave():
            a(f's_mul_i32 {sT0}, {sW}, 28672'); a(f'v_add_u32 v31, {sT0}, {vTR64}')
            a(f's_lshl_b32 {sT1}, {sW}, 7'); a(f's_add_u32 {sT1}, {sT1}, {M_CSQKV}')
            def f(ks, reg, tag):
                a.ds(f'ds_read_b64_tr_b16 v[{reg}:{reg+1}], v31 offset:{(16*ks)*64}', tag)
                a.ds(f'ds_read_b64_tr_b16 v[{reg+2}:{reg+3}], v31 offset:{(16*ks+8)*64}', tag)
            s.colsum(f, 28, 192, sT1, va='v30')
        g.wave_in(0, 2, cs_wave)
        a.lg = []

    def softmax_list(s, P, vC, E1, E2, dP, dM, t):
        L = []
        for r in (3, 7, 11, 15):
            L.append(f'v_cndmask_b32 v{P+r}, v{P+r}, v{P}, {sUP}')
        mx, mn, t2, t3 = f'v{t}', f'v{t+1}', f'v{t+2}', f'v{t+3}'
        L += [f'v_max3_f32 {mx}, v{P}, v{P+1}, v{P+2}', f'v_min3_f32 {mn}, v{P}, v{P+1}, v{P+2}',
              f'v_max3_f32 {t2}, v{P+3}, v{P+4}, v{P+5}', f'v_min3_f32 {t3}, v{P+3}, v{P+4}, v{P+5}']
        for r in (6, 10):
            L += [f'v_max3_f32 {mx}, {mx}, v{P+r}, v{P+r+1}', f'v_min3_f32 {mn}, {mn}, v{P+r}, v{P+r+1}',
                  f'v_max3_f32 {t2}, {t2}, v{P+r+2}, v{P+r+3}', f'v_min3_f32 {t3}, {t3}, v{P+r+2}, v{P+r+3}']
        L += [f'v_max3_f32 {mx}, {mx}, v{P+14}, v{P+15}', f'v_min3_f32 {mn}, {mn}, v{P+14}, v{P+15}',
              f'v_max_f32 {mx}, {mx}, {t2}', f'v_min_f32 {mn}, {mn}, {t3}',
              f'v_mov_b32 {t2}, {mx}', f'v_mov_b32 {t3}, {mn}',
              f'v_permlane32_swap_b32 {mx}, {t2}', f'v_permlane32_swap_b32 {mn}, {t3}',
              f'v_max_f32 {mx}, {mx}, {t2}', f'v_min_f32 {mn}, {mn}, {t3}',
              f'v_mul_f32 {mx}, {mx}, {vC}', f'v_mul_f32 {mn}, {mn}, {vC}']
        c = int(vC[1:]); assert c % 2 == 0 and t % 2 == 0
        cp = f'v[{c}:{c+1}]'; tp = f'v[{t}:{t+1}]'
        for r in range(0, 16, 2):
            L.append(f'v_pk_fma_f32 v[{E1+r}:{E1+r+1}], v[{P+r}:{P+r+1}], {cp}, {tp} op_sel:[0,0,0] op_sel_hi:[1,0,0] neg_lo:[0,0,1] neg_hi:[0,0,1]')
            L.append(f'v_pk_fma_f32 v[{E2+r}:{E2+r+1}], v[{P+r}:{P+r+1}], {cp}, {tp} op_sel:[0,0,1] op_sel_hi:[1,0,1] neg_lo:[1,0,0] neg_hi:[1,0,0]')
        for r in range(16):
            L += [f'v_exp_f32 v{E1+r}, v{E1+r}', f'v_exp_f32 v{E2+r}, v{E2+r}']
        for r in (3, 7, 11, 15):
            L += [f'v_cndmask_b32 v{E1+r}, v{E1+r}, 0, {sUP}', f'v_cndmask_b32 v{E2+r}, v{E2+r}, 0, {sUP}']
        A1 = f'v[{t}:{t+1}]'; A2 = f'v[{t+2}:{t+3}]'; B1 = f'v[{t+4}:{t+5}]'; B2 = f'v[{t+6}:{t+7}]'
        pr = lambda b, r: f'v[{b+r}:{b+r+1}]'
        L += [f'v_pk_add_f32 {A1}, {pr(E1,0)}, {pr(E1,2)}', f'v_pk_add_f32 {A2}, {pr(E2,0)}, {pr(E2,2)}',
              f'v_pk_add_f32 {B1}, {pr(E1,4)}, {pr(E1,6)}', f'v_pk_add_f32 {B2}, {pr(E2,4)}, {pr(E2,6)}']
        L += [f'v_pk_add_f32 {A1}, {A1}, {pr(E1,8)}', f'v_pk_add_f32 {A2}, {A2}, {pr(E2,8)}',
              f'v_pk_add_f32 {B1}, {B1}, {pr(E1,10)}', f'v_pk_add_f32 {B2}, {B2}, {pr(E2,10)}',
              f'v_pk_add_f32 {A1}, {A1}, {pr(E1,12)}', f'v_pk_add_f32 {A2}, {A2}, {pr(E2,12)}',
              f'v_pk_add_f32 {B1}, {B1}, {pr(E1,14)}', f'v_pk_add_f32 {B2}, {B2}, {pr(E2,14)}',
              f'v_pk_add_f32 {A1}, {A1}, {B1}', f'v_pk_add_f32 {A2}, {A2}, {B2}',
              f'v_add_f32 v{t}, v{t}, v{t+1}', f'v_add_f32 v{t+2}, v{t+2}, v{t+3}',
              f'v_mov_b32 v{t+1}, v{t}', f'v_mov_b32 v{t+3}, v{t+2}',
              f'v_permlane32_swap_b32 v{t}, v{t+1}', f'v_permlane32_swap_b32 v{t+2}, v{t+3}',
              f'v_add_f32 v{t}, v{t}, v{t+1}', f'v_add_f32 v{t+2}, v{t+2}, v{t+3}',
              f'v_rcp_f32 v{t}, v{t}', f'v_rcp_f32 v{t+2}, v{t+2}']
        for r in range(0, 16, 2):
            L.append(f'v_pk_mul_f32 {pr(E1,r)}, {pr(E1,r)}, {A1} op_sel_hi:[1,0]')
            L.append(f'v_pk_mul_f32 {pr(E2,r)}, {pr(E2,r)}, {A2} op_sel_hi:[1,0]')
        for i in range(8):
            L += [f'v_cvt_pk_bf16_f32 v{dP+i}, v{E1+2*i}, v{E1+2*i+1}', f'v_cvt_pk_bf16_f32 v{dM+i}, v{E2+2*i}, v{E2+2*i+1}']
        return L

    def qk_list(s, acc, cs, NMp, vC, frag, P, E1, E2, dP, dM, t):
        L = []
        for r in range(0, 16, 2):
            L.append(f'v_pk_fma_f32 v[{acc+r}:{acc+r+1}], v[{cs+r}:{cs+r+1}], v[{NMp}:{NMp+1}], v[{acc+r}:{acc+r+1}] op_sel_hi:[1,0,1]')
        for i in range(8):
            L.append(f'v_cvt_pk_bf16_f32 v{frag+i}, v{acc+2*i}, v{acc+2*i+1}')
        L.append(f'v_mfma_f32_32x32x16_bf16 v[{P}:{P+15}], a[248:251], v[{frag}:{frag+3}], 0')
        L.append(f'v_mfma_f32_32x32x16_bf16 v[{P}:{P+15}], a[252:255], v[{frag+4}:{frag+7}], v[{P}:{P+15}]')
        L += s.softmax_list(P, vC, E1, E2, dP, dM, t)
        return L

    def dma_item(s, srd, voff, ssrc, srcoff, sdst, dstoff, tag, track=True):
        a = s.a
        def f():
            if sdst is None: a(f's_mov_b32 m0, {dstoff}')
            else: a(f's_add_u32 m0, {sdst}, {dstoff}')
            a(f's_add_u32 s92, {ssrc}, {srcoff}')
            if track: a.vmem(f'buffer_load_dwordx4 {voff}, {srd}, s92 offen lds', tag)
            else: a(f'buffer_load_dwordx4 {voff}, {srd}, s92 offen lds')
        return f

    def wq_items(s):
        a = s.a
        a(f's_mul_i32 s90, {sHEAD}, {WQH}'); a(f's_add_u32 s90, s90, {G0 + WQ}')
        a(f's_lshl_b32 s91, {sW}, 10'); a(f's_add_u32 s90, s90, s91')
        return [s.dma_item(WS, vL16, 's90', n*4096, 's91', n*4096, 'W') for n in range(21)]

    def layer_setup(s):
        a = s.a
        L0 = a.newlabel('Ll0'); Le = a.newlabel('Lle')
        a(f's_cmp_lg_u32 {sL}, 0'); a(f's_cbranch_scc1 {L0}')
        for r, o in ((sXIN, X0), (sSTIN, ST0), (sX1, X1A), (sST1, ST1A), (sXO, X2A), (sSTO, ST2A), (sO, OA), (sH, HA)):
            a(f's_add_u32 {r}, {sGB}, {o}')
        a(f's_branch {Le}')
        a.label(L0)
        for r, o in ((sXIN, X2A), (sSTIN, ST2A), (sX1, X1A), (sST1, ST1A), (sXO, X2A), (sSTO, ST2A), (sO, OA), (sH, HA)):
            a(f's_add_u32 {r}, {sGB}, {o}')
        a.label(Le)
        a(f's_lshl_b32 {sT0}, {sL}, 4'); a(f's_add_u32 {sT0}, {sT0}, {sHEAD}')
        a(f's_lshl_b32 {sKV}, {sT0}, 13'); a(f's_add_u32 {sKV}, {sKV}, {KV}')
        a(f's_lshl_b32 {sKVC}, {sT0}, 7'); a(f's_add_u32 {sKVC}, {sKVC}, {KVC}')
        a(f's_lshl_b32 {sFL}, {sG}, 11'); a(f's_lshl_b32 {sT0}, {sL}, 9'); a(f's_add_u32 {sFL}, {sFL}, {sT0}')
        if FLAGS: a(f's_add_u32 {sFL}, {sFL}, {FLAGS}')

    def wait_saved(s, all_heads=False):
        a = s.a; g = s.g
        def w0():
            Lx = a.newlabel('Lx'); a(f's_cmp_lg_u32 {sL}, 0'); a(f's_cbranch_scc1 {Lx}')
            if all_heads:
                a(f'v_and_b32 v11, 15, {vLANE}'); a('v_lshlrev_b32 v11, 7, v11')
                a(f's_mov_b32 {sT0}, {KVC}')
                g.poll(WS, 'v11', sT0, 16, vt='v10')
            else:
                a(f's_lshl_b32 {sT0}, {sHEAD}, 7'); a(f's_add_u32 {sT0}, {sT0}, {KVC}')
                g.poll(WS, None, sT0, 16, vt='v10')
            a.label(Lx)
        g.wave_only(0, w0)

    def fl(s, p):
        s.a(f's_add_u32 s80, {sFL}, {p*128}')
        return 's80'

    def p1(s):
        a = s.a; g = s.g
        a.c('==== P1')
        XD = int(os.environ.get('XD1', '12'))
        a(f's_lshl_b32 {sT3}, {sHALF}, 2'); a(f's_add_u32 {sT3}, {sT3}, {sW}')
        a(f's_mul_i32 s82, {sT3}, 3584'); a(f's_add_u32 s82, s82, {sSTIN}')
        a(f's_mul_i32 s83, {sT3}, 28672'); a(f's_add_u32 s83, s83, {sXIN}')
        def xload(ks):
            if ks % 4 == 0: a(f's_add_u32 s84, s83, {(ks//4)*4096}')
            a.vmem(f'buffer_load_dwordx4 a[{4*ks}:{4*ks+3}], {vL16}, {WS}, s84 offen offset:{(ks%4)*1024} {LDSC}', ('x', ks))
        a(f's_lshl_b32 {sT4}, {sT3}, 15'); a(f's_add_u32 {sT4}, {sT4}, {sO}'); a(f's_lshl_b32 {sT5}, {sHEAD}, 11'); a(f's_add_u32 s85, {sT4}, {sT5}')
        def rd64(base, va=vTR64):
            def f(ks, reg, tag):
                a.ds(f'ds_read_b64_tr_b16 v[{reg}:{reg+1}], {va} offset:{base+(16*ks)*64}', tag)
                a.ds(f'ds_read_b64_tr_b16 v[{reg+2}:{reg+3}], {va} offset:{base+(16*ks+8)*64}', tag)
            return f
        AK, AV, AQ, FR = 16, 32, 48, 64
        rk, rv, rq = rd64(L_WK), rd64(L_WV), rd64(0, 'v208')
        FRS = (64, 72, 216)
        NM, RS, VC = 'v10', 'v11', 'v12'
        def kvloop(loads):
            side = Side()
            if loads:
                run_list(a, s.stats_load_items(96, 's82', 'st', 'v14'))
                for ks in range(XD): xload(ks)
                a(f'v_add_u32 v15, {M_CSQKV}, {vCS}')
                side = Side(s.cs_read_items(112, 0, 'csk', 'v15') + s.cs_read_items(128, 128, 'csv', 'v15')
                            + [lambda: a.wait_vm('st')] + s.stats_list(96, NM, RS, 'v13', 'v14'))
            CF = (132, 136, 140)
            rc = rd64(0, 'v210')
            if not loads:
                a(f's_and_b32 {sT0}, {sW}, 1'); a(f's_mul_i32 {sT0}, {sT0}, 28672'); a(f'v_add_u32 v210, {sT0}, {vTR64}')
                for i in range(4): a(f'v_mov_b32 v{128+i}, 0x3f803f80')
            rk(0, FRS[0], ('fk', 0)); rv(0, FRS[0]+4, ('fv', 0))
            if not loads: rc(0, CF[0], ('fc', 0))
            rk(1, FRS[1], ('fk', 1)); rv(1, FRS[1]+4, ('fv', 1))
            if not loads: rc(1, CF[1], ('fc', 1))
            for ks in range(28):
                b = FRS[ks % 3]
                if loads: a.wait_vm(('x', ks))
                a.wait_lg(('fk', ks))
                ck = '0' if ks == 0 else f'v[{AK}:{AK+15}]'
                cv = '0' if ks == 0 else f'v[{AV}:{AV+15}]'
                a(f'v_mfma_f32_32x32x16_bf16 v[{AK}:{AK+15}], v[{b}:{b+3}], a[{4*ks}:{4*ks+3}], {ck}')
                if ks+2 < 28: rk(ks+2, FRS[(ks+2) % 3], ('fk', ks+2))
                if loads and ks + XD < 28: xload(ks + XD)
                a.wait_lg(('fv', ks))
                a(f'v_mfma_f32_32x32x16_bf16 v[{AV}:{AV+15}], v[{b+4}:{b+7}], a[{4*ks}:{4*ks+3}], {cv}')
                if ks+2 < 28: rv(ks+2, FRS[(ks+2) % 3]+4, ('fv', ks+2))
                if not loads:
                    a.wait_lg(('fc', ks))
                    cc = '0' if ks == 0 else 'v[112:127]'
                    a(f'v_mfma_f32_32x32x16_bf16 v[112:127], v[{CF[ks % 3]}:{CF[ks % 3]+3}], v[128:131], {cc}')
                    if ks+2 < 28: rc(ks+2, CF[(ks+2) % 3], ('fc', ks+2))
                if ks >= 2: side.emit(a, 2)
            if not loads:
                def csw():
                    a(f's_lshl_b32 {sT1}, {sW}, 7'); a(f's_add_u32 {sT1}, {sT1}, {M_CSQKV}')
                    a(f'v_add_u32 v211, {sT1}, {vCS}')
                    a('s_mov_b32 exec_lo, 1'); a('s_mov_b32 exec_hi, 1')
                    for gq in range(4):
                        a(f'ds_write_b128 v211, v[{112+4*gq}:{115+4*gq}] offset:{32*gq}')
                    a('s_mov_b64 exec, -1')
                    a('s_waitcnt lgkmcnt(0)')
                g.wave_in(0, 2, csw)
            side.flush(a)
        L1p = a.newlabel('Lp1l1'); Lj = a.newlabel('Lp1j')
        a(f's_cmp_lg_u32 {sL}, 0'); a(f's_cbranch_scc1 {L1p}')
        a(f'v_and_b32 v13, 7, {vLANE}'); a('v_lshlrev_b32 v233, 5, v13')
        a(f'buffer_load_dword v232, v233, {DBG}, 0 offen sc1')
        a.lg = []
        kvloop(False)
        a('s_waitcnt vmcnt(0)')
        g.wave_in(0, 2, g.registration_check)
        a('s_barrier')
        a(f's_lshl_b32 {sT0}, {sG}, 1'); a(f's_add_u32 {sT0}, {sT0}, {sHALF}'); a(f's_lshl_b32 {sT1}, {sW}, 4'); a(f's_add_u32 {sT0}, {sT0}, {sT1}')
        a(f's_add_u32 {sT1}, {sT0}, 64')
        a(f's_cmp_lt_u32 {sT1}, 84'); a(f's_cselect_b32 {sT2}, {sT1}, {sT0}')
        a(f's_lshl_b32 {sT0}, {sT0}, 10'); a(f's_lshl_b32 {sT2}, {sT2}, 10')
        a(f'v_add_u32 v13, {sT0}, {vL16}'); a(f'v_add_u32 v14, {sT2}, {vL16}')
        a('ds_read_b128 v[128:131], v13'); a('ds_read_b128 v[132:135], v14')
        a(f's_mul_i32 {sT1}, {sHEAD}, {WQH}'); a(f's_add_u32 {sT1}, {sT1}, {G0 + WQ}')
        a(f's_add_u32 {sT0}, {sT0}, {sT1}'); a(f's_add_u32 {sT2}, {sT2}, {sT1}')
        a('s_waitcnt lgkmcnt(0)')
        a(f'buffer_store_dwordx4 v[128:131], {vL16}, {WS}, {sT0} offen sc1')
        a(f'buffer_store_dwordx4 v[132:135], {vL16}, {WS}, {sT2} offen sc1')
        a('s_barrier')
        a(f'v_add_u32 v15, {M_CSQKV}, {vCS}')
        run_list(a, s.cs_read_items(112, 0, 'csk', 'v15') + s.cs_read_items(128, 128, 'csv', 'v15'))
        a('v_mov_b32 v10, v234'); a('v_mov_b32 v11, v235')
        a(f's_branch {Lj}')
        a.label(L1p)
        a.vm = []; a.lg = []
        kvloop(True)
        a('s_barrier')
        a.label(Lj)
        a.vm = []; a.lg = []
        g.stamp('p1 KV gemm')
        a(f'v_mul_f32 {VC}, {fbits(LOG2E)}, {RS}')
        a.wait_lg0()
        a(f's_lshl_b32 s90, {sM}, 7'); a(f's_mul_i32 s91, {sW}, {8*3584}'); a(f's_add_u32 s90, s90, s91')
        a(f's_lshl_b32 s91, {sW}, 10')
        wa = Side([s.dma_item(WG, vD3584, 's90', 4*n*8*3584, 's91', L_WG + 4*n*1024, 'WA') for n in range(10)] if PFA else [])
        L = s.qk_list(AK, 112, 10, VC, 144, 80, 96, 192, 176, 184, 152)
        LV = []
        for r in range(0, 16, 2):
            LV.append(f'v_pk_fma_f32 v[{AV+r}:{AV+r+1}], v[{128+r}:{129+r}], v[10:11], v[{AV+r}:{AV+r+1}] op_sel_hi:[1,0,1]')
        for r in range(0, 16, 2):
            LV.append(f'v_pk_mul_f32 v[{AV+r}:{AV+r+1}], v[{AV+r}:{AV+r+1}], v[10:11] op_sel:[0,1] op_sel_hi:[1,1]')
        LV.append(f'v_cndmask_b32 v{AV+12}, v{AV+12}, 1.0, {sUP}')
        for i in range(8):
            LV.append(f'v_cvt_pk_bf16_f32 v{128+i}, v{AV+2*i}, v{AV+2*i+1}')
        for gq in range(4):
            LV.append(f'v_xor_b32 v{136+(gq&1)}, {(2*gq) << 3}, {vVIW}')
            LV.append(lambda gq=gq: a.ds(f'ds_write_b64 v{136+(gq&1)}, v[{128+2*gq}:{129+2*gq}]', 'vw'))
        im = max(i for i, it in enumerate(L) if isinstance(it, str) and it.startswith('v_mfma'))
        L = L[:im+1] + LV + L[im+1:]
        for T in range(2):
            for gq in range(4):
                R = 176 + 8*T + 2*gq
                L.append(f'v_xor_b32 v{156+(gq&1)}, {(8*T+2*gq) << 3}, {vPHIW}')
                L.append(lambda R=R, gq=gq: a.ds(f'ds_write_b64 v{156+(gq&1)}, v[{R}:{R+1}]', 'pw'))
        run_list(a, L, wa, 22)
        a(f's_waitcnt vmcnt({10 if PFA else 0}) lgkmcnt(0)')
        a.lg = []
        a('s_barrier')
        g.stamp('p1 phi/v written')
        s.pretouch('s85', 16)
        def kv():
            def rr(kt, reg, tag):
                a.ds(f'ds_read_b64_tr_b16 v[{reg}:{reg+1}], {vPA0} offset:{kt*2048}', tag)
                a.ds(f'ds_read_b64_tr_b16 v[{reg+2}:{reg+3}], {vPA1} offset:{kt*2048}', tag)
                a.ds(f'ds_read_b64_tr_b16 v[{reg+4}:{reg+5}], {vVB0} offset:{kt*1024}', tag)
                a.ds(f'ds_read_b64_tr_b16 v[{reg+6}:{reg+7}], {vVB1} offset:{kt*1024}', tag)
            KS = (64, 72, 216)
            rr(0, KS[0], ('k', 0)); rr(1, KS[1], ('k', 1))
            for kt in range(8):
                if kt+2 < 8: rr(kt+2, KS[(kt+2) % 3], ('k', kt+2))
                a.wait_lg(('k', kt))
                b = KS[kt % 3]
                c = '0' if kt == 0 else 'v[80:95]'
                a(f'v_mfma_f32_32x32x16_bf16 v[80:95], v[{b+4}:{b+7}], v[{b}:{b+3}], {c}')
            a(f's_lshl_b32 {sT0}, {sW}, 7'); a(f's_add_u32 {sT0}, {sT0}, {sKV}'); a(f's_add_u32 {sT1}, {sT0}, 4096')
            a('s_mov_b32 s78, 0x80808080'); a('s_mov_b32 s79, 0x80808080')
            for r in range(16):
                a(f'v_cndmask_b32 v{80+r}, v{80+r}, 1.0, s[78:79]')
            for gq in range(4):
                for r in range(4):
                    so = sT0 if gq < 2 else sT1
                    a(f'buffer_atomic_add_f32 v{80+4*gq+r}, {vKVO}, {WS}, {so} offen offset:{((8*gq+r)*256) % 4096} sc1')
        g.wave_in(0, 2, kv)
        def csq():
            Lq0 = a.newlabel('Lq0')
            a(f's_cmp_lg_u32 {sL}, 0'); a(f's_cbranch_scc1 {Lq0}')
            a(f'v_add_u32 v209, {2*28672}, {vTR64}')
            a(f's_mov_b32 {sT1}, {M_CSQKV + 256}')
            s.colsum(rd64(0, 'v209'), 28, 112, sT1, va='v152')
            a.label(Lq0)
        g.wave_only(2, csq)
        a.lg = []
        a.vm = []
        a.lg = []
        g.stamp('p1 kv issued')
        Lcq = a.newlabel('Lcq')
        a(f's_cmp_eq_u32 {sL}, 0'); a(f's_cbranch_scc1 {Lcq}')
        for it in s.cs_read_items(112, 256, 'csq0', 'v15'): it()
        a.label(Lcq)
        a.lg = []
        a(f'v_add_u32 v208, {L_WQ}, {vTR64}')
        QS = (64, 68, 72)
        rq(0, QS[0], ('f', 0)); rq(1, QS[1], ('f', 1))
        for ks in range(28):
            if ks+2 < 28: rq(ks+2, QS[(ks+2) % 3], ('f', ks+2))
            a.wait_lg(('f', ks))
            b = QS[ks % 3]
            cq = '0' if ks == 0 else f'v[{AQ}:{AQ+15}]'
            a(f'v_mfma_f32_32x32x16_bf16 v[{AQ}:{AQ+15}], v[{b}:{b+3}], a[{4*ks}:{4*ks+3}], {cq}')
        a.wait_lg0()
        a('s_barrier')
        Lcr = a.newlabel('Lcr')
        a(f's_cmp_lg_u32 {sL}, 0'); a(f's_cbranch_scc1 {Lcr}')
        run_list(a, s.cs_read_items(112, 256, 'csq', 'v15'))
        a.wait_lg0()
        a.label(Lcr)
        g.stamp('p1 q gemm')
        qpost = lambda: s.qk_list(AQ, 112, 10, VC, 144, 80, 96, 192, 160, 168, 152)
        Lq = a.newlabel('Lq23'); Lqe = a.newlabel('Lqe')
        a(f's_cmp_ge_u32 {sW}, 2'); a(f's_cbranch_scc1 {Lq}')
        a.vm = []
        s.resid_loads(224, sXIN, track=False, raw_l0=True)
        s.dest_pretouch(sX1, sST1)
        if G.CPF: g.wave_only(1, lambda: g.code_prefetch('L_code_p2b', 'L_code_p4', v='v14'))
        Lp = a.newlabel('Lkvp'); Ld = a.newlabel('Lkvd'); Lc = a.newlabel('Lkvc')
        a(f's_lshl_b32 {sT0}, {sW}, 7'); a(f's_add_u32 {sT0}, {sT0}, {sKV}'); a(f's_add_u32 {sT1}, {sT0}, 4096')
        a('s_mov_b32 s78, 0xaaaaaaaa'); a('s_mov_b32 s79, 0xaaaaaaaa')
        a(f's_mov_b32 {sT7}, 0')
        def kvloads():
            for q in range(4):
                so = sT0 if q < 2 else sT1
                a(f'buffer_load_dwordx4 v[{64+4*q}:{67+4*q}], {vKVR}, {WS}, {so} offen offset:{(q*2048) % 4096} sc1')
        Lq_ = qpost()
        cut = int(len(Lq_)*float(os.environ.get('ASYNC', '0.5')))
        run_list(a, Lq_[:cut] + [kvloads] + Lq_[cut:])
        g.stamp('p1 kv counted')
        a(f's_branch {Lc}')
        a.label(Lp)
        kvloads()
        a.label(Lc)
        a('s_waitcnt vmcnt(0)')
        for q in range(1, 4):
            a(f'v_sub_f32 v{96+q}, 0x41800000, v{67+4*q}')
        a('v_sub_f32 v96, 0x41800000, v67')
        a('v_or_b32 v96, v96, v97'); a('v_or_b32 v98, v98, v99'); a('v_or_b32 v96, v96, v98')
        a('v_lshlrev_b32 v96, 1, v96')
        a('v_cmp_ne_u32 vcc, 0, v96')
        a(f's_add_u32 {sT7}, {sT7}, 1')
        a('s_and_b64 vcc, vcc, s[78:79]')
        a('s_cmp_eq_u64 vcc, 0'); a(f's_cbranch_scc1 {Ld}')
        a(f's_cmp_lt_u32 {sT7}, {G.TIMEOUT}'); a(f's_cbranch_scc1 {Lp}')
        a(f's_mov_b32 {sTO}, 1')
        a.label(Ld)
        g.stamp('kv hop done')
        for q in range(4):
            a(f'v_cvt_pk_bf16_f32 v{96+2*q}, v{64+4*q}, v{65+4*q}'); a(f'v_cvt_pk_bf16_f32 v{97+2*q}, v{66+4*q}, v{67+4*q}')
        for q in range(4):
            a(f'ds_write_b64 {vKVW}, v[{96+2*q}:{97+2*q}] offset:{q*128}')
        a('s_waitcnt lgkmcnt(0)')
        a(f's_branch {Lqe}')
        a.label(Lq)
        a.vm = []
        a(f's_sub_u32 {sT0}, {sW}, 2')
        a(f's_lshl_b32 s86, {sCT}, 7'); a(f's_mul_i32 {sT1}, {sT0}, {8*896}'); a(f's_add_u32 s86, s86, {sT1}')
        a(f's_lshl_b32 s87, {sT0}, 10')
        a(f's_lshl_b32 s88, {sM}, 7'); a(f's_mul_i32 {sT1}, {sT0}, {8*3584}'); a(f's_add_u32 s88, s88, {sT1}')
        items = [s.dma_item(WO, vD896, 's86', 2*n*8*896, 's87', L_WO + 2*n*1024, 'W1') for n in range(28)]
        if not PFA: items += [s.dma_item(WG, vD3584, 's88', 2*n*8*3584, 's87', L_WG + 2*n*1024, 'W1') for n in range(20)]
        items += [s.dma_item(WU, vD3584, 's88', 2*n*8*3584, 's87', L_WU + 2*n*1024, 'W1', track=False) for n in range(14 if LATEU else 28)]
        s.resid_loads(224, sXIN, track=False, raw_l0=True)
        s.dest_pretouch(sX1, sST1)
        run_list(a, qpost(), Side(items), 2)
        a.label(Lqe)
        a.vm = []; a.lg = []
        a('s_barrier')
        g.stamp('kv frags ready')

    def p2a(s):
        a = s.a; g = s.g
        a.c('==== P2a')
        a(f'v_add_u32 v13, {L_KVF}, {vL16}')
        for k in range(4):
            a.ds(f'ds_read_b128 v[{96+4*k}:{99+4*k}], v13 offset:{k*1024}', ('kf', k))
        for k in range(4):
            a.wait_lg(('kf', k))
            c = '0' if k == 0 else 'v[16:31]'
            a(f'v_mfma_f32_32x32x16_bf16 v[16:31], v[{96+4*k}:{99+4*k}], v[{160+4*k}:{163+4*k}], {c}')
        a('v_mov_b32 v32, v28'); a('v_mov_b32 v33, v28')
        a('v_permlane32_swap_b32 v32, v33')
        a(f'v_add_f32 v33, {fbits(1e-6)}, v33')
        a('v_rcp_f32 v34, v33')
        for r in range(0, 16, 2):
            a(f'v_pk_mul_f32 v[{16+r}:{17+r}], v[{16+r}:{17+r}], v[34:35] op_sel_hi:[1,0]')
        for r in range(12, 16):
            a(f'v_cndmask_b32 v{16+r}, v{16+r}, 0, {sUP}')
        for i in range(8):
            a(f'v_cvt_pk_bf16_f32 v{40+i}, v{16+2*i}, v{16+2*i+1}')
        a(f'buffer_store_dwordx4 v[40:43], {vL16}, {WS}, s85 offen {STSC}')
        a(f'buffer_store_dwordx4 v[44:47], {vL16}, {WS}, s85 offen offset:1024 {STSC}')
        g.set_flag(s.fl(1))
        def svc():
            Lx = a.newlabel('Lx'); a(f's_cmp_lg_u32 {sL}, 0'); a(f's_cbranch_scc1 {Lx}')
            a(f's_lshl_b32 {sT0}, {sHEAD}, 7'); a(f's_add_u32 {sT0}, {sT0}, {KVC}')
            a('v_mov_b32 v10, 1'); a('s_mov_b64 exec, 1')
            a(f'buffer_atomic_add v10, off, {WS}, {sT0} sc1')
            a('s_mov_b64 exec, -1')
            a.label(Lx)
        g.wave_only(3, svc)
        g.stamp('p2a done')

    def tile_coords(s):
        a = s.a
        a(f's_and_b32 {sT1}, {sW}, 1'); a(f's_lshl_b32 {sT2}, {sTQ}, 1'); a(f's_add_u32 {sT1}, {sT1}, {sT2}')
        a(f's_lshr_b32 {sT2}, {sW}, 1'); a(f's_lshl_b32 {sT3}, {sCT}, 1'); a(f's_add_u32 {sT2}, {sT2}, {sT3}')

    def resid_loads(s, dst, sX, track=True, raw_l0=False):
        a = s.a
        s.tile_coords()
        f = a.vmem if track else (lambda t, tag: a(t))
        Lr = Le = None
        if raw_l0:
            Lr = a.newlabel('Lrr'); Le = a.newlabel('Lre')
            a(f's_cmp_eq_u32 {sL}, 0'); a(f's_cbranch_scc1 {Lr}')
        a(f's_mul_i32 {sT4}, {sT1}, 28672'); a(f's_lshl_b32 {sT2}, {sT2}, 11'); a(f's_add_u32 {sT4}, {sT4}, {sT2}')
        a(f's_add_u32 {sT4}, {sT4}, {sX}')
        f(f'buffer_load_dwordx4 v[{dst}:{dst+3}], {vL16}, {WS}, {sT4} offen {LDSC}', 'res')
        f(f'buffer_load_dwordx4 v[{dst+4}:{dst+7}], {vL16}, {WS}, {sT4} offen offset:1024 {LDSC}', 'res')
        if raw_l0:
            a(f's_branch {Le}')
            a.label(Lr)
            a(f's_lshl_b32 {sT4}, {sG}, 8'); a(f's_lshl_b32 {sT5}, {sT1}, 5'); a(f's_add_u32 {sT4}, {sT4}, {sT5}')
            a(f's_mul_i32 {sT4}, {sT4}, 896'); a(f's_lshl_b32 {sT5}, {sT2}, 6'); a(f's_add_u32 {sT4}, {sT4}, {sT5}')
            a(f'v_and_b32 v13, 31, {vLANE}'); a('v_mul_u32_u24 v13, 896, v13')
            a(f'v_lshrrev_b32 v14, 5, {vLANE}'); a('v_lshl_add_u32 v13, v14, 3, v13')
            for gq in range(4):
                a(f'buffer_load_dwordx2 v[{dst+2*gq}:{dst+2*gq+1}], v13, {AX}, {sT4} offen offset:{16*gq}')
            a.label(Le)

    def dest_pretouch(s, sXdst, sSTdst):
        if not PRET: return
        a = s.a
        s.tile_coords()
        a(f's_mul_i32 {sT4}, {sT1}, 28672'); a(f's_lshl_b32 {sT5}, {sT2}, 11'); a(f's_add_u32 {sT4}, {sT4}, {sT5}')
        a(f's_add_u32 {sT4}, {sT4}, {sXdst}')
        s.pretouch(sT4, 16)
        a(f's_mul_i32 {sT4}, {sT1}, 3584'); a(f's_lshl_b32 {sT5}, {sCT}, 9'); a(f's_add_u32 {sT4}, {sT4}, {sT5}')
        a(f's_add_u32 {sT4}, {sT4}, {sSTdst}')
        s.pretouch(sT4, 4)

    def red_addrs(s, RED, parts):
        a = s.a
        n = len(parts)
        for k, (slot, x) in enumerate(parts):
            a(f's_xor_b32 {sT0}, {sW}, {x}'); a(f's_mul_i32 {sT0}, {sT0}, {n}'); a(f's_add_u32 {sT0}, {sT0}, {k}')
            a(f's_lshl_b32 {sT0}, {sT0}, 12'); a(f's_add_u32 {sT0}, {sT0}, {RED}')
            a(f'v_add_u32 v{112+k}, {sT0}, {vL16}')
        a(f's_mul_i32 {sT0}, {sW}, {n*4096}'); a(f's_add_u32 {sT0}, {sT0}, {RED}')
        a(f'v_add_u32 v116, {sT0}, {vL16}')

    def red_write(s, ACC, RED, parts=(1, 2, 3), side=None):
        a = s.a
        for k, (slot, x) in enumerate(parts):
            for q in range(4):
                R = ACC + 16*slot + 4*q
                a.ds(f'ds_write_b128 v{112+k}, v[{R}:{R+3}] offset:{q*1024}', 'rw')
                if side is not None and q % 2 == 1: side.emit(a)
        a.wait_lg0()
        a('s_barrier')

    def red_list(s, ACC, resid, n=3):
        a = s.a
        T = ACC + 16
        L = []
        for k in range(n):
            for q in range(4):
                R = T + 16*k + 4*q
                L.append(lambda R=R, k=k, q=q: a.ds(f'ds_read_b128 v[{R}:{R+3}], v116 offset:{k*4096+q*1024}', ('rr', k)))
        U = ACC + 64
        for i in range(8):
            L += [f'v_lshlrev_b32 v{U+2*i}, 16, v{resid+i}', f'v_and_b32 v{U+2*i+1}, 0xffff0000, v{resid+i}']
        pr = lambda b, r: f'v[{b+r}:{b+r+1}]'
        for r in range(0, 16, 2):
            L.append(f'v_pk_add_f32 {pr(ACC,r)}, {pr(ACC,r)}, {pr(U,r)}')
        for k in range(n):
            L.append(lambda k=k: a.wait_lg(('rr', k)))
            for r in range(0, 16, 2):
                L.append(f'v_pk_add_f32 {pr(ACC,r)}, {pr(ACC,r)}, {pr(T+16*k,r)}')
        PK = ACC + 48 + 0
        for i in range(8):
            L.append(f'v_cvt_pk_bf16_f32 v{PK+i}, v{ACC+2*i}, v{ACC+2*i+1}')
        return L

    def store_x_list(s, ACC, sXdst, sSTdst):
        a = s.a
        PK = ACC + 48
        L = []
        def addr():
            s.tile_coords()
            a(f's_mul_i32 {sT4}, {sT1}, 28672'); a(f's_lshl_b32 {sT5}, {sT2}, 11'); a(f's_add_u32 {sT4}, {sT4}, {sT5}')
            a(f's_add_u32 {sT4}, {sT4}, {sXdst}')
            a.vmem(f'buffer_store_dwordx4 v[{PK}:{PK+3}], {vL16}, {WS}, {sT4} offen {STSC}', 'xs')
            a.vmem(f'buffer_store_dwordx4 v[{PK+4}:{PK+7}], {vL16}, {WS}, {sT4} offen offset:1024 {STSC}', 'xs')
        L.append(addr)
        pr = lambda b, r: f'v[{b+r}:{b+r+1}]'
        L += [f'v_pk_add_f32 v[12:13], {pr(ACC,0)}, {pr(ACC,2)}', f'v_pk_mul_f32 v[14:15], {pr(ACC,0)}, {pr(ACC,0)}']
        L.append(f'v_pk_fma_f32 v[14:15], {pr(ACC,2)}, {pr(ACC,2)}, v[14:15]')
        for r in range(4, 16, 2):
            L += [f'v_pk_add_f32 v[12:13], v[12:13], {pr(ACC,r)}', f'v_pk_fma_f32 v[14:15], {pr(ACC,r)}, {pr(ACC,r)}, v[14:15]']
        L += ['v_add_f32 v12, v12, v13', 'v_add_f32 v14, v14, v15', 'v_mov_b32 v13, v12', 'v_mov_b32 v15, v14',
              'v_permlane32_swap_b32 v12, v13', 'v_permlane32_swap_b32 v14, v15',
              'v_add_f32 v12, v12, v13', 'v_add_f32 v13, v14, v15']
        def st():
            a(f's_mul_i32 {sT4}, {sT1}, 3584'); a(f's_lshl_b32 {sT5}, {sCT}, 9'); a(f's_add_u32 {sT4}, {sT4}, {sT5}')
            a(f's_lshr_b32 {sT5}, {sW}, 1'); a(f's_lshl_b32 {sT5}, {sT5}, 3'); a(f's_add_u32 {sT4}, {sT4}, {sT5}')
            a(f's_add_u32 {sT4}, {sT4}, {sSTdst}')
            a('s_mov_b64 exec, 0xffffffff')
            a.vmem(f'buffer_store_dwordx2 v[12:13], {vL16}, {WS}, {sT4} offen {STSC}', 'xs')
            a('s_mov_b64 exec, -1')
        L.append(st)
        return L

    def store_out_list(s, ACC):
        a = s.a
        PK = ACC + 48
        L = []
        for e in range(2):
            L += [f'v_permlane32_swap_b32 v{PK+4*e}, v{PK+4*e+2}', f'v_permlane32_swap_b32 v{PK+4*e+1}, v{PK+4*e+3}']
        def st():
            s.tile_coords()
            a(f's_lshl_b32 {sT4}, {sG}, 8'); a(f's_lshl_b32 {sT5}, {sT1}, 5'); a(f's_add_u32 {sT4}, {sT4}, {sT5}')
            a(f's_mul_i32 {sT4}, {sT4}, 896'); a(f's_lshl_b32 {sT5}, {sT2}, 6'); a(f's_add_u32 {sT4}, {sT4}, {sT5}')
            a(f'v_and_b32 v12, 31, {vLANE}'); a('v_mul_u32_u24 v12, 896, v12')
            a(f'v_lshrrev_b32 v13, 5, {vLANE}'); a('v_lshl_add_u32 v12, v13, 4, v12')
            a(f'buffer_store_dwordx4 v[{PK}:{PK+3}], v12, {OUT}, {sT4} offen {OUTSC}')
            a(f'buffer_store_dwordx4 v[{PK+4}:{PK+7}], v12, {OUT}, {sT4} offen offset:32 {OUTSC}')
        L.append(st)
        return L

    def tile_addrs(s, sbase):
        a = s.a
        a(f's_lshr_b32 {sT0}, {sW}, 1'); a(f's_lshl_b32 {sT0}, {sT0}, 6')
        a(f'v_xor_b32 v14, {sT0}, {vTR0}')
        a(f'v_add_u32 v14, {sbase}, v14')
        a('v_xor_b32 v15, 64, v14')

    def p2b(s):
        a = s.a; g = s.g
        a.c('==== P2b')
        a.rawlabel('L_code_p2b')
        a(f's_lshr_b32 {sT5}, {sW}, 1'); a(f's_mul_i32 {sT5}, {sT5}, 28672'); a(f's_add_u32 {sT5}, {sT5}, {L_WO}')
        s.tile_addrs(sT5)
        a(f'v_lshrrev_b32 v12, 5, {vLANE}'); a('v_lshlrev_b32 v12, 9, v12')
        a('v_sub_u32 v13, v15, v12'); a('v_sub_u32 v12, v14, v12')
        a(f's_lshr_b32 {sT0}, {sTQ}, 1'); a(f's_lshl_b32 {sT0}, {sT0}, 4'); a(f's_lshl_b32 s81, 0xffff, {sT0}')
        a(f's_and_b32 {sT0}, {sW}, 1'); a(f's_lshl_b32 {sT1}, {sTQ}, 1')
        a(f's_add_u32 {sT0}, {sT0}, {sT1}'); a(f's_lshl_b32 {sT0}, {sT0}, 15'); a(f's_add_u32 {sT0}, {sT0}, {sO}')
        a(f's_lshr_b32 {sT1}, {sW}, 1'); a(f's_lshl_b32 {sT1}, {sT1}, 14'); a(f's_add_u32 s82, {sT0}, {sT1}')
        s.red_addrs(RED2, ((1, 2),))
        g.wait_flags(s.fl(1), 's81', vt='v10', va='v11')
        a.vm = []
        g.stamp('p2b hop done')
        def oload(i):
            if i % 4 == 0: a(f's_add_u32 s84, s82, {(i//4)*4096}')
            a.vmem(f'buffer_load_dwordx4 a[{4*i}:{4*i+3}], {vL16}, {WS}, s84 offen offset:{(i%4)*1024} {LDSC}', ('o', i))
        ACC = 16; FS = (80, 88, 104)
        def rd(i, reg, tag):
            off = (28*(i >> 1) + 16*(i & 1))*128
            for sl in range(2):
                va = ('v14', 'v15')[sl]
                vb = ('v12', 'v13')[sl] if (i & 1) else va
                a.ds(f'ds_read_b64_tr_b16 v[{reg+4*sl}:{reg+4*sl+1}], {va} offset:{off}', tag)
                a.ds(f'ds_read_b64_tr_b16 v[{reg+4*sl+2}:{reg+4*sl+3}], {vb} offset:{off+8*128}', tag)
        OD = int(os.environ.get('OD', '10'))
        for i in range(OD): oload(i)
        rd(0, FS[0], ('f', 0)); rd(1, FS[1], ('f', 1))
        for i in range(16):
            if i+2 < 16: rd(i+2, FS[(i+2) % 3], ('f', i+2))
            a.wait_lg(('f', i))
            a.wait_vm(('o', i))
            b0 = FS[i % 3]
            for sa in range(2):
                R = ACC + 16*sa
                c = '0' if i == 0 else f'v[{R}:{R+15}]'
                a(f'v_mfma_f32_32x32x16_bf16 v[{R}:{R+15}], v[{b0+4*sa}:{b0+4*sa+3}], a[{4*i}:{4*i+3}], {c}')
                if sa == 0 and i + OD < 16: oload(i + OD)
        g.stamp('p2b gemm')
        s.red_write(ACC, RED2, parts=((1, 2),))
        run_list(a, s.red_list(ACC, 224, n=1) + s.store_x_list(ACC, sX1, sST1))
        g.set_flag(s.fl(2))
        if G.CPF: g.wave_only(1, lambda: g.code_prefetch('L_code_p4', 'L_code_end', v='v14'))
        def late():
            a(f's_sub_u32 {sT0}, {sW}, 1')
            a(f's_lshl_b32 s90, {sM}, 7'); a(f's_mul_i32 s91, {sT0}, {8*3584}'); a(f's_add_u32 s90, s90, s91')
            a(f's_lshl_b32 s91, {sT0}, 10')
            def grp(srd, base, blk0, nblk):
                for n in range((nblk + 2)//3):
                    lastpartial = 3*n + 2 >= nblk
                    if lastpartial:
                        Lx = a.newlabel('Lx'); a(f's_cmp_gt_u32 {sW}, {nblk - 3*n}'); a(f's_cbranch_scc1 {Lx}')
                    s.dma_item(srd, vD3584, 's90', (blk0+3*n)*8*3584, 's91', base + (blk0+3*n)*1024, 'late', track=False)()
                    if lastpartial: a.label(Lx)
            if LATEU: grp(WU, L_WU, 28, 28)
            grp(WG, L_WG, 40, 16)
        g.wave_in(1, 4, late)
        a.vm = []
        g.stamp('p2b done')

    def gelu_list(s, G, U, csg, csu, NM, K, T, PK, packed):
        L = []
        pr = lambda b, r: f'v[{b+r}:{b+r+1}]'
        vA, vB, vV = f'v{K}', f'v{K+1}', f'v{K+2}'
        if packed:
            nm = int(NM[1:]); nmp = f'v[{nm & ~1}:{(nm & ~1)+1}]'; ns = nm & 1
            AB = f'v[{K}:{K+1}]'; VV = f'v[{K+2}:{K+3}]'
            for r in range(0, 16, 2): L.append(f'v_pk_fma_f32 {pr(G,r)}, {pr(csg,r)}, {nmp}, {pr(G,r)} op_sel:[0,{ns},0] op_sel_hi:[1,{ns},1]')
            for r in range(0, 16, 2): L.append(f'v_pk_fma_f32 {pr(U,r)}, {pr(csu,r)}, {nmp}, {pr(U,r)} op_sel:[0,{ns},0] op_sel_hi:[1,{ns},1]')
            for r in range(0, 16, 2): L.append(f'v_pk_mul_f32 {pr(T,r)}, {pr(G,r)}, {pr(G,r)}')
            for r in range(0, 16, 2): L.append(f'v_pk_fma_f32 {pr(T,r)}, {pr(T,r)}, {AB}, {AB} op_sel:[0,1,0] op_sel_hi:[1,1,0]')
            for r in range(0, 16, 2): L.append(f'v_pk_mul_f32 {pr(T,r)}, {pr(T,r)}, {pr(G,r)}')
            for r in range(0, 16, 2):
                L += [f'v_exp_f32 v{T+r}, v{T+r}', f'v_exp_f32 v{T+r+1}, v{T+r+1}', f'v_pk_mul_f32 {pr(U,r)}, {pr(U,r)}, {pr(G,r)}']
            for r in range(0, 16, 2): L.append(f'v_pk_fma_f32 {pr(T,r)}, {pr(T,r)}, {VV}, {VV} op_sel:[0,0,0] op_sel_hi:[1,0,0]')
            for r in range(16): L.append(f'v_rcp_f32 v{T+r}, v{T+r}')
            for r in range(0, 16, 2): L.append(f'v_pk_mul_f32 {pr(U,r)}, {pr(U,r)}, {pr(T,r)}')
        else:
            for r in range(16): L.append(f'v_fmac_f32 v{G+r}, {NM}, v{csg+r}')
            for r in range(16): L.append(f'v_fmac_f32 v{U+r}, {NM}, v{csu+r}')
            for r in range(16): L.append(f'v_mul_f32 v{T+r}, v{G+r}, v{G+r}')
            for r in range(16): L.append(f'v_fma_f32 v{T+r}, v{T+r}, {vB}, {vA}')
            for r in range(16): L.append(f'v_mul_f32 v{T+r}, v{T+r}, v{G+r}')
            for r in range(16):
                L += [f'v_exp_f32 v{T+r}, v{T+r}', f'v_mul_f32 v{U+r}, v{U+r}, v{G+r}']
            for r in range(16): L.append(f'v_fma_f32 v{T+r}, v{T+r}, {vV}, {vV}')
            for r in range(16): L.append(f'v_rcp_f32 v{T+r}, v{T+r}')
            for r in range(16): L.append(f'v_mul_f32 v{U+r}, v{U+r}, v{T+r}')
        for i in range(8):
            L.append(f'v_cvt_pk_bf16_f32 v{PK+i}, v{U+2*i}, v{U+2*i+1}')
        return L

    def p3(s):
        a = s.a; g = s.g
        a.c('==== P3')
        a(f'v_add_u32 v12, {L_WU}, {vTR0}'); a(f'v_add_u32 v13, {L_WU}, {vTR1}')
        for b in range(2):
            a(f's_lshl_b32 {sT0}, {sW}, 1'); a(f's_add_u32 {sT0}, {sT0}, {b}')
            a(f's_mul_i32 s{82+b}, {sT0}, 28672'); a(f's_add_u32 s{82+b}, s{82+b}, {sX1}')
            a(f's_mul_i32 s{86+b}, {sT0}, 3584'); a(f's_add_u32 s{86+b}, s{86+b}, {sST1}')
            a(f's_mul_i32 s{88+b}, {sT0}, 114688'); a(f's_add_u32 s{88+b}, s{88+b}, {sH}')
            a(f's_lshl_b32 {sT1}, {sM}, 12'); a(f's_add_u32 s{88+b}, s{88+b}, {sT1}')
        g.wait_flags(s.fl(2), 0x0fffffff, vt='v10', va='v11', keep_vm=True)
        g.stamp('p3 hop done')
        def xload(ks, b):
            a(f's_add_u32 {sT6}, s{82+b}, {(ks//4)*4096}')
            a.vmem(f'buffer_load_dwordx4 a[{8*ks+4*b}:{8*ks+4*b+3}], {vL16}, {WS}, {sT6} offen offset:{(ks%4)*1024} {LDSC}', ('x', ks, b))
        XD = int(os.environ.get('XD3', '5'))
        for ks in range(XD):
            xload(ks, 0); xload(ks, 1)
        GU = (((16, 32), (48, 64)), ((80, 96), (112, 128)))
        FS = (144, 152, 160)
        NM = ('v10', 'v11'); RS = ('v14', 'v15')
        STR = (168, 184); CSG = 168; CSU = 184; T = 200; PK = 216
        mk_misc = lambda: s.stats_load_items(STR[0], 's86', 'st', 'v234') + s.stats_load_items(STR[1], 's87', 'st', 'v235')
        misc = Side(mk_misc())
        NMs = ('v10', 'v11'); RSs = ('v14', 'v15')
        def stats_side():
            L = [lambda: a.wait_vm('st')]
            L += s.stats_list(STR[0], NMs[0], RSs[0], 'v234', 'v235') + s.stats_list(STR[1], NMs[1], RSs[1], 'v234', 'v235')
            for b in range(2):
                K = (250, 236)[b]
                L += [f'v_mul_f32 v234, {RSs[b]}, {RSs[b]}', f'v_mov_b32 v{K+2}, v{STR[b]+1}',
                      f'v_mul_f32 v{K}, {fbits(C0)}, {RSs[b]}', f'v_mul_f32 v234, v234, {RSs[b]}', f'v_mul_f32 v{K+1}, {fbits(C1)}, v234']
            return Side(L)
        def unit(c, side, per_beat, cs=True):
            vside = stats_side() if (c == 0 and STU0) else None
            vg = vTR0 if c == 0 else vTR1
            vu = 'v12' if c == 0 else 'v13'
            def rdg(ks):
                reg = FS[ks % 3]
                a.ds(f'ds_read_b64_tr_b16 v[{reg}:{reg+1}], {vg} offset:{L_WG+(16*ks)*128}', ('fg', ks))
                a.ds(f'ds_read_b64_tr_b16 v[{reg+2}:{reg+3}], {vg} offset:{L_WG+(16*ks+8)*128}', ('fg', ks))
            def rdu(ks):
                reg = FS[ks % 3] + 4
                a.ds(f'ds_read_b64_tr_b16 v[{reg}:{reg+1}], {vu} offset:{(16*ks)*128}', ('fu', ks))
                a.ds(f'ds_read_b64_tr_b16 v[{reg+2}:{reg+3}], {vu} offset:{(16*ks+8)*128}', ('fu', ks))
            (G_, U_) = GU[c]
            CF = (100, 104, 108)
            def rdc(ks):
                reg = CF[ks % 3]
                a.ds(f'ds_read_b64_tr_b16 v[{reg}:{reg+1}], v233 offset:{(16*ks)*128}', ('fc', ks))
                a.ds(f'ds_read_b64_tr_b16 v[{reg+2}:{reg+3}], v233 offset:{(16*ks+8)*128}', ('fc', ks))
            rdg(0); rdu(0); rdg(1); rdu(1)
            if c == 0 and cs: rdc(0); rdc(1)
            for ks in range(28):
                b0 = FS[ks % 3]
                if c == 0 and ks == (12 if LATEU else 18):
                    a('s_barrier')
                for j, (acc, fo, b) in enumerate(((G_[0], 0, 0), (G_[1], 0, 1), (U_[0], 4, 0), (U_[1], 4, 1))):
                    if c == 0 and j < 2: a.wait_vm(('x', ks, b))
                    if j == 0: a.wait_lg(('fg', ks))
                    if j == 2: a.wait_lg(('fu', ks))
                    cc = '0' if ks == 0 else f'v[{acc}:{acc+15}]'
                    a(f'v_mfma_f32_32x32x16_bf16 v[{acc}:{acc+15}], v[{b0+fo}:{b0+fo+3}], a[{8*ks+4*b}:{8*ks+4*b+3}], {cc}')
                    if j == 0 and ks+2 < 28: rdg(ks+2)
                    if j == 2 and ks+2 < 28: rdu(ks+2)
                    if c == 0 and cs and j == 3:
                        a.wait_lg(('fc', ks))
                        reg = CF[ks % 3]
                        cc2 = '0' if ks == 0 else 'v[200:215]'
                        a(f'v_mfma_f32_32x32x16_bf16 v[200:215], v[{reg}:{reg+3}], v[96:99], {cc2}')
                        if ks+2 < 28: rdc(ks+2)
                    if c == 0:
                        if j in (0, 2) and ks + XD < 28: xload(ks+XD, j >> 1)
                        if STU0:
                            if j == 3 and 6 <= ks <= 20 and ks % 2 == 0: side.emit(a)
                            if ks >= 24: vside.emit_budget(a, 5)
                        elif j == 3 and ks >= 12 and ks % 2 == 0: side.emit(a)
                    else:
                        side.emit_budget(a, per_beat[j])
            side.flush(a)
            if vside is not None: vside.flush(a)
        a(f's_and_b32 {sT0}, {sW}, 1'); a(f's_lshl_b32 {sT0}, {sT0}, 6'); a(f'v_xor_b32 v233, {sT0}, {vTR0}')
        a(f's_lshr_b32 {sT0}, {sW}, 1'); a(f's_mul_i32 {sT0}, {sT0}, {L_WU}'); a(f'v_add_u32 v233, {sT0}, v233')
        for i in range(4): a(f'v_mov_b32 v{96+i}, 0x3f803f80')
        if CS1:
            unit(0, misc, None)
        else:
            Lu1 = a.newlabel('Lu1'); Lue = a.newlabel('Lue')
            a(f's_cmp_lg_u32 {sL}, 0'); a(f's_cbranch_scc1 {Lu1}')
            vm0, lg0 = list(a.vm), list(a.lg)
            unit(0, misc, None)
            vmA, lgA = list(a.vm), list(a.lg)
            a(f's_branch {Lue}')
            a.label(Lu1)
            a.vm, a.lg = list(vm0), list(lg0)
            unit(0, Side(mk_misc()), None, cs=False)
            assert a.vm == vmA and a.lg == lgA, (a.vm, vmA, a.lg, lgA)
            a.label(Lue)
        vm_st = None
        s.resid_loads(224, sX1)
        if not IDLEP:
            if not HSC:
                s.pretouch('s88', 32); s.pretouch('s89', 32)
        g.stamp('p3 gemm 0')
        prel = []
        def csw():
            a(f's_lshl_b32 {sT1}, {sW}, 7'); a(f's_add_u32 {sT1}, {sT1}, {M_CSFF}')
            a(f'v_add_u32 v232, {sT1}, {vCS}')
            a('s_mov_b32 exec_lo, 1'); a('s_mov_b32 exec_hi, 1')
            for gq in range(4):
                a.ds(f'ds_write_b128 v232, v[{200+4*gq}:{203+4*gq}] offset:{32*gq}', 'csw')
            a('s_mov_b64 exec, -1')
        if not CS1:
            csw_body = csw
            def csw():
                Lx = a.newlabel('Lx'); a(f's_cmp_lg_u32 {sL}, 0'); a(f's_cbranch_scc1 {Lx}')
                lg = list(a.lg)
                csw_body()
                a('s_waitcnt lgkmcnt(0)')
                a.rawlabel(Lx)
                a('s_waitcnt lgkmcnt(0)')
                a.lg = []
        csw.cost = 6
        KC = (250, 236)
        if STU0:
            prel.append(csw)
        else:
            prel.append(lambda: a.wait_vm('st'))
            prel += s.stats_list(STR[0], NM[0], RS[0], 'v234', 'v235')
            prel.append(csw)
            prel += s.stats_list(STR[1], NM[1], RS[1], 'v234', 'v235')
            for b in range(2):
                K = KC[b]
                prel += [f'v_mul_f32 v234, {RS[b]}, {RS[b]}', f'v_mov_b32 v{K+2}, v{STR[b]+1}',
                         f'v_mul_f32 v{K}, {fbits(C0)}, {RS[b]}', f'v_mul_f32 v234, v234, {RS[b]}', f'v_mul_f32 v{K+1}, {fbits(C1)}, v234']
        def csb():
            a.wait_lg('csw'); a('s_barrier')
            a(f'v_add_u32 v232, {M_CSFF}, {vCS}')
        csb.cost = 2
        prel.append(csb)
        def epi(c, packed):
            L = []
            if c == 0: L += s.cs_read_items(CSG, 128*c, 'cs', 'v232') + s.cs_read_items(CSU, 256+128*c, 'cs', 'v232')
            L.append(lambda: a.wait_lg('cs'))
            for b in range(2):
                L += s.gelu_list(GU[c][0][b], GU[c][1][b], CSG, CSU, NM[b], KC[b], T, PK, packed)
                def st(b=b):
                    a.vmem(f'buffer_store_dwordx4 v[{PK}:{PK+3}], {vL16}, {WS}, s{88+b} offen offset:{2*c*1024} {HSC or STSC}', 'hs')
                    a.vmem(f'buffer_store_dwordx4 v[{PK+4}:{PK+7}], {vL16}, {WS}, s{88+b} offen offset:{(2*c+1)*1024} {HSC or STSC}', 'hs')
                L.append(st)
            return L
        e0 = epi(0, False)
        a(f's_mul_i32 s90, {sW}, {448*896}'); a(f's_lshl_b32 {sT1}, {sCT}, 7'); a(f's_add_u32 s90, s90, {sT1}')
        a(f's_mul_i32 s85, {sW}, {NRA*1024}'); a(f's_add_u32 s85, s85, {RA}')
        a(f's_mul_i32 s91, {sW}, 28672'); a(f's_cmp_ge_u32 {sW}, 2'); a(f's_cselect_b32 {sT0}, 47104, 0'); a(f's_add_u32 s91, s91, {sT0}')
        a(f's_sub_u32 s91, s91, {NRA*1024}')
        extra = []
        for i in range(NRA):
            f = s.wd_item(i); f.cost = 3; extra.append(f)
        if MAINW:
            def wdt(i):
                def f():
                    a(f's_add_u32 {sT0}, s67, {16*i*896}')
                    a('s_mov_b64 exec, ' + ('0xffff' if i < 5 else '0x3ff'))
                    a.vmem(f'buffer_load_dword {vDUM}, v233, {WD}, {sT0} offen', 'tw')
                    a('s_mov_b64 exec, -1')
                f.cost = 2
                return f
            a(f'v_mul_u32_u24 v233, 896, {vLANE}')
            a(f's_mul_i32 {sT0}, {sTQ}, 90'); a(f's_add_u32 {sT0}, {sT0}, 88'); a(f's_mul_i32 {sT0}, {sT0}, 896'); a(f's_add_u32 s67, {sT0}, s90')
            extra += [wdt(i) for i in range(6)]
        step = (len(e0) - 20)//len(extra)
        out = []
        for i, f in enumerate(extra):
            out += e0[i*step:(i+1)*step] + [f]
        e0 = out + e0[len(extra)*step:]
        e0 = prel + e0 + s.cs_read_items(CSG, 128, 'cs', 'v232') + s.cs_read_items(CSU, 256+128, 'cs', 'v232')
        unit(1, Side(e0), (BUD_A, BUD_B, BUD_A, BUD_B))
        g.stamp('p3 gemm 1')
        a('s_barrier')
        NA = NRA + int(os.environ.get('NE1', '12'))
        e1 = epi(1, True)
        run_list(a, e1, Side([s.wd_item(i) for i in range(NRA, NA)]), max(1, len(e1)//(NA-NRA+2)))
        g.stamp('p3 epi 1')
        s.p3_tail(NA)

    def p3t(s):
        a = s.a; g = s.g
        a.c('==== P3')
        a(f'v_add_u32 v12, {L_WU}, {vTR0}'); a(f'v_add_u32 v13, {L_WU}, {vTR1}')
        for b in range(2):
            a(f's_lshl_b32 {sT0}, {sW}, 1'); a(f's_add_u32 {sT0}, {sT0}, {b}')
            a(f's_mul_i32 s{82+b}, {sT0}, 28672'); a(f's_add_u32 s{82+b}, s{82+b}, {sX1}')
            a(f's_mul_i32 s{86+b}, {sT0}, 3584'); a(f's_add_u32 s{86+b}, s{86+b}, {sST1}')
            a(f's_mul_i32 s{88+b}, {sT0}, 114688'); a(f's_add_u32 s{88+b}, s{88+b}, {sH}')
            a(f's_lshl_b32 {sT1}, {sM}, 12'); a(f's_add_u32 s{88+b}, s{88+b}, {sT1}')
        a(f's_and_b32 {sT0}, {sW}, 1'); a(f's_lshl_b32 {sT0}, {sT0}, 6'); a(f'v_xor_b32 v233, {sT0}, {vTR0}')
        a(f's_lshr_b32 {sT0}, {sW}, 1'); a(f's_mul_i32 {sT0}, {sT0}, {L_WU}'); a(f'v_add_u32 v233, {sT0}, v233')
        for i in range(4): a(f'v_mov_b32 v{96+i}, 0x3f803f80')
        g.wait_flags(s.fl(2), 0x0fffffff, vt='v10', va='v11', keep_vm=True)
        g.stamp('p3 hop done')
        def xload(ks, b):
            a(f's_add_u32 {sT6}, s{82+b}, {(ks//4)*4096}')
            a.vmem(f'buffer_load_dwordx4 a[{8*ks+4*b}:{8*ks+4*b+3}], {vL16}, {WS}, {sT6} offen offset:{(ks%4)*1024} {LDSC}', ('x', ks, b))
        XD = int(os.environ.get('XD3', '5'))
        for ks in range(XD): xload(ks, 0)
        GU = (((16, 32), (48, 64)), ((80, 96), (112, 128)))
        FRG = (('v', 144), ('v', 148), ('v', 152), ('v', 156), ('a', 224), ('a', 228), ('a', 232), ('a', 236), ('v', 160), ('v', 164), ('a', 240), ('a', 244))
        NM = ('v10', 'v11'); RS = ('v14', 'v15'); KC = (250, 236)
        CSG = 168; CSU = 184; T = 200; PK = 216
        def kconst(b, src):
            K = KC[b]
            return [f'v_mul_f32 v234, {RS[b]}, {RS[b]}', f'v_mov_b32 v{K+2}, v{src+1}',
                    f'v_mul_f32 v{K}, {fbits(C0)}, {RS[b]}', f'v_mul_f32 v234, v234, {RS[b]}', f'v_mul_f32 v{K+1}, {fbits(C1)}, v234']
        def rd(ks, t):
            c, mat = t >> 1, t & 1
            kind, reg = FRG[4*(ks % 3) + t]
            va = ((vTR0, vTR1), ('v12', 'v13'))[mat][c]
            base = L_WG if mat == 0 else 0
            a.ds(f'ds_read_b64_tr_b16 {kind}[{reg}:{reg+1}], {va} offset:{base+(16*ks)*128}', ('f', ks, t))
            a.ds(f'ds_read_b64_tr_b16 {kind}[{reg+2}:{reg+3}], {va} offset:{base+(16*ks+8)*128}', ('f', ks, t))
        CF = (100, 104, 108)
        def rdc(ks):
            reg = CF[ks % 3]
            a.ds(f'ds_read_b64_tr_b16 v[{reg}:{reg+1}], v233 offset:{(16*ks)*128}', ('fc', ks))
            a.ds(f'ds_read_b64_tr_b16 v[{reg+2}:{reg+3}], v233 offset:{(16*ks+8)*128}', ('fc', ks))
        B_IN_A = [ks for ks in range(28) if ks % 7 not in (3, 6)]
        def pass_(b, side, budget, cs, side_from=0, vm_items=None):
            nb = [0]
            for ks in range(2):
                for t in range(4): rd(ks, t)
                if cs: rdc(ks)
            for ks in range(28):
                if b == 0 and ks == (12 if LATEU else 18):
                    a('s_barrier')
                for j in range(4):
                    if j == 0: a.wait_vm(('x', ks, b))
                    if j in (0, 2): a.wait_lg(('f', ks, j+1))
                    c, mat = j >> 1, j & 1
                    acc = GU[c][mat][b]
                    kind, reg = FRG[4*(ks % 3) + j]
                    cc = '0' if ks == 0 else f'v[{acc}:{acc+15}]'
                    a(f'v_mfma_f32_32x32x16_bf16 v[{acc}:{acc+15}], {kind}[{reg}:{reg+3}], a[{8*ks+4*b}:{8*ks+4*b+3}], {cc}')
                    if ks+2 < 28: rd(ks+2, j)
                    if b == 0:
                        if j == 0 and ks + XD < 28: xload(ks + XD, 0)
                        if j == 2 and ks in B_IN_A: xload(nb[0], 1); nb[0] += 1
                        if j == 3 and vm_items is not None and ks >= 12 and ks % 2 == 0: vm_items.emit(a)
                        if cs and j == 3:
                            a.wait_lg(('fc', ks))
                            r = CF[ks % 3]
                            cc2 = '0' if ks == 0 else 'v[200:215]'
                            a(f'v_mfma_f32_32x32x16_bf16 v[200:215], v[{r}:{r+3}], v[96:99], {cc2}')
                            if ks+2 < 28: rdc(ks+2)
                    else:
                        if j == 2 and ks < 8: xload(20 + ks, 1)
                    if ks >= side_from: side.emit_budget(a, budget[j])
            side.flush(a)
        def sideA():
            return Side([lambda: a.wait_vm('st')] + s.stats_list(168, NM[0], RS[0], 'v234', 'v235') + kconst(0, 168))
        mkst = lambda: Side(s.stats_load_items(168, 's86', 'st', 'v234'))
        Lu1 = a.newlabel('Lu1'); Lue = a.newlabel('Lue')
        a(f's_cmp_lg_u32 {sL}, 0'); a(f's_cbranch_scc1 {Lu1}')
        vm0, lg0 = list(a.vm), list(a.lg)
        pass_(0, sideA(), (4, 4, 4, 4), True, side_from=24, vm_items=mkst())
        vmA, lgA = list(a.vm), list(a.lg)
        a(f's_branch {Lue}')
        a.label(Lu1)
        a.vm, a.lg = list(vm0), list(lg0)
        pass_(0, sideA(), (4, 4, 4, 4), False, side_from=24, vm_items=mkst())
        assert a.vm == vmA and a.lg == lgA, (a.vm, vmA, a.lg, lgA)
        a.label(Lue)
        s.resid_loads(224, sX1)
        g.stamp('p3 gemm 0')
        def csw():
            Lx = a.newlabel('Lx'); a(f's_cmp_lg_u32 {sL}, 0'); a(f's_cbranch_scc1 {Lx}')
            a(f's_lshl_b32 {sT1}, {sW}, 7'); a(f's_add_u32 {sT1}, {sT1}, {M_CSFF}')
            a(f'v_add_u32 v232, {sT1}, {vCS}')
            a('s_mov_b32 exec_lo, 1'); a('s_mov_b32 exec_hi, 1')
            for gq in range(4):
                a(f'ds_write_b128 v232, v[{200+4*gq}:{203+4*gq}] offset:{32*gq}')
            a('s_mov_b64 exec, -1')
            a.rawlabel(Lx)
            a('s_waitcnt lgkmcnt(0)')
            a.lg = []
            a('s_barrier')
            a(f'v_add_u32 v232, {M_CSFF}, {vCS}')
        csw.cost = 6
        csr = lambda c: s.cs_read_items(CSG, 128*c, 'cs', 'v232') + s.cs_read_items(CSU, 256+128*c, 'cs', 'v232')
        def hstore(b, c):
            def st():
                a.vmem(f'buffer_store_dwordx4 v[{PK}:{PK+3}], {vL16}, {WS}, s{88+b} offen offset:{2*c*1024} {HSC or STSC}', 'hs')
                a.vmem(f'buffer_store_dwordx4 v[{PK+4}:{PK+7}], {vL16}, {WS}, s{88+b} offen offset:{(2*c+1)*1024} {HSC or STSC}', 'hs')
            st.cost = 2
            return st
        def epi(b, packed, tail_reads):
            n0 = 16 if packed else 32
            L = [lambda: a.wait_lg('cs')]
            g0 = s.gelu_list(GU[0][0][b], GU[0][1][b], CSG, CSU, NM[b], KC[b], T, PK, packed)
            L += g0[:n0] + csr(1) + g0[n0:] + [hstore(b, 0)]
            mid = []
            if b == 0:
                mid = s.stats_load_items(16, 's87', 'st1', 'v234')
            L += mid + [lambda: a.wait_lg('cs')]
            g1 = s.gelu_list(GU[1][0][b], GU[1][1][b], CSG, CSU, NM[b], KC[b], T, PK, packed)
            L += g1[:n0] + (csr(0) if tail_reads else []) + g1[n0:] + [hstore(b, 1)]
            if b == 0:
                L += [lambda: a.wait_vm('st1')] + s.stats_list(16, NM[1], RS[1], 'v234', 'v235') + kconst(1, 16)
            return L
        e0 = epi(0, False, True)
        a(f's_mul_i32 s90, {sW}, {448*896}'); a(f's_lshl_b32 {sT1}, {sCT}, 7'); a(f's_add_u32 s90, s90, {sT1}')
        a(f's_mul_i32 s85, {sW}, {NRA*1024}'); a(f's_add_u32 s85, s85, {RA}')
        a(f's_mul_i32 s91, {sW}, 28672'); a(f's_cmp_ge_u32 {sW}, 2'); a(f's_cselect_b32 {sT0}, 47104, 0'); a(f's_add_u32 s91, s91, {sT0}')
        a(f's_sub_u32 s91, s91, {NRA*1024}')
        extra = []
        for i in range(NRA):
            f = s.wd_item(i); f.cost = 3; extra.append(f)
        if MAINW:
            def wdt(i):
                def f():
                    a(f's_add_u32 {sT0}, s67, {16*i*896}')
                    a('s_mov_b64 exec, ' + ('0xffff' if i < 5 else '0x3ff'))
                    a.vmem(f'buffer_load_dword {vDUM}, v233, {WD}, {sT0} offen', 'tw')
                    a('s_mov_b64 exec, -1')
                f.cost = 2
                return f
            a(f'v_mul_u32_u24 v233, 896, {vLANE}')
            a(f's_mul_i32 {sT0}, {sTQ}, 90'); a(f's_add_u32 {sT0}, {sT0}, 88'); a(f's_mul_i32 {sT0}, {sT0}, 896'); a(f's_add_u32 s67, {sT0}, s90')
            extra += [wdt(i) for i in range(6)]
        lo = 60
        step = (len(e0) - lo - 50)//len(extra)
        out = e0[:lo]
        for i, f in enumerate(extra):
            out += e0[lo+i*step:lo+(i+1)*step] + [f]
        e0 = out + e0[lo+len(extra)*step:]
        pass_(1, Side([csw] + csr(0) + e0), (int(os.environ.get('BT_A', '4')), int(os.environ.get('BT_B', '5')))*2, False)
        g.stamp('p3 gemm 1')
        a('s_barrier')
        NA = NRA + int(os.environ.get('NE1', '12'))
        e1 = epi(1, True, False)
        run_list(a, e1, Side([s.wd_item(i) for i in range(NRA, NA)]), max(1, len(e1)//(NA-NRA+2)))
        g.stamp('p3 epi 1')
        s.p3_tail(NA)

    def p3_tail(s, NA):
        a = s.a; g = s.g
        g.set_flag(s.fl(3))
        def ringb():
            for i in range(NA, NSLOT): s.wd_item(i, track=False)()
            nb = NSLOT - NA
            a(f's_sub_u32 {sT0}, {sW}, 1'); a(f's_mul_i32 {sT1}, {sT0}, {8*896}'); a(f's_lshl_b32 {sT3}, {sCT}, 7'); a(f's_add_u32 s86, {sT1}, {sT3}')
            a(f's_lshl_b32 s87, {sT0}, 10')
            for n in range((nb+2)//3):
                partial = 3*n + 2 >= nb
                if partial:
                    Lx = a.newlabel('Lx'); a(f's_cmp_gt_u32 {sW}, {nb - 3*n}'); a(f's_cbranch_scc1 {Lx}')
                s.dma_item(WD, vD896, 's86', (NA+3*n)*8*896, 's87', (NA-NRA+3*n)*1024, 'Wb', track=False)()
                if partial: a.label(Lx)
        g.wave_in(1, 4, ringb)
        if G.CPF and G.CPF4: g.wave_only(1, lambda: g.code_prefetch('L_layer', 'L_code_p2b', v='v14'))
        a.vm = []
        g.stamp('p3 done')

    def wd_item(s, blk, track=True):
        slot = blk % NSLOT
        return s.dma_item(WD, vD896, 's90', blk*8*896, 's85' if slot < NRA else 's91', slot*1024, ('W', blk), track=track)

    def p4(s):
        a = s.a; g = s.g
        a.c('==== P4')
        a.rawlabel('L_code_p4')
        a(f's_add_u32 {sT5}, s91, {NRA*1024}')
        s.tile_addrs(sT5)
        a(f's_sub_u32 {sT0}, s85, {sT5}'); a(f'v_add_u32 v12, {sT0}, v14'); a('v_xor_b32 v13, 64, v12')
        for b in range(2):
            a(f's_and_b32 {sT0}, {sW}, 1'); a(f's_xor_b32 {sT0}, {sT0}, {b}'); a(f's_lshl_b32 {sT1}, {sTQ}, 1')
            a(f's_add_u32 {sT0}, {sT0}, {sT1}'); a(f's_mul_i32 {sT0}, {sT0}, 114688'); a(f's_add_u32 {sT0}, {sT0}, {sH}')
            a(f's_mul_i32 {sT1}, {sW}, {28*1024}'); a(f's_add_u32 s{82+b}, {sT0}, {sT1}')
        s.red_addrs(RED4, ((1, 1), (2, 2), (3, 3)))
        s.wait_saved()
        g.wait_flags(s.fl(3), 0x0fffffff, vt='v10', va='v11', keep_vm=True)
        g.stamp('p4 hop done')
        wd = s.wd_item
        def hload(ks, b):
            a(f's_add_u32 {sT6}, s{82+b}, {(ks//4)*4096}')
            a.vmem(f'buffer_load_dwordx4 a[{8*ks+4*b}:{8*ks+4*b+3}], {vL16}, {WS}, {sT6} offen offset:{(ks%4)*1024} {LDSC}', ('h', ks, b))
        HD = int(os.environ.get('HD', '6'))
        for ks in range(HD):
            hload(ks, 0); hload(ks, 1)
        ACC = 16; FS = (80, 88, 104)
        def rd(ks):
            reg = FS[ks % 3]
            a.wait_vm(('W', 2*ks+1))
            for sl in range(2):
                for b in range(2):
                    slot = (2*ks + b) % NSLOT
                    va = ('v12', 'v13')[sl] if slot < NRA else ('v14', 'v15')[sl]
                    off = (slot if slot < NRA else slot - NRA)*1024
                    a.ds(f'ds_read_b64_tr_b16 v[{reg+4*sl+2*b}:{reg+4*sl+2*b+1}], {va} offset:{off}', ('f', ks, sl))
        rd(0); rd(1)
        for ks in range(28):
            b0 = FS[ks % 3]
            if ks == 7:
                a('s_barrier')
            for j, (sa, sb) in enumerate(((0, 0), (0, 1), (1, 0), (1, 1))):
                if j < 2: a.wait_vm(('h', ks, sb))
                if j in (0, 2): a.wait_lg(('f', ks, sa))
                R = ACC + 16*(2*sa+sb)
                c = '0' if ks == 0 else f'v[{R}:{R+15}]'
                a(f'v_mfma_f32_32x32x16_bf16 v[{R}:{R+15}], v[{b0+4*sa}:{b0+4*sa+3}], a[{8*ks+4*sb}:{8*ks+4*sb+3}], {c}')
                if j == 0 and ks+2 < 28: rd(ks+2)
                if j in (0, 2) and ks + HD < 28: hload(ks+HD, j >> 1)
                if j in (1, 3) and ks >= 1 and 2*(ks-1) + NSLOT < 56: wd(2*(ks-1) + NSLOT + (j >> 1))()
        g.stamp('p4 gemm')
        a('s_barrier')
        P3W = ((1, 1), (2, 2), (3, 3))
        Lf = a.newlabel('Lfin'); Le = a.newlabel('Lp4e')
        a(f's_cmp_lg_u32 {sL}, 0'); a(f's_cbranch_scc1 {Lf}')
        side = Side(s.wq_items())
        s.red_write(ACC, RED4, parts=P3W, side=side)
        Lr = s.red_list(ACC, 224)
        n_in = int(os.environ.get('NIN', '8'))
        part = Side([side.q.popleft() for _ in range(n_in)])
        run_list(a, Lr, part, max(1, len(Lr)//(n_in+1)))
        run_list(a, s.store_x_list(ACC, sXO, sSTO))
        g.set_flag(s.fl(4))
        side.flush(a)
        a(f's_branch {Le}')
        a.label(Lf)
        a.vm = []; a.lg = []
        s.red_write(ACC, RED4, parts=P3W)
        Lr_ = s.red_list(ACC, 224)
        if os.environ.get('BIAS'):
            i0 = min(i for i, it in enumerate(Lr_) if isinstance(it, str) and it.startswith('v_cvt_pk'))
            Lr_ = Lr_[:i0] + [f'v_add_f32 v{ACC+r}, {fbits(float(os.environ["BIAS"]))}, v{ACC+r}' for r in range(16)] + Lr_[i0:]
        run_list(a, Lr_ + s.store_out_list(ACC))
        a('s_branch L_fin')
        a.label(Le)
        g.stamp('p4 epi')

    def run(s):
        a = s.a; g = s.g; stop = s.stop
        a.label('L_layer')
        s.layer_setup()
        s.p1()
        s.p2a()
        a(f's_cmp_ge_u32 {sM}, 28'); a('s_cbranch_scc1 L_idle')
        s.p2b()
        (s.p3t if BYTB else s.p3)()
        s.p4()
        a('s_branch L_next')
        a.label('L_idle')
        a.vm = []; a.lg = []
        a(f's_sub_u32 {sT0}, {sM}, 28'); a(f's_lshl_b32 {sT0}, {sT0}, 2'); a(f's_add_u32 s86, {sT0}, {sW}')
        if LATEU:
            a(f's_mul_i32 s87, s86, {392*128}'); a(f's_add_u32 s87, s87, {224*3584}')
            for i in range(7):
                a(f's_add_u32 {sT1}, s87, {i*64*128}')
                if i == 6: a('s_mov_b64 exec, 0xff')
                a(f'buffer_load_dword {vDUM}, {vL128}, {WU}, {sT1} offen')
                if i == 6: a('s_mov_b64 exec, -1')
            a(f's_mul_i32 s87, s86, {224*128}'); a(f's_add_u32 s87, s87, {320*3584}')
            for i in range(4):
                a(f's_add_u32 {sT1}, s87, {i*64*128}')
                if i == 3: a('s_mov_b64 exec, 0xffffffff')
                a(f'buffer_load_dword {vDUM}, {vL128}, {WG}, {sT1} offen')
                if i == 3: a('s_mov_b64 exec, -1')
        if IDLEP and PRET:
            if not HSC:
                a(f's_mul_i32 s87, s86, {448*128}'); a(f's_add_u32 s87, s87, {sH}')
                for i in range(7):
                    a(f's_add_u32 {sT1}, s87, {i*64*128}')
                    a(f'buffer_load_dword {vDUM}, {vL128}, {WS}, {sT1} offen')
        if IDLEW:
            a(f's_mul_i32 s87, s86, {784*128}')
            for i in range(13):
                a(f's_add_u32 {sT1}, s87, {i*64*128}')
                a(f'buffer_load_dword {vDUM}, {vL128}, {WD}, {sT1} offen')
        Li0 = a.newlabel('Lidle0')
        a(f's_cmp_eq_u32 {sL}, 0'); a(f's_cbranch_scc1 {Li0}')
        if WBL:
            g.wait_flags(s.fl(3), 0x0fffffff, vt='v10', va='v11', drain=True)
            def wb():
                Lx = a.newlabel('Lx'); a(f's_cmp_lg_u32 {sM}, 28'); a(f's_cbranch_scc1 {Lx}')
                a('buffer_wbl2 sc1'); a('s_waitcnt vmcnt(0)')
                a.label(Lx)
            g.wave_only(0, wb)
        a('s_branch L_fin')
        a.label(Li0)
        if IDLEP and PRET:
            a(f's_mul_i32 s87, s86, {112*128}'); a(f's_add_u32 s87, s87, {sXO}')
            for i in range(2):
                a(f's_add_u32 {sT1}, s87, {i*64*128}')
                if i == 1: a('s_mov_b32 exec_hi, 0xffff')
                a(f'buffer_load_dword {vDUM}, {vL128}, {WS}, {sT1} offen')
                if i == 1: a('s_mov_b64 exec, -1')
            a(f's_mul_i32 s87, s86, {14*128}'); a(f's_add_u32 s87, s87, {sSTO}')
            a('s_mov_b64 exec, 0x3fff')
            a(f'buffer_load_dword {vDUM}, {vL128}, {WS}, s87 offen')
            a('s_mov_b64 exec, -1')
        s.wait_saved(all_heads=True)
        a('s_waitcnt vmcnt(0)'); a('s_barrier')
        for it in s.wq_items(): it()
        if IDLEQ:
            g.wait_flags(s.fl(3), 0x0fffffff, vt='v10', va='v11', drain=True)
            a(f's_mul_i32 s87, s86, {672*128}'); a(f's_add_u32 s87, s87, {G0 + WQ}')
            for i in range(11):
                a(f's_add_u32 {sT1}, s87, {i*64*128}')
                a(f'buffer_load_dword {vDUM}, {vL128}, {WS}, {sT1} offen')
        a.label('L_next')
        a.vm = []; a.lg = []
        a(f's_mul_i32 {sT0}, {sHALF}, 14'); a(f's_lshl_b32 s81, 0x3fff, {sT0}')
        g.wait_flags(s.fl(4), 's81', vt='v10', va='v11', drain=True)
        g.stamp('p4 hop(x2)')
        a(f's_mov_b32 {sL}, 1')
        a('s_branch L_layer')
```

```python
import sys
from asmlib import Asm
from layout import *

NAME = 'interleave_layers__linear_kernel_hedgehog__geglu_ffn__prompt_kernel'

WS='s[4:7]'; WO='s[8:11]'; WG='s[12:15]'; WU='s[16:19]'; WD='s[20:23]'; OUT='s[24:27]'; DBG='s[28:31]'
AX='s[32:35]'; WQKV='s[36:39]'; WPHI='s[40:43]'
sG='s44'; sM='s45'; sW='s46'; sL='s47'; sHEAVY='s48'; sGB='s49'; sTO='s50'
sXIN='s51'; sSTIN='s52'; sX1='s53'; sST1='s54'; sXO='s55'; sSTO='s56'; sO='s57'; sH='s58'; sKV='s59'; sKVC='s60'; sFL='s61'
sXCC='s62'; sHEAD='s63'; sHALF='s64'; sTQ='s65'; sCT='s66'
sUP='s[96:97]'
sT0='s68'; sT1='s69'; sT2='s70'; sT3='s71'; sT4='s72'; sT5='s73'; sT6='s74'; sT7='s75'
sP0='s[76:77]'; sP1='s[78:79]'
vLANE='v0'; vL16='v1'; vTR64='v2'; vTR0='v3'; vTR1='v4'; vD896='v5'; vD3584='v6'; vSTA='v7'; vCS='v8'; vSTAMP='v9'
LDS_TOTAL = 163840
MISC = LDS_TOTAL - 2048
M_MODE = MISC
M_CSQKV = MISC + 128
M_CSFF  = MISC + 512
L_WK=0; L_WV=28672; L_WQ=57344
L_PHI=86016; L_VI=102400; L_KVF=110592
LOG2E = 1.4426950408889634
import os
STSC = os.environ.get('STSC','')
STSC0 = os.environ.get('STSC0','sc1')
CPF = int(os.environ.get('CPF','2'))
CPF4 = int(os.environ.get('CPF4','1'))
WARM = int(os.environ.get('WARM','1'))
TIMEOUT = 100000
TOUCH0 = int(os.environ.get('TOUCH0','1'))

def fbits(x):
    import struct
    return '0x%08x' % struct.unpack('<I', struct.pack('<f', x))[0]

class Gen:
    def __init__(s, stop_after=None, stamps=False, force_heavy=False):
        s.a = Asm(); s.stop_after = stop_after; s.stamps = stamps; s.force_heavy = force_heavy
        s.nstamp = 0
        s.stamp_names = []

    def stamp(s, name):
        if not s.stamps: return
        if os.environ.get('STAMPMIN') and name != 'start': return
        a = s.a
        i = s.nstamp; s.nstamp += 1; s.stamp_names.append(name)
        a('s_waitcnt lgkmcnt(0)'); a.lg = []
        a('s_memrealtime s[94:95]' if os.environ.get('RT') else 's_memtime s[94:95]')
        a('s_waitcnt lgkmcnt(0)')
        a(f's_lshl_b32 s95, {sL}, 5')
        a(f's_add_u32 s95, s95, {i}')
        a('s_mov_b32 s93, m0')
        a('s_mov_b32 m0, s95')
        a(f'v_writelane_b32 {vSTAMP}, s94, m0')
        a('s_mov_b32 m0, s93')

    def wave_only(s, w, fn):
        a = s.a
        L = a.newlabel('Lw')
        a(f's_cmp_lg_u32 {sW}, {w}')
        a(f's_cbranch_scc1 {L}')
        fn()
        a.label(L)

    def wave_in(s, lo, hi, fn):
        a = s.a
        L = a.newlabel('Lw')
        if lo > 0:
            a(f's_cmp_lt_u32 {sW}, {lo}'); a(f's_cbranch_scc1 {L}')
        if hi < 4:
            a(f's_cmp_ge_u32 {sW}, {hi}'); a(f's_cbranch_scc1 {L}')
        fn()
        a.label(L)

    def poll(s, srd, voff, soff, expect, mask=None, sc='sc1', vt='v10'):
        a = s.a
        Lp = a.newlabel('Lpoll'); Ld = a.newlabel('Ldone'); Lt = a.newlabel('Lto')
        a(f's_cmp_lg_u32 {sTO}, 0'); a(f's_cbranch_scc1 {Ld}')
        a(f's_mov_b32 {sT7}, 0')
        a.label(Lp)
        if voff is None:
            a(f'buffer_load_dword {vt}, off, {srd}, {soff} {sc}')
        else:
            a(f'buffer_load_dword {vt}, {voff}, {srd}, {soff} offen {sc}')
        a('s_waitcnt vmcnt(0)')
        a(f'v_cmp_ne_u32 vcc, {expect}, {vt}')
        a(f's_add_u32 {sT7}, {sT7}, 1')
        if mask is not None:
            a(f's_and_b64 vcc, vcc, {mask}')
        a('s_cmp_eq_u64 vcc, 0')
        a(f's_cbranch_scc1 {Ld}')
        a(f's_cmp_lt_u32 {sT7}, {TIMEOUT}')
        a(f's_cbranch_scc1 {Lp}')
        a(f's_mov_b32 {sTO}, 1')
        a.label(Ld)

    def set_flag(s, phase_off):
        a = s.a
        a.wait_all()
        a('s_barrier')
        def w0():
            Lh = a.newlabel('Lh'); Le = a.newlabel('Le')
            a(f's_lshl_b32 {sT0}, {sM}, 2')
            a(f's_add_u32 {sT0}, {sT0}, {phase_off}')
            a('v_mov_b32 v10, 1')
            a('s_mov_b64 exec, 1')
            a(f's_cmp_lg_u32 {sHEAVY}, 0'); a(f's_cbranch_scc1 {Lh}')
            a(f'buffer_store_dword v10, off, {WS}, {sT0}')
            a(f's_branch {Le}')
            a.label(Lh)
            a('buffer_wbl2 sc1')
            a('s_waitcnt vmcnt(0)')
            a(f'buffer_store_dword v10, off, {WS}, {sT0} sc1')
            a.label(Le)
            a('s_mov_b64 exec, -1')
        s.wave_only(0, w0)

    def wait_flags(s, phase_off, mask_lo, vt='v10', va='v11', keep_vm=False, drain=False):
        a = s.a
        vm = list(a.vm)
        def w0():
            a(f's_mov_b32 s76, {mask_lo}'); a('s_mov_b32 s77, 0')
            a(f'v_and_b32 {va}, 31, {vLANE}'); a(f'v_lshlrev_b32 {va}, 2, {va}')
            s.poll(WS, va, phase_off, 1, mask=sP0, vt=vt)
            Le = a.newlabel('Le')
            a(f's_cmp_eq_u32 {sHEAVY}, 0'); a(f's_cbranch_scc1 {Le}')
            a('buffer_inv sc1'); a('s_waitcnt vmcnt(0)')
            a.label(Le)
        s.wave_only(0, w0)
        if drain:
            a.wait_vm0()
        else:
            a.vm = vm
        a('s_barrier')

    def lane_consts(s):
        a = s.a
        a(f'v_lshlrev_b32 {vL16}, 4, {vLANE}')
        a(f'v_lshrrev_b32 v10, 5, {vLANE}')
        a(f'v_and_b32 v11, 15, {vLANE}')
        a('v_lshrrev_b32 v12, 2, v11')
        a(f'v_bfe_u32 v13, {vLANE}, 4, 1')
        a('v_and_b32 v14, 3, v11')
        a('v_lshl_add_u32 v15, v10, 2, v12')
        a('v_lshlrev_b32 v16, 5, v13'); a('v_lshl_add_u32 v16, v14, 3, v16')
        a(f'v_lshl_add_u32 {vTR64}, v15, 6, v16')
        a('v_lshl_add_u32 v17, v15, 7, v16')
        a('v_lshrrev_b32 v18, 1, v12')
        a(f'v_lshl_add_u32 {vTR0}, v18, 6, v17')
        a('v_xor_b32 v18, 1, v18')
        a(f'v_lshl_add_u32 {vTR1}, v18, 6, v17')
        a(f'v_lshrrev_b32 v19, 3, {vLANE}')
        a(f'v_and_b32 v20, 7, {vLANE}')
        a('v_lshlrev_b32 v21, 2, v13')
        a('v_xor_b32 v20, v20, v21'); a('v_lshlrev_b32 v20, 4, v20')
        a(f'v_mul_u32_u24 {vD896}, 896, v19'); a(f'v_add_u32 {vD896}, {vD896}, v20')
        a(f'v_mul_u32_u24 {vD3584}, 3584, v19'); a(f'v_add_u32 {vD3584}, {vD3584}, v20')
        a(f'v_and_b32 v22, 31, {vLANE}'); a('v_lshlrev_b32 v22, 4, v22')
        a(f'v_lshl_add_u32 {vSTA}, v10, 11, v22')
        a(f'v_lshlrev_b32 {vCS}, 4, v10')

    def prologue(s):
        a = s.a
        a('s_cmp_ge_u32 s2, 256'); a('s_cbranch_scc1 L_end')
        if s.stamps and os.environ.get('T0'): a('s_memrealtime s[90:91]')
        a('s_load_dwordx4 s[32:35], s[0:1], 0')
        a('s_load_dwordx2 s[40:41], s[0:1], 16')
        a('s_load_dwordx2 s[8:9], s[0:1], 24')
        a('s_load_dwordx2 s[12:13], s[0:1], 40')
        a('s_load_dwordx2 s[16:17], s[0:1], 48')
        a('s_load_dwordx2 s[20:21], s[0:1], 56')
        a('s_load_dwordx2 s[24:25], s[0:1], 64')
        a('s_load_dwordx2 s[28:29], s[0:1], 72')
        a('s_load_dwordx2 s[4:5], s[0:1], 80')
        a(f's_getreg_b32 {sXCC}, hwreg(HW_REG_XCC_ID, 0, 4)')
        a(f's_and_b32 {sG}, s2, 7'); a(f's_lshr_b32 {sM}, s2, 3')
        a('v_lshrrev_b32 v10, 6, v0')
        a(f'v_and_b32 {vLANE}, 63, v0')
        a(f'v_readfirstlane_b32 {sW}, v10')
        a(f's_mov_b32 {sL}, 0'); a(f's_mov_b32 {sHEAVY}, 0'); a(f's_mov_b32 {sTO}, 0')
        a(f's_mul_i32 {sGB}, {sG}, {GS}'); a(f's_add_u32 {sGB}, {sGB}, {G0}')
        a(f's_and_b32 {sHEAD}, {sM}, 15'); a(f's_lshr_b32 {sHALF}, {sM}, 4')
        a(f's_mul_i32 {sTQ}, {sM}, 37'); a(f's_lshr_b32 {sTQ}, {sTQ}, 8')
        a(f's_mul_i32 {sT0}, {sTQ}, 7'); a(f's_sub_u32 {sCT}, {sM}, {sT0}')
        a('s_mov_b32 s96, 0'); a('s_mov_b32 s97, -1')
        a('s_getpc_b64 s[98:99]')
        a.rawlabel('L_pc')
        a(f's_sub_u32 s98, s98, L_pc-{NAME}'); a('s_subb_u32 s99, s99, 0')
        if CPF == 2: s.wave_only(3, lambda: s.code_prefetch(NAME, 'L_code_p2b'))
        if s.stamps: a(f'v_mov_b32 {vSTAMP}, 0')
        for (b, n) in ((6, WS_BYTES), (10, D*D*2), (14, D*F*2), (18, D*F*2), (22, F*D*2), (26, S*D*2), (30, 256), (42, NH*DH*DH*2)):
            a(f's_mov_b32 s{b}, {n}'); a(f's_mov_b32 s{b+1}, 0x20000')
        a('s_waitcnt lgkmcnt(0)')
        a('s_mov_b32 s36, s34'); a('s_mov_b32 s37, s35')
        a(f's_mov_b32 s34, {S*D*2}'); a('s_mov_b32 s35, 0x20000')
        a(f's_mov_b32 s38, {D*3*D*2}'); a('s_mov_b32 s39, 0x20000')
        s.stamp('start')
        if s.stamps:
            a('s_memrealtime s[100:101]'); a('s_waitcnt lgkmcnt(0)')
            if os.environ.get('T0'):
                a('s_sub_u32 s90, s100, s90'); a(f'v_writelane_b32 {vSTAMP}, s90, 59')

    def p0(s):
        a = s.a
        a.c('==== P0')
        XS = 47104; XSW = 28672
        from phases import Phases
        s.P = Phases(s)
        def w0():
            a(f's_lshl_b32 {sFL}, {sG}, 11')
            if FLAGS: a(f's_add_u32 {sFL}, {sFL}, {FLAGS}')
            a(f'v_lshlrev_b32 v11, 7, {vLANE}')
            a('v_mov_b32 v12, 0'); a('v_mov_b32 v13, 0'); a('v_mov_b32 v14, 0'); a('v_mov_b32 v15, 0')
            a('s_mov_b64 exec, 0xffff')
            a(f'buffer_load_dword v254, v11, {WS}, {sFL} offen')
            a(f's_lshl_b32 {sT0}, {sM}, 2'); a(f's_add_u32 {sT0}, {sT0}, {sFL}')
            a(f'buffer_store_dword v12, v11, {WS}, {sT0} offen')
            a('s_mov_b64 exec, -1')
            a(f'v_lshlrev_b32 v16, 4, {vLANE}')
            a(f's_lshl_b32 {sT0}, s2, 10'); a(f's_add_u32 {sT0}, {sT0}, {KV}')
            a(f'buffer_store_dwordx4 v[12:15], v16, {WS}, {sT0} offen sc1')
            L = a.newlabel('Lz')
            a('s_cmp_ge_u32 s2, 32'); a(f's_cbranch_scc1 {L}')
            a(f's_lshl_b32 {sT0}, s2, 7'); a(f's_add_u32 {sT0}, {sT0}, {KVC}')
            a('s_mov_b64 exec, 1')
            a(f'buffer_store_dword v12, off, {WS}, {sT0} sc1')
            a('s_mov_b64 exec, -1')
            a.label(L)
        s.wave_only(0, w0)
        if TOUCH0:
            def xt():
                a(f'v_lshlrev_b32 v30, 7, {vLANE}')
                a(f's_lshl_b32 {sT0}, {sG}, 8'); a(f's_lshl_b32 {sT1}, {sM}, 3'); a(f's_add_u32 {sT0}, {sT0}, {sT1}'); a(f's_mul_i32 {sT0}, {sT0}, 896')
                a('s_mov_b32 exec_hi, 0xffffff')
                a(f'buffer_load_dword v254, v30, {AX}, {sT0} offen')
                a('s_mov_b64 exec, -1')
            s.wave_only(2, xt)
        a(f'v_lshrrev_b32 v10, 3, {vLANE}'); a('v_mul_u32_u24 v10, 896, v10')
        a(f'v_and_b32 v11, 7, {vLANE}'); a(f'v_lshrrev_b32 v12, 4, {vLANE}'); a('v_xor_b32 v11, v11, v12')
        a('v_lshl_add_u32 v40, v11, 4, v10'); a('v_xor_b32 v41, 64, v40')
        a(f's_lshl_b32 {sT0}, {sG}, 8'); a(f's_lshl_b32 {sT1}, {sHALF}, 7'); a(f's_add_u32 {sT0}, {sT0}, {sT1}')
        a(f's_lshl_b32 {sT1}, {sW}, 5'); a(f's_add_u32 {sT0}, {sT0}, {sT1}'); a(f's_mul_i32 s82, {sT0}, 896')
        a(f's_mul_i32 s83, {sW}, {XSW}'); a(f's_add_u32 s83, s83, {XS}')
        for L in range(7):
            for rb in range(4):
                a(f's_add_u32 m0, s83, {L*4096 + rb*1024}')
                a(f's_add_u32 {sT2}, s82, {rb*8*896 + L*128}')
                a.vmem(f'buffer_load_dwordx4 v{40 + (rb & 1)}, {AX}, {sT2} offen lds', 'x')
        s.stamp('p0 x issued')
        def reg():
            a(f's_mul_i32 {sT1}, {sXCC}, {sXCC}'); a(f's_lshl_b32 {sT1}, {sT1}, 10'); a(f's_add_u32 {sT1}, {sT1}, {sXCC}')
            a(f's_add_u32 {sT1}, {sT1}, {1<<26}')
            a(f'v_mov_b32 v10, {sT1}')
            a(f's_lshl_b32 {sT2}, {sG}, 5')
            a('s_waitcnt vmcnt(28)')
            a('s_mov_b64 exec, 1')
            a(f'buffer_atomic_add v10, off, {DBG}, {sT2} sc1')
            a('s_mov_b64 exec, -1')
        s.wave_only(0, reg)
        if CPF == 1: s.wave_only(3, lambda: s.code_prefetch(NAME, 'L_code_p2b'))
        a(f'v_lshrrev_b32 v10, 2, {vLANE}'); a('v_mul_u32_u24 v10, 2688, v10')
        a(f'v_and_b32 v11, 3, {vLANE}'); a('v_lshl_add_u32 v42, v11, 4, v10')
        a(f's_mul_i32 s84, {sHEAD}, 56'); a(f's_mul_i32 {sT0}, {sW}, {16*2688}'); a(f's_add_u32 s84, s84, {sT0}')
        a(f's_lshl_b32 s85, {sW}, 10')
        def wdma(slot, i, tag):
            col = (896, 1792, 0)[slot]
            a(f's_add_u32 m0, s85, {slot*28672 + i*4096}')
            a(f's_add_u32 {sT2}, s84, {col + i*4*16*2688}')
            a.vmem(f'buffer_load_dwordx4 v42, {WQKV}, {sT2} offen lds', tag)
        from phases import Side
        wearly = Side([(lambda i=i: wdma(0, i, 'Wkv')) for i in range(7)] + [(lambda i=i: wdma(1, i, 'Wkv')) for i in range(4)])
        wearly.emit(a, 2)
        s.lane_consts()
        s.P.persistent_addrs()
        a(f'v_and_b32 v10, 31, {vLANE}'); a('v_bfe_u32 v11, v10, 1, 3'); a('v_lshlrev_b32 v11, 4, v11')
        a('v_lshl_add_u32 v11, v10, 7, v11'); a(f'v_lshrrev_b32 v12, 5, {vLANE}'); a('v_lshl_add_u32 v11, v12, 3, v11')
        a('v_add_u32 v11, s83, v11')
        for c in range(8): a(f'v_xor_b32 v{44+c}, {c << 4}, v11')
        a('v_mov_b32 v54, 0'); a('v_mov_b32 v55, 0')
        for r in range(60, 64): a(f'v_mov_b32 v{r}, 0x3f803f80')
        a.wait_vm('x')
        s.stamp('p0 x landed')
        def reads(L):
            for q in range(4):
                ks = 4*L + q
                for b in range(2):
                    a.ds(f'ds_read_b64 a[{4*ks+2*b}:{4*ks+2*b+1}], v{44+2*q+b} offset:{L*4096}', ('xa', L))
            for q in range(4):
                for b in range(2):
                    R = 128 + 16*(L % 3) + 4*q + 2*b
                    a.ds(f'ds_read_b64 v[{R}:{R+1}], v{44+2*q+b} offset:{L*4096}', ('xv', L))
        reads(0)
        for L in range(7):
            if L+1 < 7: reads(L+1)
            a.wait_lg(('xv', L))
            for q in range(4):
                ks = 4*L + q
                c = '0' if ks == 0 else 'v[64:79]'
                a(f'v_mfma_f32_32x32x16_bf16 v[64:79], v[60:63], a[{4*ks}:{4*ks+3}], {c}')
                for i in range(4):
                    R = 128 + 16*(L % 3) + 4*q + i
                    a(f'v_dot2c_f32_bf16 v{54 + (i & 1)}, v{R}, v{R}')
                if q & 1: wearly.emit(a)
        wearly.flush(a)
        a.wait_lg0()
        a('s_barrier')
        s.stamp('p0 x read')
        for i in range(4, 7): wdma(1, i, 'Wkv')
        def wp():
            a(f's_mul_i32 {sT0}, {sHEAD}, 1568'); a(f's_mov_b32 m0, {L_PHI}')
            a(f'buffer_load_dwordx4 {vL16}, {WPHI}, {sT0} offen lds')
            a(f's_add_u32 {sT0}, {sT0}, 1024'); a(f's_mov_b32 m0, {L_PHI + 1024}')
            a(f'buffer_load_dwordx4 {vL16}, {WPHI}, {sT0} offen lds')
        s.wave_only(0, wp)
        for i in range(7): wdma(2, i, 'Wq')
        a('v_add_f32 v54, v54, v55')
        a('v_mov_b32 v55, v54')
        a('v_permlane32_swap_b32 v54, v55')
        a('v_add_f32 v54, v54, v55')
        a(f'v_mul_f32 v234, {fbits(-1.0/448)}, v64'); a(f'v_mul_f32 v54, {fbits(1.0/448)}, v54')
        a('v_fma_f32 v54, -v234, v234, v54'); a('v_max_f32 v54, 0, v54'); a(f'v_add_f32 v54, {fbits(1e-5)}, v54')
        a('v_rsq_f32 v235, v54')
        a.wait_vm('Wkv')
        def wpw(): a('s_waitcnt vmcnt(7)')
        s.wave_only(0, wpw)
        a('s_barrier')
        s.stamp('p1 W landed')
        a(f'v_and_b32 v10, 31, {vLANE}'); a(f'v_lshrrev_b32 v11, 5, {vLANE}')
        a('v_lshrrev_b32 v12, 3, v10'); a('v_sub_u32 v12, v10, v12')
        a('v_lshlrev_b32 v12, 1, v12'); a('v_mul_u32_u24 v13, 224, v11'); a('v_add_u32 v12, v12, v13'); a(f'v_add_u32 v12, {L_PHI}, v12')
        a('v_and_b32 v10, 7, v10')
        for e in range(2):
            for b in range(2):
                for r in range(4):
                    a.ds(f'ds_read_u16 v{96 + 8*e + 4*b + r}, v12 offset:{(16*e+8*b+r)*56}', 'wp')
        def warm():
            a(f'v_lshlrev_b32 v15, 7, {vLANE}')
            a(f's_mul_i32 {sT1}, s2, {49*128}')
            a('s_mov_b32 exec_lo, -1'); a('s_mov_b32 exec_hi, 0x1ffff')
            for srd in (WG, WU, WD):
                a(f'buffer_load_dword v254, v15, {srd}, {sT1} offen')
            a(f's_mul_i32 {sT1}, s2, {13*128}')
            a('s_mov_b64 exec, 0x1fff')
            a(f'buffer_load_dword v254, v15, {WO}, {sT1} offen')
            a('s_mov_b64 exec, -1')
        if WARM: s.wave_only(3, warm)
        a('v_cmp_gt_u32 vcc, 7, v10')
        a.wait_lg0()
        for i in range(8):
            a(f'v_lshl_or_b32 v{96+2*i}, v{97+2*i}, 16, v{96+2*i}')
        for i in range(8):
            a(f'v_cndmask_b32 v{96+2*i}, 0, v{96+2*i}, vcc')
        for i in (6, 7):
            a(f'v_cndmask_b32 v{96+2*i}, v{96+2*i}, 0, {sUP}')
        for i in range(8):
            a(f'v_accvgpr_write_b32 a{248+i}, v{96+2*i}')
        a.vm = []; a.lg = []
        s.stamp('p0 done')

    def code_prefetch(s, l0, l1, v='v10', vd='v255'):
        a = s.a
        a(f's_mul_i32 {sT0}, {sM}, ((({l1}-{l0})+4095)/4096)*128')
        a(f's_add_u32 {sT0}, {sT0}, {l0}-{NAME}')
        a(f'v_lshlrev_b32 {v}, 7, {vLANE}'); a(f'v_add_u32 {v}, {sT0}, {v}')
        a(f'v_min_u32 {v}, CODE_BYTES-4, {v}')
        a(f's_mov_b32 exec_lo, (1<<((({l1}-{l0})+4095)/4096))-1'); a('s_mov_b32 exec_hi, 0')
        a(f'global_load_dword {vd}, {v}, s[98:99]')
        a('s_mov_b64 exec, -1')

    def registration_check(s):
        a = s.a
        Lp = a.newlabel('Lreg'); Ld = a.newlabel('Lregd'); Lc = a.newlabel('Lregc')
        a(f's_mov_b32 {sT7}, 0')
        a(f's_branch {Lc}')
        a.label(Lp)
        a(f'buffer_load_dword v232, v233, {DBG}, 0 offen sc1')
        a.label(Lc)
        a('s_waitcnt vmcnt(0)')
        a('v_lshrrev_b32 v13, 26, v232')
        a('v_cmp_ne_u32 vcc, 32, v13')
        a(f's_add_u32 {sT7}, {sT7}, 1')
        a('s_cmp_eq_u64 vcc, 0'); a(f's_cbranch_scc1 {Ld}')
        a(f's_cmp_lt_u32 {sT7}, {TIMEOUT}'); a(f's_cbranch_scc1 {Lp}')
        a(f's_mov_b32 {sTO}, 1')
        a.label(Ld)
        def w0():
            a(f'v_readlane_b32 {sT3}, v232, {sG}')
            a(f's_mul_i32 {sT1}, {sXCC}, {sXCC}'); a(f's_lshl_b32 {sT1}, {sT1}, 10'); a(f's_add_u32 {sT1}, {sT1}, {sXCC}')
            a(f's_lshl_b32 {sT1}, {sT1}, 5')
            a(f's_and_b32 {sT3}, {sT3}, {(1<<26)-1}')
            a(f's_cmp_lg_u32 {sT3}, {sT1}'); a(f's_cselect_b32 {sHEAVY}, 1, 0')
            if s.force_heavy: a(f's_mov_b32 {sHEAVY}, 1')
            Le = a.newlabel('Le')
            a(f's_cmp_eq_u32 {sHEAVY}, 0'); a(f's_cbranch_scc1 {Le}')
            a(f's_lshl_b32 {sT0}, {sG}, 11')
            if FLAGS: a(f's_add_u32 {sT0}, {sT0}, {FLAGS}')
            a(f's_lshl_b32 {sT1}, {sM}, 2'); a(f's_add_u32 {sT0}, {sT0}, {sT1}')
            a('v_mov_b32 v14, 0'); a(f'v_lshlrev_b32 v13, 7, {vLANE}')
            a('s_mov_b64 exec, 0xffff')
            a(f'buffer_store_dword v14, v13, {WS}, {sT0} offen sc1')
            a('s_waitcnt vmcnt(0)')
            a('s_mov_b64 exec, 1')
            a('v_mov_b32 v14, 1')
            a(f's_lshl_b32 {sT1}, {sG}, 5'); a(f's_add_u32 {sT1}, {sT1}, 8')
            a(f'buffer_atomic_add v14, off, {DBG}, {sT1} sc1')
            a('s_mov_b64 exec, -1')
            s.poll(DBG, None, sT1, 32, vt='v14')
            a.label(Le)
        s.wave_only(0, w0)

    def wphi_loads(s, track=False):
        a = s.a
        a(f'v_and_b32 v10, 31, {vLANE}'); a(f'v_lshrrev_b32 v11, 5, {vLANE}')
        a('v_lshlrev_b32 v12, 1, v10'); a('v_mul_u32_u24 v13, 224, v11'); a('v_add_u32 v12, v12, v13')
        a(f's_mul_i32 {sT5}, {sHEAD}, 1568')
        a('v_mov_b32 v14, 0x40000000')
        a('v_cmp_gt_u32 vcc, 28, v10')
        a('v_cndmask_b32 v12, v14, v12, vcc')
        a(f'v_cndmask_b32 v13, v12, v14, {sUP}')
        for e in range(2):
            for b in range(2):
                for r in range(4):
                    reg = 96 + 8*e + 4*b + r
                    va = 'v13' if (e == 1 and b == 1) else 'v12'
                    t = f'buffer_load_ushort v{reg}, {va}, {WPHI}, {sT5} offen offset:{(16*e+8*b+r)*56}'
                    if track: a.vmem(t, 'wphi')
                    else: a(t)

    def finish(s):
        a = s.a
        a.label('L_fin')
        if s.stamps:
            a('s_memrealtime s[94:95]'); a('s_waitcnt lgkmcnt(0)')
            a(f'v_writelane_b32 {vSTAMP}, s100, 61')
            a(f'v_writelane_b32 {vSTAMP}, s94, 60')
            a('s_sub_u32 s100, s94, s100')
            a(f'v_writelane_b32 {vSTAMP}, s100, 63')
            a('s_memtime s[94:95]'); a('s_waitcnt lgkmcnt(0)')
            a(f'v_writelane_b32 {vSTAMP}, s94, 62')
            def w0():
                a(f's_lshl_b32 {sT0}, s2, 8'); a(f's_add_u32 {sT0}, {sT0}, {STAMP}')
                a(f'v_lshlrev_b32 v10, 2, {vLANE}')
                a(f'buffer_store_dword {vSTAMP}, v10, {WS}, {sT0} offen')
            s.wave_only(int(os.environ.get('STAMPW','0')), w0)
            if os.environ.get('DBGOUT'):
                def wd():
                    L = a.newlabel('Ld'); a('s_cmp_lg_u32 s2, 0'); a(f's_cbranch_scc1 {L}')
                    idx = [int(x) for x in os.environ['DBGOUT'].split(',')]
                    a(f'v_readlane_b32 s93, {vSTAMP}, 0')
                    slots = [3,4,5,6,7,9,10,11,12,13,14,15]
                    for sl, i in zip(slots, idx):
                        a(f'v_readlane_b32 s94, {vSTAMP}, {i}')
                        if i != 63: a('s_sub_u32 s94, s94, s93')
                        a('v_mov_b32 v10, s94'); a('s_mov_b64 exec, 1'); a(f's_mov_b32 s95, {sl*4}')
                        a(f'buffer_store_dword v10, off, {DBG}, s95'); a('s_mov_b64 exec, -1'); a('s_nop 1')
                    a.label(L)
                s.wave_only(0, wd)
        a('s_waitcnt vmcnt(0) lgkmcnt(0)')
        a.label('L_end')
        a('s_endpgm')
        a.label('L_code_end')

    def build(s):
        s.prologue()
        s.p0()
        if s.stop_after != 'p0':
            s.P.run()
        s.finish()
        body = s.a.finalize(True)
        hdr = open('interleave_layers__linear_kernel_hedgehog__geglu_ffn__prompt.s.ref').read().split('\n') if False else None
        head = HEADER
        return head + body + '\n' + f'.set CODE_BYTES, L_code_end-{NAME}\n' + FOOTER

HEADER = f'''; Persistent single-launch kernel: 256 workgroups (one per CU), 8 groups of 32 that share an L2.
; @launch grid=(256,1,1) block=(256,1,1) lds={LDS_TOTAL}
.amdgcn_target "amdgcn-amd-amdhsa--gfx950"
.text
.globl {NAME}
.p2align 8
.type {NAME},@function
{NAME}:
'''
FOOTER = f'''.section .rodata,"a"
.p2align 6
.amdhsa_kernel {NAME}
  .amdhsa_next_free_vgpr 512
  .amdhsa_next_free_sgpr 102
  .amdhsa_accum_offset 256
  .amdhsa_group_segment_fixed_size 0
  .amdhsa_kernarg_size 88
  .amdhsa_user_sgpr_count 2
  .amdhsa_user_sgpr_kernarg_segment_ptr 1
  .amdhsa_system_sgpr_workgroup_id_x 1
.end_amdhsa_kernel
'''

if __name__ == '__main__':
    import argparse
    ap = argparse.ArgumentParser()
    ap.add_argument('-o', default='k.s')
    ap.add_argument('--stop', default=None)
    ap.add_argument('--stamps', action='store_true')
    ap.add_argument('--heavy', action='store_true')
    args = ap.parse_args()
    g = Gen(stop_after=args.stop, stamps=args.stamps, force_heavy=args.heavy)
    txt = g.build()
    open(args.o, 'w').write(txt)
    open(args.o+'.stamps','w').write(','.join(g.stamp_names))
    print('written', args.o, len(txt), 'bytes;', 'stamps:', g.stamp_names)
```

```python
from gen import *
import gen as G
import math, os
from collections import deque

C0 = -2.0*LOG2E*math.sqrt(2.0/math.pi)
C1 = C0*0.044715
PRET = int(os.environ.get('PRET', '0'))
IDLEW = int(os.environ.get('IDLEW', '0'))
CS1 = int(os.environ.get('CS1', '1'))
BYTB = int(os.environ.get('BYTB', '0'))
STU0 = int(os.environ.get('STU0', '1'))
BUD_A = int(os.environ.get('BUD_A', '4')); BUD_B = int(os.environ.get('BUD_B', '5'))
MAINW = int(os.environ.get('MAINW', '1'))
IDLEQ = int(os.environ.get('IDLEQ', '0'))
LATEU = int(os.environ.get('LATEU', '1'))
WBL = int(os.environ.get('WBL', '0'))
OUTP = int(os.environ.get('OUTP', '0'))
PT23 = int(os.environ.get('PT23', '0'))
OUTSC = os.environ.get('OUTSC', '')
SAVE_LATE = int(os.environ.get('SAVE_LATE', '1'))
IDLEP = int(os.environ.get('IDLEP', '1'))
PFA = int(os.environ.get('PFA', '1'))
HSC = os.environ.get('HSC', '')
LDSC = os.environ.get('LDSC', 'sc1')

L_WG = 0; L_WU = 104448; L_WO = 45056; WOW = 14336; L_KVF = 40960
RED2 = 133120
RED4 = 86016
RA = 57344; NRA = 11; NSLOT = 39
vPHIW='v240'; vVIW='v241'; vPA0='v242'; vPA1='v243'; vVB0='v244'; vVB1='v245'; vKVO='v246'; vL128='v247'; vKVR='v248'; vKVW='v249'
vDUM='v255'

class Side:
    def __init__(s, items=()): s.q = deque(items)
    def emit(s, a, n=1):
        for _ in range(n):
            if not s.q: return
            it = s.q.popleft()
            if callable(it): it()
            else: a(it)
    def flush(s, a): s.emit(a, len(s.q))
    @staticmethod
    def cost(it):
        if callable(it): return getattr(it, 'cost', 1)
        op = it.split()[0]
        return 2 if op in ('v_exp_f32', 'v_rcp_f32', 'v_rsq_f32', 'v_log_f32') else 1
    def emit_budget(s, a, budget):
        b = budget + getattr(s, 'carry', 0)
        while s.q and (Side.cost(s.q[0]) <= b or (Side.cost(s.q[0]) > budget and b > 0)):
            b -= Side.cost(s.q[0]); s.emit(a)
        s.carry = min(b, 2)
    def __len__(s): return len(s.q)

def run_list(a, L, side=None, every=0):
    cnt = 0
    for it in L:
        if callable(it): it()
        else: a(it)
        cnt += 1
        if side is not None and every and cnt % every == 0: side.emit(a)
    if side is not None: side.flush(a)

class Phases:
    def __init__(s, g):
        s.g = g; s.a = g.a
        s.stop = g.stop_after

    def persistent_addrs(s):
        a = s.a
        a(f'v_and_b32 v13, 31, {vLANE}'); a(f's_lshl_b32 {sT0}, {sW}, 5'); a(f'v_add_u32 v14, {sT0}, v13')
        a(f'v_lshrrev_b32 v20, 5, {vLANE}')
        a('v_bfe_u32 v21, v13, 1, 1'); a('v_lshlrev_b32 v21, 3, v21')
        a('v_bfe_u32 v22, v13, 3, 1'); a('v_lshl_or_b32 v21, v22, 2, v21')
        a('v_bfe_u32 v22, v13, 2, 1'); a('v_lshl_or_b32 v21, v22, 1, v21')
        a('v_and_b32 v22, 1, v13'); a('v_or_b32 v21, v21, v22')
        a('v_xor_b32 v21, v21, v20')
        a('v_lshlrev_b32 v21, 3, v21'); a('v_lshl_add_u32 v21, v14, 7, v21')
        a(f'v_add_u32 {vPHIW}, {L_PHI}, v21')
        a('v_bfe_u32 v21, v14, 1, 3'); a('v_xor_b32 v21, v21, v20'); a('v_lshlrev_b32 v21, 3, v21')
        a('v_lshl_add_u32 v21, v14, 6, v21'); a(f'v_add_u32 {vVIW}, {L_VI}, v21')
        a(f'v_and_b32 v13, 15, {vLANE}'); a('v_lshrrev_b32 v14, 2, v13')
        a('v_and_b32 v22, 3, v13'); a(f'v_bfe_u32 v23, {vLANE}, 4, 1')
        a('v_lshl_add_u32 v24, v23, 2, v22')
        a('v_lshl_add_u32 v25, v20, 2, v14')
        a('v_lshrrev_b32 v26, 1, v14'); a('v_lshlrev_b32 v26, 3, v26')
        a('v_lshl_or_b32 v26, v20, 1, v26'); a('v_and_b32 v27, 1, v14'); a('v_or_b32 v26, v26, v27')
        a(f's_and_b32 {sT0}, {sW}, 1'); a(f's_lshl_b32 {sT0}, {sT0}, 3'); a(f'v_add_u32 v27, {sT0}, v24')
        a('v_xor_b32 v27, v27, v26')
        a('v_lshlrev_b32 v27, 3, v27'); a('v_lshl_add_u32 v27, v25, 7, v27')
        a(f'v_add_u32 {vPA0}, {L_PHI}, v27')
        a(f'v_xor_b32 v27, 32, {vPA0}'); a(f'v_add_u32 {vPA1}, {8*128}, v27')
        a('v_lshrrev_b32 v26, 1, v14'); a('v_lshl_or_b32 v26, v20, 1, v26')
        a('v_xor_b32 v26, v26, v24'); a('v_lshlrev_b32 v26, 3, v26')
        a('v_lshl_add_u32 v26, v25, 6, v26'); a(f'v_add_u32 {vVB0}, {L_VI}, v26')
        a(f'v_xor_b32 v27, 32, {vVB0}'); a(f'v_add_u32 {vVB1}, {8*64}, v27')
        a(f'v_and_b32 v13, 31, {vLANE}'); a('v_lshlrev_b32 v13, 2, v13'); a(f'v_lshl_add_u32 {vKVO}, v20, 10, v13')
        a(f'v_lshrrev_b32 v13, 3, {vLANE}'); a(f'v_and_b32 v14, 7, {vLANE}')
        a('v_lshlrev_b32 v21, 8, v13'); a(f'v_lshl_add_u32 {vKVR}, v14, 4, v21')
        a('v_and_b32 v21, 1, v14'); a('v_lshl_add_u32 v21, v21, 5, v13'); a('v_lshlrev_b32 v21, 4, v21')
        a('v_bfe_u32 v22, v14, 1, 1'); a('v_lshl_add_u32 v21, v22, 3, v21')
        a('v_lshrrev_b32 v22, 2, v14'); a('v_lshl_add_u32 v21, v22, 10, v21')
        a(f's_and_b32 {sT0}, {sW}, 1'); a(f's_lshl_b32 {sT0}, {sT0}, 11'); a(f's_add_u32 {sT0}, {sT0}, {L_KVF}')
        a(f'v_add_u32 {vKVW}, {sT0}, v21')
        a(f'v_lshlrev_b32 {vL128}, 7, {vLANE}')

    def pretouch(s, soff, nlines, tag='pt'):
        if not PRET: return
        a = s.a
        if nlines < 64: a(f's_mov_b64 exec, {hex((1 << nlines)-1)}')
        a.vmem(f'buffer_load_dword {vDUM}, {vL128}, {WS}, {soff} offen', tag)
        if nlines < 64: a('s_mov_b64 exec, -1')

    def stats_load_items(s, dst, sbase, tag, vtmp):
        a = s.a
        def last():
            a(f'v_mov_b32 {vtmp}, 0x40000000')
            a(f'v_cndmask_b32 {vtmp}, {vSTA}, {vtmp}, {sUP}')
            a.vmem(f'buffer_load_dwordx4 v[{dst+12}:{dst+15}], {vtmp}, {WS}, {sbase} offen offset:{3*512} {LDSC}', tag)
        return [(lambda i=i: a.vmem(f'buffer_load_dwordx4 v[{dst+4*i}:{dst+4*i+3}], {vSTA}, {WS}, {sbase} offen offset:{i*512} {LDSC}', tag)) for i in range(3)] + [last]

    def stats_list(s, src, vnmean, vrstd, t0, t1):
        S_, Q_ = f'v{src}', f'v{src+1}'
        L = []
        L += [f'v_add_f32 v{src+2}, v{src+2}, v{src+6}', f'v_add_f32 v{src+3}, v{src+3}, v{src+7}']
        L += [f'v_add_f32 {S_}, {S_}, v{src+4}', f'v_add_f32 {Q_}, {Q_}, v{src+5}']
        L += [f'v_add_f32 v{src+2}, v{src+2}, v{src+10}', f'v_add_f32 v{src+3}, v{src+3}, v{src+11}']
        L += [f'v_add_f32 {S_}, {S_}, v{src+8}', f'v_add_f32 {Q_}, {Q_}, v{src+9}']
        L += [f'v_add_f32 v{src+2}, v{src+2}, v{src+14}', f'v_add_f32 v{src+3}, v{src+3}, v{src+15}']
        L += [f'v_add_f32 {S_}, {S_}, v{src+12}', f'v_add_f32 {Q_}, {Q_}, v{src+13}']
        L += [f'v_add_f32 {S_}, {S_}, v{src+2}', f'v_add_f32 {Q_}, {Q_}, v{src+3}']
        L += [f'v_mov_b32 {t0}, {S_}', f'v_mov_b32 {t1}, {Q_}', 's_nop 0',
              f'v_permlane32_swap_b32 {S_}, {t0}', f'v_permlane32_swap_b32 {Q_}, {t1}',
              f'v_add_f32 {S_}, {S_}, {t0}', f'v_add_f32 {Q_}, {Q_}, {t1}',
              f'v_mul_f32 {vnmean}, {fbits(-1.0/448)}, {S_}', f'v_mul_f32 {Q_}, {fbits(1.0/448)}, {Q_}',
              f'v_fma_f32 {Q_}, -{vnmean}, {vnmean}, {Q_}', f'v_max_f32 {Q_}, 0, {Q_}',
              f'v_add_f32 {Q_}, {fbits(1e-5)}, {Q_}', f'v_rsq_f32 {vrstd}, {Q_}']
        L.remove('s_nop 0')
        return L

    def cs_read_items(s, dst, lds_off, tag, vaddr):
        a = s.a
        return [(lambda g=g: a.ds(f'ds_read_b128 v[{dst+4*g}:{dst+4*g+3}], {vaddr} offset:{lds_off+32*g}', tag)) for g in range(4)]

    def colsum(s, reads_fn, nks, dst, lds_out, va='v10'):
        a = s.a
        for i in range(4): a(f'v_mov_b32 v{dst+16+i}, 0x3f803f80')
        F = dst + 20
        reads_fn(0, F, ('cs', 0)); reads_fn(1, F+4, ('cs', 1))
        for ks in range(nks):
            if ks+2 < nks: reads_fn(ks+2, F + 4*((ks+2) % 3), ('cs', ks+2))
            a.wait_lg(('cs', ks))
            R = F + 4*(ks % 3)
            c = '0' if ks == 0 else f'v[{dst}:{dst+15}]'
            a(f'v_mfma_f32_32x32x16_bf16 v[{dst}:{dst+15}], v[{R}:{R+3}], v[{dst+16}:{dst+19}], {c}')
        a(f'v_add_u32 {va}, {lds_out}, {vCS}')
        a('s_mov_b32 exec_lo, 1'); a('s_mov_b32 exec_hi, 1')
        for g in range(4):
            a.ds(f'ds_write_b128 {va}, v[{dst+4*g}:{dst+4*g+3}] offset:{32*g}', 'csw')
        a('s_mov_b64 exec, -1')
        a.wait_lg0()

    def colsum_kv(s):
        a = s.a; g = s.g
        def cs_wave():
            a(f's_mul_i32 {sT0}, {sW}, 28672'); a(f'v_add_u32 v31, {sT0}, {vTR64}')
            a(f's_lshl_b32 {sT1}, {sW}, 7'); a(f's_add_u32 {sT1}, {sT1}, {M_CSQKV}')
            def f(ks, reg, tag):
                a.ds(f'ds_read_b64_tr_b16 v[{reg}:{reg+1}], v31 offset:{(16*ks)*64}', tag)
                a.ds(f'ds_read_b64_tr_b16 v[{reg+2}:{reg+3}], v31 offset:{(16*ks+8)*64}', tag)
            s.colsum(f, 28, 192, sT1, va='v30')
        g.wave_in(0, 2, cs_wave)
        a.lg = []

    def softmax_list(s, P, vC, E1, E2, dP, dM, t):
        L = []
        for r in (3, 7, 11, 15):
            L.append(f'v_cndmask_b32 v{P+r}, v{P+r}, v{P}, {sUP}')
        mx, mn, t2, t3 = f'v{t}', f'v{t+1}', f'v{t+2}', f'v{t+3}'
        L += [f'v_max3_f32 {mx}, v{P}, v{P+1}, v{P+2}', f'v_min3_f32 {mn}, v{P}, v{P+1}, v{P+2}',
              f'v_max3_f32 {t2}, v{P+3}, v{P+4}, v{P+5}', f'v_min3_f32 {t3}, v{P+3}, v{P+4}, v{P+5}']
        for r in (6, 10):
            L += [f'v_max3_f32 {mx}, {mx}, v{P+r}, v{P+r+1}', f'v_min3_f32 {mn}, {mn}, v{P+r}, v{P+r+1}',
                  f'v_max3_f32 {t2}, {t2}, v{P+r+2}, v{P+r+3}', f'v_min3_f32 {t3}, {t3}, v{P+r+2}, v{P+r+3}']
        L += [f'v_max3_f32 {mx}, {mx}, v{P+14}, v{P+15}', f'v_min3_f32 {mn}, {mn}, v{P+14}, v{P+15}',
              f'v_max_f32 {mx}, {mx}, {t2}', f'v_min_f32 {mn}, {mn}, {t3}',
              f'v_mov_b32 {t2}, {mx}', f'v_mov_b32 {t3}, {mn}',
              f'v_permlane32_swap_b32 {mx}, {t2}', f'v_permlane32_swap_b32 {mn}, {t3}',
              f'v_max_f32 {mx}, {mx}, {t2}', f'v_min_f32 {mn}, {mn}, {t3}',
              f'v_mul_f32 {mx}, {mx}, {vC}', f'v_mul_f32 {mn}, {mn}, {vC}']
        c = int(vC[1:]); assert c % 2 == 0 and t % 2 == 0
        cp = f'v[{c}:{c+1}]'; tp = f'v[{t}:{t+1}]'
        for r in range(0, 16, 2):
            L.append(f'v_pk_fma_f32 v[{E1+r}:{E1+r+1}], v[{P+r}:{P+r+1}], {cp}, {tp} op_sel:[0,0,0] op_sel_hi:[1,0,0] neg_lo:[0,0,1] neg_hi:[0,0,1]')
            L.append(f'v_pk_fma_f32 v[{E2+r}:{E2+r+1}], v[{P+r}:{P+r+1}], {cp}, {tp} op_sel:[0,0,1] op_sel_hi:[1,0,1] neg_lo:[1,0,0] neg_hi:[1,0,0]')
        for r in range(16):
            L += [f'v_exp_f32 v{E1+r}, v{E1+r}', f'v_exp_f32 v{E2+r}, v{E2+r}']
        for r in (3, 7, 11, 15):
            L += [f'v_cndmask_b32 v{E1+r}, v{E1+r}, 0, {sUP}', f'v_cndmask_b32 v{E2+r}, v{E2+r}, 0, {sUP}']
        A1 = f'v[{t}:{t+1}]'; A2 = f'v[{t+2}:{t+3}]'; B1 = f'v[{t+4}:{t+5}]'; B2 = f'v[{t+6}:{t+7}]'
        pr = lambda b, r: f'v[{b+r}:{b+r+1}]'
        L += [f'v_pk_add_f32 {A1}, {pr(E1,0)}, {pr(E1,2)}', f'v_pk_add_f32 {A2}, {pr(E2,0)}, {pr(E2,2)}',
              f'v_pk_add_f32 {B1}, {pr(E1,4)}, {pr(E1,6)}', f'v_pk_add_f32 {B2}, {pr(E2,4)}, {pr(E2,6)}']
        L += [f'v_pk_add_f32 {A1}, {A1}, {pr(E1,8)}', f'v_pk_add_f32 {A2}, {A2}, {pr(E2,8)}',
              f'v_pk_add_f32 {B1}, {B1}, {pr(E1,10)}', f'v_pk_add_f32 {B2}, {B2}, {pr(E2,10)}',
              f'v_pk_add_f32 {A1}, {A1}, {pr(E1,12)}', f'v_pk_add_f32 {A2}, {A2}, {pr(E2,12)}',
              f'v_pk_add_f32 {B1}, {B1}, {pr(E1,14)}', f'v_pk_add_f32 {B2}, {B2}, {pr(E2,14)}',
              f'v_pk_add_f32 {A1}, {A1}, {B1}', f'v_pk_add_f32 {A2}, {A2}, {B2}',
              f'v_add_f32 v{t}, v{t}, v{t+1}', f'v_add_f32 v{t+2}, v{t+2}, v{t+3}',
              f'v_mov_b32 v{t+1}, v{t}', f'v_mov_b32 v{t+3}, v{t+2}',
              f'v_permlane32_swap_b32 v{t}, v{t+1}', f'v_permlane32_swap_b32 v{t+2}, v{t+3}',
              f'v_add_f32 v{t}, v{t}, v{t+1}', f'v_add_f32 v{t+2}, v{t+2}, v{t+3}',
              f'v_rcp_f32 v{t}, v{t}', f'v_rcp_f32 v{t+2}, v{t+2}']
        for r in range(0, 16, 2):
            L.append(f'v_pk_mul_f32 {pr(E1,r)}, {pr(E1,r)}, {A1} op_sel_hi:[1,0]')
            L.append(f'v_pk_mul_f32 {pr(E2,r)}, {pr(E2,r)}, {A2} op_sel_hi:[1,0]')
        for i in range(8):
            L += [f'v_cvt_pk_bf16_f32 v{dP+i}, v{E1+2*i}, v{E1+2*i+1}', f'v_cvt_pk_bf16_f32 v{dM+i}, v{E2+2*i}, v{E2+2*i+1}']
        return L

    def qk_list(s, acc, cs, NMp, vC, frag, P, E1, E2, dP, dM, t):
        L = []
        for r in range(0, 16, 2):
            L.append(f'v_pk_fma_f32 v[{acc+r}:{acc+r+1}], v[{cs+r}:{cs+r+1}], v[{NMp}:{NMp+1}], v[{acc+r}:{acc+r+1}] op_sel_hi:[1,0,1]')
        for i in range(8):
            L.append(f'v_cvt_pk_bf16_f32 v{frag+i}, v{acc+2*i}, v{acc+2*i+1}')
        L.append(f'v_mfma_f32_32x32x16_bf16 v[{P}:{P+15}], a[248:251], v[{frag}:{frag+3}], 0')
        L.append(f'v_mfma_f32_32x32x16_bf16 v[{P}:{P+15}], a[252:255], v[{frag+4}:{frag+7}], v[{P}:{P+15}]')
        L += s.softmax_list(P, vC, E1, E2, dP, dM, t)
        return L

    def dma_item(s, srd, voff, ssrc, srcoff, sdst, dstoff, tag, track=True):
        a = s.a
        def f():
            if sdst is None: a(f's_mov_b32 m0, {dstoff}')
            else: a(f's_add_u32 m0, {sdst}, {dstoff}')
            a(f's_add_u32 s92, {ssrc}, {srcoff}')
            if track: a.vmem(f'buffer_load_dwordx4 {voff}, {srd}, s92 offen lds', tag)
            else: a(f'buffer_load_dwordx4 {voff}, {srd}, s92 offen lds')
        return f

    def wq_items(s):
        a = s.a
        a(f's_mul_i32 s90, {sHEAD}, {WQH}'); a(f's_add_u32 s90, s90, {G0 + WQ}')
        a(f's_lshl_b32 s91, {sW}, 10'); a(f's_add_u32 s90, s90, s91')
        return [s.dma_item(WS, vL16, 's90', n*4096, 's91', n*4096, 'W') for n in range(21)]

    def layer_setup(s):
        a = s.a
        L0 = a.newlabel('Ll0'); Le = a.newlabel('Lle')
        a(f's_cmp_lg_u32 {sL}, 0'); a(f's_cbranch_scc1 {L0}')
        for r, o in ((sXIN, X0), (sSTIN, ST0), (sX1, X1A), (sST1, ST1A), (sXO, X2A), (sSTO, ST2A), (sO, OA), (sH, HA)):
            a(f's_add_u32 {r}, {sGB}, {o}')
        a(f's_branch {Le}')
        a.label(L0)
        for r, o in ((sXIN, X2A), (sSTIN, ST2A), (sX1, X1A), (sST1, ST1A), (sXO, X2A), (sSTO, ST2A), (sO, OA), (sH, HA)):
            a(f's_add_u32 {r}, {sGB}, {o}')
        a.label(Le)
        a(f's_lshl_b32 {sT0}, {sL}, 4'); a(f's_add_u32 {sT0}, {sT0}, {sHEAD}')
        a(f's_lshl_b32 {sKV}, {sT0}, 13'); a(f's_add_u32 {sKV}, {sKV}, {KV}')
        a(f's_lshl_b32 {sKVC}, {sT0}, 7'); a(f's_add_u32 {sKVC}, {sKVC}, {KVC}')
        a(f's_lshl_b32 {sFL}, {sG}, 11'); a(f's_lshl_b32 {sT0}, {sL}, 9'); a(f's_add_u32 {sFL}, {sFL}, {sT0}')
        if FLAGS: a(f's_add_u32 {sFL}, {sFL}, {FLAGS}')

    def wait_saved(s, all_heads=False):
        a = s.a; g = s.g
        def w0():
            Lx = a.newlabel('Lx'); a(f's_cmp_lg_u32 {sL}, 0'); a(f's_cbranch_scc1 {Lx}')
            if all_heads:
                a(f'v_and_b32 v11, 15, {vLANE}'); a('v_lshlrev_b32 v11, 7, v11')
                a(f's_mov_b32 {sT0}, {KVC}')
                g.poll(WS, 'v11', sT0, 16, vt='v10')
            else:
                a(f's_lshl_b32 {sT0}, {sHEAD}, 7'); a(f's_add_u32 {sT0}, {sT0}, {KVC}')
                g.poll(WS, None, sT0, 16, vt='v10')
            a.label(Lx)
        g.wave_only(0, w0)

    def fl(s, p):
        s.a(f's_add_u32 s80, {sFL}, {p*128}')
        return 's80'

    def p1(s):
        a = s.a; g = s.g
        a.c('==== P1')
        XD = int(os.environ.get('XD1', '12'))
        a(f's_lshl_b32 {sT3}, {sHALF}, 2'); a(f's_add_u32 {sT3}, {sT3}, {sW}')
        a(f's_mul_i32 s82, {sT3}, 3584'); a(f's_add_u32 s82, s82, {sSTIN}')
        a(f's_mul_i32 s83, {sT3}, 28672'); a(f's_add_u32 s83, s83, {sXIN}')
        def xload(ks):
            if ks % 4 == 0: a(f's_add_u32 s84, s83, {(ks//4)*4096}')
            a.vmem(f'buffer_load_dwordx4 a[{4*ks}:{4*ks+3}], {vL16}, {WS}, s84 offen offset:{(ks%4)*1024} {LDSC}', ('x', ks))
        a(f's_lshl_b32 {sT4}, {sT3}, 15'); a(f's_add_u32 {sT4}, {sT4}, {sO}'); a(f's_lshl_b32 {sT5}, {sHEAD}, 11'); a(f's_add_u32 s85, {sT4}, {sT5}')
        def rd64(base, va=vTR64):
            def f(ks, reg, tag):
                a.ds(f'ds_read_b64_tr_b16 v[{reg}:{reg+1}], {va} offset:{base+(16*ks)*64}', tag)
                a.ds(f'ds_read_b64_tr_b16 v[{reg+2}:{reg+3}], {va} offset:{base+(16*ks+8)*64}', tag)
            return f
        AK, AV, AQ, FR = 16, 32, 48, 64
        rk, rv, rq = rd64(L_WK), rd64(L_WV), rd64(0, 'v208')
        FRS = (64, 72, 216)
        NM, RS, VC = 'v10', 'v11', 'v12'
        def kvloop(loads):
            side = Side()
            if loads:
                run_list(a, s.stats_load_items(96, 's82', 'st', 'v14'))
                for ks in range(XD): xload(ks)
                a(f'v_add_u32 v15, {M_CSQKV}, {vCS}')
                side = Side(s.cs_read_items(112, 0, 'csk', 'v15') + s.cs_read_items(128, 128, 'csv', 'v15')
                            + [lambda: a.wait_vm('st')] + s.stats_list(96, NM, RS, 'v13', 'v14'))
            CF = (132, 136, 140)
            rc = rd64(0, 'v210')
            if not loads:
                a(f's_and_b32 {sT0}, {sW}, 1'); a(f's_mul_i32 {sT0}, {sT0}, 28672'); a(f'v_add_u32 v210, {sT0}, {vTR64}')
                for i in range(4): a(f'v_mov_b32 v{128+i}, 0x3f803f80')
            rk(0, FRS[0], ('fk', 0)); rv(0, FRS[0]+4, ('fv', 0))
            if not loads: rc(0, CF[0], ('fc', 0))
            rk(1, FRS[1], ('fk', 1)); rv(1, FRS[1]+4, ('fv', 1))
            if not loads: rc(1, CF[1], ('fc', 1))
            for ks in range(28):
                b = FRS[ks % 3]
                if loads: a.wait_vm(('x', ks))
                a.wait_lg(('fk', ks))
                ck = '0' if ks == 0 else f'v[{AK}:{AK+15}]'
                cv = '0' if ks == 0 else f'v[{AV}:{AV+15}]'
                a(f'v_mfma_f32_32x32x16_bf16 v[{AK}:{AK+15}], v[{b}:{b+3}], a[{4*ks}:{4*ks+3}], {ck}')
                if ks+2 < 28: rk(ks+2, FRS[(ks+2) % 3], ('fk', ks+2))
                if loads and ks + XD < 28: xload(ks + XD)
                a.wait_lg(('fv', ks))
                a(f'v_mfma_f32_32x32x16_bf16 v[{AV}:{AV+15}], v[{b+4}:{b+7}], a[{4*ks}:{4*ks+3}], {cv}')
                if ks+2 < 28: rv(ks+2, FRS[(ks+2) % 3]+4, ('fv', ks+2))
                if not loads:
                    a.wait_lg(('fc', ks))
                    cc = '0' if ks == 0 else 'v[112:127]'
                    a(f'v_mfma_f32_32x32x16_bf16 v[112:127], v[{CF[ks % 3]}:{CF[ks % 3]+3}], v[128:131], {cc}')
                    if ks+2 < 28: rc(ks+2, CF[(ks+2) % 3], ('fc', ks+2))
                if ks >= 2: side.emit(a, 2)
            if not loads:
                def csw():
                    a(f's_lshl_b32 {sT1}, {sW}, 7'); a(f's_add_u32 {sT1}, {sT1}, {M_CSQKV}')
                    a(f'v_add_u32 v211, {sT1}, {vCS}')
                    a('s_mov_b32 exec_lo, 1'); a('s_mov_b32 exec_hi, 1')
                    for gq in range(4):
                        a(f'ds_write_b128 v211, v[{112+4*gq}:{115+4*gq}] offset:{32*gq}')
                    a('s_mov_b64 exec, -1')
                    a('s_waitcnt lgkmcnt(0)')
                g.wave_in(0, 2, csw)
            side.flush(a)
        L1p = a.newlabel('Lp1l1'); Lj = a.newlabel('Lp1j')
        a(f's_cmp_lg_u32 {sL}, 0'); a(f's_cbranch_scc1 {L1p}')
        a(f'v_and_b32 v13, 7, {vLANE}'); a('v_lshlrev_b32 v233, 5, v13')
        a(f'buffer_load_dword v232, v233, {DBG}, 0 offen sc1')
        a.lg = []
        kvloop(False)
        a('s_waitcnt vmcnt(0)')
        g.wave_in(0, 2, g.registration_check)
        a('s_barrier')
        a(f's_lshl_b32 {sT0}, {sG}, 1'); a(f's_add_u32 {sT0}, {sT0}, {sHALF}'); a(f's_lshl_b32 {sT1}, {sW}, 4'); a(f's_add_u32 {sT0}, {sT0}, {sT1}')
        a(f's_add_u32 {sT1}, {sT0}, 64')
        a(f's_cmp_lt_u32 {sT1}, 84'); a(f's_cselect_b32 {sT2}, {sT1}, {sT0}')
        a(f's_lshl_b32 {sT0}, {sT0}, 10'); a(f's_lshl_b32 {sT2}, {sT2}, 10')
        a(f'v_add_u32 v13, {sT0}, {vL16}'); a(f'v_add_u32 v14, {sT2}, {vL16}')
        a('ds_read_b128 v[128:131], v13'); a('ds_read_b128 v[132:135], v14')
        a(f's_mul_i32 {sT1}, {sHEAD}, {WQH}'); a(f's_add_u32 {sT1}, {sT1}, {G0 + WQ}')
        a(f's_add_u32 {sT0}, {sT0}, {sT1}'); a(f's_add_u32 {sT2}, {sT2}, {sT1}')
        a('s_waitcnt lgkmcnt(0)')
        a(f'buffer_store_dwordx4 v[128:131], {vL16}, {WS}, {sT0} offen sc1')
        a(f'buffer_store_dwordx4 v[132:135], {vL16}, {WS}, {sT2} offen sc1')
        a('s_barrier')
        a(f'v_add_u32 v15, {M_CSQKV}, {vCS}')
        run_list(a, s.cs_read_items(112, 0, 'csk', 'v15') + s.cs_read_items(128, 128, 'csv', 'v15'))
        a('v_mov_b32 v10, v234'); a('v_mov_b32 v11, v235')
        a(f's_branch {Lj}')
        a.label(L1p)
        a.vm = []; a.lg = []
        kvloop(True)
        a('s_barrier')
        a.label(Lj)
        a.vm = []; a.lg = []
        g.stamp('p1 KV gemm')
        a(f'v_mul_f32 {VC}, {fbits(LOG2E)}, {RS}')
        a.wait_lg0()
        a(f's_lshl_b32 s90, {sM}, 7'); a(f's_mul_i32 s91, {sW}, {8*3584}'); a(f's_add_u32 s90, s90, s91')
        a(f's_lshl_b32 s91, {sW}, 10')
        wa = Side([s.dma_item(WG, vD3584, 's90', 4*n*8*3584, 's91', L_WG + 4*n*1024, 'WA') for n in range(10)] if PFA else [])
        L = s.qk_list(AK, 112, 10, VC, 144, 80, 96, 192, 176, 184, 152)
        LV = []
        for r in range(0, 16, 2):
            LV.append(f'v_pk_fma_f32 v[{AV+r}:{AV+r+1}], v[{128+r}:{129+r}], v[10:11], v[{AV+r}:{AV+r+1}] op_sel_hi:[1,0,1]')
        for r in range(0, 16, 2):
            LV.append(f'v_pk_mul_f32 v[{AV+r}:{AV+r+1}], v[{AV+r}:{AV+r+1}], v[10:11] op_sel:[0,1] op_sel_hi:[1,1]')
        LV.append(f'v_cndmask_b32 v{AV+12}, v{AV+12}, 1.0, {sUP}')
        for i in range(8):
            LV.append(f'v_cvt_pk_bf16_f32 v{128+i}, v{AV+2*i}, v{AV+2*i+1}')
        for gq in range(4):
            LV.append(f'v_xor_b32 v{136+(gq&1)}, {(2*gq) << 3}, {vVIW}')
            LV.append(lambda gq=gq: a.ds(f'ds_write_b64 v{136+(gq&1)}, v[{128+2*gq}:{129+2*gq}]', 'vw'))
        im = max(i for i, it in enumerate(L) if isinstance(it, str) and it.startswith('v_mfma'))
        L = L[:im+1] + LV + L[im+1:]
        for T in range(2):
            for gq in range(4):
                R = 176 + 8*T + 2*gq
                L.append(f'v_xor_b32 v{156+(gq&1)}, {(8*T+2*gq) << 3}, {vPHIW}')
                L.append(lambda R=R, gq=gq: a.ds(f'ds_write_b64 v{156+(gq&1)}, v[{R}:{R+1}]', 'pw'))
        run_list(a, L, wa, 22)
        a(f's_waitcnt vmcnt({10 if PFA else 0}) lgkmcnt(0)')
        a.lg = []
        a('s_barrier')
        g.stamp('p1 phi/v written')
        s.pretouch('s85', 16)
        def kv():
            def rr(kt, reg, tag):
                a.ds(f'ds_read_b64_tr_b16 v[{reg}:{reg+1}], {vPA0} offset:{kt*2048}', tag)
                a.ds(f'ds_read_b64_tr_b16 v[{reg+2}:{reg+3}], {vPA1} offset:{kt*2048}', tag)
                a.ds(f'ds_read_b64_tr_b16 v[{reg+4}:{reg+5}], {vVB0} offset:{kt*1024}', tag)
                a.ds(f'ds_read_b64_tr_b16 v[{reg+6}:{reg+7}], {vVB1} offset:{kt*1024}', tag)
            KS = (64, 72, 216)
            rr(0, KS[0], ('k', 0)); rr(1, KS[1], ('k', 1))
            for kt in range(8):
                if kt+2 < 8: rr(kt+2, KS[(kt+2) % 3], ('k', kt+2))
                a.wait_lg(('k', kt))
                b = KS[kt % 3]
                c = '0' if kt == 0 else 'v[80:95]'
                a(f'v_mfma_f32_32x32x16_bf16 v[80:95], v[{b+4}:{b+7}], v[{b}:{b+3}], {c}')
            a(f's_lshl_b32 {sT0}, {sW}, 7'); a(f's_add_u32 {sT0}, {sT0}, {sKV}'); a(f's_add_u32 {sT1}, {sT0}, 4096')
            a('s_mov_b32 s78, 0x80808080'); a('s_mov_b32 s79, 0x80808080')
            for r in range(16):
                a(f'v_cndmask_b32 v{80+r}, v{80+r}, 1.0, s[78:79]')
            for gq in range(4):
                for r in range(4):
                    so = sT0 if gq < 2 else sT1
                    a(f'buffer_atomic_add_f32 v{80+4*gq+r}, {vKVO}, {WS}, {so} offen offset:{((8*gq+r)*256) % 4096} sc1')
        g.wave_in(0, 2, kv)
        def csq():
            Lq0 = a.newlabel('Lq0')
            a(f's_cmp_lg_u32 {sL}, 0'); a(f's_cbranch_scc1 {Lq0}')
            a(f'v_add_u32 v209, {2*28672}, {vTR64}')
            a(f's_mov_b32 {sT1}, {M_CSQKV + 256}')
            s.colsum(rd64(0, 'v209'), 28, 112, sT1, va='v152')
            a.label(Lq0)
        g.wave_only(2, csq)
        a.lg = []
        a.vm = []
        a.lg = []
        g.stamp('p1 kv issued')
        Lcq = a.newlabel('Lcq')
        a(f's_cmp_eq_u32 {sL}, 0'); a(f's_cbranch_scc1 {Lcq}')
        for it in s.cs_read_items(112, 256, 'csq0', 'v15'): it()
        a.label(Lcq)
        a.lg = []
        a(f'v_add_u32 v208, {L_WQ}, {vTR64}')
        QS = (64, 68, 72)
        rq(0, QS[0], ('f', 0)); rq(1, QS[1], ('f', 1))
        for ks in range(28):
            if ks+2 < 28: rq(ks+2, QS[(ks+2) % 3], ('f', ks+2))
            a.wait_lg(('f', ks))
            b = QS[ks % 3]
            cq = '0' if ks == 0 else f'v[{AQ}:{AQ+15}]'
            a(f'v_mfma_f32_32x32x16_bf16 v[{AQ}:{AQ+15}], v[{b}:{b+3}], a[{4*ks}:{4*ks+3}], {cq}')
        a.wait_lg0()
        a('s_barrier')
        Lcr = a.newlabel('Lcr')
        a(f's_cmp_lg_u32 {sL}, 0'); a(f's_cbranch_scc1 {Lcr}')
        run_list(a, s.cs_read_items(112, 256, 'csq', 'v15'))
        a.wait_lg0()
        a.label(Lcr)
        g.stamp('p1 q gemm')
        qpost = lambda: s.qk_list(AQ, 112, 10, VC, 144, 80, 96, 192, 160, 168, 152)
        Lq = a.newlabel('Lq23'); Lqe = a.newlabel('Lqe')
        a(f's_cmp_ge_u32 {sW}, 2'); a(f's_cbranch_scc1 {Lq}')
        a.vm = []
        s.resid_loads(224, sXIN, track=False, raw_l0=True)
        if not PT23: s.dest_pretouch(sX1, sST1)
        if G.CPF: g.wave_only(1, lambda: g.code_prefetch('L_code_p2b', 'L_code_p4', v='v14'))
        Lp = a.newlabel('Lkvp'); Ld = a.newlabel('Lkvd'); Lc = a.newlabel('Lkvc')
        a(f's_lshl_b32 {sT0}, {sW}, 7'); a(f's_add_u32 {sT0}, {sT0}, {sKV}'); a(f's_add_u32 {sT1}, {sT0}, 4096')
        a('s_mov_b32 s78, 0xaaaaaaaa'); a('s_mov_b32 s79, 0xaaaaaaaa')
        a(f's_mov_b32 {sT7}, 0')
        def kvloads():
            for q in range(4):
                so = sT0 if q < 2 else sT1
                a(f'buffer_load_dwordx4 v[{64+4*q}:{67+4*q}], {vKVR}, {WS}, {so} offen offset:{(q*2048) % 4096} sc1')
        Lq_ = qpost()
        cut = int(len(Lq_)*float(os.environ.get('ASYNC', '0.5')))
        run_list(a, Lq_[:cut] + [kvloads] + Lq_[cut:])
        g.stamp('p1 kv counted')
        a(f's_branch {Lc}')
        a.label(Lp)
        kvloads()
        a.label(Lc)
        a('s_waitcnt vmcnt(0)')
        for q in range(1, 4):
            a(f'v_sub_f32 v{96+q}, 0x41800000, v{67+4*q}')
        a('v_sub_f32 v96, 0x41800000, v67')
        a('v_or_b32 v96, v96, v97'); a('v_or_b32 v98, v98, v99'); a('v_or_b32 v96, v96, v98')
        a('v_lshlrev_b32 v96, 1, v96')
        a('v_cmp_ne_u32 vcc, 0, v96')
        a(f's_add_u32 {sT7}, {sT7}, 1')
        a('s_and_b64 vcc, vcc, s[78:79]')
        a('s_cmp_eq_u64 vcc, 0'); a(f's_cbranch_scc1 {Ld}')
        a(f's_cmp_lt_u32 {sT7}, {G.TIMEOUT}'); a(f's_cbranch_scc1 {Lp}')
        a(f's_mov_b32 {sTO}, 1')
        a.label(Ld)
        g.stamp('kv hop done')
        for q in range(4):
            a(f'v_cvt_pk_bf16_f32 v{96+2*q}, v{64+4*q}, v{65+4*q}'); a(f'v_cvt_pk_bf16_f32 v{97+2*q}, v{66+4*q}, v{67+4*q}')
        for q in range(4):
            a(f'ds_write_b64 {vKVW}, v[{96+2*q}:{97+2*q}] offset:{q*128}')
        a('s_waitcnt lgkmcnt(0)')
        a(f's_branch {Lqe}')
        a.label(Lq)
        a.vm = []
        a(f's_sub_u32 {sT0}, {sW}, 2')
        a(f's_lshl_b32 s86, {sCT}, 7'); a(f's_mul_i32 {sT1}, {sT0}, {8*896}'); a(f's_add_u32 s86, s86, {sT1}')
        a(f's_lshl_b32 s87, {sT0}, 10')
        a(f's_lshl_b32 s88, {sM}, 7'); a(f's_mul_i32 {sT1}, {sT0}, {8*3584}'); a(f's_add_u32 s88, s88, {sT1}')
        items = [s.dma_item(WO, vD896, 's86', 2*n*8*896, 's87', L_WO + 2*n*1024, 'W1') for n in range(28)]
        if not PFA: items += [s.dma_item(WG, vD3584, 's88', 2*n*8*3584, 's87', L_WG + 2*n*1024, 'W1') for n in range(20)]
        items += [s.dma_item(WU, vD3584, 's88', 2*n*8*3584, 's87', L_WU + 2*n*1024, 'W1', track=False) for n in range(14 if LATEU else 28)]
        s.resid_loads(224, sXIN, track=False, raw_l0=True)
        s.dest_pretouch(sX1, sST1, both=bool(PT23))
        run_list(a, qpost(), Side(items), 2)
        a.label(Lqe)
        a.vm = []; a.lg = []
        a('s_barrier')
        g.stamp('kv frags ready')

    def p2a(s):
        a = s.a; g = s.g
        a.c('==== P2a')
        a(f'v_add_u32 v13, {L_KVF}, {vL16}')
        for k in range(4):
            a.ds(f'ds_read_b128 v[{96+4*k}:{99+4*k}], v13 offset:{k*1024}', ('kf', k))
        for k in range(4):
            a.wait_lg(('kf', k))
            c = '0' if k == 0 else 'v[16:31]'
            a(f'v_mfma_f32_32x32x16_bf16 v[16:31], v[{96+4*k}:{99+4*k}], v[{160+4*k}:{163+4*k}], {c}')
        a('v_mov_b32 v32, v28'); a('v_mov_b32 v33, v28')
        a('v_permlane32_swap_b32 v32, v33')
        a(f'v_add_f32 v33, {fbits(1e-6)}, v33')
        a('v_rcp_f32 v34, v33')
        for r in range(0, 16, 2):
            a(f'v_pk_mul_f32 v[{16+r}:{17+r}], v[{16+r}:{17+r}], v[34:35] op_sel_hi:[1,0]')
        for r in range(12, 16):
            a(f'v_cndmask_b32 v{16+r}, v{16+r}, 0, {sUP}')
        for i in range(8):
            a(f'v_cvt_pk_bf16_f32 v{40+i}, v{16+2*i}, v{16+2*i+1}')
        a(f'buffer_store_dwordx4 v[40:43], {vL16}, {WS}, s85 offen {STSC}')
        a(f'buffer_store_dwordx4 v[44:47], {vL16}, {WS}, s85 offen offset:1024 {STSC}')
        g.set_flag(s.fl(1))
        def svc():
            Lx = a.newlabel('Lx'); a(f's_cmp_lg_u32 {sL}, 0'); a(f's_cbranch_scc1 {Lx}')
            a(f's_lshl_b32 {sT0}, {sHEAD}, 7'); a(f's_add_u32 {sT0}, {sT0}, {KVC}')
            a('v_mov_b32 v10, 1'); a('s_mov_b64 exec, 1')
            a(f'buffer_atomic_add v10, off, {WS}, {sT0} sc1')
            a('s_mov_b64 exec, -1')
            a.label(Lx)
        g.wave_only(3, svc)
        g.stamp('p2a done')

    def tile_coords(s):
        a = s.a
        a(f's_and_b32 {sT1}, {sW}, 1'); a(f's_lshl_b32 {sT2}, {sTQ}, 1'); a(f's_add_u32 {sT1}, {sT1}, {sT2}')
        a(f's_lshr_b32 {sT2}, {sW}, 1'); a(f's_lshl_b32 {sT3}, {sCT}, 1'); a(f's_add_u32 {sT2}, {sT2}, {sT3}')

    def resid_loads(s, dst, sX, track=True, raw_l0=False):
        a = s.a
        s.tile_coords()
        f = a.vmem if track else (lambda t, tag: a(t))
        Lr = Le = None
        if raw_l0:
            Lr = a.newlabel('Lrr'); Le = a.newlabel('Lre')
            a(f's_cmp_eq_u32 {sL}, 0'); a(f's_cbranch_scc1 {Lr}')
        a(f's_mul_i32 {sT4}, {sT1}, 28672'); a(f's_lshl_b32 {sT2}, {sT2}, 11'); a(f's_add_u32 {sT4}, {sT4}, {sT2}')
        a(f's_add_u32 {sT4}, {sT4}, {sX}')
        f(f'buffer_load_dwordx4 v[{dst}:{dst+3}], {vL16}, {WS}, {sT4} offen {LDSC}', 'res')
        f(f'buffer_load_dwordx4 v[{dst+4}:{dst+7}], {vL16}, {WS}, {sT4} offen offset:1024 {LDSC}', 'res')
        if raw_l0:
            a(f's_branch {Le}')
            a.label(Lr)
            a(f's_lshl_b32 {sT4}, {sG}, 8'); a(f's_lshl_b32 {sT5}, {sT1}, 5'); a(f's_add_u32 {sT4}, {sT4}, {sT5}')
            a(f's_mul_i32 {sT4}, {sT4}, 896'); a(f's_lshl_b32 {sT5}, {sT2}, 6'); a(f's_add_u32 {sT4}, {sT4}, {sT5}')
            a(f'v_and_b32 v13, 31, {vLANE}'); a('v_mul_u32_u24 v13, 896, v13')
            a(f'v_lshrrev_b32 v14, 5, {vLANE}'); a('v_lshl_add_u32 v13, v14, 3, v13')
            for gq in range(4):
                a(f'buffer_load_dwordx2 v[{dst+2*gq}:{dst+2*gq+1}], v13, {AX}, {sT4} offen offset:{16*gq}')
            a.label(Le)

    def dest_pretouch(s, sXdst, sSTdst, both=False):
        if not PRET: return
        a = s.a
        s.tile_coords()
        a(f's_mul_i32 {sT4}, {sT1}, 28672'); a(f's_lshl_b32 {sT5}, {sT2}, 11'); a(f's_add_u32 {sT4}, {sT4}, {sT5}')
        a(f's_add_u32 {sT4}, {sT4}, {sXdst}')
        if both: a(f's_sub_u32 {sT4}, {sT4}, 2048')
        s.pretouch(sT4, 32 if both else 16)
        a(f's_mul_i32 {sT4}, {sT1}, 3584'); a(f's_lshl_b32 {sT5}, {sCT}, 9'); a(f's_add_u32 {sT4}, {sT4}, {sT5}')
        a(f's_add_u32 {sT4}, {sT4}, {sSTdst}')
        s.pretouch(sT4, 4)

    def red_addrs(s, RED, parts):
        a = s.a
        n = len(parts)
        for k, (slot, x) in enumerate(parts):
            a(f's_xor_b32 {sT0}, {sW}, {x}'); a(f's_mul_i32 {sT0}, {sT0}, {n}'); a(f's_add_u32 {sT0}, {sT0}, {k}')
            a(f's_lshl_b32 {sT0}, {sT0}, 12'); a(f's_add_u32 {sT0}, {sT0}, {RED}')
            a(f'v_add_u32 v{112+k}, {sT0}, {vL16}')
        a(f's_mul_i32 {sT0}, {sW}, {n*4096}'); a(f's_add_u32 {sT0}, {sT0}, {RED}')
        a(f'v_add_u32 v116, {sT0}, {vL16}')

    def red_write(s, ACC, RED, parts=(1, 2, 3), side=None):
        a = s.a
        for k, (slot, x) in enumerate(parts):
            for q in range(4):
                R = ACC + 16*slot + 4*q
                a.ds(f'ds_write_b128 v{112+k}, v[{R}:{R+3}] offset:{q*1024}', 'rw')
                if side is not None and q % 2 == 1: side.emit(a)
        a.wait_lg0()
        a('s_barrier')

    def red_list(s, ACC, resid, n=3):
        a = s.a
        T = ACC + 16
        L = []
        for k in range(n):
            for q in range(4):
                R = T + 16*k + 4*q
                L.append(lambda R=R, k=k, q=q: a.ds(f'ds_read_b128 v[{R}:{R+3}], v116 offset:{k*4096+q*1024}', ('rr', k)))
        U = ACC + 64
        for i in range(8):
            L += [f'v_lshlrev_b32 v{U+2*i}, 16, v{resid+i}', f'v_and_b32 v{U+2*i+1}, 0xffff0000, v{resid+i}']
        pr = lambda b, r: f'v[{b+r}:{b+r+1}]'
        for r in range(0, 16, 2):
            L.append(f'v_pk_add_f32 {pr(ACC,r)}, {pr(ACC,r)}, {pr(U,r)}')
        for k in range(n):
            L.append(lambda k=k: a.wait_lg(('rr', k)))
            for r in range(0, 16, 2):
                L.append(f'v_pk_add_f32 {pr(ACC,r)}, {pr(ACC,r)}, {pr(T+16*k,r)}')
        PK = ACC + 48 + 0
        for i in range(8):
            L.append(f'v_cvt_pk_bf16_f32 v{PK+i}, v{ACC+2*i}, v{ACC+2*i+1}')
        return L

    def store_x_list(s, ACC, sXdst, sSTdst):
        a = s.a
        PK = ACC + 48
        L = []
        def addr():
            s.tile_coords()
            a(f's_mul_i32 {sT4}, {sT1}, 28672'); a(f's_lshl_b32 {sT5}, {sT2}, 11'); a(f's_add_u32 {sT4}, {sT4}, {sT5}')
            a(f's_add_u32 {sT4}, {sT4}, {sXdst}')
            a.vmem(f'buffer_store_dwordx4 v[{PK}:{PK+3}], {vL16}, {WS}, {sT4} offen {STSC}', 'xs')
            a.vmem(f'buffer_store_dwordx4 v[{PK+4}:{PK+7}], {vL16}, {WS}, {sT4} offen offset:1024 {STSC}', 'xs')
        L.append(addr)
        pr = lambda b, r: f'v[{b+r}:{b+r+1}]'
        L += [f'v_pk_add_f32 v[12:13], {pr(ACC,0)}, {pr(ACC,2)}', f'v_pk_mul_f32 v[14:15], {pr(ACC,0)}, {pr(ACC,0)}']
        L.append(f'v_pk_fma_f32 v[14:15], {pr(ACC,2)}, {pr(ACC,2)}, v[14:15]')
        for r in range(4, 16, 2):
            L += [f'v_pk_add_f32 v[12:13], v[12:13], {pr(ACC,r)}', f'v_pk_fma_f32 v[14:15], {pr(ACC,r)}, {pr(ACC,r)}, v[14:15]']
        L += ['v_add_f32 v12, v12, v13', 'v_add_f32 v14, v14, v15', 'v_mov_b32 v13, v12', 'v_mov_b32 v15, v14',
              'v_permlane32_swap_b32 v12, v13', 'v_permlane32_swap_b32 v14, v15',
              'v_add_f32 v12, v12, v13', 'v_add_f32 v13, v14, v15']
        def st():
            a(f's_mul_i32 {sT4}, {sT1}, 3584'); a(f's_lshl_b32 {sT5}, {sCT}, 9'); a(f's_add_u32 {sT4}, {sT4}, {sT5}')
            a(f's_lshr_b32 {sT5}, {sW}, 1'); a(f's_lshl_b32 {sT5}, {sT5}, 3'); a(f's_add_u32 {sT4}, {sT4}, {sT5}')
            a(f's_add_u32 {sT4}, {sT4}, {sSTdst}')
            a('s_mov_b64 exec, 0xffffffff')
            a.vmem(f'buffer_store_dwordx2 v[12:13], {vL16}, {WS}, {sT4} offen {STSC}', 'xs')
            a('s_mov_b64 exec, -1')
        L.append(st)
        return L

    def store_out_list(s, ACC):
        a = s.a
        PK = ACC + 48
        L = []
        for e in range(2):
            L += [f'v_permlane32_swap_b32 v{PK+4*e}, v{PK+4*e+2}', f'v_permlane32_swap_b32 v{PK+4*e+1}, v{PK+4*e+3}']
        def st():
            s.tile_coords()
            a(f's_lshl_b32 {sT4}, {sG}, 8'); a(f's_lshl_b32 {sT5}, {sT1}, 5'); a(f's_add_u32 {sT4}, {sT4}, {sT5}')
            a(f's_mul_i32 {sT4}, {sT4}, 896'); a(f's_lshl_b32 {sT5}, {sT2}, 6'); a(f's_add_u32 {sT4}, {sT4}, {sT5}')
            a(f'v_and_b32 v12, 31, {vLANE}'); a('v_mul_u32_u24 v12, 896, v12')
            a(f'v_lshrrev_b32 v13, 5, {vLANE}'); a('v_lshl_add_u32 v12, v13, 4, v12')
            a(f'buffer_store_dwordx4 v[{PK}:{PK+3}], v12, {OUT}, {sT4} offen {OUTSC}')
            a(f'buffer_store_dwordx4 v[{PK+4}:{PK+7}], v12, {OUT}, {sT4} offen offset:32 {OUTSC}')
        L.append(st)
        return L

    def tile_addrs(s, sbase):
        a = s.a
        a(f's_lshr_b32 {sT0}, {sW}, 1'); a(f's_lshl_b32 {sT0}, {sT0}, 6')
        a(f'v_xor_b32 v14, {sT0}, {vTR0}')
        a(f'v_add_u32 v14, {sbase}, v14')
        a('v_xor_b32 v15, 64, v14')

    def p2b(s):
        a = s.a; g = s.g
        a.c('==== P2b')
        a.rawlabel('L_code_p2b')
        a(f's_lshr_b32 {sT5}, {sW}, 1'); a(f's_mul_i32 {sT5}, {sT5}, 28672'); a(f's_add_u32 {sT5}, {sT5}, {L_WO}')
        s.tile_addrs(sT5)
        a(f'v_lshrrev_b32 v12, 5, {vLANE}'); a('v_lshlrev_b32 v12, 9, v12')
        a('v_sub_u32 v13, v15, v12'); a('v_sub_u32 v12, v14, v12')
        a(f's_lshr_b32 {sT0}, {sTQ}, 1'); a(f's_lshl_b32 {sT0}, {sT0}, 4'); a(f's_lshl_b32 s81, 0xffff, {sT0}')
        a(f's_and_b32 {sT0}, {sW}, 1'); a(f's_lshl_b32 {sT1}, {sTQ}, 1')
        a(f's_add_u32 {sT0}, {sT0}, {sT1}'); a(f's_lshl_b32 {sT0}, {sT0}, 15'); a(f's_add_u32 {sT0}, {sT0}, {sO}')
        a(f's_lshr_b32 {sT1}, {sW}, 1'); a(f's_lshl_b32 {sT1}, {sT1}, 14'); a(f's_add_u32 s82, {sT0}, {sT1}')
        s.red_addrs(RED2, ((1, 2),))
        g.wait_flags(s.fl(1), 's81', vt='v10', va='v11')
        a.vm = []
        g.stamp('p2b hop done')
        def oload(i):
            if i % 4 == 0: a(f's_add_u32 s84, s82, {(i//4)*4096}')
            a.vmem(f'buffer_load_dwordx4 a[{4*i}:{4*i+3}], {vL16}, {WS}, s84 offen offset:{(i%4)*1024} {LDSC}', ('o', i))
        ACC = 16; FS = (80, 88, 104)
        def rd(i, reg, tag):
            off = (28*(i >> 1) + 16*(i & 1))*128
            for sl in range(2):
                va = ('v14', 'v15')[sl]
                vb = ('v12', 'v13')[sl] if (i & 1) else va
                a.ds(f'ds_read_b64_tr_b16 v[{reg+4*sl}:{reg+4*sl+1}], {va} offset:{off}', tag)
                a.ds(f'ds_read_b64_tr_b16 v[{reg+4*sl+2}:{reg+4*sl+3}], {vb} offset:{off+8*128}', tag)
        OD = int(os.environ.get('OD', '10'))
        for i in range(OD): oload(i)
        rd(0, FS[0], ('f', 0)); rd(1, FS[1], ('f', 1))
        for i in range(16):
            if i+2 < 16: rd(i+2, FS[(i+2) % 3], ('f', i+2))
            a.wait_lg(('f', i))
            a.wait_vm(('o', i))
            b0 = FS[i % 3]
            for sa in range(2):
                R = ACC + 16*sa
                c = '0' if i == 0 else f'v[{R}:{R+15}]'
                a(f'v_mfma_f32_32x32x16_bf16 v[{R}:{R+15}], v[{b0+4*sa}:{b0+4*sa+3}], a[{4*i}:{4*i+3}], {c}')
                if sa == 0 and i + OD < 16: oload(i + OD)
        g.stamp('p2b gemm')
        s.red_write(ACC, RED2, parts=((1, 2),))
        run_list(a, s.red_list(ACC, 224, n=1) + s.store_x_list(ACC, sX1, sST1))
        g.set_flag(s.fl(2))
        if G.CPF: g.wave_only(1, lambda: g.code_prefetch('L_code_p4', 'L_code_end', v='v14'))
        def late():
            a(f's_sub_u32 {sT0}, {sW}, 1')
            a(f's_lshl_b32 s90, {sM}, 7'); a(f's_mul_i32 s91, {sT0}, {8*3584}'); a(f's_add_u32 s90, s90, s91')
            a(f's_lshl_b32 s91, {sT0}, 10')
            def grp(srd, base, blk0, nblk):
                for n in range((nblk + 2)//3):
                    lastpartial = 3*n + 2 >= nblk
                    if lastpartial:
                        Lx = a.newlabel('Lx'); a(f's_cmp_gt_u32 {sW}, {nblk - 3*n}'); a(f's_cbranch_scc1 {Lx}')
                    s.dma_item(srd, vD3584, 's90', (blk0+3*n)*8*3584, 's91', base + (blk0+3*n)*1024, 'late', track=False)()
                    if lastpartial: a.label(Lx)
            if LATEU: grp(WU, L_WU, 28, 28)
            grp(WG, L_WG, 40, 16)
        g.wave_in(1, 4, late)
        a.vm = []
        g.stamp('p2b done')

    def gelu_list(s, G, U, csg, csu, NM, K, T, PK, packed):
        L = []
        pr = lambda b, r: f'v[{b+r}:{b+r+1}]'
        vA, vB, vV = f'v{K}', f'v{K+1}', f'v{K+2}'
        if packed:
            nm = int(NM[1:]); nmp = f'v[{nm & ~1}:{(nm & ~1)+1}]'; ns = nm & 1
            AB = f'v[{K}:{K+1}]'; VV = f'v[{K+2}:{K+3}]'
            for r in range(0, 16, 2): L.append(f'v_pk_fma_f32 {pr(G,r)}, {pr(csg,r)}, {nmp}, {pr(G,r)} op_sel:[0,{ns},0] op_sel_hi:[1,{ns},1]')
            for r in range(0, 16, 2): L.append(f'v_pk_fma_f32 {pr(U,r)}, {pr(csu,r)}, {nmp}, {pr(U,r)} op_sel:[0,{ns},0] op_sel_hi:[1,{ns},1]')
            for r in range(0, 16, 2): L.append(f'v_pk_mul_f32 {pr(T,r)}, {pr(G,r)}, {pr(G,r)}')
            for r in range(0, 16, 2): L.append(f'v_pk_fma_f32 {pr(T,r)}, {pr(T,r)}, {AB}, {AB} op_sel:[0,1,0] op_sel_hi:[1,1,0]')
            for r in range(0, 16, 2): L.append(f'v_pk_mul_f32 {pr(T,r)}, {pr(T,r)}, {pr(G,r)}')
            for r in range(0, 16, 2):
                L += [f'v_exp_f32 v{T+r}, v{T+r}', f'v_exp_f32 v{T+r+1}, v{T+r+1}', f'v_pk_mul_f32 {pr(U,r)}, {pr(U,r)}, {pr(G,r)}']
            for r in range(0, 16, 2): L.append(f'v_pk_fma_f32 {pr(T,r)}, {pr(T,r)}, {VV}, {VV} op_sel:[0,0,0] op_sel_hi:[1,0,0]')
            for r in range(16): L.append(f'v_rcp_f32 v{T+r}, v{T+r}')
            for r in range(0, 16, 2): L.append(f'v_pk_mul_f32 {pr(U,r)}, {pr(U,r)}, {pr(T,r)}')
        else:
            for r in range(16): L.append(f'v_fmac_f32 v{G+r}, {NM}, v{csg+r}')
            for r in range(16): L.append(f'v_fmac_f32 v{U+r}, {NM}, v{csu+r}')
            for r in range(16): L.append(f'v_mul_f32 v{T+r}, v{G+r}, v{G+r}')
            for r in range(16): L.append(f'v_fma_f32 v{T+r}, v{T+r}, {vB}, {vA}')
            for r in range(16): L.append(f'v_mul_f32 v{T+r}, v{T+r}, v{G+r}')
            for r in range(16):
                L += [f'v_exp_f32 v{T+r}, v{T+r}', f'v_mul_f32 v{U+r}, v{U+r}, v{G+r}']
            for r in range(16): L.append(f'v_fma_f32 v{T+r}, v{T+r}, {vV}, {vV}')
            for r in range(16): L.append(f'v_rcp_f32 v{T+r}, v{T+r}')
            for r in range(16): L.append(f'v_mul_f32 v{U+r}, v{U+r}, v{T+r}')
        for i in range(8):
            L.append(f'v_cvt_pk_bf16_f32 v{PK+i}, v{U+2*i}, v{U+2*i+1}')
        return L

    def p3(s):
        a = s.a; g = s.g
        a.c('==== P3')
        a(f'v_add_u32 v12, {L_WU}, {vTR0}'); a(f'v_add_u32 v13, {L_WU}, {vTR1}')
        for b in range(2):
            a(f's_lshl_b32 {sT0}, {sW}, 1'); a(f's_add_u32 {sT0}, {sT0}, {b}')
            a(f's_mul_i32 s{82+b}, {sT0}, 28672'); a(f's_add_u32 s{82+b}, s{82+b}, {sX1}')
            a(f's_mul_i32 s{86+b}, {sT0}, 3584'); a(f's_add_u32 s{86+b}, s{86+b}, {sST1}')
            a(f's_mul_i32 s{88+b}, {sT0}, 114688'); a(f's_add_u32 s{88+b}, s{88+b}, {sH}')
            a(f's_lshl_b32 {sT1}, {sM}, 12'); a(f's_add_u32 s{88+b}, s{88+b}, {sT1}')
        g.wait_flags(s.fl(2), 0x0fffffff, vt='v10', va='v11', keep_vm=True)
        g.stamp('p3 hop done')
        def xload(ks, b):
            a(f's_add_u32 {sT6}, s{82+b}, {(ks//4)*4096}')
            a.vmem(f'buffer_load_dwordx4 a[{8*ks+4*b}:{8*ks+4*b+3}], {vL16}, {WS}, {sT6} offen offset:{(ks%4)*1024} {LDSC}', ('x', ks, b))
        XD = int(os.environ.get('XD3', '5'))
        for ks in range(XD):
            xload(ks, 0); xload(ks, 1)
        GU = (((16, 32), (48, 64)), ((80, 96), (112, 128)))
        FS = (144, 152, 160)
        NM = ('v10', 'v11'); RS = ('v14', 'v15')
        STR = (168, 184); CSG = 168; CSU = 184; T = 200; PK = 216
        mk_misc = lambda: s.stats_load_items(STR[0], 's86', 'st', 'v234') + s.stats_load_items(STR[1], 's87', 'st', 'v235')
        misc = Side(mk_misc())
        NMs = ('v10', 'v11'); RSs = ('v14', 'v15')
        def stats_side():
            L = [lambda: a.wait_vm('st')]
            L += s.stats_list(STR[0], NMs[0], RSs[0], 'v234', 'v235') + s.stats_list(STR[1], NMs[1], RSs[1], 'v234', 'v235')
            for b in range(2):
                K = (250, 236)[b]
                L += [f'v_mul_f32 v234, {RSs[b]}, {RSs[b]}', f'v_mov_b32 v{K+2}, v{STR[b]+1}',
                      f'v_mul_f32 v{K}, {fbits(C0)}, {RSs[b]}', f'v_mul_f32 v234, v234, {RSs[b]}', f'v_mul_f32 v{K+1}, {fbits(C1)}, v234']
            return Side(L)
        def unit(c, side, per_beat, cs=True):
            vside = stats_side() if (c == 0 and STU0) else None
            vg = vTR0 if c == 0 else vTR1
            vu = 'v12' if c == 0 else 'v13'
            def rdg(ks):
                reg = FS[ks % 3]
                a.ds(f'ds_read_b64_tr_b16 v[{reg}:{reg+1}], {vg} offset:{L_WG+(16*ks)*128}', ('fg', ks))
                a.ds(f'ds_read_b64_tr_b16 v[{reg+2}:{reg+3}], {vg} offset:{L_WG+(16*ks+8)*128}', ('fg', ks))
            def rdu(ks):
                reg = FS[ks % 3] + 4
                a.ds(f'ds_read_b64_tr_b16 v[{reg}:{reg+1}], {vu} offset:{(16*ks)*128}', ('fu', ks))
                a.ds(f'ds_read_b64_tr_b16 v[{reg+2}:{reg+3}], {vu} offset:{(16*ks+8)*128}', ('fu', ks))
            (G_, U_) = GU[c]
            CF = (100, 104, 108)
            def rdc(ks):
                reg = CF[ks % 3]
                a.ds(f'ds_read_b64_tr_b16 v[{reg}:{reg+1}], v233 offset:{(16*ks)*128}', ('fc', ks))
                a.ds(f'ds_read_b64_tr_b16 v[{reg+2}:{reg+3}], v233 offset:{(16*ks+8)*128}', ('fc', ks))
            rdg(0); rdu(0); rdg(1); rdu(1)
            if c == 0 and cs: rdc(0); rdc(1)
            for ks in range(28):
                b0 = FS[ks % 3]
                if c == 0 and ks == (12 if LATEU else 18):
                    a('s_barrier')
                for j, (acc, fo, b) in enumerate(((G_[0], 0, 0), (G_[1], 0, 1), (U_[0], 4, 0), (U_[1], 4, 1))):
                    if c == 0 and j < 2: a.wait_vm(('x', ks, b))
                    if j == 0: a.wait_lg(('fg', ks))
                    if j == 2: a.wait_lg(('fu', ks))
                    cc = '0' if ks == 0 else f'v[{acc}:{acc+15}]'
                    a(f'v_mfma_f32_32x32x16_bf16 v[{acc}:{acc+15}], v[{b0+fo}:{b0+fo+3}], a[{8*ks+4*b}:{8*ks+4*b+3}], {cc}')
                    if j == 0 and ks+2 < 28: rdg(ks+2)
                    if j == 2 and ks+2 < 28: rdu(ks+2)
                    if c == 0 and cs and j == 3:
                        a.wait_lg(('fc', ks))
                        reg = CF[ks % 3]
                        cc2 = '0' if ks == 0 else 'v[200:215]'
                        a(f'v_mfma_f32_32x32x16_bf16 v[200:215], v[{reg}:{reg+3}], v[96:99], {cc2}')
                        if ks+2 < 28: rdc(ks+2)
                    if c == 0:
                        if j in (0, 2) and ks + XD < 28: xload(ks+XD, j >> 1)
                        if STU0:
                            if j == 3 and 6 <= ks <= 20 and ks % 2 == 0: side.emit(a)
                            if ks >= 24: vside.emit_budget(a, 5)
                        elif j == 3 and ks >= 12 and ks % 2 == 0: side.emit(a)
                    else:
                        side.emit_budget(a, per_beat[j])
            side.flush(a)
            if vside is not None: vside.flush(a)
        a(f's_and_b32 {sT0}, {sW}, 1'); a(f's_lshl_b32 {sT0}, {sT0}, 6'); a(f'v_xor_b32 v233, {sT0}, {vTR0}')
        a(f's_lshr_b32 {sT0}, {sW}, 1'); a(f's_mul_i32 {sT0}, {sT0}, {L_WU}'); a(f'v_add_u32 v233, {sT0}, v233')
        for i in range(4): a(f'v_mov_b32 v{96+i}, 0x3f803f80')
        if CS1:
            unit(0, misc, None)
        else:
            Lu1 = a.newlabel('Lu1'); Lue = a.newlabel('Lue')
            a(f's_cmp_lg_u32 {sL}, 0'); a(f's_cbranch_scc1 {Lu1}')
            vm0, lg0 = list(a.vm), list(a.lg)
            unit(0, misc, None)
            vmA, lgA = list(a.vm), list(a.lg)
            a(f's_branch {Lue}')
            a.label(Lu1)
            a.vm, a.lg = list(vm0), list(lg0)
            unit(0, Side(mk_misc()), None, cs=False)
            assert a.vm == vmA and a.lg == lgA, (a.vm, vmA, a.lg, lgA)
            a.label(Lue)
        vm_st = None
        s.resid_loads(224, sX1)
        if not IDLEP:
            if not HSC:
                s.pretouch('s88', 32); s.pretouch('s89', 32)
        g.stamp('p3 gemm 0')
        prel = []
        def csw():
            a(f's_lshl_b32 {sT1}, {sW}, 7'); a(f's_add_u32 {sT1}, {sT1}, {M_CSFF}')
            a(f'v_add_u32 v232, {sT1}, {vCS}')
            a('s_mov_b32 exec_lo, 1'); a('s_mov_b32 exec_hi, 1')
            for gq in range(4):
                a.ds(f'ds_write_b128 v232, v[{200+4*gq}:{203+4*gq}] offset:{32*gq}', 'csw')
            a('s_mov_b64 exec, -1')
        if not CS1:
            csw_body = csw
            def csw():
                Lx = a.newlabel('Lx'); a(f's_cmp_lg_u32 {sL}, 0'); a(f's_cbranch_scc1 {Lx}')
                lg = list(a.lg)
                csw_body()
                a('s_waitcnt lgkmcnt(0)')
                a.rawlabel(Lx)
                a('s_waitcnt lgkmcnt(0)')
                a.lg = []
        csw.cost = 6
        KC = (250, 236)
        if STU0:
            prel.append(csw)
        else:
            prel.append(lambda: a.wait_vm('st'))
            prel += s.stats_list(STR[0], NM[0], RS[0], 'v234', 'v235')
            prel.append(csw)
            prel += s.stats_list(STR[1], NM[1], RS[1], 'v234', 'v235')
            for b in range(2):
                K = KC[b]
                prel += [f'v_mul_f32 v234, {RS[b]}, {RS[b]}', f'v_mov_b32 v{K+2}, v{STR[b]+1}',
                         f'v_mul_f32 v{K}, {fbits(C0)}, {RS[b]}', f'v_mul_f32 v234, v234, {RS[b]}', f'v_mul_f32 v{K+1}, {fbits(C1)}, v234']
        def csb():
            a.wait_lg('csw'); a('s_barrier')
            a(f'v_add_u32 v232, {M_CSFF}, {vCS}')
        csb.cost = 2
        prel.append(csb)
        def epi(c, packed):
            L = []
            if c == 0: L += s.cs_read_items(CSG, 128*c, 'cs', 'v232') + s.cs_read_items(CSU, 256+128*c, 'cs', 'v232')
            L.append(lambda: a.wait_lg('cs'))
            for b in range(2):
                L += s.gelu_list(GU[c][0][b], GU[c][1][b], CSG, CSU, NM[b], KC[b], T, PK, packed)
                def st(b=b):
                    a.vmem(f'buffer_store_dwordx4 v[{PK}:{PK+3}], {vL16}, {WS}, s{88+b} offen offset:{2*c*1024} {HSC or STSC}', 'hs')
                    a.vmem(f'buffer_store_dwordx4 v[{PK+4}:{PK+7}], {vL16}, {WS}, s{88+b} offen offset:{(2*c+1)*1024} {HSC or STSC}', 'hs')
                L.append(st)
            return L
        e0 = epi(0, False)
        a(f's_mul_i32 s90, {sW}, {448*896}'); a(f's_lshl_b32 {sT1}, {sCT}, 7'); a(f's_add_u32 s90, s90, {sT1}')
        a(f's_mul_i32 s85, {sW}, {NRA*1024}'); a(f's_add_u32 s85, s85, {RA}')
        a(f's_mul_i32 s91, {sW}, 28672'); a(f's_cmp_ge_u32 {sW}, 2'); a(f's_cselect_b32 {sT0}, 47104, 0'); a(f's_add_u32 s91, s91, {sT0}')
        a(f's_sub_u32 s91, s91, {NRA*1024}')
        extra = []
        for i in range(NRA):
            f = s.wd_item(i); f.cost = 3; extra.append(f)
        if MAINW:
            def wdt(i):
                def f():
                    a(f's_add_u32 {sT0}, s67, {16*i*896}')
                    a('s_mov_b64 exec, ' + ('0xffff' if i < 5 else '0x3ff'))
                    a.vmem(f'buffer_load_dword {vDUM}, v233, {WD}, {sT0} offen', 'tw')
                    a('s_mov_b64 exec, -1')
                f.cost = 2
                return f
            a(f'v_mul_u32_u24 v233, 896, {vLANE}')
            a(f's_mul_i32 {sT0}, {sTQ}, 90'); a(f's_add_u32 {sT0}, {sT0}, 88'); a(f's_mul_i32 {sT0}, {sT0}, 896'); a(f's_add_u32 s67, {sT0}, s90')
            extra += [wdt(i) for i in range(6)]
        step = (len(e0) - 20)//len(extra)
        out = []
        for i, f in enumerate(extra):
            out += e0[i*step:(i+1)*step] + [f]
        e0 = out + e0[len(extra)*step:]
        e0 = prel + e0 + s.cs_read_items(CSG, 128, 'cs', 'v232') + s.cs_read_items(CSU, 256+128, 'cs', 'v232')
        unit(1, Side(e0), (BUD_A, BUD_B, BUD_A, BUD_B))
        g.stamp('p3 gemm 1')
        a('s_barrier')
        NA = NRA + int(os.environ.get('NE1', '12'))
        e1 = epi(1, True)
        run_list(a, e1, Side([s.wd_item(i) for i in range(NRA, NA)]), max(1, len(e1)//(NA-NRA+2)))
        g.stamp('p3 epi 1')
        s.p3_tail(NA)

    def p3t(s):
        a = s.a; g = s.g
        a.c('==== P3')
        a(f'v_add_u32 v12, {L_WU}, {vTR0}'); a(f'v_add_u32 v13, {L_WU}, {vTR1}')
        for b in range(2):
            a(f's_lshl_b32 {sT0}, {sW}, 1'); a(f's_add_u32 {sT0}, {sT0}, {b}')
            a(f's_mul_i32 s{82+b}, {sT0}, 28672'); a(f's_add_u32 s{82+b}, s{82+b}, {sX1}')
            a(f's_mul_i32 s{86+b}, {sT0}, 3584'); a(f's_add_u32 s{86+b}, s{86+b}, {sST1}')
            a(f's_mul_i32 s{88+b}, {sT0}, 114688'); a(f's_add_u32 s{88+b}, s{88+b}, {sH}')
            a(f's_lshl_b32 {sT1}, {sM}, 12'); a(f's_add_u32 s{88+b}, s{88+b}, {sT1}')
        a(f's_and_b32 {sT0}, {sW}, 1'); a(f's_lshl_b32 {sT0}, {sT0}, 6'); a(f'v_xor_b32 v233, {sT0}, {vTR0}')
        a(f's_lshr_b32 {sT0}, {sW}, 1'); a(f's_mul_i32 {sT0}, {sT0}, {L_WU}'); a(f'v_add_u32 v233, {sT0}, v233')
        for i in range(4): a(f'v_mov_b32 v{96+i}, 0x3f803f80')
        g.wait_flags(s.fl(2), 0x0fffffff, vt='v10', va='v11', keep_vm=True)
        g.stamp('p3 hop done')
        def xload(ks, b):
            a(f's_add_u32 {sT6}, s{82+b}, {(ks//4)*4096}')
            a.vmem(f'buffer_load_dwordx4 a[{8*ks+4*b}:{8*ks+4*b+3}], {vL16}, {WS}, {sT6} offen offset:{(ks%4)*1024} {LDSC}', ('x', ks, b))
        XD = int(os.environ.get('XD3', '5'))
        for ks in range(XD): xload(ks, 0)
        GU = (((16, 32), (48, 64)), ((80, 96), (112, 128)))
        FRG = (('v', 144), ('v', 148), ('v', 152), ('v', 156), ('a', 224), ('a', 228), ('a', 232), ('a', 236), ('v', 160), ('v', 164), ('a', 240), ('a', 244))
        NM = ('v10', 'v11'); RS = ('v14', 'v15'); KC = (250, 236)
        CSG = 168; CSU = 184; T = 200; PK = 216
        def kconst(b, src):
            K = KC[b]
            return [f'v_mul_f32 v234, {RS[b]}, {RS[b]}', f'v_mov_b32 v{K+2}, v{src+1}',
                    f'v_mul_f32 v{K}, {fbits(C0)}, {RS[b]}', f'v_mul_f32 v234, v234, {RS[b]}', f'v_mul_f32 v{K+1}, {fbits(C1)}, v234']
        def rd(ks, t):
            c, mat = t >> 1, t & 1
            kind, reg = FRG[4*(ks % 3) + t]
            va = ((vTR0, vTR1), ('v12', 'v13'))[mat][c]
            base = L_WG if mat == 0 else 0
            a.ds(f'ds_read_b64_tr_b16 {kind}[{reg}:{reg+1}], {va} offset:{base+(16*ks)*128}', ('f', ks, t))
            a.ds(f'ds_read_b64_tr_b16 {kind}[{reg+2}:{reg+3}], {va} offset:{base+(16*ks+8)*128}', ('f', ks, t))
        CF = (100, 104, 108)
        def rdc(ks):
            reg = CF[ks % 3]
            a.ds(f'ds_read_b64_tr_b16 v[{reg}:{reg+1}], v233 offset:{(16*ks)*128}', ('fc', ks))
            a.ds(f'ds_read_b64_tr_b16 v[{reg+2}:{reg+3}], v233 offset:{(16*ks+8)*128}', ('fc', ks))
        B_IN_A = [ks for ks in range(28) if ks % 7 not in (3, 6)]
        def pass_(b, side, budget, cs, side_from=0, vm_items=None):
            nb = [0]
            for ks in range(2):
                for t in range(4): rd(ks, t)
                if cs: rdc(ks)
            for ks in range(28):
                if b == 0 and ks == (12 if LATEU else 18):
                    a('s_barrier')
                for j in range(4):
                    if j == 0: a.wait_vm(('x', ks, b))
                    if j in (0, 2): a.wait_lg(('f', ks, j+1))
                    c, mat = j >> 1, j & 1
                    acc = GU[c][mat][b]
                    kind, reg = FRG[4*(ks % 3) + j]
                    cc = '0' if ks == 0 else f'v[{acc}:{acc+15}]'
                    a(f'v_mfma_f32_32x32x16_bf16 v[{acc}:{acc+15}], {kind}[{reg}:{reg+3}], a[{8*ks+4*b}:{8*ks+4*b+3}], {cc}')
                    if ks+2 < 28: rd(ks+2, j)
                    if b == 0:
                        if j == 0 and ks + XD < 28: xload(ks + XD, 0)
                        if j == 2 and ks in B_IN_A: xload(nb[0], 1); nb[0] += 1
                        if j == 3 and vm_items is not None and ks >= 12 and ks % 2 == 0: vm_items.emit(a)
                        if cs and j == 3:
                            a.wait_lg(('fc', ks))
                            r = CF[ks % 3]
                            cc2 = '0' if ks == 0 else 'v[200:215]'
                            a(f'v_mfma_f32_32x32x16_bf16 v[200:215], v[{r}:{r+3}], v[96:99], {cc2}')
                            if ks+2 < 28: rdc(ks+2)
                    else:
                        if j == 2 and ks < 8: xload(20 + ks, 1)
                    if ks >= side_from: side.emit_budget(a, budget[j])
            side.flush(a)
        def sideA():
            return Side([lambda: a.wait_vm('st')] + s.stats_list(168, NM[0], RS[0], 'v234', 'v235') + kconst(0, 168))
        mkst = lambda: Side(s.stats_load_items(168, 's86', 'st', 'v234'))
        Lu1 = a.newlabel('Lu1'); Lue = a.newlabel('Lue')
        a(f's_cmp_lg_u32 {sL}, 0'); a(f's_cbranch_scc1 {Lu1}')
        vm0, lg0 = list(a.vm), list(a.lg)
        pass_(0, sideA(), (4, 4, 4, 4), True, side_from=24, vm_items=mkst())
        vmA, lgA = list(a.vm), list(a.lg)
        a(f's_branch {Lue}')
        a.label(Lu1)
        a.vm, a.lg = list(vm0), list(lg0)
        pass_(0, sideA(), (4, 4, 4, 4), False, side_from=24, vm_items=mkst())
        assert a.vm == vmA and a.lg == lgA, (a.vm, vmA, a.lg, lgA)
        a.label(Lue)
        s.resid_loads(224, sX1)
        g.stamp('p3 gemm 0')
        def csw():
            Lx = a.newlabel('Lx'); a(f's_cmp_lg_u32 {sL}, 0'); a(f's_cbranch_scc1 {Lx}')
            a(f's_lshl_b32 {sT1}, {sW}, 7'); a(f's_add_u32 {sT1}, {sT1}, {M_CSFF}')
            a(f'v_add_u32 v232, {sT1}, {vCS}')
            a('s_mov_b32 exec_lo, 1'); a('s_mov_b32 exec_hi, 1')
            for gq in range(4):
                a(f'ds_write_b128 v232, v[{200+4*gq}:{203+4*gq}] offset:{32*gq}')
            a('s_mov_b64 exec, -1')
            a.rawlabel(Lx)
            a('s_waitcnt lgkmcnt(0)')
            a.lg = []
            a('s_barrier')
            a(f'v_add_u32 v232, {M_CSFF}, {vCS}')
        csw.cost = 6
        csr = lambda c: s.cs_read_items(CSG, 128*c, 'cs', 'v232') + s.cs_read_items(CSU, 256+128*c, 'cs', 'v232')
        def hstore(b, c):
            def st():
                a.vmem(f'buffer_store_dwordx4 v[{PK}:{PK+3}], {vL16}, {WS}, s{88+b} offen offset:{2*c*1024} {HSC or STSC}', 'hs')
                a.vmem(f'buffer_store_dwordx4 v[{PK+4}:{PK+7}], {vL16}, {WS}, s{88+b} offen offset:{(2*c+1)*1024} {HSC or STSC}', 'hs')
            st.cost = 2
            return st
        def epi(b, packed, tail_reads):
            n0 = 16 if packed else 32
            L = [lambda: a.wait_lg('cs')]
            g0 = s.gelu_list(GU[0][0][b], GU[0][1][b], CSG, CSU, NM[b], KC[b], T, PK, packed)
            L += g0[:n0] + csr(1) + g0[n0:] + [hstore(b, 0)]
            mid = []
            if b == 0:
                mid = s.stats_load_items(16, 's87', 'st1', 'v234')
            L += mid + [lambda: a.wait_lg('cs')]
            g1 = s.gelu_list(GU[1][0][b], GU[1][1][b], CSG, CSU, NM[b], KC[b], T, PK, packed)
            L += g1[:n0] + (csr(0) if tail_reads else []) + g1[n0:] + [hstore(b, 1)]
            if b == 0:
                L += [lambda: a.wait_vm('st1')] + s.stats_list(16, NM[1], RS[1], 'v234', 'v235') + kconst(1, 16)
            return L
        e0 = epi(0, False, True)
        a(f's_mul_i32 s90, {sW}, {448*896}'); a(f's_lshl_b32 {sT1}, {sCT}, 7'); a(f's_add_u32 s90, s90, {sT1}')
        a(f's_mul_i32 s85, {sW}, {NRA*1024}'); a(f's_add_u32 s85, s85, {RA}')
        a(f's_mul_i32 s91, {sW}, 28672'); a(f's_cmp_ge_u32 {sW}, 2'); a(f's_cselect_b32 {sT0}, 47104, 0'); a(f's_add_u32 s91, s91, {sT0}')
        a(f's_sub_u32 s91, s91, {NRA*1024}')
        extra = []
        for i in range(NRA):
            f = s.wd_item(i); f.cost = 3; extra.append(f)
        if MAINW:
            def wdt(i):
                def f():
                    a(f's_add_u32 {sT0}, s67, {16*i*896}')
                    a('s_mov_b64 exec, ' + ('0xffff' if i < 5 else '0x3ff'))
                    a.vmem(f'buffer_load_dword {vDUM}, v233, {WD}, {sT0} offen', 'tw')
                    a('s_mov_b64 exec, -1')
                f.cost = 2
                return f
            a(f'v_mul_u32_u24 v233, 896, {vLANE}')
            a(f's_mul_i32 {sT0}, {sTQ}, 90'); a(f's_add_u32 {sT0}, {sT0}, 88'); a(f's_mul_i32 {sT0}, {sT0}, 896'); a(f's_add_u32 s67, {sT0}, s90')
            extra += [wdt(i) for i in range(6)]
        lo = 60
        step = (len(e0) - lo - 50)//len(extra)
        out = e0[:lo]
        for i, f in enumerate(extra):
            out += e0[lo+i*step:lo+(i+1)*step] + [f]
        e0 = out + e0[lo+len(extra)*step:]
        pass_(1, Side([csw] + csr(0) + e0), (int(os.environ.get('BT_A', '4')), int(os.environ.get('BT_B', '5')))*2, False)
        g.stamp('p3 gemm 1')
        a('s_barrier')
        NA = NRA + int(os.environ.get('NE1', '12'))
        e1 = epi(1, True, False)
        run_list(a, e1, Side([s.wd_item(i) for i in range(NRA, NA)]), max(1, len(e1)//(NA-NRA+2)))
        g.stamp('p3 epi 1')
        s.p3_tail(NA)

    def p3_tail(s, NA):
        a = s.a; g = s.g
        g.set_flag(s.fl(3))
        def ringb():
            for i in range(NA, NSLOT): s.wd_item(i, track=False)()
            nb = NSLOT - NA
            a(f's_sub_u32 {sT0}, {sW}, 1'); a(f's_mul_i32 {sT1}, {sT0}, {8*896}'); a(f's_lshl_b32 {sT3}, {sCT}, 7'); a(f's_add_u32 s86, {sT1}, {sT3}')
            a(f's_lshl_b32 s87, {sT0}, 10')
            for n in range((nb+2)//3):
                partial = 3*n + 2 >= nb
                if partial:
                    Lx = a.newlabel('Lx'); a(f's_cmp_gt_u32 {sW}, {nb - 3*n}'); a(f's_cbranch_scc1 {Lx}')
                s.dma_item(WD, vD896, 's86', (NA+3*n)*8*896, 's87', (NA-NRA+3*n)*1024, 'Wb', track=False)()
                if partial: a.label(Lx)
        g.wave_in(1, 4, ringb)
        if G.CPF and G.CPF4: g.wave_only(1, lambda: g.code_prefetch('L_layer', 'L_code_p2b', v='v14'))
        a.vm = []
        g.stamp('p3 done')

    def wd_item(s, blk, track=True):
        slot = blk % NSLOT
        return s.dma_item(WD, vD896, 's90', blk*8*896, 's85' if slot < NRA else 's91', slot*1024, ('W', blk), track=track)

    def p4(s):
        a = s.a; g = s.g
        a.c('==== P4')
        a.rawlabel('L_code_p4')
        a(f's_add_u32 {sT5}, s91, {NRA*1024}')
        s.tile_addrs(sT5)
        a(f's_sub_u32 {sT0}, s85, {sT5}'); a(f'v_add_u32 v12, {sT0}, v14'); a('v_xor_b32 v13, 64, v12')
        for b in range(2):
            a(f's_and_b32 {sT0}, {sW}, 1'); a(f's_xor_b32 {sT0}, {sT0}, {b}'); a(f's_lshl_b32 {sT1}, {sTQ}, 1')
            a(f's_add_u32 {sT0}, {sT0}, {sT1}'); a(f's_mul_i32 {sT0}, {sT0}, 114688'); a(f's_add_u32 {sT0}, {sT0}, {sH}')
            a(f's_mul_i32 {sT1}, {sW}, {28*1024}'); a(f's_add_u32 s{82+b}, {sT0}, {sT1}')
        s.red_addrs(RED4, ((1, 1), (2, 2), (3, 3)))
        s.wait_saved()
        g.wait_flags(s.fl(3), 0x0fffffff, vt='v10', va='v11', keep_vm=True)
        g.stamp('p4 hop done')
        wd = s.wd_item
        def hload(ks, b):
            a(f's_add_u32 {sT6}, s{82+b}, {(ks//4)*4096}')
            a.vmem(f'buffer_load_dwordx4 a[{8*ks+4*b}:{8*ks+4*b+3}], {vL16}, {WS}, {sT6} offen offset:{(ks%4)*1024} {LDSC}', ('h', ks, b))
        HD = int(os.environ.get('HD', '6'))
        for ks in range(HD):
            hload(ks, 0); hload(ks, 1)
        ACC = 16; FS = (80, 88, 104)
        def rd(ks):
            reg = FS[ks % 3]
            a.wait_vm(('W', 2*ks+1))
            for sl in range(2):
                for b in range(2):
                    slot = (2*ks + b) % NSLOT
                    va = ('v12', 'v13')[sl] if slot < NRA else ('v14', 'v15')[sl]
                    off = (slot if slot < NRA else slot - NRA)*1024
                    a.ds(f'ds_read_b64_tr_b16 v[{reg+4*sl+2*b}:{reg+4*sl+2*b+1}], {va} offset:{off}', ('f', ks, sl))
        rd(0); rd(1)
        for ks in range(28):
            b0 = FS[ks % 3]
            if ks == 7:
                a('s_barrier')
            for j, (sa, sb) in enumerate(((0, 0), (0, 1), (1, 0), (1, 1))):
                if j < 2: a.wait_vm(('h', ks, sb))
                if j in (0, 2): a.wait_lg(('f', ks, sa))
                R = ACC + 16*(2*sa+sb)
                c = '0' if ks == 0 else f'v[{R}:{R+15}]'
                a(f'v_mfma_f32_32x32x16_bf16 v[{R}:{R+15}], v[{b0+4*sa}:{b0+4*sa+3}], a[{8*ks+4*sb}:{8*ks+4*sb+3}], {c}')
                if j == 0 and ks+2 < 28: rd(ks+2)
                if j in (0, 2) and ks + HD < 28: hload(ks+HD, j >> 1)
                if j in (1, 3) and ks >= 1 and 2*(ks-1) + NSLOT < 56: wd(2*(ks-1) + NSLOT + (j >> 1))()
        g.stamp('p4 gemm')
        a('s_barrier')
        P3W = ((1, 1), (2, 2), (3, 3))
        Lf = a.newlabel('Lfin'); Le = a.newlabel('Lp4e')
        a(f's_cmp_lg_u32 {sL}, 0'); a(f's_cbranch_scc1 {Lf}')
        side = Side(s.wq_items())
        s.red_write(ACC, RED4, parts=P3W, side=side)
        Lr = s.red_list(ACC, 224)
        n_in = int(os.environ.get('NIN', '8'))
        part = Side([side.q.popleft() for _ in range(n_in)])
        run_list(a, Lr, part, max(1, len(Lr)//(n_in+1)))
        run_list(a, s.store_x_list(ACC, sXO, sSTO))
        g.set_flag(s.fl(4))
        side.flush(a)
        a(f's_branch {Le}')
        a.label(Lf)
        a.vm = []; a.lg = []
        s.red_write(ACC, RED4, parts=P3W)
        Lr_ = s.red_list(ACC, 224)
        if os.environ.get('BIAS'):
            i0 = min(i for i, it in enumerate(Lr_) if isinstance(it, str) and it.startswith('v_cvt_pk'))
            Lr_ = Lr_[:i0] + [f'v_add_f32 v{ACC+r}, {fbits(float(os.environ["BIAS"]))}, v{ACC+r}' for r in range(16)] + Lr_[i0:]
        run_list(a, Lr_ + s.store_out_list(ACC))
        a('s_branch L_fin')
        a.label(Le)
        g.stamp('p4 epi')

    def run(s):
        a = s.a; g = s.g; stop = s.stop
        a.label('L_layer')
        s.layer_setup()
        s.p1()
        s.p2a()
        a(f's_cmp_ge_u32 {sM}, 28'); a('s_cbranch_scc1 L_idle')
        s.p2b()
        (s.p3t if BYTB else s.p3)()
        s.p4()
        a('s_branch L_next')
        a.label('L_idle')
        a.vm = []; a.lg = []
        a(f's_sub_u32 {sT0}, {sM}, 28'); a(f's_lshl_b32 {sT0}, {sT0}, 2'); a(f's_add_u32 s86, {sT0}, {sW}')
        if LATEU:
            a(f's_mul_i32 s87, s86, {392*128}'); a(f's_add_u32 s87, s87, {224*3584}')
            for i in range(7):
                a(f's_add_u32 {sT1}, s87, {i*64*128}')
                if i == 6: a('s_mov_b64 exec, 0xff')
                a(f'buffer_load_dword {vDUM}, {vL128}, {WU}, {sT1} offen')
                if i == 6: a('s_mov_b64 exec, -1')
            a(f's_mul_i32 s87, s86, {224*128}'); a(f's_add_u32 s87, s87, {320*3584}')
            for i in range(4):
                a(f's_add_u32 {sT1}, s87, {i*64*128}')
                if i == 3: a('s_mov_b64 exec, 0xffffffff')
                a(f'buffer_load_dword {vDUM}, {vL128}, {WG}, {sT1} offen')
                if i == 3: a('s_mov_b64 exec, -1')
        if IDLEP and PRET:
            if not HSC:
                a(f's_mul_i32 s87, s86, {448*128}'); a(f's_add_u32 s87, s87, {sH}')
                for i in range(7):
                    a(f's_add_u32 {sT1}, s87, {i*64*128}')
                    a(f'buffer_load_dword {vDUM}, {vL128}, {WS}, {sT1} offen')
        if IDLEW:
            a(f's_mul_i32 s87, s86, {784*128}')
            for i in range(13):
                a(f's_add_u32 {sT1}, s87, {i*64*128}')
                a(f'buffer_load_dword {vDUM}, {vL128}, {WD}, {sT1} offen')
        Li0 = a.newlabel('Lidle0')
        a(f's_cmp_eq_u32 {sL}, 0'); a(f's_cbranch_scc1 {Li0}')
        if OUTP:
            a(f's_mul_i32 s87, {sG}, {256*896}'); a(f's_mul_i32 {sT1}, s86, {112*128}'); a(f's_add_u32 s87, s87, {sT1}')
            for i in range(2):
                a(f's_add_u32 {sT1}, s87, {i*64*128}')
                if i == 1: a('s_mov_b32 exec_hi, 0xffff')
                a(f'buffer_load_dword {vDUM}, {vL128}, {OUT}, {sT1} offen')
                if i == 1: a('s_mov_b64 exec, -1')
        if WBL:
            g.wait_flags(s.fl(3), 0x0fffffff, vt='v10', va='v11', drain=True)
            def wb():
                Lx = a.newlabel('Lx'); a(f's_cmp_lg_u32 {sM}, 28'); a(f's_cbranch_scc1 {Lx}')
                a('buffer_wbl2 sc1'); a('s_waitcnt vmcnt(0)')
                a.label(Lx)
            g.wave_only(0, wb)
        a('s_branch L_fin')
        a.label(Li0)
        if IDLEP and PRET:
            a(f's_mul_i32 s87, s86, {112*128}'); a(f's_add_u32 s87, s87, {sXO}')
            for i in range(2):
                a(f's_add_u32 {sT1}, s87, {i*64*128}')
                if i == 1: a('s_mov_b32 exec_hi, 0xffff')
                a(f'buffer_load_dword {vDUM}, {vL128}, {WS}, {sT1} offen')
                if i == 1: a('s_mov_b64 exec, -1')
            a(f's_mul_i32 s87, s86, {14*128}'); a(f's_add_u32 s87, s87, {sSTO}')
            a('s_mov_b64 exec, 0x3fff')
            a(f'buffer_load_dword {vDUM}, {vL128}, {WS}, s87 offen')
            a('s_mov_b64 exec, -1')
        s.wait_saved(all_heads=True)
        a('s_waitcnt vmcnt(0)'); a('s_barrier')
        for it in s.wq_items(): it()
        if IDLEQ:
            g.wait_flags(s.fl(3), 0x0fffffff, vt='v10', va='v11', drain=True)
            a(f's_mul_i32 s87, s86, {672*128}'); a(f's_add_u32 s87, s87, {G0 + WQ}')
            for i in range(11):
                a(f's_add_u32 {sT1}, s87, {i*64*128}')
                a(f'buffer_load_dword {vDUM}, {vL128}, {WS}, {sT1} offen')
        a.label('L_next')
        a.vm = []; a.lg = []
        a(f's_mul_i32 {sT0}, {sHALF}, 14'); a(f's_lshl_b32 s81, 0x3fff, {sT0}')
        g.wait_flags(s.fl(4), 's81', vt='v10', va='v11', drain=True)
        g.stamp('p4 hop(x2)')
        a(f's_mov_b32 {sL}, 1')
        a('s_branch L_layer')
```

```python
import sys
from asmlib import Asm
from layout import *

NAME = 'interleave_layers__linear_kernel_hedgehog__geglu_ffn__prompt_kernel'

WS='s[4:7]'; WO='s[8:11]'; WG='s[12:15]'; WU='s[16:19]'; WD='s[20:23]'; OUT='s[24:27]'; DBG='s[28:31]'
AX='s[32:35]'; WQKV='s[36:39]'; WPHI='s[40:43]'
sG='s44'; sM='s45'; sW='s46'; sL='s47'; sHEAVY='s48'; sGB='s49'; sTO='s50'
sXIN='s51'; sSTIN='s52'; sX1='s53'; sST1='s54'; sXO='s55'; sSTO='s56'; sO='s57'; sH='s58'; sKV='s59'; sKVC='s60'; sFL='s61'
sXCC='s62'; sHEAD='s63'; sHALF='s64'; sTQ='s65'; sCT='s66'
sUP='s[96:97]'
sT0='s68'; sT1='s69'; sT2='s70'; sT3='s71'; sT4='s72'; sT5='s73'; sT6='s74'; sT7='s75'
sP0='s[76:77]'; sP1='s[78:79]'
vLANE='v0'; vL16='v1'; vTR64='v2'; vTR0='v3'; vTR1='v4'; vD896='v5'; vD3584='v6'; vSTA='v7'; vCS='v8'; vSTAMP='v9'
LDS_TOTAL = 163840
MISC = LDS_TOTAL - 2048
M_MODE = MISC
M_CSQKV = MISC + 128
M_CSFF  = MISC + 512
L_WK=0; L_WV=28672; L_WQ=57344
L_PHI=86016; L_VI=102400; L_KVF=110592
LOG2E = 1.4426950408889634
import os
STSC = os.environ.get('STSC','')
STSC0 = os.environ.get('STSC0','sc1')
CPF = int(os.environ.get('CPF','2'))
CPF4 = int(os.environ.get('CPF4','1'))
WARM = int(os.environ.get('WARM','1'))
TIMEOUT = 100000
PRIO = int(os.environ.get('PRIO','0'))
TOUCH0 = int(os.environ.get('TOUCH0','1'))

def fbits(x):
    import struct
    return '0x%08x' % struct.unpack('<I', struct.pack('<f', x))[0]

class Gen:
    def __init__(s, stop_after=None, stamps=False, force_heavy=False):
        s.a = Asm(); s.stop_after = stop_after; s.stamps = stamps; s.force_heavy = force_heavy
        s.nstamp = 0
        s.stamp_names = []

    def stamp(s, name):
        if not s.stamps: return
        if os.environ.get('STAMPMIN') and name != 'start': return
        a = s.a
        i = s.nstamp; s.nstamp += 1; s.stamp_names.append(name)
        a('s_waitcnt lgkmcnt(0)'); a.lg = []
        a('s_memrealtime s[94:95]' if os.environ.get('RT') else 's_memtime s[94:95]')
        a('s_waitcnt lgkmcnt(0)')
        a(f's_lshl_b32 s95, {sL}, 5')
        a(f's_add_u32 s95, s95, {i}')
        a('s_mov_b32 s93, m0')
        a('s_mov_b32 m0, s95')
        a(f'v_writelane_b32 {vSTAMP}, s94, m0')
        a('s_mov_b32 m0, s93')

    def wave_only(s, w, fn):
        a = s.a
        L = a.newlabel('Lw')
        a(f's_cmp_lg_u32 {sW}, {w}')
        a(f's_cbranch_scc1 {L}')
        fn()
        a.label(L)

    def wave_in(s, lo, hi, fn):
        a = s.a
        L = a.newlabel('Lw')
        if lo > 0:
            a(f's_cmp_lt_u32 {sW}, {lo}'); a(f's_cbranch_scc1 {L}')
        if hi < 4:
            a(f's_cmp_ge_u32 {sW}, {hi}'); a(f's_cbranch_scc1 {L}')
        fn()
        a.label(L)

    def poll(s, srd, voff, soff, expect, mask=None, sc='sc1', vt='v10'):
        a = s.a
        Lp = a.newlabel('Lpoll'); Ld = a.newlabel('Ldone'); Lt = a.newlabel('Lto')
        a(f's_cmp_lg_u32 {sTO}, 0'); a(f's_cbranch_scc1 {Ld}')
        a(f's_mov_b32 {sT7}, 0')
        a.label(Lp)
        if voff is None:
            a(f'buffer_load_dword {vt}, off, {srd}, {soff} {sc}')
        else:
            a(f'buffer_load_dword {vt}, {voff}, {srd}, {soff} offen {sc}')
        a('s_waitcnt vmcnt(0)')
        a(f'v_cmp_ne_u32 vcc, {expect}, {vt}')
        a(f's_add_u32 {sT7}, {sT7}, 1')
        if mask is not None:
            a(f's_and_b64 vcc, vcc, {mask}')
        a('s_cmp_eq_u64 vcc, 0')
        a(f's_cbranch_scc1 {Ld}')
        a(f's_cmp_lt_u32 {sT7}, {TIMEOUT}')
        a(f's_cbranch_scc1 {Lp}')
        a(f's_mov_b32 {sTO}, 1')
        a.label(Ld)

    def set_flag(s, phase_off):
        a = s.a
        a.wait_all()
        a('s_barrier')
        def w0():
            Lh = a.newlabel('Lh'); Le = a.newlabel('Le')
            a(f's_lshl_b32 {sT0}, {sM}, 2')
            a(f's_add_u32 {sT0}, {sT0}, {phase_off}')
            a('v_mov_b32 v10, 1')
            a('s_mov_b64 exec, 1')
            a(f's_cmp_lg_u32 {sHEAVY}, 0'); a(f's_cbranch_scc1 {Lh}')
            a(f'buffer_store_dword v10, off, {WS}, {sT0}')
            a(f's_branch {Le}')
            a.label(Lh)
            a('buffer_wbl2 sc1')
            a('s_waitcnt vmcnt(0)')
            a(f'buffer_store_dword v10, off, {WS}, {sT0} sc1')
            a.label(Le)
            a('s_mov_b64 exec, -1')
        s.wave_only(0, w0)

    def wait_flags(s, phase_off, mask_lo, vt='v10', va='v11', keep_vm=False, drain=False):
        a = s.a
        vm = list(a.vm)
        def w0():
            if PRIO: a('s_setprio 3')
            a(f's_mov_b32 s76, {mask_lo}'); a('s_mov_b32 s77, 0')
            a(f'v_and_b32 {va}, 31, {vLANE}'); a(f'v_lshlrev_b32 {va}, 2, {va}')
            s.poll(WS, va, phase_off, 1, mask=sP0, vt=vt)
            if PRIO: a('s_setprio 0')
            Le = a.newlabel('Le')
            a(f's_cmp_eq_u32 {sHEAVY}, 0'); a(f's_cbranch_scc1 {Le}')
            a('buffer_inv sc1'); a('s_waitcnt vmcnt(0)')
            a.label(Le)
        s.wave_only(0, w0)
        if drain:
            a.wait_vm0()
        else:
            a.vm = vm
        a('s_barrier')

    def lane_consts(s):
        a = s.a
        a(f'v_lshlrev_b32 {vL16}, 4, {vLANE}')
        a(f'v_lshrrev_b32 v10, 5, {vLANE}')
        a(f'v_and_b32 v11, 15, {vLANE}')
        a('v_lshrrev_b32 v12, 2, v11')
        a(f'v_bfe_u32 v13, {vLANE}, 4, 1')
        a('v_and_b32 v14, 3, v11')
        a('v_lshl_add_u32 v15, v10, 2, v12')
        a('v_lshlrev_b32 v16, 5, v13'); a('v_lshl_add_u32 v16, v14, 3, v16')
        a(f'v_lshl_add_u32 {vTR64}, v15, 6, v16')
        a('v_lshl_add_u32 v17, v15, 7, v16')
        a('v_lshrrev_b32 v18, 1, v12')
        a(f'v_lshl_add_u32 {vTR0}, v18, 6, v17')
        a('v_xor_b32 v18, 1, v18')
        a(f'v_lshl_add_u32 {vTR1}, v18, 6, v17')
        a(f'v_lshrrev_b32 v19, 3, {vLANE}')
        a(f'v_and_b32 v20, 7, {vLANE}')
        a('v_lshlrev_b32 v21, 2, v13')
        a('v_xor_b32 v20, v20, v21'); a('v_lshlrev_b32 v20, 4, v20')
        a(f'v_mul_u32_u24 {vD896}, 896, v19'); a(f'v_add_u32 {vD896}, {vD896}, v20')
        a(f'v_mul_u32_u24 {vD3584}, 3584, v19'); a(f'v_add_u32 {vD3584}, {vD3584}, v20')
        a(f'v_and_b32 v22, 31, {vLANE}'); a('v_lshlrev_b32 v22, 4, v22')
        a(f'v_lshl_add_u32 {vSTA}, v10, 11, v22')
        a(f'v_lshlrev_b32 {vCS}, 4, v10')

    def prologue(s):
        a = s.a
        a('s_cmp_ge_u32 s2, 256'); a('s_cbranch_scc1 L_end')
        if s.stamps and os.environ.get('T0'): a('s_memrealtime s[90:91]')
        a('s_load_dwordx4 s[32:35], s[0:1], 0')
        a('s_load_dwordx2 s[40:41], s[0:1], 16')
        a('s_load_dwordx2 s[8:9], s[0:1], 24')
        a('s_load_dwordx2 s[12:13], s[0:1], 40')
        a('s_load_dwordx2 s[16:17], s[0:1], 48')
        a('s_load_dwordx2 s[20:21], s[0:1], 56')
        a('s_load_dwordx2 s[24:25], s[0:1], 64')
        a('s_load_dwordx2 s[28:29], s[0:1], 72')
        a('s_load_dwordx2 s[4:5], s[0:1], 80')
        a(f's_getreg_b32 {sXCC}, hwreg(HW_REG_XCC_ID, 0, 4)')
        a(f's_and_b32 {sG}, s2, 7'); a(f's_lshr_b32 {sM}, s2, 3')
        a('v_lshrrev_b32 v10, 6, v0')
        a(f'v_and_b32 {vLANE}, 63, v0')
        a(f'v_readfirstlane_b32 {sW}, v10')
        a(f's_mov_b32 {sL}, 0'); a(f's_mov_b32 {sHEAVY}, 0'); a(f's_mov_b32 {sTO}, 0')
        a(f's_mul_i32 {sGB}, {sG}, {GS}'); a(f's_add_u32 {sGB}, {sGB}, {G0}')
        a(f's_and_b32 {sHEAD}, {sM}, 15'); a(f's_lshr_b32 {sHALF}, {sM}, 4')
        a(f's_mul_i32 {sTQ}, {sM}, 37'); a(f's_lshr_b32 {sTQ}, {sTQ}, 8')
        a(f's_mul_i32 {sT0}, {sTQ}, 7'); a(f's_sub_u32 {sCT}, {sM}, {sT0}')
        a('s_mov_b32 s96, 0'); a('s_mov_b32 s97, -1')
        a('s_getpc_b64 s[98:99]')
        a.rawlabel('L_pc')
        a(f's_sub_u32 s98, s98, L_pc-{NAME}'); a('s_subb_u32 s99, s99, 0')
        if CPF == 2: s.wave_only(3, lambda: s.code_prefetch(NAME, 'L_code_p2b'))
        if s.stamps: a(f'v_mov_b32 {vSTAMP}, 0')
        for (b, n) in ((6, WS_BYTES), (10, D*D*2), (14, D*F*2), (18, D*F*2), (22, F*D*2), (26, S*D*2), (30, 256), (42, NH*DH*DH*2)):
            a(f's_mov_b32 s{b}, {n}'); a(f's_mov_b32 s{b+1}, 0x20000')
        a('s_waitcnt lgkmcnt(0)')
        a('s_mov_b32 s36, s34'); a('s_mov_b32 s37, s35')
        a(f's_mov_b32 s34, {S*D*2}'); a('s_mov_b32 s35, 0x20000')
        a(f's_mov_b32 s38, {D*3*D*2}'); a('s_mov_b32 s39, 0x20000')
        s.stamp('start')
        if s.stamps:
            a('s_memrealtime s[100:101]'); a('s_waitcnt lgkmcnt(0)')
            if os.environ.get('T0'):
                a('s_sub_u32 s90, s100, s90'); a(f'v_writelane_b32 {vSTAMP}, s90, 59')

    def p0(s):
        a = s.a
        a.c('==== P0')
        XS = 47104; XSW = 28672
        from phases import Phases
        s.P = Phases(s)
        def w0():
            a(f's_lshl_b32 {sFL}, {sG}, 11')
            if FLAGS: a(f's_add_u32 {sFL}, {sFL}, {FLAGS}')
            a(f'v_lshlrev_b32 v11, 7, {vLANE}')
            a('v_mov_b32 v12, 0'); a('v_mov_b32 v13, 0'); a('v_mov_b32 v14, 0'); a('v_mov_b32 v15, 0')
            a('s_mov_b64 exec, 0xffff')
            a(f'buffer_load_dword v254, v11, {WS}, {sFL} offen')
            a(f's_lshl_b32 {sT0}, {sM}, 2'); a(f's_add_u32 {sT0}, {sT0}, {sFL}')
            a(f'buffer_store_dword v12, v11, {WS}, {sT0} offen')
            a('s_mov_b64 exec, -1')
            a(f'v_lshlrev_b32 v16, 4, {vLANE}')
            a(f's_lshl_b32 {sT0}, s2, 10'); a(f's_add_u32 {sT0}, {sT0}, {KV}')
            a(f'buffer_store_dwordx4 v[12:15], v16, {WS}, {sT0} offen sc1')
            L = a.newlabel('Lz')
            a('s_cmp_ge_u32 s2, 32'); a(f's_cbranch_scc1 {L}')
            a(f's_lshl_b32 {sT0}, s2, 7'); a(f's_add_u32 {sT0}, {sT0}, {KVC}')
            a('s_mov_b64 exec, 1')
            a(f'buffer_store_dword v12, off, {WS}, {sT0} sc1')
            a('s_mov_b64 exec, -1')
            a.label(L)
        s.wave_only(0, w0)
        if TOUCH0:
            def xt():
                a(f'v_lshlrev_b32 v30, 7, {vLANE}')
                a(f's_lshl_b32 {sT0}, {sG}, 8'); a(f's_lshl_b32 {sT1}, {sM}, 3'); a(f's_add_u32 {sT0}, {sT0}, {sT1}'); a(f's_mul_i32 {sT0}, {sT0}, 896')
                a('s_mov_b32 exec_hi, 0xffffff')
                a(f'buffer_load_dword v254, v30, {AX}, {sT0} offen')
                a('s_mov_b64 exec, -1')
            s.wave_only(2, xt)
            def wt():
                a(f's_mul_i32 {sT0}, {sM}, {14*2688}'); a(f's_add_u32 {sT0}, {sT0}, 896')
                for n in range(4):
                    a(f'v_add_u32 v31, {64*n}, {vLANE}')
                    a('v_mul_u32_u24 v32, 4682, v31'); a('v_lshrrev_b32 v32, 16, v32')
                    a('v_mul_u32_u24 v33, 14, v32'); a('v_sub_u32 v33, v31, v33')
                    a('v_mul_u32_u24 v32, 2688, v32'); a('v_lshl_add_u32 v32, v33, 7, v32')
                    if n == 3: a('s_mov_b64 exec, 0xf')
                    a(f'buffer_load_dword v254, v32, {WQKV}, {sT0} offen')
                    if n == 3: a('s_mov_b64 exec, -1')
            if TOUCH0 == 2: s.wave_only(1, wt)
        a(f'v_lshrrev_b32 v10, 3, {vLANE}'); a('v_mul_u32_u24 v10, 896, v10')
        a(f'v_and_b32 v11, 7, {vLANE}'); a(f'v_lshrrev_b32 v12, 4, {vLANE}'); a('v_xor_b32 v11, v11, v12')
        a('v_lshl_add_u32 v40, v11, 4, v10'); a('v_xor_b32 v41, 64, v40')
        a(f's_lshl_b32 {sT0}, {sG}, 8'); a(f's_lshl_b32 {sT1}, {sHALF}, 7'); a(f's_add_u32 {sT0}, {sT0}, {sT1}')
        a(f's_lshl_b32 {sT1}, {sW}, 5'); a(f's_add_u32 {sT0}, {sT0}, {sT1}'); a(f's_mul_i32 s82, {sT0}, 896')
        a(f's_mul_i32 s83, {sW}, {XSW}'); a(f's_add_u32 s83, s83, {XS}')
        for L in range(7):
            for rb in range(4):
                a(f's_add_u32 m0, s83, {L*4096 + rb*1024}')
                a(f's_add_u32 {sT2}, s82, {rb*8*896 + L*128}')
                a.vmem(f'buffer_load_dwordx4 v{40 + (rb & 1)}, {AX}, {sT2} offen lds', 'x')
        s.stamp('p0 x issued')
        def reg():
            a(f's_mul_i32 {sT1}, {sXCC}, {sXCC}'); a(f's_lshl_b32 {sT1}, {sT1}, 10'); a(f's_add_u32 {sT1}, {sT1}, {sXCC}')
            a(f's_add_u32 {sT1}, {sT1}, {1<<26}')
            a(f'v_mov_b32 v10, {sT1}')
            a(f's_lshl_b32 {sT2}, {sG}, 5')
            a('s_waitcnt vmcnt(28)')
            a('s_mov_b64 exec, 1')
            a(f'buffer_atomic_add v10, off, {DBG}, {sT2} sc1')
            a('s_mov_b64 exec, -1')
        s.wave_only(0, reg)
        if CPF == 1: s.wave_only(3, lambda: s.code_prefetch(NAME, 'L_code_p2b'))
        a(f'v_lshrrev_b32 v10, 2, {vLANE}'); a('v_mul_u32_u24 v10, 2688, v10')
        a(f'v_and_b32 v11, 3, {vLANE}'); a('v_lshl_add_u32 v42, v11, 4, v10')
        a(f's_mul_i32 s84, {sHEAD}, 56'); a(f's_mul_i32 {sT0}, {sW}, {16*2688}'); a(f's_add_u32 s84, s84, {sT0}')
        a(f's_lshl_b32 s85, {sW}, 10')
        def wdma(slot, i, tag):
            col = (896, 1792, 0)[slot]
            a(f's_add_u32 m0, s85, {slot*28672 + i*4096}')
            a(f's_add_u32 {sT2}, s84, {col + i*4*16*2688}')
            a.vmem(f'buffer_load_dwordx4 v42, {WQKV}, {sT2} offen lds', tag)
        from phases import Side
        wearly = Side([(lambda i=i: wdma(0, i, 'Wkv')) for i in range(7)] + [(lambda i=i: wdma(1, i, 'Wkv')) for i in range(4)])
        wearly.emit(a, 2)
        s.lane_consts()
        s.P.persistent_addrs()
        a(f'v_and_b32 v10, 31, {vLANE}'); a('v_bfe_u32 v11, v10, 1, 3'); a('v_lshlrev_b32 v11, 4, v11')
        a('v_lshl_add_u32 v11, v10, 7, v11'); a(f'v_lshrrev_b32 v12, 5, {vLANE}'); a('v_lshl_add_u32 v11, v12, 3, v11')
        a('v_add_u32 v11, s83, v11')
        for c in range(8): a(f'v_xor_b32 v{44+c}, {c << 4}, v11')
        a('v_mov_b32 v54, 0'); a('v_mov_b32 v55, 0')
        for r in range(60, 64): a(f'v_mov_b32 v{r}, 0x3f803f80')
        a.wait_vm('x')
        s.stamp('p0 x landed')
        def reads(L):
            for q in range(4):
                ks = 4*L + q
                for b in range(2):
                    a.ds(f'ds_read_b64 a[{4*ks+2*b}:{4*ks+2*b+1}], v{44+2*q+b} offset:{L*4096}', ('xa', L))
            for q in range(4):
                for b in range(2):
                    R = 128 + 16*(L % 3) + 4*q + 2*b
                    a.ds(f'ds_read_b64 v[{R}:{R+1}], v{44+2*q+b} offset:{L*4096}', ('xv', L))
        reads(0)
        for L in range(7):
            if L+1 < 7: reads(L+1)
            a.wait_lg(('xv', L))
            for q in range(4):
                ks = 4*L + q
                c = '0' if ks == 0 else 'v[64:79]'
                a(f'v_mfma_f32_32x32x16_bf16 v[64:79], v[60:63], a[{4*ks}:{4*ks+3}], {c}')
                for i in range(4):
                    R = 128 + 16*(L % 3) + 4*q + i
                    a(f'v_dot2c_f32_bf16 v{54 + (i & 1)}, v{R}, v{R}')
                if q & 1: wearly.emit(a)
        wearly.flush(a)
        a.wait_lg0()
        a('s_barrier')
        s.stamp('p0 x read')
        for i in range(4, 7): wdma(1, i, 'Wkv')
        def wp():
            a(f's_mul_i32 {sT0}, {sHEAD}, 1568'); a(f's_mov_b32 m0, {L_PHI}')
            a(f'buffer_load_dwordx4 {vL16}, {WPHI}, {sT0} offen lds')
            a(f's_add_u32 {sT0}, {sT0}, 1024'); a(f's_mov_b32 m0, {L_PHI + 1024}')
            a(f'buffer_load_dwordx4 {vL16}, {WPHI}, {sT0} offen lds')
        s.wave_only(0, wp)
        for i in range(7): wdma(2, i, 'Wq')
        a('v_add_f32 v54, v54, v55')
        a('v_mov_b32 v55, v54')
        a('v_permlane32_swap_b32 v54, v55')
        a('v_add_f32 v54, v54, v55')
        a(f'v_mul_f32 v234, {fbits(-1.0/448)}, v64'); a(f'v_mul_f32 v54, {fbits(1.0/448)}, v54')
        a('v_fma_f32 v54, -v234, v234, v54'); a('v_max_f32 v54, 0, v54'); a(f'v_add_f32 v54, {fbits(1e-5)}, v54')
        a('v_rsq_f32 v235, v54')
        a.wait_vm('Wkv')
        def wpw(): a('s_waitcnt vmcnt(7)')
        s.wave_only(0, wpw)
        a('s_barrier')
        s.stamp('p1 W landed')
        a(f'v_and_b32 v10, 31, {vLANE}'); a(f'v_lshrrev_b32 v11, 5, {vLANE}')
        a('v_lshrrev_b32 v12, 3, v10'); a('v_sub_u32 v12, v10, v12')
        a('v_lshlrev_b32 v12, 1, v12'); a('v_mul_u32_u24 v13, 224, v11'); a('v_add_u32 v12, v12, v13'); a(f'v_add_u32 v12, {L_PHI}, v12')
        a('v_and_b32 v10, 7, v10')
        for e in range(2):
            for b in range(2):
                for r in range(4):
                    a.ds(f'ds_read_u16 v{96 + 8*e + 4*b + r}, v12 offset:{(16*e+8*b+r)*56}', 'wp')
        def warm():
            a(f'v_lshlrev_b32 v15, 7, {vLANE}')
            a(f's_mul_i32 {sT1}, s2, {49*128}')
            a('s_mov_b32 exec_lo, -1'); a('s_mov_b32 exec_hi, 0x1ffff')
            for srd in (WG, WU, WD):
                a(f'buffer_load_dword v254, v15, {srd}, {sT1} offen')
            a(f's_mul_i32 {sT1}, s2, {13*128}')
            a('s_mov_b64 exec, 0x1fff')
            a(f'buffer_load_dword v254, v15, {WO}, {sT1} offen')
            a('s_mov_b64 exec, -1')
        if WARM: s.wave_only(3, warm)
        a('v_cmp_gt_u32 vcc, 7, v10')
        a.wait_lg0()
        for i in range(8):
            a(f'v_lshl_or_b32 v{96+2*i}, v{97+2*i}, 16, v{96+2*i}')
        for i in range(8):
            a(f'v_cndmask_b32 v{96+2*i}, 0, v{96+2*i}, vcc')
        for i in (6, 7):
            a(f'v_cndmask_b32 v{96+2*i}, v{96+2*i}, 0, {sUP}')
        for i in range(8):
            a(f'v_accvgpr_write_b32 a{248+i}, v{96+2*i}')
        a.vm = []; a.lg = []
        s.stamp('p0 done')

    def code_prefetch(s, l0, l1, v='v10', vd='v255'):
        a = s.a
        a(f's_mul_i32 {sT0}, {sM}, ((({l1}-{l0})+4095)/4096)*128')
        a(f's_add_u32 {sT0}, {sT0}, {l0}-{NAME}')
        a(f'v_lshlrev_b32 {v}, 7, {vLANE}'); a(f'v_add_u32 {v}, {sT0}, {v}')
        a(f'v_min_u32 {v}, CODE_BYTES-4, {v}')
        a(f's_mov_b32 exec_lo, (1<<((({l1}-{l0})+4095)/4096))-1'); a('s_mov_b32 exec_hi, 0')
        a(f'global_load_dword {vd}, {v}, s[98:99]')
        a('s_mov_b64 exec, -1')

    def registration_check(s):
        a = s.a
        Lp = a.newlabel('Lreg'); Ld = a.newlabel('Lregd'); Lc = a.newlabel('Lregc')
        a(f's_mov_b32 {sT7}, 0')
        a(f's_branch {Lc}')
        a.label(Lp)
        a(f'buffer_load_dword v232, v233, {DBG}, 0 offen sc1')
        a.label(Lc)
        a('s_waitcnt vmcnt(0)')
        a('v_lshrrev_b32 v13, 26, v232')
        a('v_cmp_ne_u32 vcc, 32, v13')
        a(f's_add_u32 {sT7}, {sT7}, 1')
        a('s_cmp_eq_u64 vcc, 0'); a(f's_cbranch_scc1 {Ld}')
        a(f's_cmp_lt_u32 {sT7}, {TIMEOUT}'); a(f's_cbranch_scc1 {Lp}')
        a(f's_mov_b32 {sTO}, 1')
        a.label(Ld)
        def w0():
            a(f'v_readlane_b32 {sT3}, v232, {sG}')
            a(f's_mul_i32 {sT1}, {sXCC}, {sXCC}'); a(f's_lshl_b32 {sT1}, {sT1}, 10'); a(f's_add_u32 {sT1}, {sT1}, {sXCC}')
            a(f's_lshl_b32 {sT1}, {sT1}, 5')
            a(f's_and_b32 {sT3}, {sT3}, {(1<<26)-1}')
            a(f's_cmp_lg_u32 {sT3}, {sT1}'); a(f's_cselect_b32 {sHEAVY}, 1, 0')
            if s.force_heavy: a(f's_mov_b32 {sHEAVY}, 1')
            Le = a.newlabel('Le')
            a(f's_cmp_eq_u32 {sHEAVY}, 0'); a(f's_cbranch_scc1 {Le}')
            a(f's_lshl_b32 {sT0}, {sG}, 11')
            if FLAGS: a(f's_add_u32 {sT0}, {sT0}, {FLAGS}')
            a(f's_lshl_b32 {sT1}, {sM}, 2'); a(f's_add_u32 {sT0}, {sT0}, {sT1}')
            a('v_mov_b32 v14, 0'); a(f'v_lshlrev_b32 v13, 7, {vLANE}')
            a('s_mov_b64 exec, 0xffff')
            a(f'buffer_store_dword v14, v13, {WS}, {sT0} offen sc1')
            a('s_waitcnt vmcnt(0)')
            a('s_mov_b64 exec, 1')
            a('v_mov_b32 v14, 1')
            a(f's_lshl_b32 {sT1}, {sG}, 5'); a(f's_add_u32 {sT1}, {sT1}, 8')
            a(f'buffer_atomic_add v14, off, {DBG}, {sT1} sc1')
            a('s_mov_b64 exec, -1')
            s.poll(DBG, None, sT1, 32, vt='v14')
            a.label(Le)
        s.wave_only(0, w0)

    def wphi_loads(s, track=False):
        a = s.a
        a(f'v_and_b32 v10, 31, {vLANE}'); a(f'v_lshrrev_b32 v11, 5, {vLANE}')
        a('v_lshlrev_b32 v12, 1, v10'); a('v_mul_u32_u24 v13, 224, v11'); a('v_add_u32 v12, v12, v13')
        a(f's_mul_i32 {sT5}, {sHEAD}, 1568')
        a('v_mov_b32 v14, 0x40000000')
        a('v_cmp_gt_u32 vcc, 28, v10')
        a('v_cndmask_b32 v12, v14, v12, vcc')
        a(f'v_cndmask_b32 v13, v12, v14, {sUP}')
        for e in range(2):
            for b in range(2):
                for r in range(4):
                    reg = 96 + 8*e + 4*b + r
                    va = 'v13' if (e == 1 and b == 1) else 'v12'
                    t = f'buffer_load_ushort v{reg}, {va}, {WPHI}, {sT5} offen offset:{(16*e+8*b+r)*56}'
                    if track: a.vmem(t, 'wphi')
                    else: a(t)

    def finish(s):
        a = s.a
        a.label('L_fin')
        if s.stamps:
            a('s_waitcnt vmcnt(0)')
            a('s_memrealtime s[94:95]'); a('s_waitcnt lgkmcnt(0)')
            a(f'v_writelane_b32 {vSTAMP}, s100, 61')
            a(f'v_writelane_b32 {vSTAMP}, s94, 60')
            a('s_sub_u32 s100, s94, s100')
            a(f'v_writelane_b32 {vSTAMP}, s100, 63')
            a('s_memtime s[94:95]'); a('s_waitcnt lgkmcnt(0)')
            a(f'v_writelane_b32 {vSTAMP}, s94, 62')
            def w0():
                a(f's_lshl_b32 {sT0}, s2, 8'); a(f's_add_u32 {sT0}, {sT0}, {STAMP}')
                a(f'v_lshlrev_b32 v10, 2, {vLANE}')
                a(f'buffer_store_dword {vSTAMP}, v10, {WS}, {sT0} offen')
            s.wave_only(int(os.environ.get('STAMPW','0')), w0)
            if os.environ.get('DBGOUT'):
                def wd():
                    L = a.newlabel('Ld'); a('s_cmp_lg_u32 s2, 0'); a(f's_cbranch_scc1 {L}')
                    idx = [int(x) for x in os.environ['DBGOUT'].split(',')]
                    a(f'v_readlane_b32 s93, {vSTAMP}, 0')
                    slots = [3,4,5,6,7,9,10,11,12,13,14,15]
                    for sl, i in zip(slots, idx):
                        a(f'v_readlane_b32 s94, {vSTAMP}, {i}')
                        if i != 63: a('s_sub_u32 s94, s94, s93')
                        a('v_mov_b32 v10, s94'); a('s_mov_b64 exec, 1'); a(f's_mov_b32 s95, {sl*4}')
                        a(f'buffer_store_dword v10, off, {DBG}, s95'); a('s_mov_b64 exec, -1'); a('s_nop 1')
                    a.label(L)
                s.wave_only(0, wd)
        a('s_waitcnt vmcnt(0) lgkmcnt(0)')
        a.label('L_end')
        a('s_endpgm')
        a.label('L_code_end')

    def build(s):
        s.prologue()
        s.p0()
        if s.stop_after != 'p0':
            s.P.run()
        s.finish()
        body = s.a.finalize(True)
        hdr = open('interleave_layers__linear_kernel_hedgehog__geglu_ffn__prompt.s.ref').read().split('\n') if False else None
        head = HEADER
        return head + body + '\n' + f'.set CODE_BYTES, L_code_end-{NAME}\n' + FOOTER

HEADER = f'''; Persistent single-launch kernel: 256 workgroups (one per CU), 8 groups of 32 that share an L2.
; @launch grid=(256,1,1) block=(256,1,1) lds={LDS_TOTAL}
.amdgcn_target "amdgcn-amd-amdhsa--gfx950"
.text
.globl {NAME}
.p2align 8
.type {NAME},@function
{NAME}:
'''
FOOTER = f'''.section .rodata,"a"
.p2align 6
.amdhsa_kernel {NAME}
  .amdhsa_next_free_vgpr 512
  .amdhsa_next_free_sgpr 102
  .amdhsa_accum_offset 256
  .amdhsa_group_segment_fixed_size 0
  .amdhsa_kernarg_size 88
  .amdhsa_user_sgpr_count 2
  .amdhsa_user_sgpr_kernarg_segment_ptr 1
  .amdhsa_system_sgpr_workgroup_id_x 1
.end_amdhsa_kernel
'''

if __name__ == '__main__':
    import argparse
    ap = argparse.ArgumentParser()
    ap.add_argument('-o', default='k.s')
    ap.add_argument('--stop', default=None)
    ap.add_argument('--stamps', action='store_true')
    ap.add_argument('--heavy', action='store_true')
    args = ap.parse_args()
    g = Gen(stop_after=args.stop, stamps=args.stamps, force_heavy=args.heavy)
    txt = g.build()
    open(args.o, 'w').write(txt)
    open(args.o+'.stamps','w').write(','.join(g.stamp_names))
    print('written', args.o, len(txt), 'bytes;', 'stamps:', g.stamp_names)
```
